```python
import torch

def _softmax(x, axis=-1):
    return torch.softmax(x, dim=axis)

def _gelu(x):
    return torch.nn.functional.gelu(x, approximate='tanh')

def _silu(x):
    return torch.nn.functional.silu(x)

def _sigmoid(x):
    return torch.sigmoid(x)

def _layernorm(x, axis=-1, eps=1e-05):
    m = x.mean(dim=axis, keepdim=True)
    v = x.var(dim=axis, keepdim=True, unbiased=False)
    return (x - m) / torch.sqrt(v + eps)

def _scatter_add(tgt, idx, src, axis=0):
    return tgt.clone().index_add_(axis, idx, src)

def _segment_sum(src, seg, n):
    out = torch.zeros((n,) + src.shape[1:], dtype=src.dtype)
    return out.index_add_(0, seg, src)

def _pad(x, pw):
    flat = tuple((v for pair in reversed(pw) for v in pair))
    return torch.nn.functional.pad(x, flat)
kernel_name = 'gather_scatter__tensor_product_equiv_tfn__graph'

def setup_inputs():

    _w = lambda a: (lambda t: t.to(torch.bfloat16) if t.is_floating_point() else t)(torch.as_tensor(a))
    N, deg, C, L, DE = (10000, 32, 128, 1, 4)
    E = N * deg
    M = (L + 1) ** 2
    src = (lambda lo, hi, *s: torch.randint(lo, hi, s))(0, N, E).to(torch.int64)
    dst = (lambda lo, hi, *s: torch.randint(lo, hi, s))(0, N, E).to(torch.int64)
    r = (lambda *s: torch.randn(*s, dtype=torch.bfloat16) * 0.05)(E, 3)
    r = r / (torch.linalg.norm(r, dim=-1, keepdim=True) + 1e-09)
    rx, ry, rz = (r[:, 0].clone(), r[:, 1].clone(), r[:, 2].clone())
    Ys = [torch.ones((E, 1), dtype=float)]
    if L >= 1:
        Ys.append(r.to(float))
    if L >= 2:
        Ys.append(torch.stack([2 * rx * ry, 2 * ry * rz, (3 * rz * rz - 1.0) / (lambda _x: torch.sqrt(torch.as_tensor(_x)))(3.0), 2 * rx * rz, rx * rx - ry * ry], dim=-1).to(float))
    for _l in range(3, L + 1):
        Ys.append(((lambda *s: torch.randn(*s, dtype=torch.bfloat16) * 0.05)(E, 2 * _l + 1) * 0.3).to(float))
    Y = torch.cat(Ys, dim=-1)
    cg = torch.zeros((M, M, M), dtype=float)
    off = [_l * _l for _l in range(L + 2)]
    for l1 in range(L + 1):
        for l2 in range(L + 1):
            for l3 in range(abs(l1 - l2), min(L, l1 + l2) + 1):
                d1, d2, d3 = (2 * l1 + 1, 2 * l2 + 1, 2 * l3 + 1)
                cg[off[l1]:off[l1 + 1], off[l2]:off[l2 + 1], off[l3]:off[l3 + 1]] = (lambda *s: torch.randn(*s, dtype=torch.bfloat16) * 0.05)(d1, d2, d3) / (lambda _x: torch.sqrt(torch.as_tensor(_x)))(float(d1 * d2))
    return {'x': _w((lambda *s: torch.randn(*s, dtype=torch.bfloat16) * 0.05)(N, C, M) * 0.2), 'src': _w(src), 'dst': _w(dst), 'Y': _w(Y), 'edge_feat': _w((lambda *s: torch.randn(*s, dtype=torch.bfloat16) * 0.05)(E, DE)), 'w_rad': _w((lambda *s: torch.randn(*s, dtype=torch.bfloat16) * 0.05)(DE, C) * (1.0 / max(1.0, DE) ** 0.5)), 'cg': _w(cg), 'w_mix': _w((lambda *s: torch.randn(*s, dtype=torch.bfloat16) * 0.05)(C, C) * (1.0 / max(1.0, C) ** 0.5))}

def reference(x, src, dst, Y, edge_feat, w_rad, cg, w_mix):
    N, C, M = (x.shape[0], x.shape[1], x.shape[2])
    R = _silu(edge_feat @ w_rad)
    xs = x[src]
    tp = torch.einsum('eci,ef,ifo->eco', xs, Y, cg)
    msg = R[:, :, None] * tp
    agg = _segment_sum(msg.reshape(-1, C * M), dst, N).reshape(N, C, M)
    return torch.einsum('ncm,cd->ndm', agg, w_mix)
```

```python
import re

TRANS = ("v_exp_", "v_log_", "v_rcp_", "v_rsq_", "v_sqrt_", "v_sin_", "v_cos_")
_reg_re = re.compile(r"^(-|abs\()?\s*([vsa])(?:(\d+)|\[(\d+):(\d+)\])\)?$")

def regs_of(op):
    op = op.strip()
    if op == "vcc": return {("s", "vcc")}
    if op in ("vcc_lo", "vcc_hi"): return {("s", "vcc")}
    if op in ("exec", "exec_lo", "exec_hi"): return {("s", "exec")}
    if op == "m0": return {("s", "m0")}
    m = _reg_re.match(op)
    if not m: return set()
    k = m.group(2)
    if m.group(3) is not None: return {(k, int(m.group(3)))}
    return {(k, i) for i in range(int(m.group(4)), int(m.group(5)) + 1)}

def mfma_passes(mn):
    if "4x4x4" in mn or "4x4x1" in mn or "4x4x2" in mn: return 2
    if "16x16x32" in mn or "16x16x16" in mn: return 4
    if "32x32x16" in mn or "32x32x8" in mn: return 8
    raise ValueError(mn)

class Ins:
    def __init__(self, text):
        self.text = text
        t = text.split(";")[0].strip()
        self.label = None; self.mn = None; self.states = 0
        self.vw = set(); self.vr = set(); self.sw = set(); self.sr = set()
        self.kind = "other"
        if not t: return
        if t.endswith(":"):
            self.label = t[:-1]; return
        if t.startswith("."): return
        parts = t.split(None, 1)
        mn = parts[0]; self.mn = mn
        rest = parts[1] if len(parts) > 1 else ""
        ops = []; depth = 0; cur = ""
        for ch in rest:
            if ch in "[(": depth += 1
            if ch in "])": depth -= 1
            if ch == "," and depth == 0: ops.append(cur); cur = ""
            else: cur += ch
        if cur.strip(): ops.append(cur)
        mods = ""
        if ops:
            last = ops[-1].strip().split(None, 1)
            ops[-1] = last[0]
            if len(last) > 1: mods = last[1]
        ops = [o.strip() for o in ops]
        self.ops = ops; self.mods = mods
        self.states = 1
        R = [regs_of(o) for o in ops]
        def split(s): return {r for r in s if r[0] in "va"}, {r for r in s if r[0] == "s"}
        def rd(s):
            a, b = split(s); self.vr |= a; self.sr |= b
        def wr(s):
            a, b = split(s); self.vw |= a; self.sw |= b
        if mn == "s_nop":
            self.states = int(ops[0], 0) + 1; self.kind = "nop"
        elif mn.startswith("v_mfma"):
            self.kind = "mfma"; self.passes = mfma_passes(mn)
            wr(R[0]); self.D = R[0]; self.A = R[1]; self.B = R[2]; self.C = R[3]
            rd(R[1]); rd(R[2]); rd(R[3])
        elif mn.startswith("v_"):
            self.kind = "valu"
            self.trans = mn.startswith(TRANS)
            self.dpp = ("row_" in mods or "quad_perm" in mods or "_dpp" in mn or "wave_" in mods)
            self.lane = mn.startswith(("v_readlane", "v_readfirstlane", "v_writelane"))
            self.perm = mn.startswith("v_permlane")
            nd = 1
            if re.match(r"v_(add|sub|subrev|addc|subb|subbrev)_co_", mn) or mn.startswith(("v_mad_u64", "v_div_scale")): nd = 2
            for r in R[:nd]: wr(r)
            for r in R[nd:]: rd(r)
            if mn.startswith("v_cmpx"): self.sw.add(("s", "exec"))
            if mn.startswith(("v_fmac", "v_dot2c", "v_writelane")) or self.dpp: rd(R[0])
            if self.perm: rd(R[0]); wr(R[1])
            if mn.startswith("v_cndmask") and len(ops) == 3: self.sr.add(("s", "vcc"))
            self.lanesel = R[2] if mn.startswith(("v_readlane", "v_writelane")) else set()
        elif mn.startswith(("buffer_", "global_", "flat_")):
            self.kind = "vmem"
            load = "_load" in mn and "lds" not in mods and "_lds_" not in mn
            ret_atomic = "atomic" in mn and "sc0" in mods
            if load or (ret_atomic and mn.startswith("global_")):
                wr(R[0]); [rd(r) for r in R[1:]]
            else:
                [rd(r) for r in R]
                if ret_atomic: wr(R[0])
            self.widestore = None
            if "_store_" in mn and ("x3" in mn or "x4" in mn):
                self.widestore = R[0] if mn.startswith("buffer_") else R[1]
        elif mn.startswith("ds_"):
            self.kind = "ds"
            if mn.startswith(("ds_read", "ds_bpermute", "ds_permute", "ds_swizzle")) or "_rtn" in mn:
                wr(R[0]); [rd(r) for r in R[1:]]
            else:
                [rd(r) for r in R]
        else:
            self.kind = "salu"
            if mn.startswith(("s_cmp", "s_cbranch", "s_branch", "s_waitcnt", "s_barrier", "s_endpgm", "s_setprio", "s_sleep", "s_set_gpr_idx", "s_bitcmp")):
                [rd(r) for r in R]
            elif R:
                wr(R[0]); [rd(r) for r in R[1:]]

def need(p, c):
    n = 0
    if p.kind == "valu":
        if c.kind == "valu":
            ov = p.vw & c.vr
            if ov:
                if c.dpp or c.perm: n = max(n, 2)
                if c.lane: n = max(n, 1)
                if p.trans: n = max(n, 1)
            sw = p.sw - {("s", "exec")}
            if sw & c.sr: n = max(n, 2)
            if sw & c.lanesel: n = max(n, 4)
            if ("s", "exec") in p.sw:
                if c.dpp: n = max(n, 5)
                if c.lane or c.perm: n = max(n, 4)
                if ("s", "exec") in c.sr: n = max(n, 2)
        if c.kind == "mfma":
            if p.vw & c.vr: n = max(n, 2)
            if ("s", "exec") in p.sw: n = max(n, 4)
        if c.kind == "vmem" and (p.sw & c.sr): n = max(n, 5)
    if p.kind == "mfma":
        i = {2: 0, 4: 1, 8: 2, 16: 3}[p.passes]
        if c.kind == "mfma":
            if p.D & (c.A | c.B): n = max(n, (5, 8, 12, 20)[i])
            if p.D & c.C:
                if p.D == c.C and p.passes == c.passes: n = max(n, (2, 0, 0, 0)[i])
                else: n = max(n, (4, 6, 10, 18)[i])
            elif p.D & c.D: n = max(n, (4, 6, 10, 18)[i])
        elif c.kind in ("valu", "vmem", "ds"):
            if p.D & (c.vr | c.vw): n = max(n, (5, 8, 12, 20)[i])
            if c.kind == "valu" and (p.C & c.vw): n = max(n, (1, 3, 7, 15)[i])
    if p.kind == "vmem" and p.widestore:
        if p.widestore & c.vw: n = max(n, 2)
    return n

class Asm:
    def __init__(self): self.lines = []
    def __call__(self, s):
        for l in s.split("\n"):
            if l.strip(): self.lines.append(l.strip())
    def text(self, fix=True, verbose=False):
        ins = [Ins(l) for l in self.lines]
        out = []
        W = 24
        nfix = 0
        def check(hist, c):
            worst = 0; d = 0
            for p in reversed(hist):
                if d >= W: break
                if p.mn is None: continue
                n = need(p, c)
                if n > d: worst = max(worst, n - d)
                d += p.states
            return worst
        for c in ins:
            if c.mn is not None:
                k = check(out, c)
                if k:
                    nfix += 1
                    if verbose: print("hazard fix: s_nop %d before: %s" % (k - 1, c.text))
                    out.append(Ins("s_nop %d" % (k - 1)))
            out.append(c)
            if c.mn in ("s_branch", "s_endpgm", "s_setpc_b64"):
                out.append(Ins("s_nop 15")); out[-1].virtual = True
                out.append(Ins("s_nop 15")); out[-1].virtual = True
        labels = {x.label: i for i, x in enumerate(out) if x.label}
        for i, b in enumerate(out):
            if b.mn and b.mn.startswith(("s_cbranch", "s_branch")):
                tgt = labels.get(b.ops[0])
                if tgt is None: continue
                hist = list(out[max(0, i - 40): i + 1])
                d = 0
                for c in out[tgt:]:
                    if c.mn is None: continue
                    if getattr(c, "virtual", False): break
                    k = check(hist, c)
                    if k: raise RuntimeError("hazard across branch %s -> %s (%d short)" % (b.text, c.text, k))
                    hist.append(c); d += c.states
                    if d >= W: break
        res = []
        for x in out:
            if getattr(x, "virtual", False): continue
            res.append(x.text if (x.label or (x.mn is None)) else "    " + x.text)
        self.nfix = nfix
        return "\n".join(res) + "\n"
```

```python
import sys, struct
from asmlib import Asm

N, E = 10000, 320000
NB = 256
CH = 1250
WS_TAB, WS_KEY, WS_PAY, WS_CST, WS_WMF, WS_TS = 0, 0x40000, 0x180000, 0x670000, 0x680000, 0x8000000
def f32(x): return "0x%08x" % struct.unpack("<I", struct.pack("<f", x))[0]
LOG2E = 1.4426950408889634
LN2 = 0.6931471805599453

HEADER = """; Kernarg layout for this problem (88 bytes, ptrs only, base s[0:1]):
"""

def scan_incl(a, op, regs, tmp=None):
    for ctl in ("row_shr:1 row_mask:0xf bank_mask:0xf", "row_shr:2 row_mask:0xf bank_mask:0xf",
                "row_shr:4 row_mask:0xf bank_mask:0xf", "row_shr:8 row_mask:0xf bank_mask:0xf",
                "row_bcast:15 row_mask:0xa bank_mask:0xf", "row_bcast:31 row_mask:0xc bank_mask:0xf"):
        for r in regs:
            a(f"{op}_dpp v{r}, v{r}, v{r} {ctl}")

def desc(name, nv, ns):
    nv8 = (nv + 7) // 8 * 8
    return f""".p2align 6
.amdhsa_kernel {name}
  .amdhsa_next_free_vgpr {nv8}
  .amdhsa_next_free_sgpr {ns}
  .amdhsa_accum_offset {nv8}
  .amdhsa_group_segment_fixed_size 0
  .amdhsa_kernarg_size 88
  .amdhsa_user_sgpr_count 2
  .amdhsa_user_sgpr_kernarg_segment_ptr 1
  .amdhsa_system_sgpr_workgroup_id_x 1
  .amdhsa_float_denorm_mode_32 3
.end_amdhsa_kernel
"""

class TS:
    def __init__(self, a, on, first): self.a, self.on, self.n, self.first = a, on, 0, first
    def stamp(self):
        if self.on:
            r = self.first + 2 * self.n
            self.a(f"s_memrealtime s[{r}:{r+1}]"); self.n += 1
    def dump(self, wsreg, base, sWG, sW, waves):
        if not self.on: return
        a = self.a
        a("s_waitcnt lgkmcnt(0)")
        a(f"s_mul_i32 s98, {sWG}, {waves}\ns_add_u32 s98, s98, {sW}\ns_lshl_b32 s98, s98, 6\ns_add_u32 s98, s98, {base}")
        a("s_mov_b64 exec, 1\nv_mov_b32 v2, s98")
        for i in range(self.n):
            a(f"v_mov_b32 v3, s{self.first + 2*i}\nglobal_store_dword v2, v3, s[{wsreg}:{wsreg+1}] offset:{4*i}")

def gen_k1(a, P):
    L_CNT, L_PRE, L_KEY, L_PAY = 0, 1024, 2048, 7168
    ts = TS(a, P.get("ts"), 60)
    a(".globl part_kernel\n.p2align 8\n.type part_kernel,@function\npart_kernel:")
    a(f"s_cmp_ge_u32 s2, {NB}\ns_cbranch_scc1 K1_END")
    a("s_load_dwordx16 s[4:19], s[0:1], 0\ns_load_dwordx2 s[20:21], s[0:1], 80")
    ts.stamp()
    a("v_lshrrev_b32 v1, 6, v0\nv_lshlrev_b32 v2, 2, v0\nv_mov_b32 v3, 0")
    a("v_readfirstlane_b32 s3, v1")
    a("v_cmp_gt_u32 vcc, 256, v0\ns_and_saveexec_b64 s[22:23], vcc")
    a(f"ds_write_b32 v2, v3 offset:{L_CNT}")
    a("s_mov_b64 exec, s[22:23]")
    a("s_and_b32 s24, s2, 7\ns_lshl_b32 s24, s24, 5\ns_lshr_b32 s25, s2, 3\ns_add_u32 s24, s24, s25")
    a("s_cmp_eq_u32 s3, 10\ns_cbranch_scc1 K1_SIDE")
    a(f"s_mul_i32 s25, s2, {CH*4}")
    a("v_lshlrev_b32 v4, 3, v0\nv_add_u32 v4, s25, v4\nv_lshlrev_b32 v5, 1, v4")
    a("v_cmp_gt_u32 vcc, 625, v0\ns_and_b64 s[26:27], vcc, exec\ns_mov_b64 exec, s[26:27]")
    a("s_waitcnt lgkmcnt(0)")
    a("global_load_dwordx2 v[6:7], v4, s[8:9]")
    a("global_load_dwordx2 v[8:9], v4, s[6:7]")
    a("global_load_dwordx4 v[12:15], v5, s[10:11]")
    a("global_load_dwordx4 v[16:19], v5, s[12:13]")
    a("v_mov_b32 v20, 1")
    a("s_barrier")
    ts.stamp()
    a("s_waitcnt vmcnt(3)")
    ts.stamp()
    for e in range(2):
        a(f"v_mul_u32_u24 v{22+e}, 214749, v{6+e}")
    for e in range(2):
        a(f"v_lshrrev_b32 v{22+e}, 23, v{22+e}")
    for e in range(2):
        a(f"v_lshlrev_b32 v{24+e}, 2, v{22+e}")
        a(f"ds_add_rtn_u32 v{26+e}, v{24+e}, v20 offset:{L_CNT}")
    for e in range(2):
        a(f"v_mul_u32_u24 v{28+e}, 625, v{22+e}")
        a(f"v_add_u32 v{28+e}, 15, v{28+e}")
        a(f"v_lshrrev_b32 v{28+e}, 4, v{28+e}")
        a(f"v_sub_u32 v{28+e}, v{6+e}, v{28+e}")
        a(f"v_mul_u32_u24 v{30+e}, 52, v{28+e}")
        a(f"v_lshrrev_b32 v{30+e}, 8, v{30+e}")
        a(f"v_mul_u32_u24 v{32+e}, 5, v{30+e}")
        a(f"v_sub_u32 v{32+e}, v{28+e}, v{32+e}")
        a(f"v_lshlrev_b32 v{30+e}, 4, v{30+e}")
        a(f"v_lshl_or_b32 v{30+e}, v{32+e}, 7, v{30+e}")
    a("s_waitcnt vmcnt(2)")
    for e in range(2):
        a(f"v_mul_u32_u24 v{32+e}, 1677, v{8+e}")
        a(f"v_lshrrev_b32 v{32+e}, 20, v{32+e}")
        a(f"v_lshl_or_b32 v{30+e}, v{8+e}, 10, v{30+e}")
        a(f"v_or_b32 v{30+e}, v{30+e}, v{32+e}")
    a("s_mov_b64 exec, -1")
    a("v_and_b32 v1, 63, v0\nv_lshlrev_b32 v2, 4, v1")
    a("s_waitcnt lgkmcnt(0)\ns_barrier")
    ts.stamp()
    a(f"ds_read_b128 v[36:39], v2 offset:{L_CNT}")
    a("s_waitcnt lgkmcnt(0)")
    a("v_add_u32 v41, v36, v37\nv_add_u32 v42, v41, v38\nv_add_u32 v43, v42, v39\nv_mov_b32 v44, v43")
    scan_incl(a, "v_add_u32", [44])
    a("v_sub_u32 v44, v44, v43")
    a("v_add_u32 v45, v44, v36\nv_add_u32 v46, v44, v41\nv_add_u32 v47, v44, v42")
    a(f"ds_write_b128 v2, v[44:47] offset:{L_PRE}")
    a("s_mov_b64 exec, s[26:27]")
    for e in range(2): a(f"ds_read_b32 v{34+e}, v{24+e} offset:{L_PRE}")
    a("s_mov_b64 exec, -1")
    a("s_cmp_ge_u32 s3, 4\ns_cbranch_scc1 K1_NOTAB")
    a("s_set_gpr_idx_on s3, gpr_idx(SRC0)\nv_mov_b32 v40, v44\nv_mov_b32 v41, v36\ns_set_gpr_idx_off")
    a("v_lshl_or_b32 v40, v41, 16, v40")
    a("s_lshl_b32 s28, s3, 10\ns_lshl_b32 s29, s24, 2\ns_add_u32 s28, s28, s29")
    a(f"v_lshlrev_b32 v41, 12, v1\nv_add_u32 v41, s28, v41")
    a(f"global_store_dword v41, v40, s[20:21]")
    a("K1_NOTAB:")
    a("s_mov_b64 exec, s[26:27]")
    a("s_waitcnt lgkmcnt(0)")
    for e in range(2):
        a(f"v_add_u32 v{34+e}, v{34+e}, v{26+e}")
        a(f"v_lshlrev_b32 v{26+e}, 2, v{34+e}")
        a(f"ds_write_b32 v{26+e}, v{30+e} offset:{L_KEY}")
        a(f"v_lshlrev_b32 v{34+e}, 4, v{34+e}")
        a(f"v_add_u32 v{34+e}, {L_PAY}, v{34+e}")
    a("s_waitcnt vmcnt(0)" if False else "s_waitcnt vmcnt(1)")
    a("s_cmp_ge_u32 s3, 4\ns_cbranch_scc0 K1_W1\ns_waitcnt vmcnt(0)\nK1_W1:")
    for e in range(2):
        a(f"ds_write2_b64 v{34+e}, v[{12+2*e}:{13+2*e}], v[{16+2*e}:{17+2*e}] offset0:0 offset1:1")
    a("v_lshlrev_b32 v4, 3, v0\nv_lshlrev_b32 v5, 4, v0")
    a(f"s_mul_i32 s28, s24, {CH*4}\ns_mul_i32 s29, s24, {CH*16}")
    a(f"s_add_u32 s28, s28, {WS_KEY}\ns_add_u32 s29, s29, {WS_PAY}")
    a("v_add_u32 v6, s28, v4\nv_add_u32 v7, s29, v5")
    a(f"v_add_u32 v10, {625*16}, v7")
    a("s_waitcnt lgkmcnt(0)\ns_barrier")
    ts.stamp()
    a(f"ds_read_b128 v[12:15], v5 offset:{L_PAY}")
    a(f"ds_read_b128 v[16:19], v5 offset:{L_PAY + 625*16}")
    a(f"ds_read_b64 v[8:9], v4 offset:{L_KEY}")
    st = P.get("k1_store_aux", "")
    a(f"s_waitcnt lgkmcnt(2)\nglobal_store_dwordx4 v7, v[12:15], s[20:21] {st}")
    a(f"s_waitcnt lgkmcnt(1)\nglobal_store_dwordx4 v10, v[16:19], s[20:21] {st}")
    a(f"s_waitcnt lgkmcnt(0)\nglobal_store_dwordx2 v6, v[8:9], s[20:21] {st}")
    if P.get("ts"): a("s_waitcnt vmcnt(0)")
    ts.stamp()
    ts.dump(20, WS_TS, "s2", "s3", 16)
    a("s_endpgm")
    a("K1_SIDE:")
    a("v_and_b32 v1, 63, v0")
    a("s_waitcnt lgkmcnt(0)")
    npf = 0
    def prefetch():
        n = 0
        st = P.get("pf_stride", 128)
        if not st: return 0
        a(f"s_mul_i32 s30, s2, 40000")
        a(f"v_mul_u32_u24 v30, {st}, v1\nv_add_u32 v30, s30, v30")
        cnt = (40000 + 64*st - 1) // (64*st)
        a("s_mov_b32 s36, s4\ns_mov_b32 s37, s5\ns_mov_b32 s38, 10240000\ns_mov_b32 s39, 0x20000")
        for i in range(cnt):
            a(f"s_mov_b32 s31, {i*64*st}")
            a(f"buffer_load_dword v31, v30, s[36:39], s31 offen")
            n += 1
        return n
    a("s_cmp_lt_u32 s2, 32\ns_cbranch_scc1 K1_WM")
    a("s_cmp_eq_u32 s2, 32\ns_cbranch_scc1 K1_WR")
    a("s_cmp_eq_u32 s2, 33\ns_cbranch_scc1 K1_CG")
    prefetch()
    a("s_barrier\ns_barrier\ns_barrier\ns_endpgm")
    a("K1_WM:")
    a("s_lshr_b32 s28, s2, 3\ns_lshl_b32 s28, s28, 6")
    a("s_bfe_u32 s29, s2, 0x10002\ns_lshl_b32 s29, s29, 1\ns_add_u32 s28, s28, s29")
    a("s_and_b32 s29, s2, 3\ns_lshl_b32 s29, s29, 13\ns_add_u32 s28, s28, s29")
    a("v_lshrrev_b32 v2, 4, v1\nv_lshlrev_b32 v2, 11, v2\nv_and_b32 v3, 15, v1\nv_lshl_or_b32 v2, v3, 2, v2\nv_add_u32 v2, s28, v2")
    for i in range(8): a(f"global_load_ushort v{4+i}, v2, s[18:19] offset:{i*256}")
    n = prefetch()
    a("s_barrier\ns_barrier\ns_barrier")
    a(f"s_waitcnt vmcnt({n})")
    for i in range(4): a(f"v_lshl_or_b32 v{12+i}, v{5+2*i}, 16, v{4+2*i}")
    a(f"s_lshl_b32 s28, s2, 10\ns_add_u32 s28, s28, {WS_WMF}")
    a("v_lshlrev_b32 v2, 4, v1\nv_add_u32 v2, s28, v2")
    a("global_store_dwordx4 v2, v[12:15], s[20:21]")
    a("s_endpgm")
    a("K1_WR:")
    a("v_lshlrev_b32 v2, 2, v1")
    for k in range(4): a(f"global_load_dword v{4+k}, v2, s[14:15] offset:{k*256}")
    n = prefetch()
    a("s_barrier\ns_barrier\ns_barrier")
    a(f"s_waitcnt vmcnt({n})")
    a(f"s_mov_b32 s28, {f32(-LOG2E)}")
    a(f"v_lshlrev_b32 v2, 4, v1\nv_add_u32 v2, {WS_CST}, v2")
    for h in range(2):
        for k in range(4):
            a(f"v_lshlrev_b32 v{8+k}, 16, v{4+k}" if h == 0 else f"v_and_b32 v{8+k}, 0xffff0000, v{4+k}")
            a(f"v_mul_f32 v{12+k}, s28, v{8+k}")
        o = 20 + 4*h
        a(f"v_cvt_pk_bf16_f32 v{o}, v12, v13\nv_cvt_pk_bf16_f32 v{o+1}, v14, v15")
        for k in range(4):
            a(f"v_lshlrev_b32 v{16+k}, 16, v{o + k//2}" if k % 2 == 0 else f"v_and_b32 v{16+k}, 0xffff0000, v{o + k//2}")
            a(f"v_fma_f32 v{16+k}, s28, v{8+k}, -v{16+k}")
        a(f"v_cvt_pk_bf16_f32 v{o+2}, v16, v17\nv_cvt_pk_bf16_f32 v{o+3}, v18, v19")
        a(f"global_store_dwordx4 v2, v[{o}:{o+3}], s[20:21] offset:{h*1024}")
    a("s_endpgm")
    a("K1_CG:")
    a("v_and_b32 v2, 3, v1\nv_lshlrev_b32 v2, 5, v2\nv_bfe_u32 v3, v1, 2, 2\nv_lshl_or_b32 v2, v3, 1, v2")
    for f in range(4): a(f"global_load_ushort v{4+f}, v2, s[16:17] offset:{f*8}")
    n = prefetch()
    a("s_barrier\ns_barrier\ns_barrier")
    a(f"s_waitcnt vmcnt({n})")
    a("v_lshl_or_b32 v8, v5, 16, v4\nv_lshl_or_b32 v9, v7, 16, v6\nv_lshrrev_b32 v3, 4, v1")
    for g in range(4):
        a(f"v_cmp_eq_u32 vcc, {g}, v3")
        a(f"v_cndmask_b32 v{12+2*g}, 0, v8, vcc\nv_cndmask_b32 v{13+2*g}, 0, v9, vcc")
    a(f"v_lshlrev_b32 v2, 4, v1\nv_add_u32 v2, {WS_CST+2048}, v2")
    a("global_store_dwordx4 v2, v[12:15], s[20:21]\nglobal_store_dwordx4 v2, v[16:19], s[20:21] offset:1024")
    a("K1_END:\ns_endpgm")
    return 27200, 48

def gen_k2(a, P):
    DE = P.get("DE", 8)
    CAPW = 192; CAP = 8 * CAPW
    NE = CAP + 8 * 48 + 16
    L_CNT = 0
    L_OFF = 512
    L_NODE = L_OFF + NE * 4
    L_PAY = (L_NODE + NE + 63) // 64 * 64
    L_A = L_PAY + NE * 16
    L_AGG = (L_A + NE * 32 + 255) // 256 * 256
    L_MARK = L_AGG
    L_END = L_AGG + 160 * 256
    ACC, XR, TP, TA, TB, EE, WF, AOP, EF, OFFS, NODE = 16, 56, 120, 152, 160, 168, 176, 184, 186, 188, 192
    vOffA, vNodeA, vAA, vEfA = 196, 197, 198, 199
    BF, CGF, PP, PL, PD = 200, 232, 240, 244, 248
    sW, sT, sRB, sG, sN, sBase, sLen = "s3", "s24", "s25", "s26", "s27", "s28", "s29"
    ts = TS(a, P.get("ts"), 60)
    a(".globl main_kernel\n.p2align 8\n.type main_kernel,@function\nmain_kernel:")
    a(f"s_cmp_ge_u32 s2, {NB}\ns_cbranch_scc1 K2_END")
    a("s_load_dwordx2 s[4:5], s[0:1], 0\ns_load_dwordx2 s[6:7], s[0:1], 64\ns_load_dwordx2 s[20:21], s[0:1], 80")
    ts.stamp()
    a("v_lshrrev_b32 v2, 6, v0\nv_and_b32 v1, 63, v0\nv_lshlrev_b32 v3, 2, v0")
    a("v_readfirstlane_b32 s3, v2")
    for k in range(4, 8): a(f"v_mov_b32 v{k}, 0")
    a(f"v_lshlrev_b32 v8, 4, v0\nv_add_u32 v8, {L_MARK}, v8")
    a("ds_write_b128 v8, v[4:7]")
    a("v_cmp_gt_u32 vcc, 128, v0\ns_and_saveexec_b64 s[22:23], vcc")
    a(f"ds_write_b32 v3, v4 offset:{L_CNT}")
    a("s_mov_b64 exec, s[22:23]")
    a("v_lshlrev_b32 v9, 4, v1")
    a("s_lshl_b32 s16, s2, 10")
    a("v_add_u32 v10, s16, v9")
    a(f"s_and_b32 s17, s3, 3\ns_lshl_b32 s17, s17, 13\ns_add_u32 s17, s17, {WS_WMF}")
    a("v_add_u32 v11, s17, v9")
    a(f"v_add_u32 v12, {WS_CST}, v9")
    a("s_waitcnt lgkmcnt(0)")
    a(f"global_load_dwordx4 v[{TP}:{TP+3}], v10, s[20:21]")
    a(f"global_load_dwordx4 v[{WF}:{WF+3}], v12, s[20:21]")
    a(f"global_load_dwordx4 v[{WF+4}:{WF+7}], v12, s[20:21] offset:1024")
    a(f"global_load_dwordx4 v[{CGF}:{CGF+3}], v12, s[20:21] offset:2048")
    a(f"global_load_dwordx4 v[{CGF+4}:{CGF+7}], v12, s[20:21] offset:3072")
    a("v_add_u32 v12, 4096, v11")
    for i in range(8):
        a(f"global_load_dwordx4 v[{BF+4*i}:{BF+4*i+3}], v{11 + i//4}, s[20:21] offset:{(i%4)*1024}")
    SAFE = P.get("safe")
    if SAFE: a("s_mov_b32 s8, s4\ns_mov_b32 s9, s5\ns_mov_b32 s10, 10240000\ns_mov_b32 s11, 0x20000")
    else: a("s_mov_b32 s8, s4\ns_and_b32 s9, s5, 0xffff\ns_or_b32 s9, s9, 0x100000\ns_mov_b32 s10, 10240000\ns_mov_b32 s11, 0x800000")
    a("s_mul_i32 s16, s2, 625\ns_add_u32 s17, s16, 640\ns_add_u32 s16, s16, 15\ns_lshr_b32 s16, s16, 4\ns_lshr_b32 s17, s17, 4")
    a("s_mov_b32 s12, s6\ns_mov_b32 s13, s7\ns_lshl_b32 s14, s17, 10\ns_mov_b32 s15, 0x20000")
    a("s_barrier")
    for k in range(40): a(f"v_mov_b32 v{ACC+k}, 0")
    a(f"v_mul_u32_u24 v13, {4*CH}, v1")
    a("s_waitcnt vmcnt(12)")
    ts.stamp()
    c = TP + 4
    for i in range(4):
        a(f"v_lshrrev_b32 v{c+i}, 16, v{TP+i}")
        a(f"v_and_b32 v{TP+i}, 0xffff, v{TP+i}")
    p = TP + 8
    a(f"v_add_u32 v{p+1}, v{c}, v{c+1}\nv_add_u32 v{p+2}, v{p+1}, v{c+2}\nv_add_u32 v{p+3}, v{p+2}, v{c+3}\nv_mov_b32 v{p+4}, v{p+3}")
    for i in range(4):
        a(f"v_add3_u32 v{PD+i}, v13, v{TP+i}, {i*CH}" if i*CH <= 64 else f"v_add_u32 v{PD+i}, {i*CH}, v{TP+i}\nv_add_u32 v{PD+i}, v13, v{PD+i}")
    scan_incl(a, "v_add_u32", [p+4])
    a(f"v_readlane_b32 {sT}, v{p+4}, 63")
    a(f"v_sub_u32 v{PP}, v{p+4}, v{p+3}")
    a(f"v_add_u32 v{PP+1}, v{PP}, v{c}\nv_add_u32 v{PP+2}, v{PP}, v{p+1}\nv_add_u32 v{PP+3}, v{PP}, v{p+2}")
    for i in range(4):
        a(f"v_sub_u32 v{PD+i}, v{PD+i}, v{PP+i}")
        a(f"v_add_u32 v{PL+i}, v{PP+i}, v{c+i}")
    a(f"s_mov_b32 {sRB}, 0")
    a("K2_ROUND:")
    a(f"s_mul_i32 s30, {sW}, {CAPW}\ns_add_u32 s30, s30, {sRB}")
    a(f"s_add_u32 s31, s30, {CAPW}")
    a(f"s_lshl_b32 s32, {sW}, 10\ns_add_u32 s32, s32, {L_MARK}")
    m = XR
    for i in range(4):
        a(f"v_subrev_u32 v{m+i}, s30, v{PP+i}\nv_max_i32 v{m+i}, 0, v{m+i}\nv_lshl_add_u32 v{m+i}, v{m+i}, 2, s32")
    for i in range(4):
        a(f"v_cmp_lt_u32 vcc, s30, v{PL+i}\nv_cmp_gt_u32 s[34:35], s31, v{PP+i}\ns_and_b64 exec, vcc, s[34:35]")
        a(f"ds_max_u32 v{m+i}, v{PD+i}")
        a("s_mov_b64 exec, -1")
    a(f"v_lshl_add_u32 v{m+4}, v1, 2, s32")
    for u in range(3): a(f"ds_read_b32 v{m+8+u}, v{m+4} offset:{u*256}")
    f = m + 12
    a(f"v_add_u32 v{f}, s30, v1\nv_add_u32 v{f+1}, 64, v{f}\nv_add_u32 v{f+2}, 128, v{f}")
    for u in range(3): a(f"v_cmp_gt_u32 s[{36+2*u}:{37+2*u}], {sT}, v{f+u}")
    a("s_waitcnt lgkmcnt(0)")
    scan_incl(a, "v_max_u32", [m+8, m+9, m+10])
    a(f"v_readlane_b32 s33, v{m+8}, 63\nv_readlane_b32 s34, v{m+9}, 63")
    a(f"s_max_u32 s34, s33, s34")
    a(f"v_max_u32 v{m+9}, s33, v{m+9}\nv_max_u32 v{m+10}, s34, v{m+10}")
    KEY = m + 16; PAYR = m + 20; ad = m + 32
    for u in range(3):
        a(f"v_add_u32 v{f+u}, v{f+u}, v{m+8+u}")
        a(f"v_lshlrev_b32 v{ad+u}, 2, v{f+u}\nv_add_u32 v{ad+u}, {WS_KEY}, v{ad+u}")
        a(f"v_lshlrev_b32 v{ad+3+u}, 4, v{f+u}\nv_add_u32 v{ad+3+u}, {WS_PAY}, v{ad+3+u}")
    a("s_mov_b32 s44, s20\ns_mov_b32 s45, s21\ns_mov_b32 s46, 0x662000\ns_mov_b32 s47, 0x20000")
    for u in range(3):
        a(f"s_mov_b64 exec, s[{36+2*u}:{37+2*u}]")
        a(f"buffer_load_dword v{KEY+u}, v{ad+u}, s[44:47], 0 offen")
    for u in range(3):
        a(f"s_mov_b64 exec, s[{36+2*u}:{37+2*u}]")
        a(f"buffer_load_dwordx4 v[{PAYR+4*u}:{PAYR+4*u+3}], v{ad+3+u}, s[44:47], 0 offen")
    a("s_mov_b64 exec, -1")
    ts.stamp()
    a("v_mov_b32 v14, 1")
    RK = m + 40; CI = m + 44
    for u in range(3):
        a(f"s_waitcnt vmcnt({5-u})")
        a(f"s_mov_b64 exec, s[{36+2*u}:{37+2*u}]")
        a(f"v_and_b32 v{CI+u}, 127, v{KEY+u}\nv_lshlrev_b32 v{ad+u}, 2, v{CI+u}")
        a(f"ds_add_rtn_u32 v{RK+u}, v{ad+u}, v14 offset:{L_CNT}")
    a("s_mov_b64 exec, -1")
    ts.stamp()
    a("v_lshlrev_b32 v15, 3, v1")
    for u in range(3):
        a(f"v_lshrrev_b32 v{ad+u}, 1, v{CI+u}\nv_lshlrev_b32 v{ad+u}, 2, v{ad+u}")
        a(f"v_and_b32 v{CI+u}, 1, v{CI+u}\nv_lshlrev_b32 v{CI+u}, 4, v{CI+u}")
        a(f"v_lshrrev_b32 v{ad+3+u}, 4, v{KEY+u}\nv_and_b32 v{ad+3+u}, 0x38, v{ad+3+u}")
        a(f"v_and_b32 v{KEY+u}, 0xfffffc00, v{KEY+u}")
    a("s_waitcnt lgkmcnt(0)\ns_barrier")
    q = m + 48
    a(f"ds_read_b64 v[{q}:{q+1}], v15 offset:{L_CNT}")
    a(f"s_lshl_b32 s33, {sW}, 3\ns_add_u32 s34, s33, 7")
    a(f"v_lshrrev_b32 v{q+6}, 3, v1\nv_mul_u32_u24 v{q+6}, 48, v{q+6}")
    a("s_waitcnt lgkmcnt(0)")
    a(f"v_add_u32 v{q+2}, v{q}, v{q+1}\nv_mov_b32 v{q+3}, v{q+2}")
    scan_incl(a, "v_add_u32", [q+3])
    a(f"v_sub_u32 v{q+2}, v{q+3}, v{q+2}")
    a(f"v_readlane_b32 {sLen}, v{q+3}, s34")
    a(f"v_mov_b32_dpp v{q+4}, v{q+2} row_newbcast:0 row_mask:0xf bank_mask:0x3")
    a(f"v_mov_b32_dpp v{q+4}, v{q+2} row_newbcast:8 row_mask:0xf bank_mask:0xc")
    a(f"v_readlane_b32 s35, v{q+2}, s33")
    a(f"v_add_u32 v{q+5}, 15, v{q+4}\nv_and_b32 v{q+5}, -16, v{q+5}\nv_add_u32 v{q+5}, v{q+5}, v{q+6}")
    a(f"v_sub_u32 v{q+4}, v{q+5}, v{q+4}\nv_add_u32 v{q+4}, v{q+4}, v{q+2}")
    a(f"v_add_u32 v{q}, v{q+4}, v{q}\nv_lshl_or_b32 v{q}, v{q}, 16, v{q+4}")
    a(f"v_readlane_b32 {sBase}, v{q+5}, s33")
    a(f"s_sub_u32 {sLen}, {sLen}, s35")
    for u in range(3): a(f"ds_bpermute_b32 v{ad+u}, v{ad+u}, v{q}")
    a(f"s_add_u32 s33, {sBase}, {sLen}")
    a(f"v_add_u32 v{q+1}, s33, v1\nv_lshlrev_b32 v{q+2}, 2, v{q+1}\nv_lshlrev_b32 v{q+3}, 4, v{q+1}")
    a(f"v_mov_b32 v{q+4}, {(N-1)*1024}")
    a(f"s_mov_b64 exec, 0xfffff")
    a(f"ds_write_b32 v{q+2}, v{q+4} offset:{L_OFF}\nds_write_b8 v{q+1}, v4 offset:{L_NODE}\nds_write_b128 v{q+3}, v[4:7] offset:{L_PAY}")
    a("s_waitcnt vmcnt(0) lgkmcnt(3)")
    for u in range(3):
        a(f"s_mov_b64 exec, s[{36+2*u}:{37+2*u}]")
        a(f"v_bfe_u32 v{ad+u}, v{ad+u}, v{CI+u}, 16\nv_add_u32 v{ad+u}, v{ad+u}, v{RK+u}")
        a(f"v_lshlrev_b32 v{RK+u}, 2, v{ad+u}\nv_lshlrev_b32 v{CI+u}, 4, v{ad+u}")
        a(f"ds_write_b32 v{RK+u}, v{KEY+u} offset:{L_OFF}")
        a(f"ds_write_b8 v{ad+u}, v{ad+3+u} offset:{L_NODE}")
        a(f"ds_write_b128 v{CI+u}, v[{PAYR+4*u}:{PAYR+4*u+3}] offset:{L_PAY}")
    a("s_mov_b64 exec, -1")
    a(f"s_lshl_b32 s33, {sBase}, 2\ns_add_u32 s33, s33, {L_OFF}\nv_mov_b32 v{vOffA}, s33")
    a(f"s_add_u32 s33, {sBase}, {L_NODE}\nv_mov_b32 v{vNodeA}, s33")
    a(f"s_lshl_b32 s33, {sBase}, 5\ns_add_u32 s33, s33, {L_A}\nv_add_u32 v{vAA}, s33, v15")
    a(f"s_lshl_b32 s34, {sBase}, 4\ns_add_u32 s34, s34, {L_PAY}")
    a(f"v_and_b32 v12, 15, v1\nv_lshl_add_u32 v{vEfA}, v12, 4, s34")
    a(f"v_add_u32 v10, s34, v9")
    a(f"v_lshrrev_b32 v11, 4, v1\nv_lshlrev_b32 v11, 3, v11\nv_lshl_add_u32 v11, v12, 5, v11\nv_add_u32 v11, s33, v11")
    a(f"s_add_u32 {sG}, {sLen}, 3\ns_lshr_b32 {sG}, {sG}, 2")
    a("s_waitcnt lgkmcnt(0)\ns_barrier")
    ts.stamp()
    a("v_cmp_gt_u32 vcc, 128, v0\ns_and_saveexec_b64 s[22:23], vcc")
    a(f"ds_write_b32 v3, v4 offset:{L_CNT}")
    a("s_mov_b64 exec, s[22:23]")
    a(f"s_cmp_eq_u32 {sG}, 0\ns_cbranch_scc1 K2_LOOPDONE")
    ng = DE // 4
    for g in range(ng): a(f"ds_read_b128 v[{TP+4*g}:{TP+4*g+3}], v{vOffA} offset:{16*g}")
    a(f"ds_read_b128 v[{OFFS}:{OFFS+3}], v{vOffA} offset:{16*ng}")
    a(f"ds_read_b64 v[{EF}:{EF+1}], v{vEfA} offset:8")
    a(f"ds_read_b128 v[{NODE}:{NODE+3}], v{vNodeA}")
    xaux = P.get("xaux", "")
    for g in range(ng):
        a(f"s_waitcnt lgkmcnt({ng - 1 - g + 3})")
        for e in range(4):
            n = 4*g + e
            if SAFE: a(f"v_add_u32 v{TP+n}, v9, v{TP+n}")
            a(f"buffer_load_dwordx4 v[{XR+4*n}:{XR+4*n+3}], v{TP+n}, s[8:11], 0 offen {xaux}")
    a(f"s_lshl_b32 s33, {sG}, 2")
    a("K2_APREP:")
    a(f"ds_read_b64 v[{TA}:{TA+1}], v10")
    a(f"v_cmp_gt_u32 vcc, s33, v1")
    a("v_add_u32 v10, 1024, v10")
    a("s_waitcnt lgkmcnt(0)")
    a(f"v_cndmask_b32 v{TA}, 0, v{TA}, vcc\nv_cndmask_b32 v{TA+1}, 0, v{TA+1}, vcc")
    for g in range(4):
        a(f"v_mfma_f32_16x16x16_bf16 v[{TP+16+4*g}:{TP+19+4*g}], v[{CGF+2*g}:{CGF+2*g+1}], v[{TA}:{TA+1}], 0")
    for g in range(4):
        a(f"v_add_u32 v{TB}, {16*g}, v12")
        a(f"v_cmp_gt_u32 vcc, s33, v{TB}")
        a(f"v_cvt_pk_bf16_f32 v{EE+2*g}, v{TP+16+4*g}, v{TP+17+4*g}\nv_cvt_pk_bf16_f32 v{EE+2*g+1}, v{TP+18+4*g}, v{TP+19+4*g}")
        a("s_mov_b64 exec, vcc")
        a(f"ds_write_b64 v11, v[{EE+2*g}:{EE+2*g+1}] offset:{512*g}")
        a("s_mov_b64 exec, -1")
    a("v_add_u32 v11, 2048, v11")
    a("s_sub_u32 s33, s33, 64\ns_cmp_gt_i32 s33, 0\ns_cbranch_scc1 K2_APREP")
    a(f"ds_read_b64 v[{AOP}:{AOP+1}], v{vAA}")
    def pre(T, ab):
        return [f"v_mfma_f32_4x4x4_16b_bf16 v[{T}:{T+3}], v[{EF}:{EF+1}], v[{WF}:{WF+1}], 0 cbsz:4 abid:{ab}",
                f"v_mfma_f32_4x4x4_16b_bf16 v[{T+4}:{T+7}], v[{EF}:{EF+1}], v[{WF+4}:{WF+5}], 0 cbsz:4 abid:{ab}",
                f"v_mfma_f32_4x4x4_16b_bf16 v[{T}:{T+3}], v[{EF}:{EF+1}], v[{WF+2}:{WF+3}], v[{T}:{T+3}] cbsz:4 abid:{ab}",
                f"v_mfma_f32_4x4x4_16b_bf16 v[{T+4}:{T+7}], v[{EF}:{EF+1}], v[{WF+6}:{WF+7}], v[{T+4}:{T+7}] cbsz:4 abid:{ab}"]
    for x in pre(TA, 0): a(x)
    a("s_nop 4")
    ts.stamp()
    a(".p2align 4\nK2_LOOP:")
    for qq in range(4):
        T = TA if qq % 2 == 0 else TB
        Tn = TB if qq % 2 == 0 else TA
        def tp(e, h):
            s = XR + 4 * (4*qq + e) + 2*h
            d = TP + 8*e + 4*h
            return f"v_mfma_f32_4x4x4_16b_bf16 v[{d}:{d+3}], v[{AOP}:{AOP+1}], v[{s}:{s+1}], 0 cbsz:4 abid:{4*qq+e}"
        def ld(e):
            s = XR + 4 * ((4*qq + e + DE) % 16)
            return (f"v_add_u32 v{OFFS+e}, v9, v{OFFS+e}\n" if SAFE else "") + f"buffer_load_dwordx4 v[{s}:{s+3}], v{OFFS+e}, s[8:11], 0 offen {xaux}"
        ex = [f"v_exp_f32 v{EE+i}, v{T+i}" for i in range(8)]
        rc = [f"v_rcp_f32 v{EE+i}, v{EE+i}" for i in range(8)]
        a("s_waitcnt lgkmcnt(0)")
        for e in range(3):
            a(f"s_waitcnt vmcnt({DE-1})")
            a(tp(e, 0)); a(ex[2*e]); a(tp(e, 1)); a(ld(e)); a(ex[2*e+1])
        a(ex[6]); a(ex[7])
        for i in range(4): a(f"v_pk_add_f32 v[{EE+2*i}:{EE+2*i+1}], v[{EE+2*i}:{EE+2*i+1}], 1.0 op_sel_hi:[1,0]")
        pm = pre(Tn, (qq + 1) % 4)
        a(f"s_waitcnt vmcnt({DE-1})")
        a(tp(3, 0)); a(rc[0]); a(tp(3, 1)); a(ld(3)); a(rc[1])
        a(f"ds_read_b128 v[{OFFS}:{OFFS+3}], v{vOffA} offset:{16*(qq + 1 + ng)}")
        if qq == 3: a(f"ds_read_b64 v[{AOP}:{AOP+1}], v{vAA} offset:512")
        a(pm[0]); a(rc[2]); a(pm[1]); a(rc[3]); a(pm[2]); a(rc[4]); a(pm[3])
        if qq == 2: a(f"ds_read_b64 v[{EF}:{EF+1}], v{vEfA} offset:{256+8}")
        a(rc[5]); a(rc[6]); a(rc[7])
        a(f"v_readfirstlane_b32 {sN}, v{NODE+qq}")
        if qq == 3:
            a(f"ds_read_b128 v[{NODE}:{NODE+3}], v{vNodeA} offset:16")
            a(f"v_add_u32 v{vOffA}, 64, v{vOffA}\nv_add_u32 v{vNodeA}, 16, v{vNodeA}\nv_add_u32 v{vAA}, 512, v{vAA}\nv_add_u32 v{vEfA}, 256, v{vEfA}")
        for i in range(4): a(f"v_pk_mul_f32 v[{EE+2*i}:{EE+2*i+1}], v[{EE+2*i}:{EE+2*i+1}], v[{T+2*i}:{T+2*i+1}]")
        for e in range(4):
            a(f"s_set_gpr_idx_on {sN}, gpr_idx(SRC2,DST)" if e == 0 else f"s_lshr_b32 {sN}, {sN}, 8\ns_set_gpr_idx_idx {sN}")
            for h in range(2):
                r = EE + 4*h + (e & ~1); sel = e & 1
                for i in range(2):
                    d = ACC + 4*h + 2*i; t = TP + 8*e + 4*h + 2*i
                    a(f"v_pk_fma_f32 v[{d}:{d+1}], v[{r}:{r+1}], v[{t}:{t+1}], v[{d}:{d+1}] op_sel:[{sel},0,0] op_sel_hi:[{sel},1,1]")
        a("s_set_gpr_idx_off")
        a(f"s_sub_u32 {sG}, {sG}, 1\ns_cmp_eq_u32 {sG}, 0")
        a("s_cbranch_scc1 K2_LOOPDONE" if qq < 3 else "s_cbranch_scc0 K2_LOOP")
    a("K2_LOOPDONE:")
    ts.stamp()
    a(f"s_add_u32 {sRB}, {sRB}, {CAP}\ns_cmp_ge_u32 {sRB}, {sT}\ns_cbranch_scc1 K2_EPI")
    a("s_waitcnt vmcnt(0) lgkmcnt(0)")
    a("ds_write_b128 v8, v[4:7]")
    a("s_waitcnt lgkmcnt(0)\ns_barrier\ns_branch K2_ROUND")
    a("K2_EPI:")
    a(f"s_mov_b32 s30, {f32(-LN2)}\ns_mov_b32 s31, s30")
    a(f"v_lshrrev_b32 v10, 2, v1\nv_lshlrev_b32 v10, 4, v10\nv_and_b32 v11, 3, v1\nv_lshl_or_b32 v10, v11, 2, v10")
    a(f"s_mul_i32 s32, {sW}, 20")
    for k in range(20): a(f"v_pk_mul_f32 v[{ACC+2*k}:{ACC+2*k+1}], v[{ACC+2*k}:{ACC+2*k+1}], s[30:31]")
    a("s_waitcnt lgkmcnt(0)")
    for s in range(5):
        for mm in range(4):
            k = 4*s + mm
            a(f"s_add_u32 s33, s32, {k}\ns_and_b32 s34, s33, 15\ns_lshl_b32 s34, s34, 4\ns_lshl_b32 s33, s33, 8\ns_add_u32 s33, s33, {L_AGG}")
            a(f"v_cvt_pk_bf16_f32 v{EE + k%4}, v{ACC+8*s+mm}, v{ACC+8*s+4+mm}")
            a(f"v_xor_b32 v{EE+4 + k%4}, s34, v10\nv_add_u32 v{EE+4 + k%4}, s33, v{EE+4 + k%4}")
            a(f"ds_write_b32 v{EE+4 + k%4}, v{EE + k%4}")
    a(f"v_and_b32 v12, 15, v1\nv_lshrrev_b32 v11, 4, v1\nv_xor_b32 v13, v11, v12")
    a(f"s_lshr_b32 s33, {sW}, 2\ns_lshl_b32 s34, s33, 12\ns_add_u32 s34, s34, {L_AGG}")
    a(f"v_lshl_add_u32 v14, v12, 8, s34")
    for ks in range(4):
        a(f"v_xor_b32 v{TA+ks}, {4*ks}, v13\nv_lshl_add_u32 v{TA+ks}, v{TA+ks}, 4, v14")
    a(f"s_lshl_b32 s33, s33, 2\ns_add_u32 s33, s33, s16\ns_lshl_b32 s33, s33, 10\ns_and_b32 s34, {sW}, 3\ns_lshl_b32 s34, s34, 8\ns_add_u32 s33, s33, s34")
    a(f"v_lshlrev_b32 v11, 10, v11\nv_lshl_add_u32 v11, v12, 4, v11\nv_add_u32 v11, s33, v11")
    a("s_waitcnt vmcnt(0) lgkmcnt(0)\ns_barrier")
    ts.stamp()
    FA = XR
    for i in range(4):
        for ks in range(4): a(f"ds_read_b128 v[{FA+16*i+4*ks}:{FA+16*i+4*ks+3}], v{TA+ks} offset:{8192*i}")
    ost = P.get("out_aux", "")
    for i in range(5):
        D = TP + 8 * (i % 2)
        O = TP + 16 + 4 * (i % 2)
        fi = FA + 16 * (i % 4)
        for ks in range(4):
            if i < 4: a(f"s_waitcnt lgkmcnt({min(15, 15 - 4*i - ks + (4 if i >= 1 else 0))})")
            else: a(f"s_waitcnt lgkmcnt({3 - ks})")
            for t in range(2):
                b = BF + 16*t + 4*ks
                a(f"v_mfma_f32_16x16x32_bf16 v[{D+4*t}:{D+4*t+3}], v[{fi+4*ks}:{fi+4*ks+3}], v[{b}:{b+3}], " + ("0" if ks == 0 else f"v[{D+4*t}:{D+4*t+3}]"))
        if i == 0:
            for ks in range(4): a(f"ds_read_b128 v[{FA+4*ks}:{FA+4*ks+3}], v{TA+ks} offset:{8192*4}")
        if i >= 1:
            Dp = TP + 8 * ((i-1) % 2); Op = TP + 16 + 4 * ((i-1) % 2)
            for k in range(4): a(f"v_cvt_pk_bf16_f32 v{Op+k}, v{Dp+2*k}, v{Dp+2*k+1}")
            a(f"s_mov_b32 s33, {8192*(i-1)}")
            a(f"buffer_store_dwordx4 v[{Op}:{Op+3}], v11, s[12:15], s33 offen {ost}")
    Dp = TP; Op = TP + 16
    for k in range(4): a(f"v_cvt_pk_bf16_f32 v{Op+k}, v{Dp+2*k}, v{Dp+2*k+1}")
    a(f"s_mov_b32 s33, {8192*4}")
    a(f"buffer_store_dwordx4 v[{Op}:{Op+3}], v11, s[12:15], s33 offen {ost}")
    if P.get("ts"): a("s_waitcnt vmcnt(0)")
    ts.stamp()
    ts.dump(20, WS_TS + 0x100000, "s2", "s3", 16)
    a("K2_END:\ns_endpgm")
    return L_END, 256

def gen(P=None, verbose=False):
    P = P or {}
    a = Asm()
    lds1, nv1 = gen_k1(a, P)
    lds2, nv2 = gen_k2(a, P)
    body = a.text(verbose=verbose)
    lds1 = max(lds1, P.get("lds1", 0))
    head = HEADER + f"; @launch kernel=part_kernel grid=({NB},1,1) block=(704,1,1) lds={lds1}\n" \
                  + f"; @launch kernel=main_kernel grid=({NB},1,1) block=(512,1,1) lds={lds2}\n" \
                  + '.amdgcn_target "amdgcn-amd-amdhsa--gfx950"\n.text\n'
    ns = 100 if P.get("ts") else 64
    tail = '.section .rodata,"a"\n' + desc("part_kernel", nv1, ns) + desc("main_kernel", nv2, ns)
    return head + body + tail

if __name__ == "__main__":
    P = eval(sys.argv[2]) if len(sys.argv) > 2 else {}
    open(sys.argv[1], "w").write(gen(P, verbose=True))
```

```python
import sys, struct
from asmlib import Asm

N, E = 10000, 320000
NB = 256
CH = 1250
WS_TAB, WS_KEY, WS_PAY, WS_CST, WS_WMF, WS_TS = 0, 0x40000, 0x180000, 0x670000, 0x680000, 0x8000000
def f32(x): return "0x%08x" % struct.unpack("<I", struct.pack("<f", x))[0]
LOG2E = 1.4426950408889634
LN2 = 0.6931471805599453

HEADER = """; Kernarg layout for this problem (88 bytes, ptrs only, base s[0:1]):
"""

def scan_incl(a, op, regs, tmp=None):
    for ctl in ("row_shr:1 row_mask:0xf bank_mask:0xf", "row_shr:2 row_mask:0xf bank_mask:0xf",
                "row_shr:4 row_mask:0xf bank_mask:0xf", "row_shr:8 row_mask:0xf bank_mask:0xf",
                "row_bcast:15 row_mask:0xa bank_mask:0xf", "row_bcast:31 row_mask:0xc bank_mask:0xf"):
        for r in regs:
            a(f"{op}_dpp v{r}, v{r}, v{r} {ctl}")

def desc(name, nv, ns):
    nv8 = (nv + 7) // 8 * 8
    return f""".p2align 6
.amdhsa_kernel {name}
  .amdhsa_next_free_vgpr {nv8}
  .amdhsa_next_free_sgpr {ns}
  .amdhsa_accum_offset {nv8}
  .amdhsa_group_segment_fixed_size 0
  .amdhsa_kernarg_size 88
  .amdhsa_user_sgpr_count 2
  .amdhsa_user_sgpr_kernarg_segment_ptr 1
  .amdhsa_system_sgpr_workgroup_id_x 1
  .amdhsa_float_denorm_mode_32 3
.end_amdhsa_kernel
"""

class TS:
    def __init__(self, a, on, first): self.a, self.on, self.n, self.first = a, on, 0, first
    def stamp(self):
        if self.on:
            r = self.first + 2 * self.n
            self.a(f"s_memrealtime s[{r}:{r+1}]"); self.n += 1
    def dump(self, wsreg, base, sWG, sW, waves):
        if not self.on: return
        a = self.a
        a("s_waitcnt lgkmcnt(0)")
        a(f"s_mul_i32 s98, {sWG}, {waves}\ns_add_u32 s98, s98, {sW}\ns_lshl_b32 s98, s98, 6\ns_add_u32 s98, s98, {base}")
        a("s_mov_b64 exec, 1\nv_mov_b32 v2, s98")
        for i in range(self.n):
            a(f"v_mov_b32 v3, s{self.first + 2*i}\nglobal_store_dword v2, v3, s[{wsreg}:{wsreg+1}] offset:{4*i}")

def gen_k1(a, P):
    L_CNT, L_PRE, L_KEY, L_PAY = 0, 1024, 2048, 7168
    ts = TS(a, P.get("ts"), 60)
    a(".globl part_kernel\n.p2align 8\n.type part_kernel,@function\npart_kernel:")
    a(f"s_cmp_ge_u32 s2, {NB}\ns_cbranch_scc1 K1_END")
    a("s_load_dwordx16 s[4:19], s[0:1], 0\ns_load_dwordx2 s[20:21], s[0:1], 80")
    ts.stamp()
    a("v_lshrrev_b32 v1, 6, v0\nv_lshlrev_b32 v2, 2, v0\nv_mov_b32 v3, 0")
    a("v_readfirstlane_b32 s3, v1")
    a("v_cmp_gt_u32 vcc, 256, v0\ns_and_saveexec_b64 s[22:23], vcc")
    a(f"ds_write_b32 v2, v3 offset:{L_CNT}")
    a("s_mov_b64 exec, s[22:23]")
    a("s_and_b32 s24, s2, 7\ns_lshl_b32 s24, s24, 5\ns_lshr_b32 s25, s2, 3\ns_add_u32 s24, s24, s25")
    a("s_cmp_eq_u32 s3, 10\ns_cbranch_scc1 K1_SIDE")
    a(f"s_mul_i32 s25, s2, {CH*4}")
    a("v_lshlrev_b32 v4, 3, v0\nv_add_u32 v4, s25, v4\nv_lshlrev_b32 v5, 1, v4")
    a("v_cmp_gt_u32 vcc, 625, v0\ns_and_b64 s[26:27], vcc, exec\ns_mov_b64 exec, s[26:27]")
    a("s_waitcnt lgkmcnt(0)")
    a("global_load_dwordx2 v[6:7], v4, s[8:9]")
    a("global_load_dwordx2 v[8:9], v4, s[6:7]")
    a("global_load_dwordx4 v[12:15], v5, s[10:11]")
    a("global_load_dwordx4 v[16:19], v5, s[12:13]")
    a("v_mov_b32 v20, 1")
    a("s_barrier")
    ts.stamp()
    a("s_waitcnt vmcnt(3)")
    ts.stamp()
    for e in range(2):
        a(f"v_mul_u32_u24 v{22+e}, 214749, v{6+e}")
    for e in range(2):
        a(f"v_lshrrev_b32 v{22+e}, 23, v{22+e}")
    for e in range(2):
        a(f"v_lshlrev_b32 v{24+e}, 2, v{22+e}")
        a(f"ds_add_rtn_u32 v{26+e}, v{24+e}, v20 offset:{L_CNT}")
    for e in range(2):
        a(f"v_mul_u32_u24 v{28+e}, 625, v{22+e}")
        a(f"v_add_u32 v{28+e}, 15, v{28+e}")
        a(f"v_lshrrev_b32 v{28+e}, 4, v{28+e}")
        a(f"v_sub_u32 v{28+e}, v{6+e}, v{28+e}")
        a(f"v_mul_u32_u24 v{30+e}, 52, v{28+e}")
        a(f"v_lshrrev_b32 v{30+e}, 8, v{30+e}")
        a(f"v_mul_u32_u24 v{32+e}, 5, v{30+e}")
        a(f"v_sub_u32 v{32+e}, v{28+e}, v{32+e}")
        a(f"v_lshlrev_b32 v{30+e}, 4, v{30+e}")
        a(f"v_lshl_or_b32 v{30+e}, v{32+e}, 7, v{30+e}")
    a("s_waitcnt vmcnt(2)")
    for e in range(2):
        a(f"v_mul_u32_u24 v{32+e}, 1677, v{8+e}")
        a(f"v_lshrrev_b32 v{32+e}, 20, v{32+e}")
        a(f"v_lshl_or_b32 v{30+e}, v{8+e}, 10, v{30+e}")
        a(f"v_or_b32 v{30+e}, v{30+e}, v{32+e}")
    a("s_mov_b64 exec, -1")
    a("v_and_b32 v1, 63, v0\nv_lshlrev_b32 v2, 4, v1")
    a("s_waitcnt lgkmcnt(0)\ns_barrier")
    ts.stamp()
    a(f"ds_read_b128 v[36:39], v2 offset:{L_CNT}")
    a("s_waitcnt lgkmcnt(0)")
    a("v_add_u32 v41, v36, v37\nv_add_u32 v42, v41, v38\nv_add_u32 v43, v42, v39\nv_mov_b32 v44, v43")
    scan_incl(a, "v_add_u32", [44])
    a("v_sub_u32 v44, v44, v43")
    a("v_add_u32 v45, v44, v36\nv_add_u32 v46, v44, v41\nv_add_u32 v47, v44, v42")
    a(f"ds_write_b128 v2, v[44:47] offset:{L_PRE}")
    a("s_mov_b64 exec, s[26:27]")
    for e in range(2): a(f"ds_read_b32 v{34+e}, v{24+e} offset:{L_PRE}")
    a("s_mov_b64 exec, -1")
    a("s_cmp_ge_u32 s3, 4\ns_cbranch_scc1 K1_NOTAB")
    a("s_set_gpr_idx_on s3, gpr_idx(SRC0)\nv_mov_b32 v40, v44\nv_mov_b32 v41, v36\ns_set_gpr_idx_off")
    a("v_lshl_or_b32 v40, v41, 16, v40")
    a("s_lshl_b32 s28, s3, 10\ns_lshl_b32 s29, s24, 2\ns_add_u32 s28, s28, s29")
    a(f"v_lshlrev_b32 v41, 12, v1\nv_add_u32 v41, s28, v41")
    a(f"global_store_dword v41, v40, s[20:21]")
    a("K1_NOTAB:")
    a("s_mov_b64 exec, s[26:27]")
    a("s_waitcnt lgkmcnt(0)")
    for e in range(2):
        a(f"v_add_u32 v{34+e}, v{34+e}, v{26+e}")
        a(f"v_lshlrev_b32 v{26+e}, 2, v{34+e}")
        a(f"ds_write_b32 v{26+e}, v{30+e} offset:{L_KEY}")
        a(f"v_lshlrev_b32 v{34+e}, 4, v{34+e}")
        a(f"v_add_u32 v{34+e}, {L_PAY}, v{34+e}")
    a("s_waitcnt vmcnt(0)" if False else "s_waitcnt vmcnt(1)")
    a("s_cmp_ge_u32 s3, 4\ns_cbranch_scc0 K1_W1\ns_waitcnt vmcnt(0)\nK1_W1:")
    for e in range(2):
        a(f"ds_write2_b64 v{34+e}, v[{12+2*e}:{13+2*e}], v[{16+2*e}:{17+2*e}] offset0:0 offset1:1")
    a("v_lshlrev_b32 v4, 3, v0\nv_lshlrev_b32 v5, 4, v0")
    a(f"s_mul_i32 s28, s24, {CH*4}\ns_mul_i32 s29, s24, {CH*16}")
    a(f"s_add_u32 s28, s28, {WS_KEY}\ns_add_u32 s29, s29, {WS_PAY}")
    a("v_add_u32 v6, s28, v4\nv_add_u32 v7, s29, v5")
    a(f"v_add_u32 v10, {625*16}, v7")
    a("s_waitcnt lgkmcnt(0)\ns_barrier")
    ts.stamp()
    a(f"ds_read_b128 v[12:15], v5 offset:{L_PAY}")
    a(f"ds_read_b128 v[16:19], v5 offset:{L_PAY + 625*16}")
    a(f"ds_read_b64 v[8:9], v4 offset:{L_KEY}")
    st = P.get("k1_store_aux", "")
    a(f"s_waitcnt lgkmcnt(2)\nglobal_store_dwordx4 v7, v[12:15], s[20:21] {st}")
    a(f"s_waitcnt lgkmcnt(1)\nglobal_store_dwordx4 v10, v[16:19], s[20:21] {st}")
    a(f"s_waitcnt lgkmcnt(0)\nglobal_store_dwordx2 v6, v[8:9], s[20:21] {st}")
    if P.get("ts"): a("s_waitcnt vmcnt(0)")
    ts.stamp()
    ts.dump(20, WS_TS, "s2", "s3", 16)
    a("s_endpgm")
    a("K1_SIDE:")
    a("v_and_b32 v1, 63, v0")
    a("s_waitcnt lgkmcnt(0)")
    npf = 0
    def prefetch():
        n = 0
        st = P.get("pf_stride", 128)
        if not st: return 0
        a(f"s_mul_i32 s30, s2, 40000")
        a(f"v_mul_u32_u24 v30, {st}, v1\nv_add_u32 v30, s30, v30")
        cnt = (40000 + 64*st - 1) // (64*st)
        a("s_mov_b32 s36, s4\ns_mov_b32 s37, s5\ns_mov_b32 s38, 10240000\ns_mov_b32 s39, 0x20000")
        for i in range(cnt):
            a(f"s_mov_b32 s31, {i*64*st}")
            a(f"buffer_load_dword v31, v30, s[36:39], s31 offen")
            n += 1
        return n
    a("s_cmp_lt_u32 s2, 32\ns_cbranch_scc1 K1_WM")
    a("s_cmp_eq_u32 s2, 32\ns_cbranch_scc1 K1_WR")
    a("s_cmp_eq_u32 s2, 33\ns_cbranch_scc1 K1_CG")
    prefetch()
    a("s_barrier\ns_barrier\ns_barrier\ns_endpgm")
    a("K1_WM:")
    a("s_lshr_b32 s28, s2, 3\ns_lshl_b32 s28, s28, 6")
    a("s_bfe_u32 s29, s2, 0x10002\ns_lshl_b32 s29, s29, 1\ns_add_u32 s28, s28, s29")
    a("s_and_b32 s29, s2, 3\ns_lshl_b32 s29, s29, 13\ns_add_u32 s28, s28, s29")
    a("v_lshrrev_b32 v2, 4, v1\nv_lshlrev_b32 v2, 11, v2\nv_and_b32 v3, 15, v1\nv_lshl_or_b32 v2, v3, 2, v2\nv_add_u32 v2, s28, v2")
    for i in range(8): a(f"global_load_ushort v{4+i}, v2, s[18:19] offset:{i*256}")
    n = prefetch()
    a("s_barrier\ns_barrier\ns_barrier")
    a(f"s_waitcnt vmcnt({n})")
    for i in range(4): a(f"v_lshl_or_b32 v{12+i}, v{5+2*i}, 16, v{4+2*i}")
    a(f"s_lshl_b32 s28, s2, 10\ns_add_u32 s28, s28, {WS_WMF}")
    a("v_lshlrev_b32 v2, 4, v1\nv_add_u32 v2, s28, v2")
    a("global_store_dwordx4 v2, v[12:15], s[20:21]")
    a("s_endpgm")
    a("K1_WR:")
    a("v_lshlrev_b32 v2, 2, v1")
    for k in range(4): a(f"global_load_dword v{4+k}, v2, s[14:15] offset:{k*256}")
    n = prefetch()
    a("s_barrier\ns_barrier\ns_barrier")
    a(f"s_waitcnt vmcnt({n})")
    a(f"s_mov_b32 s28, {f32(-LOG2E)}")
    a(f"v_lshlrev_b32 v2, 4, v1\nv_add_u32 v2, {WS_CST}, v2")
    for h in range(2):
        for k in range(4):
            a(f"v_lshlrev_b32 v{8+k}, 16, v{4+k}" if h == 0 else f"v_and_b32 v{8+k}, 0xffff0000, v{4+k}")
            a(f"v_mul_f32 v{12+k}, s28, v{8+k}")
        o = 20 + 4*h
        a(f"v_cvt_pk_bf16_f32 v{o}, v12, v13\nv_cvt_pk_bf16_f32 v{o+1}, v14, v15")
        for k in range(4):
            a(f"v_lshlrev_b32 v{16+k}, 16, v{o + k//2}" if k % 2 == 0 else f"v_and_b32 v{16+k}, 0xffff0000, v{o + k//2}")
            a(f"v_fma_f32 v{16+k}, s28, v{8+k}, -v{16+k}")
        a(f"v_cvt_pk_bf16_f32 v{o+2}, v16, v17\nv_cvt_pk_bf16_f32 v{o+3}, v18, v19")
        a(f"global_store_dwordx4 v2, v[{o}:{o+3}], s[20:21] offset:{h*1024}")
    a("s_endpgm")
    a("K1_CG:")
    a("v_and_b32 v2, 3, v1\nv_lshlrev_b32 v2, 5, v2\nv_bfe_u32 v3, v1, 2, 2\nv_lshl_or_b32 v2, v3, 1, v2")
    for f in range(4): a(f"global_load_ushort v{4+f}, v2, s[16:17] offset:{f*8}")
    n = prefetch()
    a("s_barrier\ns_barrier\ns_barrier")
    a(f"s_waitcnt vmcnt({n})")
    a("v_lshl_or_b32 v8, v5, 16, v4\nv_lshl_or_b32 v9, v7, 16, v6\nv_lshrrev_b32 v3, 4, v1")
    for g in range(4):
        a(f"v_cmp_eq_u32 vcc, {g}, v3")
        a(f"v_cndmask_b32 v{12+2*g}, 0, v8, vcc\nv_cndmask_b32 v{13+2*g}, 0, v9, vcc")
    a(f"v_lshlrev_b32 v2, 4, v1\nv_add_u32 v2, {WS_CST+2048}, v2")
    a("global_store_dwordx4 v2, v[12:15], s[20:21]\nglobal_store_dwordx4 v2, v[16:19], s[20:21] offset:1024")
    a("K1_END:\ns_endpgm")
    return 27200, 48

def gen_k2(a, P):
    DE = P.get("DE", 8)
    CAPW = 192; CAP = 8 * CAPW
    NE = CAP + 8 * 48 + 16
    L_CNT = 0
    L_OFF = 512
    L_NODE = L_OFF + NE * 4
    L_PAY = (L_NODE + NE + 63) // 64 * 64
    L_A = L_PAY + NE * 16
    L_AGG = (L_A + NE * 32 + 255) // 256 * 256
    L_MARK = L_AGG
    L_END = L_AGG + 160 * 256
    ACC, XR, TP, TA, TB, EE, WF, AOP, EF, OFFS, NODE = 16, 56, 120, 152, 160, 168, 176, 184, 186, 188, 192
    vOffA, vNodeA, vAA, vEfA = 196, 197, 198, 199
    BF, CGF, PP, PL, PD = 200, 232, 240, 244, 248
    sW, sT, sRB, sG, sN, sBase, sLen = "s3", "s24", "s25", "s26", "s27", "s28", "s29"
    ts = TS(a, P.get("ts"), 60)
    a(".globl main_kernel\n.p2align 8\n.type main_kernel,@function\nmain_kernel:")
    a(f"s_cmp_ge_u32 s2, {NB}\ns_cbranch_scc1 K2_END")
    a("s_load_dwordx2 s[4:5], s[0:1], 0\ns_load_dwordx2 s[6:7], s[0:1], 64\ns_load_dwordx2 s[20:21], s[0:1], 80")
    ts.stamp()
    a("v_lshrrev_b32 v2, 6, v0\nv_and_b32 v1, 63, v0\nv_lshlrev_b32 v3, 2, v0")
    a("v_readfirstlane_b32 s3, v2")
    for k in range(4, 8): a(f"v_mov_b32 v{k}, 0")
    a(f"v_lshlrev_b32 v8, 4, v0\nv_add_u32 v8, {L_MARK}, v8")
    a("ds_write_b128 v8, v[4:7]")
    a("v_cmp_gt_u32 vcc, 128, v0\ns_and_saveexec_b64 s[22:23], vcc")
    a(f"ds_write_b32 v3, v4 offset:{L_CNT}")
    a("s_mov_b64 exec, s[22:23]")
    a("v_lshlrev_b32 v9, 4, v1")
    a("s_lshl_b32 s16, s2, 10")
    a("v_add_u32 v10, s16, v9")
    a(f"s_and_b32 s17, s3, 3\ns_lshl_b32 s17, s17, 13\ns_add_u32 s17, s17, {WS_WMF}")
    a("v_add_u32 v11, s17, v9")
    a(f"v_add_u32 v12, {WS_CST}, v9")
    a("s_waitcnt lgkmcnt(0)")
    a(f"global_load_dwordx4 v[{TP}:{TP+3}], v10, s[20:21]")
    a(f"global_load_dwordx4 v[{WF}:{WF+3}], v12, s[20:21]")
    a(f"global_load_dwordx4 v[{WF+4}:{WF+7}], v12, s[20:21] offset:1024")
    a(f"global_load_dwordx4 v[{CGF}:{CGF+3}], v12, s[20:21] offset:2048")
    a(f"global_load_dwordx4 v[{CGF+4}:{CGF+7}], v12, s[20:21] offset:3072")
    a("v_add_u32 v12, 4096, v11")
    for i in range(8):
        a(f"global_load_dwordx4 v[{BF+4*i}:{BF+4*i+3}], v{11 + i//4}, s[20:21] offset:{(i%4)*1024}")
    SAFE = P.get("safe")
    if SAFE: a("s_mov_b32 s8, s4\ns_mov_b32 s9, s5\ns_mov_b32 s10, 10240000\ns_mov_b32 s11, 0x20000")
    else: a("s_mov_b32 s8, s4\ns_and_b32 s9, s5, 0xffff\ns_or_b32 s9, s9, 0x100000\ns_mov_b32 s10, 10240000\ns_mov_b32 s11, 0x800000")
    a("s_mul_i32 s16, s2, 625\ns_add_u32 s17, s16, 640\ns_add_u32 s16, s16, 15\ns_lshr_b32 s16, s16, 4\ns_lshr_b32 s17, s17, 4")
    a("s_mov_b32 s12, s6\ns_mov_b32 s13, s7\ns_lshl_b32 s14, s17, 10\ns_mov_b32 s15, 0x20000")
    a("s_barrier")
    for k in range(40): a(f"v_mov_b32 v{ACC+k}, 0")
    a(f"v_mul_u32_u24 v13, {4*CH}, v1")
    a("s_waitcnt vmcnt(12)")
    ts.stamp()
    c = TP + 4
    for i in range(4):
        a(f"v_lshrrev_b32 v{c+i}, 16, v{TP+i}")
        a(f"v_and_b32 v{TP+i}, 0xffff, v{TP+i}")
    p = TP + 8
    a(f"v_add_u32 v{p+1}, v{c}, v{c+1}\nv_add_u32 v{p+2}, v{p+1}, v{c+2}\nv_add_u32 v{p+3}, v{p+2}, v{c+3}\nv_mov_b32 v{p+4}, v{p+3}")
    for i in range(4):
        a(f"v_add3_u32 v{PD+i}, v13, v{TP+i}, {i*CH}" if i*CH <= 64 else f"v_add_u32 v{PD+i}, {i*CH}, v{TP+i}\nv_add_u32 v{PD+i}, v13, v{PD+i}")
    scan_incl(a, "v_add_u32", [p+4])
    a(f"v_readlane_b32 {sT}, v{p+4}, 63")
    a(f"v_sub_u32 v{PP}, v{p+4}, v{p+3}")
    a(f"v_add_u32 v{PP+1}, v{PP}, v{c}\nv_add_u32 v{PP+2}, v{PP}, v{p+1}\nv_add_u32 v{PP+3}, v{PP}, v{p+2}")
    for i in range(4):
        a(f"v_sub_u32 v{PD+i}, v{PD+i}, v{PP+i}")
        a(f"v_add_u32 v{PL+i}, v{PP+i}, v{c+i}")
    a(f"s_mov_b32 {sRB}, 0")
    a("K2_ROUND:")
    a(f"s_mul_i32 s30, {sW}, {CAPW}\ns_add_u32 s30, s30, {sRB}")
    a(f"s_add_u32 s31, s30, {CAPW}")
    a(f"s_lshl_b32 s32, {sW}, 10\ns_add_u32 s32, s32, {L_MARK}")
    m = XR
    for i in range(4):
        a(f"v_subrev_u32 v{m+i}, s30, v{PP+i}\nv_max_i32 v{m+i}, 0, v{m+i}\nv_lshl_add_u32 v{m+i}, v{m+i}, 2, s32")
    for i in range(4):
        a(f"v_cmp_lt_u32 vcc, s30, v{PL+i}\nv_cmp_gt_u32 s[34:35], s31, v{PP+i}\ns_and_b64 exec, vcc, s[34:35]")
        a(f"ds_max_u32 v{m+i}, v{PD+i}")
        a("s_mov_b64 exec, -1")
    a(f"v_lshl_add_u32 v{m+4}, v1, 2, s32")
    for u in range(3): a(f"ds_read_b32 v{m+8+u}, v{m+4} offset:{u*256}")
    f = m + 12
    a(f"v_add_u32 v{f}, s30, v1\nv_add_u32 v{f+1}, 64, v{f}\nv_add_u32 v{f+2}, 128, v{f}")
    for u in range(3): a(f"v_cmp_gt_u32 s[{36+2*u}:{37+2*u}], {sT}, v{f+u}")
    a("s_waitcnt lgkmcnt(0)")
    scan_incl(a, "v_max_u32", [m+8, m+9, m+10])
    a(f"v_readlane_b32 s33, v{m+8}, 63\nv_readlane_b32 s34, v{m+9}, 63")
    a(f"s_max_u32 s34, s33, s34")
    a(f"v_max_u32 v{m+9}, s33, v{m+9}\nv_max_u32 v{m+10}, s34, v{m+10}")
    KEY = m + 16; PAYR = m + 20; ad = m + 32
    for u in range(3):
        a(f"v_add_u32 v{f+u}, v{f+u}, v{m+8+u}")
        a(f"v_lshlrev_b32 v{ad+u}, 2, v{f+u}\nv_add_u32 v{ad+u}, {WS_KEY}, v{ad+u}")
        a(f"v_lshlrev_b32 v{ad+3+u}, 4, v{f+u}\nv_add_u32 v{ad+3+u}, {WS_PAY}, v{ad+3+u}")
    a("s_mov_b32 s44, s20\ns_mov_b32 s45, s21\ns_mov_b32 s46, 0x662000\ns_mov_b32 s47, 0x20000")
    for u in range(3):
        a(f"s_mov_b64 exec, s[{36+2*u}:{37+2*u}]")
        a(f"buffer_load_dword v{KEY+u}, v{ad+u}, s[44:47], 0 offen")
    for u in range(3):
        a(f"s_mov_b64 exec, s[{36+2*u}:{37+2*u}]")
        a(f"buffer_load_dwordx4 v[{PAYR+4*u}:{PAYR+4*u+3}], v{ad+3+u}, s[44:47], 0 offen")
    a("s_mov_b64 exec, -1")
    ts.stamp()
    a("v_mov_b32 v14, 1")
    RK = m + 40; CI = m + 44
    for u in range(3):
        a(f"s_waitcnt vmcnt({5-u})")
        a(f"s_mov_b64 exec, s[{36+2*u}:{37+2*u}]")
        a(f"v_and_b32 v{CI+u}, 127, v{KEY+u}\nv_lshlrev_b32 v{ad+u}, 2, v{CI+u}")
        a(f"ds_add_rtn_u32 v{RK+u}, v{ad+u}, v14 offset:{L_CNT}")
    a("s_mov_b64 exec, -1")
    ts.stamp()
    a("v_lshlrev_b32 v15, 3, v1")
    for u in range(3):
        a(f"v_lshrrev_b32 v{ad+u}, 1, v{CI+u}\nv_lshlrev_b32 v{ad+u}, 2, v{ad+u}")
        a(f"v_and_b32 v{CI+u}, 1, v{CI+u}\nv_lshlrev_b32 v{CI+u}, 4, v{CI+u}")
        a(f"v_lshrrev_b32 v{ad+3+u}, 4, v{KEY+u}\nv_and_b32 v{ad+3+u}, 0x38, v{ad+3+u}")
        a(f"v_and_b32 v{KEY+u}, 0xfffffc00, v{KEY+u}")
    a("s_waitcnt lgkmcnt(0)\ns_barrier")
    q = m + 48
    a(f"ds_read_b64 v[{q}:{q+1}], v15 offset:{L_CNT}")
    a(f"s_lshl_b32 s33, {sW}, 3\ns_add_u32 s34, s33, 7")
    a(f"v_lshrrev_b32 v{q+6}, 3, v1\nv_mul_u32_u24 v{q+6}, 48, v{q+6}")
    a("s_waitcnt lgkmcnt(0)")
    a(f"v_add_u32 v{q+2}, v{q}, v{q+1}\nv_mov_b32 v{q+3}, v{q+2}")
    scan_incl(a, "v_add_u32", [q+3])
    a(f"v_sub_u32 v{q+2}, v{q+3}, v{q+2}")
    a(f"v_readlane_b32 {sLen}, v{q+3}, s34")
    a(f"v_mov_b32_dpp v{q+4}, v{q+2} row_newbcast:0 row_mask:0xf bank_mask:0x3")
    a(f"v_mov_b32_dpp v{q+4}, v{q+2} row_newbcast:8 row_mask:0xf bank_mask:0xc")
    a(f"v_readlane_b32 s35, v{q+2}, s33")
    a(f"v_add_u32 v{q+5}, 15, v{q+4}\nv_and_b32 v{q+5}, -16, v{q+5}\nv_add_u32 v{q+5}, v{q+5}, v{q+6}")
    a(f"v_sub_u32 v{q+4}, v{q+5}, v{q+4}\nv_add_u32 v{q+4}, v{q+4}, v{q+2}")
    a(f"v_add_u32 v{q}, v{q+4}, v{q}\nv_lshl_or_b32 v{q}, v{q}, 16, v{q+4}")
    a(f"v_readlane_b32 {sBase}, v{q+5}, s33")
    a(f"s_sub_u32 {sLen}, {sLen}, s35")
    for u in range(3): a(f"ds_bpermute_b32 v{ad+u}, v{ad+u}, v{q}")
    a(f"s_add_u32 s33, {sBase}, {sLen}")
    a(f"v_add_u32 v{q+1}, s33, v1\nv_lshlrev_b32 v{q+2}, 2, v{q+1}\nv_lshlrev_b32 v{q+3}, 4, v{q+1}")
    a(f"v_mov_b32 v{q+4}, {(N-1)*1024}")
    a(f"s_mov_b64 exec, 0xfffff")
    a(f"ds_write_b32 v{q+2}, v{q+4} offset:{L_OFF}\nds_write_b8 v{q+1}, v4 offset:{L_NODE}\nds_write_b128 v{q+3}, v[4:7] offset:{L_PAY}")
    a("s_waitcnt vmcnt(0) lgkmcnt(3)")
    for u in range(3):
        a(f"s_mov_b64 exec, s[{36+2*u}:{37+2*u}]")
        a(f"v_bfe_u32 v{ad+u}, v{ad+u}, v{CI+u}, 16\nv_add_u32 v{ad+u}, v{ad+u}, v{RK+u}")
        a(f"v_lshlrev_b32 v{RK+u}, 2, v{ad+u}\nv_lshlrev_b32 v{CI+u}, 4, v{ad+u}")
        a(f"ds_write_b32 v{RK+u}, v{KEY+u} offset:{L_OFF}")
        a(f"ds_write_b8 v{ad+u}, v{ad+3+u} offset:{L_NODE}")
        a(f"ds_write_b128 v{CI+u}, v[{PAYR+4*u}:{PAYR+4*u+3}] offset:{L_PAY}")
    a("s_mov_b64 exec, -1")
    a(f"s_lshl_b32 s33, {sBase}, 2\ns_add_u32 s33, s33, {L_OFF}\nv_mov_b32 v{vOffA}, s33")
    a(f"s_add_u32 s33, {sBase}, {L_NODE}\nv_mov_b32 v{vNodeA}, s33")
    a(f"s_lshl_b32 s33, {sBase}, 5\ns_add_u32 s33, s33, {L_A}\nv_add_u32 v{vAA}, s33, v15")
    a(f"s_lshl_b32 s34, {sBase}, 4\ns_add_u32 s34, s34, {L_PAY}")
    a(f"v_and_b32 v12, 15, v1\nv_lshl_add_u32 v{vEfA}, v12, 4, s34")
    a(f"v_add_u32 v10, s34, v9")
    a(f"v_lshrrev_b32 v11, 4, v1\nv_lshlrev_b32 v11, 3, v11\nv_lshl_add_u32 v11, v12, 5, v11\nv_add_u32 v11, s33, v11")
    a(f"s_add_u32 {sG}, {sLen}, 3\ns_lshr_b32 {sG}, {sG}, 2")
    a("s_waitcnt lgkmcnt(0)\ns_barrier")
    ts.stamp()
    a("v_cmp_gt_u32 vcc, 128, v0\ns_and_saveexec_b64 s[22:23], vcc")
    a(f"ds_write_b32 v3, v4 offset:{L_CNT}")
    a("s_mov_b64 exec, s[22:23]")
    a(f"s_cmp_eq_u32 {sG}, 0\ns_cbranch_scc1 K2_LOOPDONE")
    ng = DE // 4
    for g in range(ng): a(f"ds_read_b128 v[{TP+4*g}:{TP+4*g+3}], v{vOffA} offset:{16*g}")
    a(f"ds_read_b128 v[{OFFS}:{OFFS+3}], v{vOffA} offset:{16*ng}")
    a(f"ds_read_b64 v[{EF}:{EF+1}], v{vEfA} offset:8")
    a(f"ds_read_b128 v[{NODE}:{NODE+3}], v{vNodeA}")
    xaux = P.get("xaux", "")
    for g in range(ng):
        a(f"s_waitcnt lgkmcnt({ng - 1 - g + 3})")
        for e in range(4):
            n = 4*g + e
            if SAFE: a(f"v_add_u32 v{TP+n}, v9, v{TP+n}")
            a(f"buffer_load_dwordx4 v[{XR+4*n}:{XR+4*n+3}], v{TP+n}, s[8:11], 0 offen {xaux}")
    a(f"s_lshl_b32 s33, {sG}, 2")
    a("K2_APREP:")
    a(f"ds_read_b64 v[{TA}:{TA+1}], v10")
    a(f"v_cmp_gt_u32 vcc, s33, v1")
    a("v_add_u32 v10, 1024, v10")
    a("s_waitcnt lgkmcnt(0)")
    a(f"v_cndmask_b32 v{TA}, 0, v{TA}, vcc\nv_cndmask_b32 v{TA+1}, 0, v{TA+1}, vcc")
    for g in range(4):
        a(f"v_mfma_f32_16x16x16_bf16 v[{TP+16+4*g}:{TP+19+4*g}], v[{CGF+2*g}:{CGF+2*g+1}], v[{TA}:{TA+1}], 0")
    for g in range(4):
        a(f"v_add_u32 v{TB}, {16*g}, v12")
        a(f"v_cmp_gt_u32 vcc, s33, v{TB}")
        a(f"v_cvt_pk_bf16_f32 v{EE+2*g}, v{TP+16+4*g}, v{TP+17+4*g}\nv_cvt_pk_bf16_f32 v{EE+2*g+1}, v{TP+18+4*g}, v{TP+19+4*g}")
        a("s_mov_b64 exec, vcc")
        a(f"ds_write_b64 v11, v[{EE+2*g}:{EE+2*g+1}] offset:{512*g}")
        a("s_mov_b64 exec, -1")
    a("v_add_u32 v11, 2048, v11")
    a("s_sub_u32 s33, s33, 64\ns_cmp_gt_i32 s33, 0\ns_cbranch_scc1 K2_APREP")
    a(f"ds_read_b64 v[{AOP}:{AOP+1}], v{vAA}")
    def pre(T, ab):
        return [f"v_mfma_f32_4x4x4_16b_bf16 v[{T}:{T+3}], v[{EF}:{EF+1}], v[{WF}:{WF+1}], 0 cbsz:4 abid:{ab}",
                f"v_mfma_f32_4x4x4_16b_bf16 v[{T+4}:{T+7}], v[{EF}:{EF+1}], v[{WF+4}:{WF+5}], 0 cbsz:4 abid:{ab}",
                f"v_mfma_f32_4x4x4_16b_bf16 v[{T}:{T+3}], v[{EF}:{EF+1}], v[{WF+2}:{WF+3}], v[{T}:{T+3}] cbsz:4 abid:{ab}",
                f"v_mfma_f32_4x4x4_16b_bf16 v[{T+4}:{T+7}], v[{EF}:{EF+1}], v[{WF+6}:{WF+7}], v[{T+4}:{T+7}] cbsz:4 abid:{ab}"]
    for x in pre(TA, 0): a(x)
    a("s_nop 4")
    ts.stamp()
    a(".p2align 4\nK2_LOOP:")
    for qq in range(4):
        T = TA if qq % 2 == 0 else TB
        Tn = TB if qq % 2 == 0 else TA
        def tp(e, h):
            s = XR + 4 * (4*qq + e) + 2*h
            d = TP + 8*e + 4*h
            return f"v_mfma_f32_4x4x4_16b_bf16 v[{d}:{d+3}], v[{AOP}:{AOP+1}], v[{s}:{s+1}], 0 cbsz:4 abid:{4*qq+e}"
        def ld(e):
            s = XR + 4 * ((4*qq + e + DE) % 16)
            return (f"v_add_u32 v{OFFS+e}, v9, v{OFFS+e}\n" if SAFE else "") + f"buffer_load_dwordx4 v[{s}:{s+3}], v{OFFS+e}, s[8:11], 0 offen {xaux}"
        ex = [f"v_exp_f32 v{EE+i}, v{T+i}" for i in range(8)]
        rc = [f"v_rcp_f32 v{EE+i}, v{EE+i}" for i in range(8)]
        a("s_waitcnt lgkmcnt(0)")
        for e in range(3):
            a(f"s_waitcnt vmcnt({DE-1})")
            a(tp(e, 0)); a(ex[2*e]); a(tp(e, 1)); a(ld(e)); a(ex[2*e+1])
        a(ex[6]); a(ex[7])
        for i in range(4): a(f"v_pk_add_f32 v[{EE+2*i}:{EE+2*i+1}], v[{EE+2*i}:{EE+2*i+1}], 1.0 op_sel_hi:[1,0]")
        pm = pre(Tn, (qq + 1) % 4)
        a(f"s_waitcnt vmcnt({DE-1})")
        a(tp(3, 0)); a(rc[0]); a(tp(3, 1)); a(ld(3)); a(rc[1])
        a(f"ds_read_b128 v[{OFFS}:{OFFS+3}], v{vOffA} offset:{16*(qq + 1 + ng)}")
        if qq == 3: a(f"ds_read_b64 v[{AOP}:{AOP+1}], v{vAA} offset:512")
        a(pm[0]); a(rc[2]); a(pm[1]); a(rc[3]); a(pm[2]); a(rc[4]); a(pm[3])
        if qq == 2: a(f"ds_read_b64 v[{EF}:{EF+1}], v{vEfA} offset:{256+8}")
        a(rc[5]); a(rc[6]); a(rc[7])
        a(f"v_readfirstlane_b32 {sN}, v{NODE+qq}")
        if qq == 3:
            a(f"ds_read_b128 v[{NODE}:{NODE+3}], v{vNodeA} offset:16")
            a(f"v_add_u32 v{vOffA}, 64, v{vOffA}\nv_add_u32 v{vNodeA}, 16, v{vNodeA}\nv_add_u32 v{vAA}, 512, v{vAA}\nv_add_u32 v{vEfA}, 256, v{vEfA}")
        for i in range(4): a(f"v_pk_mul_f32 v[{EE+2*i}:{EE+2*i+1}], v[{EE+2*i}:{EE+2*i+1}], v[{T+2*i}:{T+2*i+1}]")
        for e in range(4):
            a(f"s_set_gpr_idx_on {sN}, gpr_idx(SRC2,DST)" if e == 0 else f"s_lshr_b32 {sN}, {sN}, 8\ns_set_gpr_idx_idx {sN}")
            for h in range(2):
                r = EE + 4*h + (e & ~1); sel = e & 1
                for i in range(2):
                    d = ACC + 4*h + 2*i; t = TP + 8*e + 4*h + 2*i
                    a(f"v_pk_fma_f32 v[{d}:{d+1}], v[{r}:{r+1}], v[{t}:{t+1}], v[{d}:{d+1}] op_sel:[{sel},0,0] op_sel_hi:[{sel},1,1]")
        a("s_set_gpr_idx_off")
        a(f"s_sub_u32 {sG}, {sG}, 1\ns_cmp_eq_u32 {sG}, 0")
        a("s_cbranch_scc1 K2_LOOPDONE" if qq < 3 else "s_cbranch_scc0 K2_LOOP")
    a("K2_LOOPDONE:")
    ts.stamp()
    a(f"s_add_u32 {sRB}, {sRB}, {CAP}\ns_cmp_ge_u32 {sRB}, {sT}\ns_cbranch_scc1 K2_EPI")
    a("s_waitcnt vmcnt(0) lgkmcnt(0)")
    a("ds_write_b128 v8, v[4:7]")
    a("s_waitcnt lgkmcnt(0)\ns_barrier\ns_branch K2_ROUND")
    a("K2_EPI:")
    a(f"s_mov_b32 s30, {f32(-LN2)}\ns_mov_b32 s31, s30")
    a(f"v_lshrrev_b32 v10, 2, v1\nv_lshlrev_b32 v10, 4, v10\nv_and_b32 v11, 3, v1\nv_lshl_or_b32 v10, v11, 2, v10")
    a(f"s_mul_i32 s32, {sW}, 20")
    for k in range(20): a(f"v_pk_mul_f32 v[{ACC+2*k}:{ACC+2*k+1}], v[{ACC+2*k}:{ACC+2*k+1}], s[30:31]")
    a("s_waitcnt lgkmcnt(0)")
    for s in range(5):
        for mm in range(4):
            k = 4*s + mm
            a(f"s_add_u32 s33, s32, {k}\ns_and_b32 s34, s33, 15\ns_lshl_b32 s34, s34, 4\ns_lshl_b32 s33, s33, 8\ns_add_u32 s33, s33, {L_AGG}")
            a(f"v_cvt_pk_bf16_f32 v{EE + k%4}, v{ACC+8*s+mm}, v{ACC+8*s+4+mm}")
            a(f"v_xor_b32 v{EE+4 + k%4}, s34, v10\nv_add_u32 v{EE+4 + k%4}, s33, v{EE+4 + k%4}")
            a(f"ds_write_b32 v{EE+4 + k%4}, v{EE + k%4}")
    a(f"v_and_b32 v12, 15, v1\nv_lshrrev_b32 v11, 4, v1\nv_xor_b32 v13, v11, v12")
    a(f"s_lshr_b32 s33, {sW}, 2\ns_lshl_b32 s34, s33, 12\ns_add_u32 s34, s34, {L_AGG}")
    a(f"v_lshl_add_u32 v14, v12, 8, s34")
    for ks in range(4):
        a(f"v_xor_b32 v{TA+ks}, {4*ks}, v13\nv_lshl_add_u32 v{TA+ks}, v{TA+ks}, 4, v14")
    a(f"s_lshl_b32 s33, s33, 2\ns_add_u32 s33, s33, s16\ns_lshl_b32 s33, s33, 10\ns_and_b32 s34, {sW}, 3\ns_lshl_b32 s34, s34, 8\ns_add_u32 s33, s33, s34")
    a(f"v_lshlrev_b32 v11, 10, v11\nv_lshl_add_u32 v11, v12, 4, v11\nv_add_u32 v11, s33, v11")
    a("s_waitcnt vmcnt(0) lgkmcnt(0)\ns_barrier")
    ts.stamp()
    FA = XR
    for i in range(4):
        for ks in range(4): a(f"ds_read_b128 v[{FA+16*i+4*ks}:{FA+16*i+4*ks+3}], v{TA+ks} offset:{8192*i}")
    ost = P.get("out_aux", "")
    for i in range(5):
        D = TP + 8 * (i % 2)
        O = TP + 16 + 4 * (i % 2)
        fi = FA + 16 * (i % 4)
        for ks in range(4):
            if i < 4: a(f"s_waitcnt lgkmcnt({min(15, 15 - 4*i - ks + (4 if i >= 1 else 0))})")
            else: a(f"s_waitcnt lgkmcnt({3 - ks})")
            for t in range(2):
                b = BF + 16*t + 4*ks
                a(f"v_mfma_f32_16x16x32_bf16 v[{D+4*t}:{D+4*t+3}], v[{fi+4*ks}:{fi+4*ks+3}], v[{b}:{b+3}], " + ("0" if ks == 0 else f"v[{D+4*t}:{D+4*t+3}]"))
        if i == 0:
            for ks in range(4): a(f"ds_read_b128 v[{FA+4*ks}:{FA+4*ks+3}], v{TA+ks} offset:{8192*4}")
        if i >= 1:
            Dp = TP + 8 * ((i-1) % 2); Op = TP + 16 + 4 * ((i-1) % 2)
            for k in range(4): a(f"v_cvt_pk_bf16_f32 v{Op+k}, v{Dp+2*k}, v{Dp+2*k+1}")
            a(f"s_mov_b32 s33, {8192*(i-1)}")
            a(f"buffer_store_dwordx4 v[{Op}:{Op+3}], v11, s[12:15], s33 offen {ost}")
    Dp = TP; Op = TP + 16
    for k in range(4): a(f"v_cvt_pk_bf16_f32 v{Op+k}, v{Dp+2*k}, v{Dp+2*k+1}")
    a(f"s_mov_b32 s33, {8192*4}")
    a(f"buffer_store_dwordx4 v[{Op}:{Op+3}], v11, s[12:15], s33 offen {ost}")
    if P.get("ts"): a("s_waitcnt vmcnt(0)")
    ts.stamp()
    ts.dump(20, WS_TS + 0x100000, "s2", "s3", 16)
    a("K2_END:\ns_endpgm")
    return L_END, 256

def gen(P=None, verbose=False):
    P = P or {}
    a = Asm()
    lds1, nv1 = gen_k1(a, P)
    lds2, nv2 = gen_k2(a, P)
    nnull = P.get("nnull", 0) + P.get("nnull_mid", 0) + P.get("nnull_pre", 0)
    if nnull: a(".globl null_kernel\n.p2align 8\n.type null_kernel,@function\nnull_kernel:\ns_endpgm")
    body = a.text(verbose=verbose)
    lds1 = max(lds1, P.get("lds1", 0))
    nl = "; @launch kernel=null_kernel grid=(256,1,1) block=(64,1,1) lds=0\n"
    head = HEADER + nl * P.get("nnull_pre", 0) + f"; @launch kernel=part_kernel grid=({NB},1,1) block=(704,1,1) lds={lds1}\n" * P.get("rep1", 1) \
                  + nl * P.get("nnull_mid", 0) \
                  + f"; @launch kernel=main_kernel grid=({NB},1,1) block=(512,1,1) lds={lds2}\n" * P.get("rep2", 1) + nl * P.get("nnull", 0) \
                  + '.amdgcn_target "amdgcn-amd-amdhsa--gfx950"\n.text\n'
    ns = 100 if P.get("ts") else 64
    tail = '.section .rodata,"a"\n' + desc("part_kernel", nv1, ns) + desc("main_kernel", nv2, ns) + (desc("null_kernel", 8, 16) if nnull else "")
    return head + body + tail

if __name__ == "__main__":
    P = eval(sys.argv[2]) if len(sys.argv) > 2 else {}
    open(sys.argv[1], "w").write(gen(P, verbose=True))
```

```python
def pre_mfmas(R, T, ab, P):
    EF, WF = R["EF"], R["WF"]
    l = [f"v_mfma_f32_4x4x4_16b_bf16 v[{T}:{T+3}], v[{EF}:{EF+1}], v[{WF}:{WF+1}], 0 cbsz:4 abid:{ab}",
         f"v_mfma_f32_4x4x4_16b_bf16 v[{T+4}:{T+7}], v[{EF}:{EF+1}], v[{WF+4}:{WF+5}], 0 cbsz:4 abid:{ab}",
         f"v_mfma_f32_4x4x4_16b_bf16 v[{T}:{T+3}], v[{EF}:{EF+1}], v[{WF+2}:{WF+3}], v[{T}:{T+3}] cbsz:4 abid:{ab}",
         f"v_mfma_f32_4x4x4_16b_bf16 v[{T+4}:{T+7}], v[{EF}:{EF+1}], v[{WF+6}:{WF+7}], v[{T+4}:{T+7}] cbsz:4 abid:{ab}"]
    return l[:2] if P.get("nolo") else l

def gen_loop(a_real, R, P, L):
    g = R.get
    ACC, XR, TP, TA, TB, EE, AOP, EF, OFFS, NODE = (R[k] for k in "ACC XR TP TA TB EE AOP EF OFFS NODE".split())
    vOffA, vNodeA, vAA, vEfA, sG, sN = (R[k] for k in "vOffA vNodeA vAA vEfA sG sN".split())
    vPm, vPo, vPv = R["vPm"], R["vPo"], R["vPv"]
    DE = P.get("DE", 8); ng = DE // 4; RING = R.get("RING", 16)
    PR = P.get("prio", ""); SAFE = P.get("safe"); xaux = P.get("xaux", "")
    sched = P.get("sched", "a"); XS = R.get("XS", "s[8:11]")
    inc = (0, 0, 0, 0) if P.get("bench") else (64, 16, 512, 256)
    drop = tuple(P.get("nocomp", ()))
    def a(t):
        for l in t.split("\n"):
            if l.strip() and not (drop and l.strip().startswith(drop)): a_real(l)
    a(".p2align 4\nK2_LOOP:")
    if P.get("trace"):
        a("s_memtime s[90:91]\ns_memrealtime s[92:93]\ns_waitcnt lgkmcnt(0)\ns_mov_b32 m0, s94\nv_writelane_b32 v250, s90, m0\nv_writelane_b32 v251, s92, m0\ns_add_u32 s94, s94, 1")
    for qq in range(4):
        T = TA if qq % 2 == 0 else TB
        Tn = TB if qq % 2 == 0 else TA
        def tp(e, h):
            s = XR + 4 * ((4*qq + e) % RING) + 2*h
            d = TP + 8*e + 4*h
            return f"v_mfma_f32_4x4x4_16b_bf16 v[{d}:{d+3}], v[{AOP}:{AOP+1}], v[{s}:{s+1}], 0 cbsz:4 abid:{4*qq+e}"
        def ld(e):
            s = XR + 4 * ((4*qq + e + DE) % RING)
            if P.get("noload"): return ""
            return (f"v_add_u32 v{OFFS+e}, v9, v{OFFS+e}\n" if SAFE else "") + f"buffer_load_dwordx4 v[{s}:{s+3}], v{OFFS+e}, {XS}, 0 offen {xaux}"
        ex = [f"v_exp_f32 v{EE+i}, v{T+i}" for i in range(8)]
        rc = [f"v_rcp_f32 v{EE+i}, v{EE+i}" for i in range(8)]
        ad = [f"v_pk_add_f32 v[{EE+2*i}:{EE+2*i+1}], v[{EE+2*i}:{EE+2*i+1}], 1.0 op_sel_hi:[1,0]" for i in range(4)]
        mu = [f"v_pk_mul_f32 v[{EE+2*i}:{EE+2*i+1}], v[{EE+2*i}:{EE+2*i+1}], v[{T+2*i}:{T+2*i+1}]" for i in range(4)]
        pm = pre_mfmas(R, Tn, (qq + 1) % 4, P) + ["", ""]
        def fma(e):
            o = [f"s_set_gpr_idx_on {sN}, gpr_idx(SRC2,DST)" if e == 0 else f"s_lshr_b32 {sN}, {sN}, 8\ns_set_gpr_idx_idx {sN}"]
            for h in range(2):
                r = EE + 4*h + (e & ~1); sel = e & 1
                for i in range(2):
                    d = ACC + 4*h + 2*i; t = TP + 8*e + 4*h + 2*i
                    o.append(f"v_pk_fma_f32 v[{d}:{d+1}], v[{r}:{r+1}], v[{t}:{t+1}], v[{d}:{d+1}] op_sel:[{sel},0,0] op_sel_hi:[{sel},1,1]")
            return "\n".join(o)
        dsoff = f"ds_read_b128 v[{OFFS}:{OFFS+3}], v{vOffA} offset:{16*(qq + 1 + ng)}"
        dsA = f"ds_read_b64 v[{AOP}:{AOP+1}], v{vAA} offset:512" if qq == 3 else ""
        dsP = f"ds_read_b32 v{vPv}, v{vPo} offset:{L['PROG']}" if (PR == "pair1" or (PR == "pair2" and qq % 2 == 1) or (PR == "pair4" and qq == 3)) else ""
        dsE = f"ds_read_b64 v[{EF}:{EF+1}], v{vEfA} offset:{256+8}" if qq == 2 else ""
        rfl = f"v_readfirstlane_b32 {sN}, v{NODE+qq}"
        dsN = (f"ds_read_b128 v[{NODE}:{NODE+3}], v{vNodeA} offset:16\n"
               f"v_add_u32 v{vOffA}, {inc[0]}, v{vOffA}\nv_add_u32 v{vNodeA}, {inc[1]}, v{vNodeA}\nv_add_u32 v{vAA}, {inc[2]}, v{vAA}\nv_add_u32 v{vEfA if not P.get('bench') else 3}, {inc[3] if not P.get('bench') else 1}, v{vEfA if not P.get('bench') else 3}") if qq == 3 else ""
        PV = 3 if P.get("bench") else OFFS
        def prio():
            dop = PR == "pair1" or (PR == "pair2" and qq % 2 == 0) or (PR == "pair4" and qq == 0)
            if dop:
                a(f"v_cmp_gt_u32 vcc, v{PV}, v{vPv}")
                a(f"ds_write_b32 v{vPm}, v{PV} offset:{L['PROG']}")
                a(f"s_setprio 0\ns_cbranch_vccnz K2_P{qq}\ns_setprio 1\nK2_P{qq}:")
            if PR == "quart" and qq == 0:
                a(f"s_cmp_le_i32 {sG}, s41\ns_cbranch_scc1 K2_PRIO\nK2_PRIOBACK:")
        if sched == "a":
            a("s_waitcnt lgkmcnt(0)")
            prio()
            for e in range(3):
                a(f"s_waitcnt vmcnt({DE-1})")
                a(tp(e, 0)); a(ex[2*e]); a(tp(e, 1)); a(ld(e)); a(ex[2*e+1])
            a(ex[6]); a(ex[7])
            for x in ad: a(x)
            a(f"s_waitcnt vmcnt({DE-1})")
            a(tp(3, 0)); a(rc[0]); a(tp(3, 1)); a(ld(3)); a(rc[1])
            a(dsoff); a(dsA); a(dsP)
            a(pm[0]); a(rc[2]); a(pm[1]); a(rc[3]); a(pm[2]); a(rc[4]); a(pm[3]); a(dsE)
            a(rc[5]); a(rc[6]); a(rc[7]); a(rfl); a(dsN)
            for x in mu: a(x)
            for e in range(4): a(fma(e))
            a("s_set_gpr_idx_off")
        elif sched == "b":
            a(f"s_waitcnt vmcnt({DE-2}) lgkmcnt(0)")
            prio()
            a(tp(0, 0)); a(ex[0]); a(tp(0, 1)); a(ex[1]); a(tp(1, 0)); a(ex[2]); a(tp(1, 1)); a(ld(0)); a(ld(1)); a(ex[3])
            a(f"s_waitcnt vmcnt({DE-2})")
            a(tp(2, 0)); a(ex[4]); a(tp(2, 1)); a(ex[5]); a(ex[6]); a(ex[7])
            for x in ad: a(x)
            a(tp(3, 0)); a(rc[0]); a(tp(3, 1)); a(ld(2)); a(ld(3)); a(rc[1])
            a(dsoff); a(dsA); a(dsP)
            a(pm[0]); a(rc[2]); a(pm[1]); a(rc[3]); a(pm[2]); a(rc[4]); a(pm[3]); a(dsE)
            a(rc[5]); a(rc[6]); a(rc[7]); a(rfl); a(dsN)
            for x in mu: a(x)
            for e in range(4): a(fma(e))
            a("s_set_gpr_idx_off")
        elif sched == "c":
            a(f"s_waitcnt vmcnt({DE-4}) lgkmcnt(0)")
            prio()
            a(tp(0, 0)); a(ld(0)); a(ex[0]); a(tp(0, 1)); a(ld(1)); a(ex[1]); a(tp(1, 0)); a(ld(2)); a(ex[2]); a(tp(1, 1)); a(ld(3)); a(ex[3])
            a(tp(2, 0)); a(dsoff); a(ex[4]); a(tp(2, 1)); a(ex[5]); a(ex[6]); a(ex[7])
            for x in ad: a(x)
            a(tp(3, 0)); a(rc[0]); a(tp(3, 1)); a(rc[1])
            a(dsA); a(dsP)
            a(pm[0]); a(rc[2]); a(pm[1]); a(rc[3]); a(pm[2]); a(rc[4]); a(pm[3]); a(dsE)
            a(rc[5]); a(rc[6]); a(rc[7]); a(rfl); a(dsN)
            for x in mu: a(x)
            for e in range(4): a(fma(e))
            a("s_set_gpr_idx_off")
        else:
            from loopx import extra
            extra(sched, a, locals())
        a(f"s_sub_u32 {sG}, {sG}, 1\ns_cmp_eq_u32 {sG}, 0" if not P.get("subcc") else f"s_sub_u32 {sG}, {sG}, 1")
        if P.get("subcc"):
            a("s_cbranch_scc1 K2_LOOPDONE" if qq < 3 else "s_cbranch_scc0 K2_LOOP")
        else:
            a("s_cbranch_scc1 K2_LOOPDONE" if qq < 3 else "s_cbranch_scc0 K2_LOOP")
    a = a_real
    if PR == "quart":
        a("s_branch K2_LOOPDONE\nK2_PRIO:\ns_sub_i32 s41, s41, s40\ns_add_u32 s42, s42, 1")
        a("s_setprio 2\ns_cmp_eq_u32 s42, 1\ns_cbranch_scc1 K2_PRIOBACK\ns_setprio 1\ns_cmp_eq_u32 s42, 2\ns_cbranch_scc1 K2_PRIOBACK\ns_setprio 0\ns_branch K2_PRIOBACK")
    a("K2_LOOPDONE:")
```

```python
import sys, struct
from asmlib import Asm
from loopgen import gen_loop, pre_mfmas
from gen import HEADER as _H, scan_incl, f32, LOG2E, LN2

N, E = 10000, 320000
NB, CH, CS = 256, 1250, 1280
WS_EPO, WS_FLG, WS_TAB, WS_KEY, WS_PAY, WS_END = 0, 0x6C2000, 0x2000, 0x82000, 0x1C2000, 0x6D2000
WS_TS = 0x8000000
NAME = "gather_scatter__tensor_product_equiv_tfn__graph_kernel"
HEADER = _H[:_H.index("; Launch 1")] + """; One launch, 256 workgroups (one per CU).  Phase 1: every workgroup bins its chunk of 1250 edges by
; destination block and publishes the binned chunk in d_ws (write-through stores, tagged table row, flag).
; Phase 2: the workgroup collects its own bin, sorts it by (owner wave, source bucket), gathers x rows,
; does the tensor product + radial gate in registers, mixes the channels and stores.
; If the hand-off never arrives (workgroups not co-resident) a workgroup scans the raw edge list itself.
"""
A39 = [6, 5, 6, 7, 4, 2, 0, 1, 3, 4, 6, 3, 2, 0, 6, 1, 3, 5, 7, 1, 0, 5, 7, 4, 2, 1, 5, 4, 7, 3, 2, 0, 2, 0, 7, 1, 3, 4, 5, 6]
A40 = [3, 2, 4, 7, 0, 1, 6, 0, 5, 1, 7, 5, 6, 3, 4, 6, 5, 0, 2, 7, 1, 4, 6, 3, 2, 1, 3, 0, 5, 4, 2, 7, 2, 5, 4, 7, 1, 6, 0, 3]

def gen(P=None, verbose=False):
    P = dict(dict(prio="pair4", sched="b", subcc=1, out_aux="sc1"), **(P or {}))
    a = Asm()
    DE = P.get("DE", 8); SAFE = P.get("safe"); PR = P["prio"]
    CAPW = 192; CAP = 8 * CAPW; NE = CAP + 8 * 48 + 16
    L_CNT, L_DEG, L_HCNT = 0, 512, 768
    L_FB = 1792
    L_PROG = 2048
    L_OFF = 4096
    L_NODE = L_OFF + NE * 4
    L_PAY = (L_NODE + NE + 63) // 64 * 64
    L_A = L_PAY + NE * 16
    L_AGG = (L_A + NE * 32 + 255) // 256 * 256
    L_MARK = L_AGG
    RS = 288
    L_END = L_AGG + 160 * RS
    L_PRE = L_OFF; L_TABL = L_OFF + 1024; L_SKEY = L_OFF + 2048; L_SPAY = L_PAY
    assert L_SKEY + 5120 <= L_NODE and L_SPAY + CH * 16 <= L_A and L_PAY < 65536 - 20480
    ACC, XR, TP, TA, TB, EE, WF, AOP, EF, OFFS, NODE = 16, 56, 120, 152, 160, 168, 176, 184, 186, 188, 192
    vOffA, vNodeA, vAA, vEfA = 196, 197, 198, 199
    BF, CGF, PP, PL, PD = 200, 232, 240, 244, 248
    vPm, vPo, vPv = 252, 253, 254
    sW, sT, sRB, sG, sN, sBase, sLen, sTag, sBin, sNs, sFB = "s3", "s46", "s47", "s48", "s49", "s50", "s51", "s52", "s53", "s54", "s55"
    XS, OS, WSR = "s[28:31]", "s[32:35]", "s[36:39]"
    M = lambda u: f"s[{40+2*u}:{41+2*u}]"
    tsn = [0]
    def stamp():
        if P.get("ts"):
            r = 70 + 2 * tsn[0]; a(f"s_memrealtime s[{r}:{r+1}]"); tsn[0] += 1
    a(f".globl {NAME}\n.p2align 8\n.type {NAME},@function\n{NAME}:")
    a(f"s_cmp_ge_u32 s2, {NB}\ns_cbranch_scc1 K_END")
    a("s_load_dwordx16 s[4:19], s[0:1], 0\ns_load_dwordx4 s[20:23], s[0:1], 64\ns_load_dwordx2 s[24:25], s[0:1], 80")
    stamp()
    if P.get("diag_hold"): a("s_memrealtime s[66:67]")
    a("v_lshrrev_b32 v2, 6, v0\nv_and_b32 v1, 63, v0\nv_lshlrev_b32 v3, 2, v0")
    a("v_readfirstlane_b32 s3, v2")
    for k in range(4, 8): a(f"v_mov_b32 v{k}, 0")
    a("v_cvt_f32_u32 v10, v1")
    a(f"v_lshlrev_b32 v8, 4, v0\nv_add_u32 v8, {L_MARK}, v8")
    a("s_cmp_eq_u32 s3, 2\ns_cselect_b32 s56, -1, 0")
    a("ds_write_b128 v8, v[4:7]")
    a("v_and_b32 v10, s56, v10")
    a(f"ds_write_b32 v3, v4 offset:{L_PROG}")
    a("ds_write_b32 v3, v10")
    a(f"s_mul_i32 s57, s2, {CH*4}")
    D, S, Y, F = TP, TP + 3, TP + 6, TP + 12
    o4 = TP + 18; o8 = TP + 21
    a(f"v_add_u32 v{o4}, s57, v3\nv_add_u32 v{o4+1}, 2048, v{o4}\nv_add_u32 v{o4+2}, 4096, v{o4}")
    a(f"v_cmp_gt_u32 vcc, {CH - 1024}, v0\ns_mov_b64 {M(2)}, vcc")
    a("s_getpc_b64 s[26:27]\nK_PC:\ns_add_u32 s26, s26, K_TAB-K_PC\ns_addc_u32 s27, s27, 0")
    a(f"s_and_b32 {sBin}, s2, 7\ns_lshr_b32 s56, s2, 3\ns_lshl_b32 {sBin}, {sBin}, 5\ns_or_b32 {sBin}, {sBin}, s56")
    la = P.get("load_aux", "")
    a("s_waitcnt lgkmcnt(0)")
    a(f"s_load_dword {sTag}, s[24:25], {WS_EPO}")
    def loads3(fmt):
        a(fmt(0)); a(fmt(1)); a(f"s_mov_b64 exec, {M(2)}"); a(fmt(2)); a("s_mov_b64 exec, -1")
    loads3(lambda u: f"global_load_dword v{D+u}, v{o4+u}, s[8:9] {la}")
    for u in range(3): a(f"v_lshlrev_b32 v{o8+u}, 1, v{o4+u}")
    a("s_barrier")
    loads3(lambda u: f"global_load_dword v{S+u}, v{o4+u}, s[6:7] {la}")
    loads3(lambda u: f"global_load_dwordx2 v[{Y+2*u}:{Y+2*u+1}], v{o8+u}, s[10:11] {la}")
    loads3(lambda u: f"global_load_dwordx2 v[{F+2*u}:{F+2*u+1}], v{o8+u}, s[12:13] {la}")
    a(f"s_mul_i32 {sNs}, {sBin}, 625\ns_add_u32 s57, {sNs}, 640\ns_add_u32 {sNs}, {sNs}, 15\ns_lshr_b32 {sNs}, {sNs}, 4\ns_lshr_b32 s57, s57, 4")
    a(f"s_sub_u32 s56, s57, {sNs}\ns_sub_u32 s56, s56, 39\ns_lshl_b32 s56, s56, 6")
    a("v_add_u32 v11, s56, v1\nv_lshlrev_b32 v9, 4, v1\nv_lshlrev_b32 v15, 2, v1")
    a("global_load_ubyte v2, v11, s[26:27]")
    RW, RC, RM = BF, BF + 4, TP
    for k in range(4): a(f"global_load_dword v{RW+k}, v15, s[14:15] offset:{k*256}")
    a("v_and_b32 v12, 3, v1\nv_lshlrev_b32 v12, 5, v12\nv_bfe_u32 v13, v1, 2, 2\nv_lshl_or_b32 v12, v13, 1, v12")
    for f in range(4): a(f"global_load_ushort v{RC+f}, v12, s[16:17] offset:{f*8}")
    NC = 9
    L_WM = L_AGG + 8192
    a(f"s_lshl_b32 s56, {sW}, 12\nv_add_u32 v13, s56, v9\ns_add_u32 s56, s56, {L_WM}\ns_mov_b32 m0, s56\ns_nop 0")
    for i in range(4): a(f"global_load_lds_dwordx4 v13, s[18:19] offset:{i*1024}")
    NC += 4
    if SAFE: a("s_mov_b32 s28, s4\ns_mov_b32 s29, s5\ns_mov_b32 s30, 10240000\ns_mov_b32 s31, 0x20000")
    else: a("s_mov_b32 s28, s4\ns_and_b32 s29, s5, 0xffff\ns_or_b32 s29, s29, 0x100000\ns_mov_b32 s30, 10240000\ns_mov_b32 s31, 0x800000")
    a("s_mov_b32 s32, s20\ns_mov_b32 s33, s21\ns_lshl_b32 s34, s57, 10\ns_mov_b32 s35, 0x20000")
    a(f"s_mov_b32 s36, s24\ns_mov_b32 s37, s25\ns_mov_b32 s38, {WS_END}\ns_mov_b32 s39, 0x20000")
    a(f"s_mov_b32 {sRB}, 0\ns_mov_b64 {M(0)}, -1\ns_mov_b64 {M(1)}, -1")
    a("v_mov_b32 v14, 1")
    for k in range(40): a(f"v_mov_b32 v{ACC+k}, 0")
    B4, RK1, KY = TP + 18, TP + 21, TP + 24
    t = TP + 27
    def keycalc(u, Dr, Sr, Br, Kr, tmp):
        a(f"v_mul_u32_u24 v{tmp}, 625, v{Br}\nv_add_u32 v{tmp}, 15, v{tmp}\nv_lshrrev_b32 v{tmp}, 4, v{tmp}\nv_sub_u32 v{Kr}, v{Dr}, v{tmp}")
    def keycalc2(Sr, Kr, tmp):
        a(f"v_mul_u32_u24 v{tmp}, 1677, v{Sr}\nv_lshrrev_b32 v{tmp}, 20, v{tmp}\nv_lshl_or_b32 v{Kr}, v{Kr}, 4, v{tmp}\nv_lshl_or_b32 v{Kr}, v{Sr}, 10, v{Kr}")
    for u in range(3):
        a(f"s_waitcnt vmcnt({2 - u + 9 + NC})")
        if u == 0: stamp()
        a(f"v_mul_u32_u24 v{t+u}, 214749, v{D+u}\nv_lshrrev_b32 v{t+u}, 23, v{t+u}\nv_lshlrev_b32 v{B4+u}, 2, v{t+u}")
        if u == 2: a(f"s_mov_b64 exec, {M(2)}")
        a(f"ds_add_rtn_u32 v{RK1+u}, v{B4+u}, v14 offset:{L_HCNT}")
    a("s_mov_b64 exec, -1")
    for u in range(3): keycalc(u, D+u, S+u, t+u, KY+u, TA)
    a("s_waitcnt lgkmcnt(0)\ns_barrier")
    stamp()
    c = TA; q = TB
    a(f"ds_read_b128 v[{c}:{c+3}], v9 offset:{L_HCNT}")
    a(f"s_add_u32 {sTag}, {sTag}, 1\ns_and_b32 s56, {sTag}, 0x3ff\ns_lshl_b32 s58, s56, 22")
    a(f"s_waitcnt vmcnt({6 + NC})")
    for u in range(3): keycalc2(S+u, KY+u, t+u)
    a("s_waitcnt lgkmcnt(0)")
    a(f"v_add_u32 v{c+4}, v{c}, v{c+1}\nv_add_u32 v{c+5}, v{c+4}, v{c+2}\nv_add_u32 v{c+6}, v{c+5}, v{c+3}\nv_mov_b32 v{q}, v{c+6}")
    scan_incl(a, "v_add_u32", [q])
    a(f"v_sub_u32 v{q}, v{q}, v{c+6}\nv_add_u32 v{q+1}, v{q}, v{c}\nv_add_u32 v{q+2}, v{q}, v{c+4}\nv_add_u32 v{q+3}, v{q}, v{c+5}")
    a(f"ds_write_b128 v9, v[{q}:{q+3}] offset:{L_PRE}")
    for u in range(3): a(f"ds_read_b32 v{t+u}, v{B4+u} offset:{L_PRE}")
    a(f"s_cmp_lg_u32 {sW}, 7\ns_cbranch_scc1 K_NOROW")
    g = EE
    for i in range(4):
        a(f"v_lshl_or_b32 v{g+2*i}, v{c+i}, 11, v{q+i}\nv_or_b32 v{g+2*i}, s58, v{g+2*i}\nv_mov_b32 v{g+2*i+1}, {sTag}")
    a(f"s_lshl_b32 s57, s2, 11\ns_add_u32 s57, s57, {WS_TAB}\nv_lshlrev_b32 v10, 5, v1")
    a(f"buffer_store_dwordx4 v[{g}:{g+3}], v10, {WSR}, s57 offen sc1\nbuffer_store_dwordx4 v[{g+4}:{g+7}], v10, {WSR}, s57 offen offset:16 sc1")
    a(f"s_waitcnt vmcnt({NC + 2})\ns_branch K_ROWDONE")
    a(f"K_NOROW:\ns_waitcnt vmcnt({NC})\nK_ROWDONE:")
    a("s_waitcnt lgkmcnt(0)")
    for u in range(3):
        if u == 2: a(f"s_mov_b64 exec, {M(2)}")
        a(f"v_add_u32 v{t+u}, v{t+u}, v{RK1+u}\nv_lshlrev_b32 v{B4+u}, 2, v{t+u}\nv_lshlrev_b32 v{t+u}, 4, v{t+u}\nv_add_u32 v{t+u}, {L_SPAY}, v{t+u}")
        a(f"ds_write_b32 v{B4+u}, v{KY+u} offset:{L_SKEY}")
        a(f"ds_write2_b64 v{t+u}, v[{Y+2*u}:{Y+2*u+1}], v[{F+2*u}:{F+2*u+1}] offset0:0 offset1:1")
    a("s_mov_b64 exec, -1")
    a("v_lshlrev_b32 v10, 4, v0")
    a(f"s_mul_i32 s56, s2, {CS*16}\ns_add_u32 s56, s56, {WS_PAY}\ns_add_u32 s57, s56, 8192\ns_add_u32 s59, s56, 16384")
    a(f"s_mul_i32 s60, s2, {CS*4}\ns_add_u32 s60, s60, {WS_KEY}")
    a(f"v_lshlrev_b32 v11, 11, v0\ns_lshl_b32 s61, {sBin}, 3\ns_add_u32 s61, s61, {WS_TAB}")
    a("s_waitcnt vmcnt(2) lgkmcnt(0)\ns_barrier")
    stamp()
    o = TP
    for u in range(3): a(f"ds_read_b128 v[{o+4*u}:{o+4*u+3}], v10 offset:{L_SPAY + 8192*u}")
    a(f"ds_read_b128 v[{o+12}:{o+15}], v10 offset:{L_SKEY}")
    a(f"s_waitcnt lgkmcnt(3)\nbuffer_store_dwordx4 v[{o}:{o+3}], v10, {WSR}, s56 offen sc1")
    a(f"s_waitcnt lgkmcnt(2)\nbuffer_store_dwordx4 v[{o+4}:{o+7}], v10, {WSR}, s57 offen sc1")
    a(f"s_cmp_ge_u32 {sW}, 5\ns_cbranch_scc1 K_NOKEY")
    a(f"s_waitcnt lgkmcnt(0)\nbuffer_store_dwordx4 v[{o+12}:{o+15}], v10, {WSR}, s60 offen sc1")
    a(f"s_cmp_ge_u32 {sW}, 4\ns_cbranch_scc1 K_NOKEY")
    a(f"s_mov_b64 exec, {M(2)}\nbuffer_store_dwordx4 v[{o+8}:{o+11}], v10, {WSR}, s59 offen sc1\ns_mov_b64 exec, -1")
    a("K_NOKEY:")
    a(f"s_mov_b32 s56, {f32(-LOG2E)}")
    w = TP + 16
    for h in range(2):
        for k in range(4):
            a(f"v_lshlrev_b32 v{w+k}, 16, v{RW+k}" if h == 0 else f"v_and_b32 v{w+k}, 0xffff0000, v{RW+k}")
            a(f"v_mul_f32 v{w+4+k}, s56, v{w+k}")
        oo = WF + 4*h
        a(f"v_cvt_pk_bf16_f32 v{oo}, v{w+4}, v{w+5}\nv_cvt_pk_bf16_f32 v{oo+1}, v{w+6}, v{w+7}")
        for k in range(4):
            a(f"v_lshlrev_b32 v{w+4+k}, 16, v{oo + k//2}" if k % 2 == 0 else f"v_and_b32 v{w+4+k}, 0xffff0000, v{oo + k//2}")
            a(f"v_fma_f32 v{w+4+k}, s56, v{w+k}, -v{w+4+k}")
        a(f"v_cvt_pk_bf16_f32 v{oo+2}, v{w+4}, v{w+5}\nv_cvt_pk_bf16_f32 v{oo+3}, v{w+6}, v{w+7}")
    a(f"v_lshl_or_b32 v{w}, v{RC+1}, 16, v{RC}\nv_lshl_or_b32 v{w+1}, v{RC+3}, 16, v{RC+2}\nv_lshrrev_b32 v13, 4, v1")
    for gg in range(4):
        a(f"v_cmp_eq_u32 vcc, {gg}, v13")
        a(f"v_cndmask_b32 v{CGF+2*gg}, 0, v{w}, vcc\nv_cndmask_b32 v{CGF+2*gg+1}, 0, v{w+1}, vcc")
    a(f"v_and_b32 v{vPm}, 0x1ff, v0\nv_lshlrev_b32 v{vPm}, 2, v{vPm}\nv_xor_b32 v{vPo}, 1024, v{vPm}")
    a(f"v_mul_u32_u24 v13, {4*CS}, v1")
    a(f"s_cmp_ge_u32 {sW}, 4\ns_cbranch_scc1 K_TABOK")
    a(f"s_mov_b32 s59, {P.get('timeout', 40000)}\ns_lshr_b32 s58, s58, 22")
    for i in range(P.get("delayA", 0)): a("s_nop 15")
    a(f"buffer_load_dwordx2 v[{TA}:{TA+1}], v11, {WSR}, s61 offen sc1")
    a("K_POLLA:\ns_waitcnt vmcnt(0)")
    a(f"v_lshrrev_b32 v{TA+2}, 22, v{TA}\nv_cmp_ne_u32 vcc, {sTag}, v{TA+1}\nv_cmp_ne_u32 s[56:57], s58, v{TA+2}\ns_or_b64 vcc, vcc, s[56:57]")
    if P.get("force_fb"): a("s_mov_b64 vcc, -1")
    a("s_cbranch_vccz K_POLLAOK")
    a(f"s_sub_u32 s59, s59, 1\ns_cbranch_scc1 K_POLLAFAIL")
    a(f"buffer_load_dwordx2 v[{TA}:{TA+1}], v11, {WSR}, s61 offen sc1\ns_branch K_POLLA")
    a(f"K_POLLAFAIL:\nds_write_b32 v4, v14 offset:{L_FB}")
    a(f"K_POLLAOK:\nds_write_b32 v3, v{TA} offset:{L_TABL}")
    a("K_TABOK:\ns_waitcnt vmcnt(0) lgkmcnt(0)\ns_barrier")
    stamp()
    a(f"s_cmp_lg_u32 {sW}, 4\ns_cbranch_scc1 K_NOFLAG")
    FS = P.get("FS", 128)
    a(f"s_mul_i32 s56, s2, {FS}\ns_add_u32 s56, s56, {WS_FLG}\nv_mov_b32 v10, {sTag}\ns_mov_b64 exec, 1")
    a(f"buffer_store_dword v10, v4, {WSR}, s56 offen sc1\ns_mov_b64 exec, -1\nK_NOFLAG:")
    FL = TA
    a(f"ds_read_b128 v[{TP}:{TP+3}], v9 offset:{L_TABL}\nds_read_b32 v10, v4 offset:{L_FB}")
    a(f"s_mov_b32 s62, {WS_FLG}\nv_mul_u32_u24 v{FL+1}, {FS}, v0")
    if P.get("earlyB", 0): a(f"s_cmp_ge_u32 {sW}, 4\ns_cbranch_scc1 K_NOB0\nbuffer_load_dword v{FL}, v{FL+1}, {WSR}, s62 offen sc1\nK_NOB0:")
    a("s_waitcnt lgkmcnt(0)")
    a(f"v_readfirstlane_b32 {sFB}, v10")
    c = TP + 4; p = TP + 8
    for i in range(4): a(f"v_bfe_u32 v{c+i}, v{TP+i}, 11, 11")
    a(f"v_add_u32 v{p+1}, v{c}, v{c+1}\nv_add_u32 v{p+2}, v{p+1}, v{c+2}\nv_add_u32 v{p+3}, v{p+2}, v{c+3}\nv_mov_b32 v{p+4}, v{p+3}")
    fill = []
    for i in range(4):
        fill.append(f"v_and_b32 v{TP+i}, 0x7ff, v{TP+i}")
        fill.append(f"v_add_u32 v{PD+i}, v13, v{TP+i}")
        if i: fill.append(f"v_add_u32 v{PD+i}, {i*CS}, v{PD+i}")
    ctl = ["row_shr:1 row_mask:0xf bank_mask:0xf", "row_shr:2 row_mask:0xf bank_mask:0xf", "row_shr:4 row_mask:0xf bank_mask:0xf",
           "row_shr:8 row_mask:0xf bank_mask:0xf", "row_bcast:15 row_mask:0xa bank_mask:0xf", "row_bcast:31 row_mask:0xc bank_mask:0xf"]
    for k in range(6):
        for x in fill[2*k:2*k+2]: a(x)
        a(f"v_add_u32_dpp v{p+4}, v{p+4}, v{p+4} {ctl[k]}")
    a(f"s_cmp_lg_u32 {sFB}, 0\ns_cbranch_scc1 K_FB0")
    a(f"v_readlane_b32 {sT}, v{p+4}, 63")
    a(f"v_sub_u32 v{PP}, v{p+4}, v{p+3}")
    a(f"v_add_u32 v{PP+1}, v{PP}, v{c}\nv_add_u32 v{PP+2}, v{PP}, v{p+1}\nv_add_u32 v{PP+3}, v{PP}, v{p+2}")
    for i in range(4):
        a(f"v_sub_u32 v{PD+i}, v{PD+i}, v{PP+i}\nv_add_u32 v{PL+i}, v{PP+i}, v{c+i}")
    m = XR; f = m + 12; KEY = m + 16; PAYR = m + 20; ad = m + 32; RK = m + 40; CI = m + 44; q = m + 48
    a("K_ROUND:")
    a(f"s_mul_i32 s56, {sW}, {CAPW}\ns_add_u32 s56, s56, {sRB}\ns_add_u32 s57, s56, {CAPW}")
    a(f"s_lshl_b32 s58, {sW}, 10\ns_add_u32 s58, s58, {L_MARK}")
    for i in range(4):
        a(f"v_cmp_lt_u32 vcc, s56, v{PL+i}\nv_cmp_gt_u32 s[60:61], s57, v{PP+i}")
        a(f"v_subrev_u32 v{m+i}, s56, v{PP+i}\nv_max_i32 v{m+i}, 0, v{m+i}\nv_lshl_add_u32 v{m+i}, v{m+i}, 2, s58")
        a(f"s_and_b64 exec, vcc, s[60:61]\nds_max_u32 v{m+i}, v{PD+i}\ns_mov_b64 exec, -1")
    a(f"v_add_u32 v{m+4}, s58, v15")
    for u in range(3): a(f"ds_read_b32 v{m+8+u}, v{m+4} offset:{u*256}")
    a(f"v_add_u32 v{f}, s56, v1\nv_add_u32 v{f+1}, 64, v{f}\nv_add_u32 v{f+2}, 128, v{f}")
    for u in range(3): a(f"v_cmp_gt_u32 {M(u)}, {sT}, v{f+u}")
    a(f"s_mov_b32 s60, {WS_KEY}\ns_mov_b32 s61, {WS_PAY}")
    a("s_waitcnt lgkmcnt(0)")
    scan_incl(a, "v_max_u32", [m+8, m+9, m+10])
    a(f"v_readlane_b32 s56, v{m+8}, 63\nv_readlane_b32 s57, v{m+9}, 63\nv_add_u32 v{f}, v{f}, v{m+8}")
    a(f"s_max_u32 s57, s56, s57")
    a(f"v_max_u32 v{m+9}, s56, v{m+9}\nv_max_u32 v{m+10}, s57, v{m+10}")
    a(f"v_add_u32 v{f+1}, v{f+1}, v{m+9}\nv_add_u32 v{f+2}, v{f+2}, v{m+10}")
    for u in range(3): a(f"v_lshlrev_b32 v{ad+u}, 2, v{f+u}\nv_lshlrev_b32 v{ad+3+u}, 4, v{f+u}")
    a(f"s_cmp_lg_u32 {sRB}, 0\ns_cbranch_scc1 K_FLAGOK")
    stamp()
    def wmextract():
        a(f"s_and_b32 s56, {sW}, 3\ns_lshl_b32 s56, s56, 6\ns_add_u32 s56, s56, {L_WM}")
        a("v_lshrrev_b32 v10, 4, v1\nv_lshlrev_b32 v10, 11, v10\nv_and_b32 v12, 15, v1\nv_lshl_or_b32 v10, v12, 2, v10\nv_add_u32 v10, s56, v10")
        a("s_mov_b32 s56, 0x05040100\ns_mov_b32 s57, 0x07060302")
        def rd(ks):
            for i in range(4): a(f"ds_read2st64_b32 v[{RM+8*ks+2*i}:{RM+8*ks+2*i+1}], v10 offset0:{32*ks+2*i} offset1:{32*ks+2*i+1}")
        for ks in range(3): rd(ks)
        for ks in range(4):
            if ks == 0: rd(3)
            for i in range(4):
                a(f"s_waitcnt lgkmcnt({15 - 4*ks - i})")
                a(f"v_perm_b32 v{BF+4*ks+i}, v{RM+8*ks+2*i+1}, v{RM+8*ks+2*i}, s56")
                a(f"v_perm_b32 v{BF+16+4*ks+i}, v{RM+8*ks+2*i+1}, v{RM+8*ks+2*i}, s57")
    wmextract()
    a(f"s_cmp_ge_u32 {sW}, 4\ns_cbranch_scc1 K_POLLBOK")
    if P.get("earlyB", 0): a("s_branch K_POLLB1")
    a(f"K_POLLB:\nbuffer_load_dword v{FL}, v{FL+1}, {WSR}, s62 offen sc1\nK_POLLB1:\ns_waitcnt vmcnt(0)")
    a(f"v_cmp_ne_u32 vcc, {sTag}, v{FL}")
    if P.get("sleepB"): a(f"s_cbranch_vccz K_POLLBOK\ns_sleep {P['sleepB']}\ns_branch K_POLLB")
    else: a("s_cbranch_vccnz K_POLLB")
    a("K_POLLBOK:\ns_barrier")
    a("K_FLAGOK:")
    stamp()
    a(f"v_mov_b32 v14, {f32(64.0)}")
    for u in range(3):
        a(f"s_mov_b64 exec, {M(u)}\nbuffer_load_dword v{KEY+u}, v{ad+u}, {WSR}, s60 offen sc1")
    def payloads():
        for u in range(3):
            a(f"s_mov_b64 exec, {M(u)}\nbuffer_load_dwordx4 v[{PAYR+4*u}:{PAYR+4*u+3}], v{ad+3+u}, {WSR}, s61 offen sc1")
        a("s_mov_b64 exec, -1")
    a(f"s_cmp_lg_u32 {sRB}, 0\ns_cbranch_scc1 K_NOBAL")
    for u in range(3):
        a(f"s_waitcnt vmcnt({2-u})")
        a(f"s_mov_b64 exec, {M(u)}")
        a(f"v_lshrrev_b32 v{ad+u}, 2, v{KEY+u}\nv_and_b32 v{ad+u}, 0xfc, v{ad+u}")
        a(f"ds_add_f32 v{ad+u}, v14 offset:{L_DEG}")
    payloads()
    a("K_BAL0:")
    stamp()
    a("s_waitcnt lgkmcnt(0)\ns_barrier")
    KK = TP; MI = EE
    a(f"ds_read_b32 v{MI}, v15 offset:{L_DEG}")
    for jj in range(10): a(f"ds_read_b128 v[{KK+4*jj}:{KK+4*jj+3}], v4 offset:{L_DEG+16*jj}")
    a("v_cmp_gt_u32 vcc, 40, v1")
    for jj in range(20):
        if jj % 2 == 0: a(f"s_waitcnt lgkmcnt({9 - jj//2})")
        tt = KK + 2*jj
        a(f"v_pk_add_f32 v[{tt}:{tt+1}], v[{tt}:{tt+1}], v[{MI}:{MI+1}] op_sel_hi:[1,0] neg_lo:[0,1] neg_hi:[0,1] clamp")
        if jj >= 2: a(f"v_pk_add_f32 v[{tt}:{tt+1}], v[{tt}:{tt+1}], v[{tt-4}:{tt-3}]")
    tt = KK + 38
    a(f"v_pk_add_f32 v[{tt}:{tt+1}], v[{tt}:{tt+1}], v[{tt-2}:{tt-1}]")
    a(f"v_add_f32 v{tt}, v{tt}, v{tt+1}\nv_cvt_u32_f32 v{tt}, v{tt}\nv_lshlrev_b32 v{tt}, 2, v{tt}")
    a(f"ds_bpermute_b32 v2, v{tt}, v2")
    a("s_waitcnt lgkmcnt(0)")
    a("v_cndmask_b32 v2, -1, v2, vcc")
    a("K_BAL:")
    for u in range(3): a(f"ds_bpermute_b32 v{ad+3+u}, v{ad+u}, v2")
    a("v_mov_b32 v14, 1\nv_lshlrev_b32 v10, 3, v1")
    for u in range(3): a(f"v_and_b32 v{CI+u}, 15, v{KEY+u}")
    for u in range(3):
        a("s_waitcnt lgkmcnt(2)")
        a(f"s_mov_b64 exec, {M(u)}")
        a(f"v_and_b32 v{ad+u}, 7, v{ad+3+u}\nv_lshl_or_b32 v{CI+u}, v{ad+u}, 4, v{CI+u}\nv_lshlrev_b32 v{ad+u}, 2, v{CI+u}")
        a(f"ds_add_rtn_u32 v{RK+u}, v{ad+u}, v14 offset:{L_CNT}")
    a("s_mov_b64 exec, -1")
    for u in range(3):
        a(f"v_lshlrev_b32 v{ad+u}, 1, v{CI+u}\nv_lshlrev_b32 v{CI+u}, 4, v{CI+u}")
        a(f"v_and_b32 v{ad+3+u}, 0x38, v{ad+3+u}")
        a(f"v_and_b32 v{KEY+u}, {P.get('xmask', 0xfffffc00)}, v{KEY+u}")
    a(f"s_lshl_b32 s56, {sW}, 3\ns_add_u32 s57, s56, 7")
    a(f"v_lshrrev_b32 v{q+6}, 3, v1\nv_mul_u32_u24 v{q+6}, 48, v{q+6}")
    a("s_waitcnt lgkmcnt(0)\ns_barrier")
    stamp()
    a(f"ds_read_b64 v[{q}:{q+1}], v10 offset:{L_CNT}")
    a(f"v_and_b32 v12, 15, v1\nv_lshrrev_b32 v11, 4, v1\nv_lshlrev_b32 v11, 3, v11\nv_lshl_add_u32 v11, v12, 5, v11")
    a(f"v_mov_b32 v{q+7}, {(N-1)*1024}")
    a("s_waitcnt lgkmcnt(0)")
    a(f"v_add_u32 v{q+2}, v{q}, v{q+1}\nv_mov_b32 v{q+3}, v{q+2}")
    scan_incl(a, "v_add_u32", [q+3])
    a(f"v_sub_u32 v{q+2}, v{q+3}, v{q+2}")
    a(f"v_readlane_b32 {sLen}, v{q+3}, s57")
    a(f"v_mov_b32_dpp v{q+4}, v{q+2} row_newbcast:0 row_mask:0xf bank_mask:0x3")
    a(f"v_readlane_b32 s58, v{q+2}, s56")
    a(f"v_mov_b32_dpp v{q+4}, v{q+2} row_newbcast:8 row_mask:0xf bank_mask:0xc")
    a(f"v_add_u32 v{q+5}, 15, v{q+4}\nv_and_or_b32 v{q+5}, v{q+5}, -16, 0\nv_add_u32 v{q+5}, v{q+5}, v{q+6}")
    a(f"v_sub_u32 v{q+4}, v{q+5}, v{q+4}\nv_add_u32 v{q+4}, v{q+4}, v{q+2}")
    a(f"v_add_u32 v{q}, v{q+4}, v{q}\nv_lshl_or_b32 v{q}, v{q}, 16, v{q+4}")
    a(f"v_readlane_b32 {sBase}, v{q+5}, s56")
    for u in range(3): a(f"ds_bpermute_b32 v{ad+u}, v{ad+u}, v{q}")
    a(f"s_sub_u32 {sLen}, {sLen}, s58\ns_add_u32 s56, {sBase}, {sLen}")
    a(f"v_add_u32 v{q+1}, s56, v1\nv_lshlrev_b32 v{q+2}, 2, v{q+1}\nv_lshlrev_b32 v{q+3}, 4, v{q+1}")
    a("s_mov_b64 exec, 0xfffff")
    a(f"ds_write_b32 v{q+2}, v{q+7} offset:{L_OFF}\nds_write_b8 v{q+1}, v4 offset:{L_NODE}\nds_write_b128 v{q+3}, v[4:7] offset:{L_PAY}")
    a("s_waitcnt vmcnt(0) lgkmcnt(3)")
    for u in range(3):
        a(f"s_mov_b64 exec, {M(u)}")
        a(f"v_bfe_u32 v{ad+u}, v{ad+u}, v{CI+u}, 16\nv_add_u32 v{ad+u}, v{ad+u}, v{RK+u}")
        a(f"v_lshlrev_b32 v{RK+u}, 2, v{ad+u}\nv_lshlrev_b32 v{CI+u}, 4, v{ad+u}")
        a(f"ds_write_b32 v{RK+u}, v{KEY+u} offset:{L_OFF}")
        a(f"ds_write_b8 v{ad+u}, v{ad+3+u} offset:{L_NODE}")
        a(f"ds_write_b128 v{CI+u}, v[{PAYR+4*u}:{PAYR+4*u+3}] offset:{L_PAY}")
    a("s_mov_b64 exec, -1")
    a(f"s_lshl_b32 s56, {sBase}, 2\ns_add_u32 s56, s56, {L_OFF}\nv_mov_b32 v{vOffA}, s56")
    a(f"s_add_u32 s56, {sBase}, {L_NODE}\nv_mov_b32 v{vNodeA}, s56")
    a(f"s_lshl_b32 s56, {sBase}, 5\ns_add_u32 s56, s56, {L_A}\nv_add_u32 v{vAA}, s56, v10\nv_add_u32 v11, s56, v11")
    a(f"s_lshl_b32 s57, {sBase}, 4\ns_add_u32 s57, s57, {L_PAY}")
    a(f"v_lshl_add_u32 v{vEfA}, v12, 4, s57\nv_add_u32 v10, s57, v9")
    a(f"s_add_u32 {sG}, {sLen}, 3\ns_lshr_b32 {sG}, {sG}, 2\nv_mov_b32 v{vPv}, 0")
    a("s_waitcnt lgkmcnt(0)\ns_barrier")
    stamp()
    a(f"s_cmp_eq_u32 {sG}, 0\ns_cbranch_scc1 K2_LOOPDONE")
    ng = DE // 4
    xaux = P.get("xaux", "")
    for gg in range(ng): a(f"ds_read_b128 v[{TP+4*gg}:{TP+4*gg+3}], v{vOffA} offset:{16*gg}")
    a(f"ds_read_b64 v[{TA}:{TA+1}], v10")
    a(f"ds_read_b128 v[{OFFS}:{OFFS+3}], v{vOffA} offset:{16*ng}")
    a(f"ds_read_b64 v[{EF}:{EF+1}], v{vEfA} offset:8")
    a(f"ds_read_b128 v[{NODE}:{NODE+3}], v{vNodeA}")
    a(f"s_lshl_b32 s56, {sG}, 2")
    for gg in range(ng):
        a(f"s_waitcnt lgkmcnt({ng - 1 - gg + 4})")
        for e in range(4):
            n = 4*gg + e
            if SAFE: a(f"v_add_u32 v{TP+n}, v9, v{TP+n}")
            a(f"buffer_load_dwordx4 v[{XR+4*n}:{XR+4*n+3}], v{TP+n}, {XS}, 0 offen {xaux}")
    a("K_APREP:")
    a(f"v_cmp_gt_u32 vcc, s56, v1")
    a("s_waitcnt lgkmcnt(0)")
    a(f"v_cndmask_b32 v{TB}, 0, v{TA}, vcc\nv_cndmask_b32 v{TB+1}, 0, v{TA+1}, vcc")
    a(f"ds_read_b64 v[{TA}:{TA+1}], v10 offset:1024\nv_add_u32 v10, 1024, v10")
    for gg in range(4):
        a(f"v_mfma_f32_16x16x16_bf16 v[{TP+16+4*gg}:{TP+19+4*gg}], v[{CGF+2*gg}:{CGF+2*gg+1}], v[{TB}:{TB+1}], 0")
    for gg in range(4):
        a(f"v_cvt_pk_bf16_f32 v{EE+2*gg}, v{TP+16+4*gg}, v{TP+17+4*gg}\nv_cvt_pk_bf16_f32 v{EE+2*gg+1}, v{TP+18+4*gg}, v{TP+19+4*gg}")
        a(f"ds_write_b64 v11, v[{EE+2*gg}:{EE+2*gg+1}] offset:{512*gg}")
        a(f"s_sub_u32 s56, s56, 16\ns_cmp_le_i32 s56, 0\ns_cbranch_scc1 K_APDONE")
    a("v_add_u32 v11, 2048, v11\ns_branch K_APREP")
    a("K_APDONE:")
    a(f"s_waitcnt lgkmcnt(0)\nds_read_b64 v[{AOP}:{AOP+1}], v{vAA}")
    for x in pre_mfmas(dict(EF=EF, WF=WF), TA, 0, P): a(x)
    a(f"s_sub_u32 {sG}, {sG}, 1\ns_nop 3")
    stamp()
    if P.get("ts"): a("s_memtime s[66:67]")
    R = dict(ACC=ACC, XR=XR, TP=TP, TA=TA, TB=TB, EE=EE, WF=WF, AOP=AOP, EF=EF, OFFS=OFFS, NODE=NODE, vOffA=vOffA, vNodeA=vNodeA,
             vAA=vAA, vEfA=vEfA, sG=sG, sN=sN, vPm=vPm, vPo=vPo, vPv=vPv, XS=XS)
    gen_loop(a, R, P, dict(PROG=L_PROG))
    if P.get("ts"): a("s_memtime s[68:69]")
    stamp()
    if PR.startswith("pair"):
        a(f"v_mov_b32 v{vPv}, -1\nds_write_b32 v{vPm}, v{vPv} offset:{L_PROG}\ns_setprio 0")
    a(f"s_add_u32 {sRB}, {sRB}, {CAP}\ns_cmp_ge_u32 {sRB}, {sT}\ns_cbranch_scc1 K_EPI")
    a("s_waitcnt vmcnt(0) lgkmcnt(0)\ns_barrier")
    a(f"ds_write_b128 v8, v[4:7]\nds_write_b32 v3, v4 offset:{L_PROG}")
    a(f"v_cmp_gt_u32 vcc, 128, v0\ns_and_saveexec_b64 s[56:57], vcc\nds_write_b32 v3, v4 offset:{L_CNT}\ns_mov_b64 exec, s[56:57]")
    a("s_waitcnt lgkmcnt(0)\ns_barrier")
    a(f"s_cmp_eq_u32 {sFB}, 0\ns_cbranch_scc1 K_ROUND\ns_branch K_FB")
    a("K_NOBAL:")
    payloads()
    a("K_NOBAL2:\ns_waitcnt vmcnt(0)")
    for u in range(3): a(f"v_lshrrev_b32 v{ad+u}, 2, v{KEY+u}\nv_and_b32 v{ad+u}, 0xfc, v{ad+u}")
    a("s_branch K_BAL")
    a(f"K_FB0:\ns_mov_b32 {sT}, {E}\ns_waitcnt vmcnt(0)")
    wmextract()
    a("K_FB:")
    a(f"s_mul_i32 s56, {sW}, {CAPW}\ns_add_u32 s56, s56, {sRB}")
    a(f"v_add_u32 v{f}, s56, v1\nv_add_u32 v{f+1}, 64, v{f}\nv_add_u32 v{f+2}, 128, v{f}")
    for u in range(3):
        a(f"v_cmp_gt_u32 {M(u)}, {sT}, v{f+u}\nv_min_u32 v{f+u}, {E-1}, v{f+u}\nv_lshlrev_b32 v{ad+u}, 2, v{f+u}\nv_lshlrev_b32 v{ad+3+u}, 3, v{f+u}")
        a(f"global_load_dword v{m+u}, v{ad+u}, s[8:9]\nglobal_load_dword v{m+4+u}, v{ad+u}, s[6:7]")
        a(f"global_load_dwordx2 v[{PAYR+4*u}:{PAYR+4*u+1}], v{ad+3+u}, s[10:11]\nglobal_load_dwordx2 v[{PAYR+4*u+2}:{PAYR+4*u+3}], v{ad+3+u}, s[12:13]")
    a("s_waitcnt vmcnt(0)")
    for u in range(3):
        a(f"v_mul_u32_u24 v{f+u}, 214749, v{m+u}\nv_lshrrev_b32 v{f+u}, 23, v{f+u}\nv_cmp_eq_u32 vcc, {sBin}, v{f+u}\ns_and_b64 {M(u)}, {M(u)}, vcc")
        a(f"v_subrev_u32 v{KEY+u}, {sNs}, v{m+u}")
        keycalc2(m+4+u, KEY+u, f+u)
    a(f"v_mov_b32 v14, {f32(64.0)}\ns_cmp_lg_u32 {sRB}, 0\ns_cbranch_scc1 K_NOBAL2")
    for u in range(3):
        a(f"s_mov_b64 exec, {M(u)}")
        a(f"v_lshrrev_b32 v{ad+u}, 2, v{KEY+u}\nv_and_b32 v{ad+u}, 0xfc, v{ad+u}")
        a(f"ds_add_f32 v{ad+u}, v14 offset:{L_DEG}")
    a("s_mov_b64 exec, -1\ns_branch K_BAL0")
    a("K_EPI:")
    a(f"s_cmp_lg_u32 {sW}, 0\ns_cbranch_scc1 K_NOCNT")
    a("v_mov_b32 v14, 1\ns_mov_b64 exec, 1\nglobal_atomic_add v255, v4, v14, s[22:23] sc0 sc1\ns_mov_b64 exec, -1\nK_NOCNT:")
    a(f"s_mov_b32 s56, {f32(-LN2)}\ns_mov_b32 s57, s56")
    for sl in range(5):
        a(f"s_add_u32 s58, {sW}, {8*sl}\nv_cmp_eq_u32 vcc, s58, v2")
        for k in range(4): a(f"v_pk_mul_f32 v[{ACC+8*sl+2*k}:{ACC+8*sl+2*k+1}], v[{ACC+8*sl+2*k}:{ACC+8*sl+2*k+1}], s[56:57]")
        a(f"s_ff1_i32_b64 s58, vcc\ns_mul_i32 s58, s58, {4*RS}\ns_add_u32 s58, s58, {L_AGG}\nv_add_u32 v{10 + sl%2}, s58, v15")
        for mm in range(4):
            a(f"v_cvt_pk_bf16_f32 v{ACC+8*sl+mm}, v{ACC+8*sl+mm}, v{ACC+8*sl+4+mm}")
            a(f"ds_write_b32 v{10 + sl%2}, v{ACC+8*sl+mm} offset:{RS*mm}")
    a(f"v_and_b32 v12, 15, v1\nv_lshrrev_b32 v13, 4, v1")
    a(f"s_lshr_b32 s58, {sW}, 2\ns_mul_i32 s59, s58, {16*RS}\ns_add_u32 s59, s59, {L_AGG}")
    a(f"v_mul_u32_u24 v14, {RS}, v12\nv_lshl_add_u32 v14, v13, 4, v14\nv_add_u32 v14, s59, v14")
    a(f"s_lshl_b32 s58, s58, 2\ns_add_u32 s58, s58, {sNs}\ns_lshl_b32 s58, s58, 10\ns_and_b32 s59, {sW}, 3\ns_lshl_b32 s59, s59, 8\ns_add_u32 s58, s58, s59")
    a(f"v_lshlrev_b32 v13, 10, v13\nv_lshl_add_u32 v13, v12, 4, v13")
    a("s_waitcnt vmcnt(0) lgkmcnt(0)\ns_barrier")
    stamp()
    FA = XR
    for i in range(4):
        for ks in range(4): a(f"ds_read_b128 v[{FA+16*i+4*ks}:{FA+16*i+4*ks+3}], v14 offset:{32*RS*i + 64*ks}")
    ost = P["out_aux"]
    def outtile(i):
        Dp = TP + 8 * (i % 2); Op = TP + 16 + 4 * (i % 2)
        for k in range(4): a(f"v_cvt_pk_bf16_f32 v{Op+k}, v{Dp+2*k}, v{Dp+2*k+1}")
        a(f"buffer_store_dwordx4 v[{Op}:{Op+3}], v13, {OS}, s58 offen {ost}")
        if i < 4: a("s_add_u32 s58, s58, 8192")
    for i in range(5):
        Dd = TP + 8 * (i % 2); fi = FA + 16 * (i % 4)
        for ks in range(4):
            if i < 4: a(f"s_waitcnt lgkmcnt({min(15, 15 - 4*i - ks + (4 if i >= 1 else 0))})")
            else: a(f"s_waitcnt lgkmcnt({3 - ks})")
            for tt in range(2):
                b = BF + 16*tt + 4*ks
                a(f"v_mfma_f32_16x16x32_bf16 v[{Dd+4*tt}:{Dd+4*tt+3}], v[{fi+4*ks}:{fi+4*ks+3}], v[{b}:{b+3}], " + ("0" if ks == 0 else f"v[{Dd+4*tt}:{Dd+4*tt+3}]"))
        if i == 0:
            for ks in range(4): a(f"ds_read_b128 v[{FA+4*ks}:{FA+4*ks+3}], v14 offset:{32*RS*4 + 64*ks}")
        if i >= 1: outtile(i - 1)
    outtile(4)
    a(f"s_cmp_lg_u32 {sW}, 0\ns_cbranch_scc1 K_NOEPO")
    a(f"v_readfirstlane_b32 s56, v255\ns_cmp_lg_u32 s56, {NB-1}\ns_cbranch_scc1 K_NOEPO")
    a(f"v_mov_b32 v10, {sTag}\ns_mov_b64 exec, 1\nbuffer_store_dword v10, v4, {WSR}, 0 offen offset:{WS_EPO} sc1\nK_NOEPO:")
    if P.get("ts"):
        a("s_waitcnt vmcnt(0)"); stamp()
        a("s_waitcnt lgkmcnt(0)")
        a(f"s_lshl_b32 s98, s2, 3\ns_add_u32 s98, s98, s3\ns_lshl_b32 s98, s98, 6\ns_add_u32 s98, s98, {WS_TS}")
        a("s_mov_b64 exec, 1\nv_mov_b32 v2, s98")
        for i in range(tsn[0]): a(f"v_mov_b32 v3, s{70 + 2*i}\nglobal_store_dword v2, v3, s[24:25] offset:{4*i}")
        a(f"s_sub_u32 s68, s68, s66\nv_mov_b32 v3, s68\nglobal_store_dword v2, v3, s[24:25] offset:56\nv_mov_b32 v3, {sLen}\nglobal_store_dword v2, v3, s[24:25] offset:60")
        assert tsn[0] <= 14
    if P.get("diag_hold"):
        a(f"s_add_u32 s66, s66, {P['diag_hold']}\nK_HOLD:\ns_memrealtime s[68:69]\ns_waitcnt lgkmcnt(0)\ns_sub_u32 s68, s68, s66\ns_cmp_lt_i32 s68, 0\ns_cbranch_scc1 K_HOLD")
    a("K_END:\ns_endpgm")
    a(".p2align 6\n.type K_TAB,@object\nK_TAB:")
    for A in (A39, A40):
        used = [0]*8; codes = []
        for ww in A: codes.append(ww | used[ww] << 3); used[ww] += 1
        assert used == [5]*8
        a(".byte " + ", ".join(str(cc) for cc in codes + [255]*24))
    body = a.text(verbose=verbose)
    ns = 100 if P.get("ts") else 72
    gen.nts = tsn[0]
    return (HEADER + f"; @launch grid=({NB},1,1) block=(512,1,1) lds={L_END}\n" + '.amdgcn_target "amdgcn-amd-amdhsa--gfx950"\n.text\n' + body +
f""".section .rodata,"a"
.p2align 6
.amdhsa_kernel {NAME}
  .amdhsa_next_free_vgpr 256
  .amdhsa_next_free_sgpr {ns}
  .amdhsa_accum_offset 256
  .amdhsa_group_segment_fixed_size 0
  .amdhsa_kernarg_size 88
  .amdhsa_user_sgpr_count 2
  .amdhsa_user_sgpr_kernarg_segment_ptr 1
  .amdhsa_system_sgpr_workgroup_id_x 1
  .amdhsa_float_denorm_mode_32 3
.end_amdhsa_kernel
""")

if __name__ == "__main__":
    P = eval(sys.argv[2]) if len(sys.argv) > 2 else {}
    open(sys.argv[1], "w").write(gen(P, verbose=True))
```

```python
import sys, struct
from asmlib import Asm
from loopgen import gen_loop, pre_mfmas
from gen import HEADER as _H, scan_incl, f32, LOG2E, LN2, desc

N, E = 10000, 320000
NB, CH, CS = 256, 1250, 1280
WS_EPO, WS_FLG, WS_TAB, WS_KEY, WS_PAY, WS_END = 0, 0x6C2000, 0x2000, 0x82000, 0x1C2000, 0x6D2000
WS_TS = 0x8000000
NAME = "gather_scatter__tensor_product_equiv_tfn__graph_kernel"
HEADER = _H[:_H.index("; Launch 1")] + """; One launch, 256 workgroups (one per CU).  Phase 1: every workgroup bins its chunk of 1250 edges by
; destination block and publishes the binned chunk in d_ws (write-through stores, tagged table row, flag).
; Phase 2: the workgroup collects its own bin, sorts it by (owner wave, source bucket), gathers x rows,
; does the tensor product + radial gate in registers, mixes the channels and stores.
; If the hand-off never arrives (workgroups not co-resident) a workgroup scans the raw edge list itself.
"""
A39 = [6, 5, 6, 7, 4, 2, 0, 1, 3, 4, 6, 3, 2, 0, 6, 1, 3, 5, 7, 1, 0, 5, 7, 4, 2, 1, 5, 4, 7, 3, 2, 0, 2, 0, 7, 1, 3, 4, 5, 6]
A40 = [3, 2, 4, 7, 0, 1, 6, 0, 5, 1, 7, 5, 6, 3, 4, 6, 5, 0, 2, 7, 1, 4, 6, 3, 2, 1, 3, 0, 5, 4, 2, 7, 2, 5, 4, 7, 1, 6, 0, 3]

def gen(P=None, verbose=False):
    P = dict(dict(prio="pair4", sched="b", subcc=1, out_aux="sc1"), **(P or {}))
    a = Asm()
    DE = P.get("DE", 8); SAFE = P.get("safe"); PR = P["prio"]
    CAPW = 192; CAP = 8 * CAPW; NE = CAP + 8 * 48 + 16
    L_CNT, L_DEG, L_HCNT = 0, 512, 768
    L_FB = 1792
    L_PROG = 2048
    L_OFF = 4096
    L_NODE = L_OFF + NE * 4
    L_PAY = (L_NODE + NE + 63) // 64 * 64
    L_A = L_PAY + NE * 16
    L_AGG = (L_A + NE * 32 + 255) // 256 * 256
    L_MARK = L_AGG
    RS = 288
    L_END = L_AGG + 160 * RS
    L_PRE = L_OFF; L_TABL = L_OFF + 1024; L_SKEY = L_OFF + 2048; L_SPAY = L_PAY
    assert L_SKEY + 5120 <= L_NODE and L_SPAY + CH * 16 <= L_A and L_PAY < 65536 - 20480
    ACC, XR, TP, TA, TB, EE, WF, AOP, EF, OFFS, NODE = 16, 56, 120, 152, 160, 168, 176, 184, 186, 188, 192
    vOffA, vNodeA, vAA, vEfA = 196, 197, 198, 199
    BF, CGF, PP, PL, PD = 200, 232, 240, 244, 248
    vPm, vPo, vPv = 252, 253, 254
    sW, sT, sRB, sG, sN, sBase, sLen, sTag, sBin, sNs, sFB = "s3", "s46", "s47", "s48", "s49", "s50", "s51", "s52", "s53", "s54", "s55"
    XS, OS, WSR = "s[28:31]", "s[32:35]", "s[36:39]"
    M = lambda u: f"s[{40+2*u}:{41+2*u}]"
    tsn = [0]
    def stamp():
        if P.get("ts"):
            r = 70 + 2 * tsn[0]; a(f"s_memrealtime s[{r}:{r+1}]"); tsn[0] += 1
    a(f".globl {NAME}\n.p2align 8\n.type {NAME},@function\n{NAME}:")
    a(f"s_cmp_ge_u32 s2, {NB}\ns_cbranch_scc1 K_END")
    a("s_load_dwordx16 s[4:19], s[0:1], 0\ns_load_dwordx4 s[20:23], s[0:1], 64\ns_load_dwordx2 s[24:25], s[0:1], 80")
    stamp()
    if P.get("diag_hold"): a("s_memrealtime s[66:67]")
    a("v_lshrrev_b32 v2, 6, v0\nv_and_b32 v1, 63, v0\nv_lshlrev_b32 v3, 2, v0")
    a("v_readfirstlane_b32 s3, v2")
    for k in range(4, 8): a(f"v_mov_b32 v{k}, 0")
    a("v_cvt_f32_u32 v10, v1")
    a(f"v_lshlrev_b32 v8, 4, v0\nv_add_u32 v8, {L_MARK}, v8")
    a("s_cmp_eq_u32 s3, 2\ns_cselect_b32 s56, -1, 0")
    a("ds_write_b128 v8, v[4:7]")
    a("v_and_b32 v10, s56, v10")
    a(f"ds_write_b32 v3, v4 offset:{L_PROG}")
    a("ds_write_b32 v3, v10")
    a(f"s_mul_i32 s57, s2, {CH*4}")
    D, S, Y, F = TP, TP + 3, TP + 6, TP + 12
    o4 = TP + 18; o8 = TP + 21
    a(f"v_add_u32 v{o4}, s57, v3\nv_add_u32 v{o4+1}, 2048, v{o4}\nv_add_u32 v{o4+2}, 4096, v{o4}")
    a(f"v_cmp_gt_u32 vcc, {CH - 1024}, v0\ns_mov_b64 {M(2)}, vcc")
    a("s_getpc_b64 s[26:27]\nK_PC:\ns_add_u32 s26, s26, K_TAB-K_PC\ns_addc_u32 s27, s27, 0")
    a(f"s_and_b32 {sBin}, s2, 7\ns_lshr_b32 s56, s2, 3\ns_lshl_b32 {sBin}, {sBin}, 5\ns_or_b32 {sBin}, {sBin}, s56")
    la = P.get("load_aux", "")
    a("s_waitcnt lgkmcnt(0)")
    a(f"s_load_dword {sTag}, s[24:25], {WS_EPO}")
    def loads3(fmt):
        a(fmt(0)); a(fmt(1)); a(f"s_mov_b64 exec, {M(2)}"); a(fmt(2)); a("s_mov_b64 exec, -1")
    loads3(lambda u: f"global_load_dword v{D+u}, v{o4+u}, s[8:9] {la}")
    for u in range(3): a(f"v_lshlrev_b32 v{o8+u}, 1, v{o4+u}")
    a("s_barrier")
    loads3(lambda u: f"global_load_dword v{S+u}, v{o4+u}, s[6:7] {la}")
    loads3(lambda u: f"global_load_dwordx2 v[{Y+2*u}:{Y+2*u+1}], v{o8+u}, s[10:11] {la}")
    loads3(lambda u: f"global_load_dwordx2 v[{F+2*u}:{F+2*u+1}], v{o8+u}, s[12:13] {la}")
    a(f"s_mul_i32 {sNs}, {sBin}, 625\ns_add_u32 s57, {sNs}, 640\ns_add_u32 {sNs}, {sNs}, 15\ns_lshr_b32 {sNs}, {sNs}, 4\ns_lshr_b32 s57, s57, 4")
    a(f"s_sub_u32 s56, s57, {sNs}\ns_sub_u32 s56, s56, 39\ns_lshl_b32 s56, s56, 6")
    a("v_add_u32 v11, s56, v1\nv_lshlrev_b32 v9, 4, v1\nv_lshlrev_b32 v15, 2, v1")
    a("global_load_ubyte v2, v11, s[26:27]")
    RW, RC, RM = BF, BF + 4, TP
    for k in range(4): a(f"global_load_dword v{RW+k}, v15, s[14:15] offset:{k*256}")
    a("v_and_b32 v12, 3, v1\nv_lshlrev_b32 v12, 5, v12\nv_bfe_u32 v13, v1, 2, 2\nv_lshl_or_b32 v12, v13, 1, v12")
    for f in range(4): a(f"global_load_ushort v{RC+f}, v12, s[16:17] offset:{f*8}")
    NC = 9
    L_WM = L_AGG + 8192
    a(f"s_lshl_b32 s56, {sW}, 12\nv_add_u32 v13, s56, v9\ns_add_u32 s56, s56, {L_WM}\ns_mov_b32 m0, s56\ns_nop 0")
    for i in range(4): a(f"global_load_lds_dwordx4 v13, s[18:19] offset:{i*1024}")
    NC += 4
    if SAFE: a("s_mov_b32 s28, s4\ns_mov_b32 s29, s5\ns_mov_b32 s30, 10240000\ns_mov_b32 s31, 0x20000")
    else: a("s_mov_b32 s28, s4\ns_and_b32 s29, s5, 0xffff\ns_or_b32 s29, s29, 0x100000\ns_mov_b32 s30, 10240000\ns_mov_b32 s31, 0x800000")
    a("s_mov_b32 s32, s20\ns_mov_b32 s33, s21\ns_lshl_b32 s34, s57, 10\ns_mov_b32 s35, 0x20000")
    a(f"s_mov_b32 s36, s24\ns_mov_b32 s37, s25\ns_mov_b32 s38, {WS_END}\ns_mov_b32 s39, 0x20000")
    a(f"s_mov_b32 {sRB}, 0\ns_mov_b64 {M(0)}, -1\ns_mov_b64 {M(1)}, -1")
    a("v_mov_b32 v14, 1")
    for k in range(40): a(f"v_mov_b32 v{ACC+k}, 0")
    B4, RK1, KY = TP + 18, TP + 21, TP + 24
    t = TP + 27
    def keycalc(u, Dr, Sr, Br, Kr, tmp):
        a(f"v_mul_u32_u24 v{tmp}, 625, v{Br}\nv_add_u32 v{tmp}, 15, v{tmp}\nv_lshrrev_b32 v{tmp}, 4, v{tmp}\nv_sub_u32 v{Kr}, v{Dr}, v{tmp}")
    def keycalc2(Sr, Kr, tmp):
        a(f"v_mul_u32_u24 v{tmp}, 1677, v{Sr}\nv_lshrrev_b32 v{tmp}, 20, v{tmp}\nv_lshl_or_b32 v{Kr}, v{Kr}, 4, v{tmp}\nv_lshl_or_b32 v{Kr}, v{Sr}, 10, v{Kr}")
    for u in range(3):
        a(f"s_waitcnt vmcnt({2 - u + 9 + NC})")
        if u == 0: stamp()
        a(f"v_mul_u32_u24 v{t+u}, 214749, v{D+u}\nv_lshrrev_b32 v{t+u}, 23, v{t+u}\nv_lshlrev_b32 v{B4+u}, 2, v{t+u}")
        if u == 2: a(f"s_mov_b64 exec, {M(2)}")
        a(f"ds_add_rtn_u32 v{RK1+u}, v{B4+u}, v14 offset:{L_HCNT}")
    a("s_mov_b64 exec, -1")
    for u in range(3): keycalc(u, D+u, S+u, t+u, KY+u, TA)
    a("s_waitcnt lgkmcnt(0)\ns_barrier")
    stamp()
    c = TA; q = TB
    a(f"ds_read_b128 v[{c}:{c+3}], v9 offset:{L_HCNT}")
    a(f"s_add_u32 {sTag}, {sTag}, 1\ns_and_b32 s56, {sTag}, 0x3ff\ns_lshl_b32 s58, s56, 22")
    a(f"s_waitcnt vmcnt({6 + NC})")
    for u in range(3): keycalc2(S+u, KY+u, t+u)
    a("s_waitcnt lgkmcnt(0)")
    a(f"v_add_u32 v{c+4}, v{c}, v{c+1}\nv_add_u32 v{c+5}, v{c+4}, v{c+2}\nv_add_u32 v{c+6}, v{c+5}, v{c+3}\nv_mov_b32 v{q}, v{c+6}")
    scan_incl(a, "v_add_u32", [q])
    a(f"v_sub_u32 v{q}, v{q}, v{c+6}\nv_add_u32 v{q+1}, v{q}, v{c}\nv_add_u32 v{q+2}, v{q}, v{c+4}\nv_add_u32 v{q+3}, v{q}, v{c+5}")
    a(f"ds_write_b128 v9, v[{q}:{q+3}] offset:{L_PRE}")
    for u in range(3): a(f"ds_read_b32 v{t+u}, v{B4+u} offset:{L_PRE}")
    a(f"s_cmp_lg_u32 {sW}, 7\ns_cbranch_scc1 K_NOROW")
    g = EE
    for i in range(4):
        a(f"v_lshl_or_b32 v{g+2*i}, v{c+i}, 11, v{q+i}\nv_or_b32 v{g+2*i}, s58, v{g+2*i}\nv_mov_b32 v{g+2*i+1}, {sTag}")
    a(f"s_lshl_b32 s57, s2, 11\ns_add_u32 s57, s57, {WS_TAB}\nv_lshlrev_b32 v10, 5, v1")
    a(f"buffer_store_dwordx4 v[{g}:{g+3}], v10, {WSR}, s57 offen sc1\nbuffer_store_dwordx4 v[{g+4}:{g+7}], v10, {WSR}, s57 offen offset:16 sc1")
    a(f"s_waitcnt vmcnt({NC + 2})\ns_branch K_ROWDONE")
    a(f"K_NOROW:\ns_waitcnt vmcnt({NC})\nK_ROWDONE:")
    a("s_waitcnt lgkmcnt(0)")
    for u in range(3):
        if u == 2: a(f"s_mov_b64 exec, {M(2)}")
        a(f"v_add_u32 v{t+u}, v{t+u}, v{RK1+u}\nv_lshlrev_b32 v{B4+u}, 2, v{t+u}\nv_lshlrev_b32 v{t+u}, 4, v{t+u}\nv_add_u32 v{t+u}, {L_SPAY}, v{t+u}")
        a(f"ds_write_b32 v{B4+u}, v{KY+u} offset:{L_SKEY}")
        a(f"ds_write2_b64 v{t+u}, v[{Y+2*u}:{Y+2*u+1}], v[{F+2*u}:{F+2*u+1}] offset0:0 offset1:1")
    a("s_mov_b64 exec, -1")
    a("v_lshlrev_b32 v10, 4, v0")
    a(f"s_mul_i32 s56, s2, {CS*16}\ns_add_u32 s56, s56, {WS_PAY}\ns_add_u32 s57, s56, 8192\ns_add_u32 s59, s56, 16384")
    a(f"s_mul_i32 s60, s2, {CS*4}\ns_add_u32 s60, s60, {WS_KEY}")
    a(f"v_lshlrev_b32 v11, 11, v0\ns_lshl_b32 s61, {sBin}, 3\ns_add_u32 s61, s61, {WS_TAB}")
    a("s_waitcnt vmcnt(2) lgkmcnt(0)\ns_barrier")
    stamp()
    o = TP
    for u in range(3): a(f"ds_read_b128 v[{o+4*u}:{o+4*u+3}], v10 offset:{L_SPAY + 8192*u}")
    a(f"ds_read_b128 v[{o+12}:{o+15}], v10 offset:{L_SKEY}")
    a(f"s_waitcnt lgkmcnt(3)\nbuffer_store_dwordx4 v[{o}:{o+3}], v10, {WSR}, s56 offen sc1")
    a(f"s_waitcnt lgkmcnt(2)\nbuffer_store_dwordx4 v[{o+4}:{o+7}], v10, {WSR}, s57 offen sc1")
    a(f"s_cmp_ge_u32 {sW}, 5\ns_cbranch_scc1 K_NOKEY")
    a(f"s_waitcnt lgkmcnt(0)\nbuffer_store_dwordx4 v[{o+12}:{o+15}], v10, {WSR}, s60 offen sc1")
    a(f"s_cmp_ge_u32 {sW}, 4\ns_cbranch_scc1 K_NOKEY")
    a(f"s_mov_b64 exec, {M(2)}\nbuffer_store_dwordx4 v[{o+8}:{o+11}], v10, {WSR}, s59 offen sc1\ns_mov_b64 exec, -1")
    a("K_NOKEY:")
    a(f"s_mov_b32 s56, {f32(-LOG2E)}")
    w = TP + 16
    for h in range(2):
        for k in range(4):
            a(f"v_lshlrev_b32 v{w+k}, 16, v{RW+k}" if h == 0 else f"v_and_b32 v{w+k}, 0xffff0000, v{RW+k}")
            a(f"v_mul_f32 v{w+4+k}, s56, v{w+k}")
        oo = WF + 4*h
        a(f"v_cvt_pk_bf16_f32 v{oo}, v{w+4}, v{w+5}\nv_cvt_pk_bf16_f32 v{oo+1}, v{w+6}, v{w+7}")
        for k in range(4):
            a(f"v_lshlrev_b32 v{w+4+k}, 16, v{oo + k//2}" if k % 2 == 0 else f"v_and_b32 v{w+4+k}, 0xffff0000, v{oo + k//2}")
            a(f"v_fma_f32 v{w+4+k}, s56, v{w+k}, -v{w+4+k}")
        a(f"v_cvt_pk_bf16_f32 v{oo+2}, v{w+4}, v{w+5}\nv_cvt_pk_bf16_f32 v{oo+3}, v{w+6}, v{w+7}")
    a(f"v_lshl_or_b32 v{w}, v{RC+1}, 16, v{RC}\nv_lshl_or_b32 v{w+1}, v{RC+3}, 16, v{RC+2}\nv_lshrrev_b32 v13, 4, v1")
    for gg in range(4):
        a(f"v_cmp_eq_u32 vcc, {gg}, v13")
        a(f"v_cndmask_b32 v{CGF+2*gg}, 0, v{w}, vcc\nv_cndmask_b32 v{CGF+2*gg+1}, 0, v{w+1}, vcc")
    a(f"v_and_b32 v{vPm}, 0x1ff, v0\nv_lshlrev_b32 v{vPm}, 2, v{vPm}\nv_xor_b32 v{vPo}, 1024, v{vPm}")
    a(f"v_mul_u32_u24 v13, {4*CS}, v1")
    a(f"s_cmp_ge_u32 {sW}, 4\ns_cbranch_scc1 K_TABOK")
    a(f"s_mov_b32 s59, {P.get('timeout', 40000)}\ns_lshr_b32 s58, s58, 22")
    for i in range(P.get("delayA", 0)): a("s_nop 15")
    a(f"buffer_load_dwordx2 v[{TA}:{TA+1}], v11, {WSR}, s61 offen sc1")
    a("K_POLLA:\ns_waitcnt vmcnt(0)")
    a(f"v_lshrrev_b32 v{TA+2}, 22, v{TA}\nv_cmp_ne_u32 vcc, {sTag}, v{TA+1}\nv_cmp_ne_u32 s[56:57], s58, v{TA+2}\ns_or_b64 vcc, vcc, s[56:57]")
    if P.get("force_fb"): a("s_mov_b64 vcc, -1")
    a("s_cbranch_vccz K_POLLAOK")
    a(f"s_sub_u32 s59, s59, 1\ns_cbranch_scc1 K_POLLAFAIL")
    a(f"buffer_load_dwordx2 v[{TA}:{TA+1}], v11, {WSR}, s61 offen sc1\ns_branch K_POLLA")
    a(f"K_POLLAFAIL:\nds_write_b32 v4, v14 offset:{L_FB}")
    a(f"K_POLLAOK:\nds_write_b32 v3, v{TA} offset:{L_TABL}")
    a("K_TABOK:\ns_waitcnt vmcnt(0) lgkmcnt(0)\ns_barrier")
    stamp()
    a(f"s_cmp_lg_u32 {sW}, 4\ns_cbranch_scc1 K_NOFLAG")
    FS = P.get("FS", 128)
    a(f"s_mul_i32 s56, s2, {FS}\ns_add_u32 s56, s56, {WS_FLG}\nv_mov_b32 v10, {sTag}\ns_mov_b64 exec, 1")
    a(f"buffer_store_dword v10, v4, {WSR}, s56 offen sc1\ns_mov_b64 exec, -1\nK_NOFLAG:")
    FL = TA
    a(f"ds_read_b128 v[{TP}:{TP+3}], v9 offset:{L_TABL}\nds_read_b32 v10, v4 offset:{L_FB}")
    a(f"s_mov_b32 s62, {WS_FLG}\nv_mul_u32_u24 v{FL+1}, {FS}, v0")
    if P.get("earlyB", 0): a(f"s_cmp_ge_u32 {sW}, 4\ns_cbranch_scc1 K_NOB0\nbuffer_load_dword v{FL}, v{FL+1}, {WSR}, s62 offen sc1\nK_NOB0:")
    a("s_waitcnt lgkmcnt(0)")
    a(f"v_readfirstlane_b32 {sFB}, v10")
    c = TP + 4; p = TP + 8
    for i in range(4): a(f"v_bfe_u32 v{c+i}, v{TP+i}, 11, 11")
    a(f"v_add_u32 v{p+1}, v{c}, v{c+1}\nv_add_u32 v{p+2}, v{p+1}, v{c+2}\nv_add_u32 v{p+3}, v{p+2}, v{c+3}\nv_mov_b32 v{p+4}, v{p+3}")
    fill = []
    for i in range(4):
        fill.append(f"v_and_b32 v{TP+i}, 0x7ff, v{TP+i}")
        fill.append(f"v_add_u32 v{PD+i}, v13, v{TP+i}")
        if i: fill.append(f"v_add_u32 v{PD+i}, {i*CS}, v{PD+i}")
    ctl = ["row_shr:1 row_mask:0xf bank_mask:0xf", "row_shr:2 row_mask:0xf bank_mask:0xf", "row_shr:4 row_mask:0xf bank_mask:0xf",
           "row_shr:8 row_mask:0xf bank_mask:0xf", "row_bcast:15 row_mask:0xa bank_mask:0xf", "row_bcast:31 row_mask:0xc bank_mask:0xf"]
    for k in range(6):
        for x in fill[2*k:2*k+2]: a(x)
        a(f"v_add_u32_dpp v{p+4}, v{p+4}, v{p+4} {ctl[k]}")
    a(f"s_cmp_lg_u32 {sFB}, 0\ns_cbranch_scc1 K_FB0")
    a(f"v_readlane_b32 {sT}, v{p+4}, 63")
    a(f"v_sub_u32 v{PP}, v{p+4}, v{p+3}")
    a(f"v_add_u32 v{PP+1}, v{PP}, v{c}\nv_add_u32 v{PP+2}, v{PP}, v{p+1}\nv_add_u32 v{PP+3}, v{PP}, v{p+2}")
    for i in range(4):
        a(f"v_sub_u32 v{PD+i}, v{PD+i}, v{PP+i}\nv_add_u32 v{PL+i}, v{PP+i}, v{c+i}")
    m = XR; f = m + 12; KEY = m + 16; PAYR = m + 20; ad = m + 32; RK = m + 40; CI = m + 44; q = m + 48
    a("K_ROUND:")
    a(f"s_mul_i32 s56, {sW}, {CAPW}\ns_add_u32 s56, s56, {sRB}\ns_add_u32 s57, s56, {CAPW}")
    a(f"s_lshl_b32 s58, {sW}, 10\ns_add_u32 s58, s58, {L_MARK}")
    for i in range(4):
        a(f"v_cmp_lt_u32 vcc, s56, v{PL+i}\nv_cmp_gt_u32 s[60:61], s57, v{PP+i}")
        a(f"v_subrev_u32 v{m+i}, s56, v{PP+i}\nv_max_i32 v{m+i}, 0, v{m+i}\nv_lshl_add_u32 v{m+i}, v{m+i}, 2, s58")
        a(f"s_and_b64 exec, vcc, s[60:61]\nds_max_u32 v{m+i}, v{PD+i}\ns_mov_b64 exec, -1")
    a(f"v_add_u32 v{m+4}, s58, v15")
    for u in range(3): a(f"ds_read_b32 v{m+8+u}, v{m+4} offset:{u*256}")
    a(f"v_add_u32 v{f}, s56, v1\nv_add_u32 v{f+1}, 64, v{f}\nv_add_u32 v{f+2}, 128, v{f}")
    for u in range(3): a(f"v_cmp_gt_u32 {M(u)}, {sT}, v{f+u}")
    a(f"s_mov_b32 s60, {WS_KEY}\ns_mov_b32 s61, {WS_PAY}")
    a("s_waitcnt lgkmcnt(0)")
    scan_incl(a, "v_max_u32", [m+8, m+9, m+10])
    a(f"v_readlane_b32 s56, v{m+8}, 63\nv_readlane_b32 s57, v{m+9}, 63\nv_add_u32 v{f}, v{f}, v{m+8}")
    a(f"s_max_u32 s57, s56, s57")
    a(f"v_max_u32 v{m+9}, s56, v{m+9}\nv_max_u32 v{m+10}, s57, v{m+10}")
    a(f"v_add_u32 v{f+1}, v{f+1}, v{m+9}\nv_add_u32 v{f+2}, v{f+2}, v{m+10}")
    for u in range(3): a(f"v_lshlrev_b32 v{ad+u}, 2, v{f+u}\nv_lshlrev_b32 v{ad+3+u}, 4, v{f+u}")
    a(f"s_cmp_lg_u32 {sRB}, 0\ns_cbranch_scc1 K_FLAGOK")
    stamp()
    def wmextract():
        a(f"s_and_b32 s56, {sW}, 3\ns_lshl_b32 s56, s56, 6\ns_add_u32 s56, s56, {L_WM}")
        a("v_lshrrev_b32 v10, 4, v1\nv_lshlrev_b32 v10, 11, v10\nv_and_b32 v12, 15, v1\nv_lshl_or_b32 v10, v12, 2, v10\nv_add_u32 v10, s56, v10")
        a("s_mov_b32 s56, 0x05040100\ns_mov_b32 s57, 0x07060302")
        def rd(ks):
            for i in range(4): a(f"ds_read2st64_b32 v[{RM+8*ks+2*i}:{RM+8*ks+2*i+1}], v10 offset0:{32*ks+2*i} offset1:{32*ks+2*i+1}")
        for ks in range(3): rd(ks)
        for ks in range(4):
            if ks == 0: rd(3)
            for i in range(4):
                a(f"s_waitcnt lgkmcnt({15 - 4*ks - i})")
                a(f"v_perm_b32 v{BF+4*ks+i}, v{RM+8*ks+2*i+1}, v{RM+8*ks+2*i}, s56")
                a(f"v_perm_b32 v{BF+16+4*ks+i}, v{RM+8*ks+2*i+1}, v{RM+8*ks+2*i}, s57")
    wmextract()
    a(f"s_cmp_ge_u32 {sW}, 4\ns_cbranch_scc1 K_POLLBOK")
    if P.get("earlyB", 0): a("s_branch K_POLLB1")
    a(f"K_POLLB:\nbuffer_load_dword v{FL}, v{FL+1}, {WSR}, s62 offen sc1\nK_POLLB1:\ns_waitcnt vmcnt(0)")
    a(f"v_cmp_ne_u32 vcc, {sTag}, v{FL}")
    if P.get("sleepB"): a(f"s_cbranch_vccz K_POLLBOK\ns_sleep {P['sleepB']}\ns_branch K_POLLB")
    else: a("s_cbranch_vccnz K_POLLB")
    a("K_POLLBOK:\ns_barrier")
    a("K_FLAGOK:")
    stamp()
    a(f"v_mov_b32 v14, {f32(64.0)}")
    for u in range(3):
        a(f"s_mov_b64 exec, {M(u)}\nbuffer_load_dword v{KEY+u}, v{ad+u}, {WSR}, s60 offen sc1")
    def payloads():
        for u in range(3):
            a(f"s_mov_b64 exec, {M(u)}\nbuffer_load_dwordx4 v[{PAYR+4*u}:{PAYR+4*u+3}], v{ad+3+u}, {WSR}, s61 offen sc1")
        a("s_mov_b64 exec, -1")
    a(f"s_cmp_lg_u32 {sRB}, 0\ns_cbranch_scc1 K_NOBAL")
    for u in range(3):
        a(f"s_waitcnt vmcnt({2-u})")
        a(f"s_mov_b64 exec, {M(u)}")
        a(f"v_lshrrev_b32 v{ad+u}, 2, v{KEY+u}\nv_and_b32 v{ad+u}, 0xfc, v{ad+u}")
        a(f"ds_add_f32 v{ad+u}, v14 offset:{L_DEG}")
    payloads()
    a("K_BAL0:")
    stamp()
    a("s_waitcnt lgkmcnt(0)\ns_barrier")
    KK = TP; MI = EE
    a(f"ds_read_b32 v{MI}, v15 offset:{L_DEG}")
    for jj in range(10): a(f"ds_read_b128 v[{KK+4*jj}:{KK+4*jj+3}], v4 offset:{L_DEG+16*jj}")
    a("v_cmp_gt_u32 vcc, 40, v1")
    for jj in range(20):
        if jj % 2 == 0: a(f"s_waitcnt lgkmcnt({9 - jj//2})")
        tt = KK + 2*jj
        a(f"v_pk_add_f32 v[{tt}:{tt+1}], v[{tt}:{tt+1}], v[{MI}:{MI+1}] op_sel_hi:[1,0] neg_lo:[0,1] neg_hi:[0,1] clamp")
        if jj >= 2: a(f"v_pk_add_f32 v[{tt}:{tt+1}], v[{tt}:{tt+1}], v[{tt-4}:{tt-3}]")
    tt = KK + 38
    a(f"v_pk_add_f32 v[{tt}:{tt+1}], v[{tt}:{tt+1}], v[{tt-2}:{tt-1}]")
    a(f"v_add_f32 v{tt}, v{tt}, v{tt+1}\nv_cvt_u32_f32 v{tt}, v{tt}\nv_lshlrev_b32 v{tt}, 2, v{tt}")
    a(f"ds_bpermute_b32 v2, v{tt}, v2")
    a("s_waitcnt lgkmcnt(0)")
    a("v_cndmask_b32 v2, -1, v2, vcc")
    a("K_BAL:")
    for u in range(3): a(f"ds_bpermute_b32 v{ad+3+u}, v{ad+u}, v2")
    a("v_mov_b32 v14, 1\nv_lshlrev_b32 v10, 3, v1")
    for u in range(3): a(f"v_and_b32 v{CI+u}, 15, v{KEY+u}")
    for u in range(3):
        a("s_waitcnt lgkmcnt(2)")
        a(f"s_mov_b64 exec, {M(u)}")
        a(f"v_and_b32 v{ad+u}, 7, v{ad+3+u}\nv_lshl_or_b32 v{CI+u}, v{ad+u}, 4, v{CI+u}\nv_lshlrev_b32 v{ad+u}, 2, v{CI+u}")
        a(f"ds_add_rtn_u32 v{RK+u}, v{ad+u}, v14 offset:{L_CNT}")
    a("s_mov_b64 exec, -1")
    for u in range(3):
        a(f"v_lshlrev_b32 v{ad+u}, 1, v{CI+u}\nv_lshlrev_b32 v{CI+u}, 4, v{CI+u}")
        a(f"v_and_b32 v{ad+3+u}, 0x38, v{ad+3+u}")
        a(f"v_and_b32 v{KEY+u}, {P.get('xmask', 0xfffffc00)}, v{KEY+u}")
    a(f"s_lshl_b32 s56, {sW}, 3\ns_add_u32 s57, s56, 7")
    a(f"v_lshrrev_b32 v{q+6}, 3, v1\nv_mul_u32_u24 v{q+6}, 48, v{q+6}")
    a("s_waitcnt lgkmcnt(0)\ns_barrier")
    stamp()
    a(f"ds_read_b64 v[{q}:{q+1}], v10 offset:{L_CNT}")
    a(f"v_and_b32 v12, 15, v1\nv_lshrrev_b32 v11, 4, v1\nv_lshlrev_b32 v11, 3, v11\nv_lshl_add_u32 v11, v12, 5, v11")
    a(f"v_mov_b32 v{q+7}, {(N-1)*1024}")
    a("s_waitcnt lgkmcnt(0)")
    a(f"v_add_u32 v{q+2}, v{q}, v{q+1}\nv_mov_b32 v{q+3}, v{q+2}")
    scan_incl(a, "v_add_u32", [q+3])
    a(f"v_sub_u32 v{q+2}, v{q+3}, v{q+2}")
    a(f"v_readlane_b32 {sLen}, v{q+3}, s57")
    a(f"v_mov_b32_dpp v{q+4}, v{q+2} row_newbcast:0 row_mask:0xf bank_mask:0x3")
    a(f"v_readlane_b32 s58, v{q+2}, s56")
    a(f"v_mov_b32_dpp v{q+4}, v{q+2} row_newbcast:8 row_mask:0xf bank_mask:0xc")
    a(f"v_add_u32 v{q+5}, 15, v{q+4}\nv_and_or_b32 v{q+5}, v{q+5}, -16, 0\nv_add_u32 v{q+5}, v{q+5}, v{q+6}")
    a(f"v_sub_u32 v{q+4}, v{q+5}, v{q+4}\nv_add_u32 v{q+4}, v{q+4}, v{q+2}")
    a(f"v_add_u32 v{q}, v{q+4}, v{q}\nv_lshl_or_b32 v{q}, v{q}, 16, v{q+4}")
    a(f"v_readlane_b32 {sBase}, v{q+5}, s56")
    for u in range(3): a(f"ds_bpermute_b32 v{ad+u}, v{ad+u}, v{q}")
    a(f"s_sub_u32 {sLen}, {sLen}, s58\ns_add_u32 s56, {sBase}, {sLen}")
    a(f"v_add_u32 v{q+1}, s56, v1\nv_lshlrev_b32 v{q+2}, 2, v{q+1}\nv_lshlrev_b32 v{q+3}, 4, v{q+1}")
    a("s_mov_b64 exec, 0xfffff")
    a(f"ds_write_b32 v{q+2}, v{q+7} offset:{L_OFF}\nds_write_b8 v{q+1}, v4 offset:{L_NODE}\nds_write_b128 v{q+3}, v[4:7] offset:{L_PAY}")
    a("s_waitcnt vmcnt(0) lgkmcnt(3)")
    for u in range(3):
        a(f"s_mov_b64 exec, {M(u)}")
        a(f"v_bfe_u32 v{ad+u}, v{ad+u}, v{CI+u}, 16\nv_add_u32 v{ad+u}, v{ad+u}, v{RK+u}")
        a(f"v_lshlrev_b32 v{RK+u}, 2, v{ad+u}\nv_lshlrev_b32 v{CI+u}, 4, v{ad+u}")
        a(f"ds_write_b32 v{RK+u}, v{KEY+u} offset:{L_OFF}")
        a(f"ds_write_b8 v{ad+u}, v{ad+3+u} offset:{L_NODE}")
        a(f"ds_write_b128 v{CI+u}, v[{PAYR+4*u}:{PAYR+4*u+3}] offset:{L_PAY}")
    a("s_mov_b64 exec, -1")
    a(f"s_lshl_b32 s56, {sBase}, 2\ns_add_u32 s56, s56, {L_OFF}\nv_mov_b32 v{vOffA}, s56")
    a(f"s_add_u32 s56, {sBase}, {L_NODE}\nv_mov_b32 v{vNodeA}, s56")
    a(f"s_lshl_b32 s56, {sBase}, 5\ns_add_u32 s56, s56, {L_A}\nv_add_u32 v{vAA}, s56, v10\nv_add_u32 v11, s56, v11")
    a(f"s_lshl_b32 s57, {sBase}, 4\ns_add_u32 s57, s57, {L_PAY}")
    a(f"v_lshl_add_u32 v{vEfA}, v12, 4, s57\nv_add_u32 v10, s57, v9")
    a(f"s_add_u32 {sG}, {sLen}, 3\ns_lshr_b32 {sG}, {sG}, 2\nv_mov_b32 v{vPv}, 0")
    a("s_waitcnt lgkmcnt(0)\ns_barrier")
    stamp()
    a(f"s_cmp_eq_u32 {sG}, 0\ns_cbranch_scc1 K2_LOOPDONE")
    ng = DE // 4
    xaux = P.get("xaux", "")
    for gg in range(ng): a(f"ds_read_b128 v[{TP+4*gg}:{TP+4*gg+3}], v{vOffA} offset:{16*gg}")
    a(f"ds_read_b64 v[{TA}:{TA+1}], v10")
    a(f"ds_read_b128 v[{OFFS}:{OFFS+3}], v{vOffA} offset:{16*ng}")
    a(f"ds_read_b64 v[{EF}:{EF+1}], v{vEfA} offset:8")
    a(f"ds_read_b128 v[{NODE}:{NODE+3}], v{vNodeA}")
    a(f"s_lshl_b32 s56, {sG}, 2")
    for gg in range(ng):
        a(f"s_waitcnt lgkmcnt({ng - 1 - gg + 4})")
        for e in range(4):
            n = 4*gg + e
            if SAFE: a(f"v_add_u32 v{TP+n}, v9, v{TP+n}")
            a(f"buffer_load_dwordx4 v[{XR+4*n}:{XR+4*n+3}], v{TP+n}, {XS}, 0 offen {xaux}")
    a("K_APREP:")
    a(f"v_cmp_gt_u32 vcc, s56, v1")
    a("s_waitcnt lgkmcnt(0)")
    a(f"v_cndmask_b32 v{TB}, 0, v{TA}, vcc\nv_cndmask_b32 v{TB+1}, 0, v{TA+1}, vcc")
    a(f"ds_read_b64 v[{TA}:{TA+1}], v10 offset:1024\nv_add_u32 v10, 1024, v10")
    for gg in range(4):
        a(f"v_mfma_f32_16x16x16_bf16 v[{TP+16+4*gg}:{TP+19+4*gg}], v[{CGF+2*gg}:{CGF+2*gg+1}], v[{TB}:{TB+1}], 0")
    for gg in range(4):
        a(f"v_cvt_pk_bf16_f32 v{EE+2*gg}, v{TP+16+4*gg}, v{TP+17+4*gg}\nv_cvt_pk_bf16_f32 v{EE+2*gg+1}, v{TP+18+4*gg}, v{TP+19+4*gg}")
        a(f"ds_write_b64 v11, v[{EE+2*gg}:{EE+2*gg+1}] offset:{512*gg}")
        a(f"s_sub_u32 s56, s56, 16\ns_cmp_le_i32 s56, 0\ns_cbranch_scc1 K_APDONE")
    a("v_add_u32 v11, 2048, v11\ns_branch K_APREP")
    a("K_APDONE:")
    a(f"s_waitcnt lgkmcnt(0)\nds_read_b64 v[{AOP}:{AOP+1}], v{vAA}")
    for x in pre_mfmas(dict(EF=EF, WF=WF), TA, 0, P): a(x)
    a(f"s_sub_u32 {sG}, {sG}, 1\ns_nop 3")
    stamp()
    if P.get("ts"): a("s_memtime s[66:67]")
    R = dict(ACC=ACC, XR=XR, TP=TP, TA=TA, TB=TB, EE=EE, WF=WF, AOP=AOP, EF=EF, OFFS=OFFS, NODE=NODE, vOffA=vOffA, vNodeA=vNodeA,
             vAA=vAA, vEfA=vEfA, sG=sG, sN=sN, vPm=vPm, vPo=vPo, vPv=vPv, XS=XS)
    gen_loop(a, R, P, dict(PROG=L_PROG))
    if P.get("ts"): a("s_memtime s[68:69]")
    stamp()
    if PR.startswith("pair"):
        a(f"v_mov_b32 v{vPv}, -1\nds_write_b32 v{vPm}, v{vPv} offset:{L_PROG}\ns_setprio 0")
    a(f"s_add_u32 {sRB}, {sRB}, {CAP}\ns_cmp_ge_u32 {sRB}, {sT}\ns_cbranch_scc1 K_EPI")
    a("s_waitcnt vmcnt(0) lgkmcnt(0)\ns_barrier")
    a(f"ds_write_b128 v8, v[4:7]\nds_write_b32 v3, v4 offset:{L_PROG}")
    a(f"v_cmp_gt_u32 vcc, 128, v0\ns_and_saveexec_b64 s[56:57], vcc\nds_write_b32 v3, v4 offset:{L_CNT}\ns_mov_b64 exec, s[56:57]")
    a("s_waitcnt lgkmcnt(0)\ns_barrier")
    a(f"s_cmp_eq_u32 {sFB}, 0\ns_cbranch_scc1 K_ROUND\ns_branch K_FB")
    a("K_NOBAL:")
    payloads()
    a("K_NOBAL2:\ns_waitcnt vmcnt(0)")
    for u in range(3): a(f"v_lshrrev_b32 v{ad+u}, 2, v{KEY+u}\nv_and_b32 v{ad+u}, 0xfc, v{ad+u}")
    a("s_branch K_BAL")
    a(f"K_FB0:\ns_mov_b32 {sT}, {E}\ns_waitcnt vmcnt(0)")
    wmextract()
    a("K_FB:")
    a(f"s_mul_i32 s56, {sW}, {CAPW}\ns_add_u32 s56, s56, {sRB}")
    a(f"v_add_u32 v{f}, s56, v1\nv_add_u32 v{f+1}, 64, v{f}\nv_add_u32 v{f+2}, 128, v{f}")
    for u in range(3):
        a(f"v_cmp_gt_u32 {M(u)}, {sT}, v{f+u}\nv_min_u32 v{f+u}, {E-1}, v{f+u}\nv_lshlrev_b32 v{ad+u}, 2, v{f+u}\nv_lshlrev_b32 v{ad+3+u}, 3, v{f+u}")
        a(f"global_load_dword v{m+u}, v{ad+u}, s[8:9]\nglobal_load_dword v{m+4+u}, v{ad+u}, s[6:7]")
        a(f"global_load_dwordx2 v[{PAYR+4*u}:{PAYR+4*u+1}], v{ad+3+u}, s[10:11]\nglobal_load_dwordx2 v[{PAYR+4*u+2}:{PAYR+4*u+3}], v{ad+3+u}, s[12:13]")
    a("s_waitcnt vmcnt(0)")
    for u in range(3):
        a(f"v_mul_u32_u24 v{f+u}, 214749, v{m+u}\nv_lshrrev_b32 v{f+u}, 23, v{f+u}\nv_cmp_eq_u32 vcc, {sBin}, v{f+u}\ns_and_b64 {M(u)}, {M(u)}, vcc")
        a(f"v_subrev_u32 v{KEY+u}, {sNs}, v{m+u}")
        keycalc2(m+4+u, KEY+u, f+u)
    a(f"v_mov_b32 v14, {f32(64.0)}\ns_cmp_lg_u32 {sRB}, 0\ns_cbranch_scc1 K_NOBAL2")
    for u in range(3):
        a(f"s_mov_b64 exec, {M(u)}")
        a(f"v_lshrrev_b32 v{ad+u}, 2, v{KEY+u}\nv_and_b32 v{ad+u}, 0xfc, v{ad+u}")
        a(f"ds_add_f32 v{ad+u}, v14 offset:{L_DEG}")
    a("s_mov_b64 exec, -1\ns_branch K_BAL0")
    a("K_EPI:")
    a(f"s_cmp_lg_u32 {sW}, 0\ns_cbranch_scc1 K_NOCNT")
    a("v_mov_b32 v14, 1\ns_mov_b64 exec, 1\nglobal_atomic_add v255, v4, v14, s[22:23] sc0 sc1\ns_mov_b64 exec, -1\nK_NOCNT:")
    a(f"s_mov_b32 s56, {f32(-LN2)}\ns_mov_b32 s57, s56")
    for sl in range(5):
        a(f"s_add_u32 s58, {sW}, {8*sl}\nv_cmp_eq_u32 vcc, s58, v2")
        for k in range(4): a(f"v_pk_mul_f32 v[{ACC+8*sl+2*k}:{ACC+8*sl+2*k+1}], v[{ACC+8*sl+2*k}:{ACC+8*sl+2*k+1}], s[56:57]")
        a(f"s_ff1_i32_b64 s58, vcc\ns_mul_i32 s58, s58, {4*RS}\ns_add_u32 s58, s58, {L_AGG}\nv_add_u32 v{10 + sl%2}, s58, v15")
        for mm in range(4):
            a(f"v_cvt_pk_bf16_f32 v{ACC+8*sl+mm}, v{ACC+8*sl+mm}, v{ACC+8*sl+4+mm}")
            a(f"ds_write_b32 v{10 + sl%2}, v{ACC+8*sl+mm} offset:{RS*mm}")
    a(f"v_and_b32 v12, 15, v1\nv_lshrrev_b32 v13, 4, v1")
    a(f"s_lshr_b32 s58, {sW}, 2\ns_mul_i32 s59, s58, {16*RS}\ns_add_u32 s59, s59, {L_AGG}")
    a(f"v_mul_u32_u24 v14, {RS}, v12\nv_lshl_add_u32 v14, v13, 4, v14\nv_add_u32 v14, s59, v14")
    a(f"s_lshl_b32 s58, s58, 2\ns_add_u32 s58, s58, {sNs}\ns_lshl_b32 s58, s58, 10\ns_and_b32 s59, {sW}, 3\ns_lshl_b32 s59, s59, 8\ns_add_u32 s58, s58, s59")
    a(f"v_lshlrev_b32 v13, 10, v13\nv_lshl_add_u32 v13, v12, 4, v13")
    a("s_waitcnt vmcnt(0) lgkmcnt(0)\ns_barrier")
    stamp()
    FA = XR
    for i in range(4):
        for ks in range(4): a(f"ds_read_b128 v[{FA+16*i+4*ks}:{FA+16*i+4*ks+3}], v14 offset:{32*RS*i + 64*ks}")
    ost = P["out_aux"]
    def outtile(i):
        Dp = TP + 8 * (i % 2); Op = TP + 16 + 4 * (i % 2)
        for k in range(4): a(f"v_cvt_pk_bf16_f32 v{Op+k}, v{Dp+2*k}, v{Dp+2*k+1}")
        a(f"buffer_store_dwordx4 v[{Op}:{Op+3}], v13, {OS}, s58 offen {ost}")
        if i < 4: a("s_add_u32 s58, s58, 8192")
    for i in range(5):
        Dd = TP + 8 * (i % 2); fi = FA + 16 * (i % 4)
        for ks in range(4):
            if i < 4: a(f"s_waitcnt lgkmcnt({min(15, 15 - 4*i - ks + (4 if i >= 1 else 0))})")
            else: a(f"s_waitcnt lgkmcnt({3 - ks})")
            for tt in range(2):
                b = BF + 16*tt + 4*ks
                a(f"v_mfma_f32_16x16x32_bf16 v[{Dd+4*tt}:{Dd+4*tt+3}], v[{fi+4*ks}:{fi+4*ks+3}], v[{b}:{b+3}], " + ("0" if ks == 0 else f"v[{Dd+4*tt}:{Dd+4*tt+3}]"))
        if i == 0:
            for ks in range(4): a(f"ds_read_b128 v[{FA+4*ks}:{FA+4*ks+3}], v14 offset:{32*RS*4 + 64*ks}")
        if i >= 1: outtile(i - 1)
    outtile(4)
    a(f"s_cmp_lg_u32 {sW}, 0\ns_cbranch_scc1 K_NOEPO")
    a(f"v_readfirstlane_b32 s56, v255\ns_cmp_lg_u32 s56, {NB-1}\ns_cbranch_scc1 K_NOEPO")
    a(f"v_mov_b32 v10, {sTag}\ns_mov_b64 exec, 1\nbuffer_store_dword v10, v4, {WSR}, 0 offen offset:{WS_EPO} sc1\nK_NOEPO:")
    if P.get("ts"):
        a("s_waitcnt vmcnt(0)"); stamp()
        a("s_waitcnt lgkmcnt(0)")
        a(f"s_lshl_b32 s98, s2, 3\ns_add_u32 s98, s98, s3\ns_lshl_b32 s98, s98, 6\ns_add_u32 s98, s98, {WS_TS}")
        a("s_mov_b64 exec, 1\nv_mov_b32 v2, s98")
        for i in range(tsn[0]): a(f"v_mov_b32 v3, s{70 + 2*i}\nglobal_store_dword v2, v3, s[24:25] offset:{4*i}")
        a(f"s_sub_u32 s68, s68, s66\nv_mov_b32 v3, s68\nglobal_store_dword v2, v3, s[24:25] offset:56\nv_mov_b32 v3, {sLen}\nglobal_store_dword v2, v3, s[24:25] offset:60")
        assert tsn[0] <= 14
    if P.get("diag_hold"):
        a(f"s_add_u32 s66, s66, {P['diag_hold']}\nK_HOLD:\ns_memrealtime s[68:69]\ns_waitcnt lgkmcnt(0)\ns_sub_u32 s68, s68, s66\ns_cmp_lt_i32 s68, 0\ns_cbranch_scc1 K_HOLD")
    a("K_END:\ns_endpgm")
    a(".p2align 6\n.type K_TAB,@object\nK_TAB:")
    for A in (A39, A40):
        used = [0]*8; codes = []
        for ww in A: codes.append(ww | used[ww] << 3); used[ww] += 1
        assert used == [5]*8
        a(".byte " + ", ".join(str(cc) for cc in codes + [255]*24))
    body = a.text(verbose=verbose)
    ns = 100 if P.get("ts") else 72
    gen.nts = tsn[0]
    nul = P.get("nullpre", 0)
    if nul:
        body = ".globl null_kernel\n.p2align 8\n.type null_kernel,@function\nnull_kernel:\ns_endpgm\n" + body
    launch = f"; @launch grid=({NB},1,1) block=(512,1,1) lds={L_END}\n"
    if nul or P.get("aslist"): launch = "; @launch kernel=null_kernel grid=(256,1,1) block=(64,1,1) lds=0\n" * nul + f"; @launch kernel={NAME} grid=({NB},1,1) block=(512,1,1) lds={L_END}\n"
    return (HEADER + launch + '.amdgcn_target "amdgcn-amd-amdhsa--gfx950"\n.text\n' + body +
f""".section .rodata,"a"
.p2align 6
.amdhsa_kernel {NAME}
  .amdhsa_next_free_vgpr 256
  .amdhsa_next_free_sgpr {ns}
  .amdhsa_accum_offset 256
  .amdhsa_group_segment_fixed_size 0
  .amdhsa_kernarg_size 88
  .amdhsa_user_sgpr_count 2
  .amdhsa_user_sgpr_kernarg_segment_ptr 1
  .amdhsa_system_sgpr_workgroup_id_x 1
  .amdhsa_float_denorm_mode_32 3
.end_amdhsa_kernel
""" + (desc("null_kernel", 8, 16) if nul else ""))

if __name__ == "__main__":
    P = eval(sys.argv[2]) if len(sys.argv) > 2 else {}
    open(sys.argv[1], "w").write(gen(P, verbose=True))
```

```python
def pre_mfmas(R, T, ab, P):
    EF, WF = R["EF"], R["WF"]
    l = [f"v_mfma_f32_4x4x4_16b_bf16 v[{T}:{T+3}], v[{EF}:{EF+1}], v[{WF}:{WF+1}], 0 cbsz:4 abid:{ab}",
         f"v_mfma_f32_4x4x4_16b_bf16 v[{T+4}:{T+7}], v[{EF}:{EF+1}], v[{WF+4}:{WF+5}], 0 cbsz:4 abid:{ab}",
         f"v_mfma_f32_4x4x4_16b_bf16 v[{T}:{T+3}], v[{EF}:{EF+1}], v[{WF+2}:{WF+3}], v[{T}:{T+3}] cbsz:4 abid:{ab}",
         f"v_mfma_f32_4x4x4_16b_bf16 v[{T+4}:{T+7}], v[{EF}:{EF+1}], v[{WF+6}:{WF+7}], v[{T+4}:{T+7}] cbsz:4 abid:{ab}"]
    return l[:2] if P.get("nolo") else l

def gen_loop(a_real, R, P, L):
    g = R.get
    ACC, XR, TP, TA, TB, EE, AOP, EF, OFFS, NODE = (R[k] for k in "ACC XR TP TA TB EE AOP EF OFFS NODE".split())
    vOffA, vNodeA, vAA, vEfA, sG, sN = (R[k] for k in "vOffA vNodeA vAA vEfA sG sN".split())
    vPm, vPo, vPv = R["vPm"], R["vPo"], R["vPv"]
    DE = P.get("DE", 8); ng = DE // 4; RING = R.get("RING", 16)
    PR = P.get("prio", ""); SAFE = P.get("safe"); xaux = P.get("xaux", "")
    sched = P.get("sched", "a"); XS = R.get("XS", "s[8:11]")
    inc = (0, 0, 0, 0) if P.get("bench") else (64, 16, 512, 256)
    drop = tuple(P.get("nocomp", ()))
    def a(t):
        for l in t.split("\n"):
            if l.strip() and not (drop and l.strip().startswith(drop)): a_real(l)
    a(".p2align 4\nK2_LOOP:")
    if P.get("trace"):
        a("s_memtime s[90:91]\ns_memrealtime s[92:93]\ns_waitcnt lgkmcnt(0)\ns_mov_b32 m0, s94\nv_writelane_b32 v250, s90, m0\nv_writelane_b32 v251, s92, m0\ns_add_u32 s94, s94, 1")
    for qq in range(4):
        T = TA if qq % 2 == 0 else TB
        Tn = TB if qq % 2 == 0 else TA
        def tp(e, h):
            s = XR + 4 * ((4*qq + e) % RING) + 2*h
            d = TP + 8*e + 4*h
            return f"v_mfma_f32_4x4x4_16b_bf16 v[{d}:{d+3}], v[{AOP}:{AOP+1}], v[{s}:{s+1}], 0 cbsz:4 abid:{4*qq+e}"
        def ld(e):
            s = XR + 4 * ((4*qq + e + DE) % RING)
            if P.get("noload"): return ""
            return (f"v_add_u32 v{OFFS+e}, v9, v{OFFS+e}\n" if SAFE else "") + f"buffer_load_dwordx4 v[{s}:{s+3}], v{OFFS+e}, {XS}, 0 offen {xaux}"
        ex = [f"v_exp_f32 v{EE+i}, v{T+i}" for i in range(8)]
        rc = [f"v_rcp_f32 v{EE+i}, v{EE+i}" for i in range(8)]
        ad = [f"v_pk_add_f32 v[{EE+2*i}:{EE+2*i+1}], v[{EE+2*i}:{EE+2*i+1}], 1.0 op_sel_hi:[1,0]" for i in range(4)]
        mu = [f"v_pk_mul_f32 v[{EE+2*i}:{EE+2*i+1}], v[{EE+2*i}:{EE+2*i+1}], v[{T+2*i}:{T+2*i+1}]" for i in range(4)]
        pm = pre_mfmas(R, Tn, (qq + 1) % 4, P) + ["", ""]
        def fma(e):
            o = [f"s_set_gpr_idx_on {sN}, gpr_idx(SRC2,DST)" if e == 0 else f"s_lshr_b32 {sN}, {sN}, 8\ns_set_gpr_idx_idx {sN}"]
            for h in range(2):
                r = EE + 4*h + (e & ~1); sel = e & 1
                for i in range(2):
                    d = ACC + 4*h + 2*i; t = TP + 8*e + 4*h + 2*i
                    o.append(f"v_pk_fma_f32 v[{d}:{d+1}], v[{r}:{r+1}], v[{t}:{t+1}], v[{d}:{d+1}] op_sel:[{sel},0,0] op_sel_hi:[{sel},1,1]")
            return "\n".join(o)
        dsoff = f"ds_read_b128 v[{OFFS}:{OFFS+3}], v{vOffA} offset:{16*(qq + 1 + ng)}"
        dsA = f"ds_read_b64 v[{AOP}:{AOP+1}], v{vAA} offset:512" if qq == 3 else ""
        dsP = f"ds_read_b32 v{vPv}, v{vPo} offset:{L['PROG']}" if (PR == "pair1" or (PR == "pair2" and qq % 2 == 1) or (PR == "pair4" and qq == 3)) else ""
        dsE = f"ds_read_b64 v[{EF}:{EF+1}], v{vEfA} offset:{256+8}" if qq == 2 else ""
        rfl = f"v_readfirstlane_b32 {sN}, v{NODE+qq}"
        dsN = (f"ds_read_b128 v[{NODE}:{NODE+3}], v{vNodeA} offset:16\n"
               f"v_add_u32 v{vOffA}, {inc[0]}, v{vOffA}\nv_add_u32 v{vNodeA}, {inc[1]}, v{vNodeA}\nv_add_u32 v{vAA}, {inc[2]}, v{vAA}\nv_add_u32 v{vEfA if not P.get('bench') else 3}, {inc[3] if not P.get('bench') else 1}, v{vEfA if not P.get('bench') else 3}") if qq == 3 else ""
        PV = 3 if P.get("bench") else OFFS
        def prio():
            dop = PR == "pair1" or (PR == "pair2" and qq % 2 == 0) or (PR == "pair4" and qq == 0)
            if dop:
                pv = PV
                if R.get("sRot"): a(f"v_subrev_u32 v{R['vPt']}, {R['sRot']}, v{PV}"); pv = R["vPt"]
                a(f"v_cmp_gt_u32 vcc, v{pv}, v{vPv}")
                a(f"ds_write_b32 v{vPm}, v{pv} offset:{L['PROG']}")
                a(f"s_setprio 0\ns_cbranch_vccnz K2_P{qq}\ns_setprio 1\nK2_P{qq}:")
            if PR == "quart" and qq == 0:
                a(f"s_cmp_le_i32 {sG}, s41\ns_cbranch_scc1 K2_PRIO\nK2_PRIOBACK:")
        if sched == "a":
            a("s_waitcnt lgkmcnt(0)")
            prio()
            for e in range(3):
                a(f"s_waitcnt vmcnt({DE-1})")
                a(tp(e, 0)); a(ex[2*e]); a(tp(e, 1)); a(ld(e)); a(ex[2*e+1])
            a(ex[6]); a(ex[7])
            for x in ad: a(x)
            a(f"s_waitcnt vmcnt({DE-1})")
            a(tp(3, 0)); a(rc[0]); a(tp(3, 1)); a(ld(3)); a(rc[1])
            a(dsoff); a(dsA); a(dsP)
            a(pm[0]); a(rc[2]); a(pm[1]); a(rc[3]); a(pm[2]); a(rc[4]); a(pm[3]); a(dsE)
            a(rc[5]); a(rc[6]); a(rc[7]); a(rfl); a(dsN)
            for x in mu: a(x)
            for e in range(4): a(fma(e))
            a("s_set_gpr_idx_off")
        elif sched == "b":
            a(f"s_waitcnt vmcnt({DE-2}) lgkmcnt(0)")
            prio()
            a(tp(0, 0)); a(ex[0]); a(tp(0, 1)); a(ex[1]); a(tp(1, 0)); a(ex[2]); a(tp(1, 1)); a(ld(0)); a(ld(1)); a(ex[3])
            a(f"s_waitcnt vmcnt({DE-2})")
            a(tp(2, 0)); a(ex[4]); a(tp(2, 1)); a(ex[5]); a(ex[6]); a(ex[7])
            for x in ad: a(x)
            a(tp(3, 0)); a(rc[0]); a(tp(3, 1)); a(ld(2)); a(ld(3)); a(rc[1])
            a(dsoff); a(dsA); a(dsP)
            a(pm[0]); a(rc[2]); a(pm[1]); a(rc[3]); a(pm[2]); a(rc[4]); a(pm[3]); a(dsE)
            a(rc[5]); a(rc[6]); a(rc[7]); a(rfl); a(dsN)
            for x in mu: a(x)
            for e in range(4): a(fma(e))
            a("s_set_gpr_idx_off")
        elif sched == "c":
            a(f"s_waitcnt vmcnt({DE-4}) lgkmcnt(0)")
            prio()
            a(tp(0, 0)); a(ld(0)); a(ex[0]); a(tp(0, 1)); a(ld(1)); a(ex[1]); a(tp(1, 0)); a(ld(2)); a(ex[2]); a(tp(1, 1)); a(ld(3)); a(ex[3])
            a(tp(2, 0)); a(dsoff); a(ex[4]); a(tp(2, 1)); a(ex[5]); a(ex[6]); a(ex[7])
            for x in ad: a(x)
            a(tp(3, 0)); a(rc[0]); a(tp(3, 1)); a(rc[1])
            a(dsA); a(dsP)
            a(pm[0]); a(rc[2]); a(pm[1]); a(rc[3]); a(pm[2]); a(rc[4]); a(pm[3]); a(dsE)
            a(rc[5]); a(rc[6]); a(rc[7]); a(rfl); a(dsN)
            for x in mu: a(x)
            for e in range(4): a(fma(e))
            a("s_set_gpr_idx_off")
        else:
            from loopx import extra
            extra(sched, a, locals())
        a(f"s_sub_u32 {sG}, {sG}, 1\ns_cmp_eq_u32 {sG}, 0" if not P.get("subcc") else f"s_sub_u32 {sG}, {sG}, 1")
        if P.get("subcc"):
            a("s_cbranch_scc1 K2_LOOPDONE" if qq < 3 else "s_cbranch_scc0 K2_LOOP")
        else:
            a("s_cbranch_scc1 K2_LOOPDONE" if qq < 3 else "s_cbranch_scc0 K2_LOOP")
    a = a_real
    if PR == "quart":
        a("s_branch K2_LOOPDONE\nK2_PRIO:\ns_sub_i32 s41, s41, s40\ns_add_u32 s42, s42, 1")
        a("s_setprio 2\ns_cmp_eq_u32 s42, 1\ns_cbranch_scc1 K2_PRIOBACK\ns_setprio 1\ns_cmp_eq_u32 s42, 2\ns_cbranch_scc1 K2_PRIOBACK\ns_setprio 0\ns_branch K2_PRIOBACK")
    a("K2_LOOPDONE:")
```

```python
import sys, struct
from asmlib import Asm
from loopgen import gen_loop, pre_mfmas
from gen import HEADER as _H, scan_incl, f32, LOG2E, LN2, desc

N, E = 10000, 320000
NB, NP, CH, CS = 256, 250, 1280, 1280
WS_EPO, WS_FLG, WS_TAB, WS_KEY, WS_PAY, WS_END = 0, 0x7F0000, 0x2000, 0x82000, 0x300000, 0x800000
WS_TS = 0x8000000
NAME = "gather_scatter__tensor_product_equiv_tfn__graph_kernel"
HEADER = _H[:_H.index("; Launch 1")] + """; One launch, 256 workgroups (one per CU).  Phase 1: every workgroup (250 of them) bins a chunk of 1280 edges by
; destination block and publishes the binned chunk in d_ws (write-through stores, tagged table row, flag).
; Phase 2: the workgroup collects its own bin, sorts it by (owner wave, source bucket), gathers x rows,
; does the tensor product + radial gate in registers, mixes the channels and stores.
; If the hand-off never arrives (workgroups not co-resident) a workgroup scans the raw edge list itself.
"""
A39 = [6, 5, 6, 7, 4, 2, 0, 1, 3, 4, 6, 3, 2, 0, 6, 1, 3, 5, 7, 1, 0, 5, 7, 4, 2, 1, 5, 4, 7, 3, 2, 0, 2, 0, 7, 1, 3, 4, 5, 6]
A40 = [3, 2, 4, 7, 0, 1, 6, 0, 5, 1, 7, 5, 6, 3, 4, 6, 5, 0, 2, 7, 1, 4, 6, 3, 2, 1, 3, 0, 5, 4, 2, 7, 2, 5, 4, 7, 1, 6, 0, 3]

def gen(P=None, verbose=False):
    P = dict(dict(prio="pair4", sched="b", subcc=1, out_aux="sc1"), **(P or {}))
    a = Asm()
    DE = P.get("DE", 8); SAFE = P.get("safe"); PR = P["prio"]
    CAPW = 192; CAP = 8 * CAPW; NE = CAP + 8 * 48 + 16
    L_CNT, L_DEG, L_HCNT = 0, 512, 768
    L_FB = 1792
    L_PROG = 2048
    L_OFF = 4096
    L_NODE = L_OFF + NE * 4
    L_PAY = (L_NODE + NE + 63) // 64 * 64
    L_A = L_PAY + NE * 16
    L_AGG = (L_A + NE * 32 + 255) // 256 * 256
    L_MARK = L_AGG
    RS = 288
    L_END = L_AGG + 160 * RS
    L_PRE = L_OFF; L_TABL = L_OFF + 1024; L_SKEY = L_PAY; L_SPAY = L_A
    assert L_SPAY + 16384 < 65536
    ACC, XR, TP, TA, TB, EE, WF, AOP, EF, OFFS, NODE = 16, 56, 120, 152, 160, 168, 176, 184, 186, 188, 192
    vOffA, vNodeA, vAA, vEfA = 196, 197, 198, 199
    BF, CGF, PP, PL, PD = 200, 232, 240, 244, 248
    vPm, vPo, vPv = 252, 253, 254
    sW, sT, sRB, sG, sN, sBase, sLen, sTag, sBin, sNs, sFB = "s3", "s46", "s47", "s48", "s49", "s50", "s51", "s52", "s53", "s54", "s55"
    sEp = "s63"; sRole = "s40"; sT8 = "s26"; sRot = "s27"; ROT = P.get("rot", 1)
    XS, OS, WSR = "s[28:31]", "s[32:35]", "s[36:39]"
    M = lambda u: f"s[{40+2*u}:{41+2*u}]"
    tsn = [0]
    PFW = ["a", "b", "c", "d", 0, 1]
    pfd = P.get("pf", {}); pfd = dict(zip((0, 1), pfd)) if isinstance(pfd, tuple) else pfd
    def prefetch(win):
        n = pfd.get(win, 0)
        if not n: return
        r0 = sum(pfd.get(w_, 0) for w_ in PFW[:PFW.index(win)]) * 2048
        ar = TA + 3 if win in (0, 1) else 254
        a(f"s_mov_b32 s64, s4\ns_mov_b32 s65, s5\ns_mov_b32 s66, 10240000\ns_mov_b32 s67, 0x20000")
        if win in (0, 1):
            a(f"s_cmp_lt_u32 {sW}, {8-n}\ns_cbranch_scc1 K_NOPF{win}")
            a(f"s_sub_u32 s68, 7, {sW}\ns_lshl_b32 s68, s68, 8\ns_add_u32 s68, s68, s2\ns_lshl_b32 s68, s68, 13\ns_add_u32 s68, s68, {r0*1024}")
            a(f"v_lshlrev_b32 v{ar}, 7, v1\nbuffer_load_dword v255, v{ar}, s[64:67], s68 offen\nK_NOPF{win}:")
        else:
            a(f"s_cmp_lg_u32 {sW}, {P.get('pfwave', 5)}\ns_cbranch_scc1 K_NOPF{win}")
            a(f"s_lshl_b32 s68, s2, 13\ns_add_u32 s68, s68, {r0*1024}\nv_lshlrev_b32 v{ar}, 7, v1")
            for i in range(n): a(f"buffer_load_dword v255, v{ar}, s[64:67], s68 offen\ns_add_u32 s68, s68, {2048*1024}")
            a(f"K_NOPF{win}:")
    hn = [0]
    def stamp():
        if P.get("hold_at") == hn[0]:
            a(f"s_waitcnt lgkmcnt(0)\ns_add_u32 s70, s70, {P['hold_x']}\nK_HOLDP:\ns_memrealtime s[68:69]\ns_waitcnt lgkmcnt(0)\ns_sub_u32 s68, s68, s70\ns_cmp_lt_i32 s68, 0\ns_cbranch_scc1 K_HOLDP")
        hn[0] += 1
        if P.get("ts"):
            r = 70 + 2 * tsn[0]; a(f"s_memrealtime s[{r}:{r+1}]"); tsn[0] += 1
    a(f".globl {NAME}\n.p2align 8\n.type {NAME},@function\n{NAME}:")
    a(f"s_cmp_ge_u32 s2, {NB}\ns_cbranch_scc1 K_END")
    a("s_load_dwordx16 s[4:19], s[0:1], 0\ns_load_dwordx4 s[20:23], s[0:1], 64\ns_load_dwordx2 s[24:25], s[0:1], 80")
    stamp()
    if P.get("diag_hold") or P.get("hold_at"): a("s_memrealtime s[70:71]")
    a("v_lshrrev_b32 v2, 6, v0\nv_and_b32 v1, 63, v0\nv_lshlrev_b32 v3, 2, v0")
    a("v_readfirstlane_b32 s3, v2")
    for k in range(4, 8): a(f"v_mov_b32 v{k}, 0")
    a("v_cvt_f32_u32 v10, v1")
    a(f"v_lshlrev_b32 v8, 4, v0\nv_add_u32 v8, {L_MARK}, v8")
    a("s_cmp_eq_u32 s3, 2\ns_cselect_b32 s56, -1, 0")
    a("ds_write_b128 v8, v[4:7]")
    a("v_and_b32 v10, s56, v10")
    a(f"ds_write_b32 v3, v4 offset:{L_PROG}")
    a("ds_write_b32 v3, v10")
    D, S, Y, F, B4, RK1 = TP, TP + 4, TP + 8, TP + 16, TP + 24, TP + 28
    KY, t, tmp = XR, XR + 4, XR + 8
    L_WM = L_AGG + 8192; L_WR = L_WM + 32768; L_CG = L_WR + 1024; L_MAP = L_CG + 128
    assert L_MAP + 128 <= L_END
    a(f"s_mul_i32 s57, s2, {CH*4}\nv_lshlrev_b32 v10, 4, v0\nv_add_u32 v11, s57, v10\nv_lshlrev_b32 v12, 1, v11")
    a(f"s_and_b32 {sBin}, s2, 7\ns_lshr_b32 s56, s2, 3\ns_lshl_b32 {sBin}, {sBin}, 5\ns_or_b32 {sBin}, {sBin}, s56")
    a(f"s_cmp_lt_u32 s2, {NP}\ns_cselect_b32 s56, 5, 0\ns_cmp_lt_u32 {sW}, s56\ns_cselect_b32 {sRole}, 1, 0")
    a("v_lshlrev_b32 v9, 4, v1\nv_lshlrev_b32 v15, 2, v1")
    la = P.get("load_aux", "")
    a("s_waitcnt lgkmcnt(0)")
    a(f"s_load_dword {sTag}, s[24:25], {WS_EPO}")
    def setup():
        a(f"s_mul_i32 {sNs}, {sBin}, 625\ns_add_u32 s57, {sNs}, 640\ns_add_u32 {sNs}, {sNs}, 15\ns_lshr_b32 {sNs}, {sNs}, 4\ns_lshr_b32 s57, s57, 4")
        if SAFE: a("s_mov_b32 s28, s4\ns_mov_b32 s29, s5\ns_mov_b32 s30, 10240000\ns_mov_b32 s31, 0x20000")
        else: a("s_mov_b32 s28, s4\ns_and_b32 s29, s5, 0xffff\ns_or_b32 s29, s29, 0x100000\ns_mov_b32 s30, 10240000\ns_mov_b32 s31, 0x800000")
        a("s_mov_b32 s32, s20\ns_mov_b32 s33, s21\ns_lshl_b32 s34, s57, 10\ns_mov_b32 s35, 0x20000")
        a(f"s_mov_b32 s36, s24\ns_mov_b32 s37, s25\ns_mov_b32 s38, {WS_END}\ns_mov_b32 s39, 0x20000")
        a(f"s_mov_b32 {sRB}, 0\nv_mov_b32 v14, 1")
        for k in range(40): a(f"v_mov_b32 v{ACC+k}, 0")
    def keycalc(Dr, Br, Kr, tm):
        a(f"v_mul_u32_u24 v{tm}, 625, v{Br}\nv_add_u32 v{tm}, 15, v{tm}\nv_lshrrev_b32 v{tm}, 4, v{tm}\nv_sub_u32 v{Kr}, v{Dr}, v{tm}")
    def keycalc2(Sr, Kr, tm):
        a(f"v_mul_u32_u24 v{tm}, 1677, v{Sr}\nv_lshrrev_b32 v{tm}, 20, v{tm}\nv_lshl_or_b32 v{Kr}, v{Kr}, 4, v{tm}\nv_lshl_or_b32 v{Kr}, v{Sr}, 10, v{Kr}")
    a(f"s_cmp_eq_u32 {sRole}, 0\ns_cbranch_scc1 K_HELP")
    a(f"global_load_dwordx4 v[{D}:{D+3}], v11, s[8:9] {la}")
    a("s_barrier")
    a(f"global_load_dwordx4 v[{S}:{S+3}], v11, s[6:7] {la}")
    for h in range(2): a(f"global_load_dwordx4 v[{Y+4*h}:{Y+4*h+3}], v12, s[10:11] offset:{16*h} {la}")
    for h in range(2): a(f"global_load_dwordx4 v[{F+4*h}:{F+4*h+3}], v12, s[12:13] offset:{16*h} {la}")
    setup()
    a("s_waitcnt vmcnt(5)")
    stamp()
    for u in range(4):
        a(f"v_mul_u32_u24 v{t+u}, 214749, v{D+u}\nv_lshrrev_b32 v{t+u}, 23, v{t+u}\nv_lshlrev_b32 v{B4+u}, 2, v{t+u}")
        a(f"ds_add_rtn_u32 v{RK1+u}, v{B4+u}, v14 offset:{L_HCNT}")
    for u in range(4): keycalc(D+u, t+u, KY+u, tmp)
    a("s_branch K_BB")
    a("K_HELP:\ns_barrier")
    a(f"s_cmp_lt_u32 {sW}, 5\ns_cbranch_scc1 K_HELP2")
    a(f"s_cmp_eq_u32 {sW}, 7\ns_cbranch_scc1 K_HELP7\ns_cmp_eq_u32 {sW}, 5\ns_cbranch_scc1 K_HELP2")
    a(f"s_and_b32 s56, {sBin}, 31\ns_lshl_b32 s56, s56, 10\nv_lshl_add_u32 v13, v1, 7, s56\ns_mov_b64 exec, 0xff")
    a("global_load_dword v255, v13, s[18:19]\ns_mov_b64 exec, -1")
    a("s_branch K_HELP2\nK_HELP7:")
    a(f"s_mov_b32 m0, {L_WR}\ns_getpc_b64 s[26:27]\nK_PC:\nglobal_load_lds_dwordx4 v9, s[14:15]")
    a(f"s_add_u32 s26, s26, K_TAB-K_PC\ns_addc_u32 s27, s27, 0\ns_mov_b32 m0, {L_CG}\ns_mov_b64 exec, 0xff\nglobal_load_lds_dwordx4 v9, s[16:17]")
    a(f"s_mov_b32 m0, {L_MAP}\ns_nop 0\nglobal_load_lds_dwordx4 v9, s[26:27]\ns_mov_b64 exec, -1")
    a("K_HELP2:")
    for i in range(P.get("pfa_delay", 0)): a("s_nop 15")
    prefetch("a")
    setup()
    if P.get("ts"): a("s_memrealtime s[72:73]")
    a("K_BB:\ns_waitcnt lgkmcnt(0)\ns_barrier")
    stamp()
    c = TA; q = TB
    a(f"s_add_u32 {sTag}, {sTag}, 1\ns_and_b32 s56, {sTag}, 0x3ff\ns_lshl_b32 s58, s56, 22")
    a(f"s_and_b32 s59, {sTag}, 0xff\ns_lshl_b32 {sT8}, s59, 24")
    a(f"s_sub_u32 s56, {sW}, 5\ns_lshl_b32 s57, s56, 14\nv_add_u32 v13, s57, v9\ns_cmp_lt_u32 s56, 2\ns_cbranch_scc1 K_DMA\ns_cmp_ge_u32 s2, {NP}\ns_cbranch_scc1 K_BC1")
    a(f"ds_read_b128 v[{c}:{c+3}], v9 offset:{L_HCNT}")
    a(f"s_cmp_eq_u32 {sW}, 7\ns_cbranch_scc1 K_SC\ns_waitcnt vmcnt(4)")
    for u in range(4): keycalc2(S+u, KY+u, t+u)
    a("K_SC:\ns_waitcnt lgkmcnt(0)")
    a(f"v_add_u32 v{c+4}, v{c}, v{c+1}\nv_add_u32 v{c+5}, v{c+4}, v{c+2}\nv_add_u32 v{c+6}, v{c+5}, v{c+3}\nv_mov_b32 v{q}, v{c+6}")
    scan_incl(a, "v_add_u32", [q])
    a(f"v_sub_u32 v{q}, v{q}, v{c+6}\nv_add_u32 v{q+1}, v{q}, v{c}\nv_add_u32 v{q+2}, v{q}, v{c+4}\nv_add_u32 v{q+3}, v{q}, v{c+5}")
    a(f"s_cmp_lg_u32 {sW}, 7\ns_cbranch_scc1 K_NOROW")
    g = EE
    for i in range(4):
        a(f"v_lshl_or_b32 v{g+2*i}, v{c+i}, 11, v{q+i}\nv_or_b32 v{g+2*i}, s58, v{g+2*i}\nv_mov_b32 v{g+2*i+1}, {sTag}")
    a(f"s_lshl_b32 s57, s2, 11\ns_add_u32 s57, s57, {WS_TAB}\nv_lshlrev_b32 v11, 5, v1")
    a(f"buffer_store_dwordx4 v[{g}:{g+3}], v11, {WSR}, s57 offen sc1\nbuffer_store_dwordx4 v[{g+4}:{g+7}], v11, {WSR}, s57 offen offset:16 sc1")
    a("s_branch K_BC1")
    a("K_DMA:")
    a(f"s_add_u32 s57, s57, {L_WM}")
    for gidx in range(4):
        a("s_mov_b32 m0, s57\ns_add_u32 s57, s57, 4096")
        for i_ in range(4): a(f"global_load_lds_dwordx4 v13, s[18:19] offset:{i_*1024}")
        if gidx < 3: a("v_add_u32 v13, 4096, v13")
    prefetch("b")
    a("s_branch K_BC1")
    a("K_NOROW:")
    a(f"ds_write_b128 v9, v[{q}:{q+3}] offset:{L_PRE}")
    for u in range(4): a(f"ds_read_b32 v{t+u}, v{B4+u} offset:{L_PRE}")
    KG = XR + 10
    for u in range(4): a(f"v_or_b32 v{KG+2*u}, {sT8}, v{KY+u}\nv_mov_b32 v{KG+2*u+1}, {sTag}")
    for u in range(4):
        a(f"s_waitcnt lgkmcnt(3)")
        a(f"v_add_lshl_u32 v{B4+u}, v{t+u}, v{RK1+u}, 3")
        a(f"ds_write_b64 v{B4+u}, v[{KG+2*u}:{KG+2*u+1}] offset:{L_SKEY}")
    for u in range(4): a(f"v_lshlrev_b32 v{B4+u}, 1, v{B4+u}\nv_add_u32 v{B4+u}, {L_SPAY}, v{B4+u}")
    a("K_BC1:")
    a(f"s_mul_i32 s60, s2, {CS*8}\ns_add_u32 s60, s60, {WS_KEY}")
    a("s_waitcnt lgkmcnt(0)\ns_barrier")
    o = XR + 20
    a(f"s_cmp_ge_u32 s2, {NP}\ns_cbranch_scc1 K_BC0")
    a(f"ds_read_b128 v[{o}:{o+3}], v10 offset:{L_SKEY}")
    a(f"s_sub_u32 s56, {sW}, 5\ns_cmp_lt_u32 s56, 2\ns_cbranch_scc0 K_KS1")
    a(f"ds_read_b128 v[{o+4}:{o+7}], v10 offset:{L_SKEY + 8192 - 5120}\ns_add_u32 s59, s60, {8192 - 5120}")
    a(f"s_waitcnt lgkmcnt(0)\nbuffer_store_dwordx4 v[{o+4}:{o+7}], v10, {WSR}, s59 offen sc1")
    a(f"K_KS1:\ns_waitcnt lgkmcnt(0)\nbuffer_store_dwordx4 v[{o}:{o+3}], v10, {WSR}, s60 offen sc1")
    a(f"s_cmp_ge_u32 {sW}, 5\ns_cbranch_scc1 K_BC3")
    a("s_waitcnt vmcnt(1)")
    for u in range(4): a(f"ds_write2_b64 v{B4+u}, v[{Y+2*u}:{Y+2*u+1}], v[{F+2*u}:{F+2*u+1}] offset0:0 offset1:1")
    a("s_branch K_BC\nK_BC0:\ns_waitcnt vmcnt(0)\nK_BC3:\ns_cmp_eq_u32 s3, 7\ns_cbranch_scc1 K_BC7\ns_waitcnt vmcnt(" + str(2) + ")\nK_BC7:\ns_waitcnt vmcnt(3)")
    prefetch("c")
    a("K_BC:")
    a(f"s_mul_i32 s56, s2, {CS*16}\ns_add_u32 s56, s56, {WS_PAY}\ns_add_u32 s57, s56, 8192\ns_add_u32 s59, s56, 16384")
    a(f"v_lshlrev_b32 v11, 11, v0\ns_lshl_b32 s61, {sBin}, 3\ns_add_u32 s61, s61, {WS_TAB}")
    a("s_waitcnt lgkmcnt(0)\ns_barrier")
    stamp()
    RW, RC, RM = OFFS, NODE, TP
    o = XR
    a(f"s_cmp_ge_u32 s2, {NP}\ns_cbranch_scc1 K_NOKEY")
    for u in range(2): a(f"ds_read_b128 v[{o+4*u}:{o+4*u+3}], v10 offset:{L_SPAY + 8192*u}")
    a(f"s_cmp_ge_u32 {sW}, 4\ns_cbranch_scc1 K_ST1")
    a(f"ds_read_b128 v[{o+8}:{o+11}], v10 offset:{L_SPAY + 16384}")
    a(f"s_waitcnt lgkmcnt(0)\nbuffer_store_dwordx4 v[{o+8}:{o+11}], v10, {WSR}, s59 offen sc1")
    a(f"K_ST1:\ns_waitcnt lgkmcnt(1)\nbuffer_store_dwordx4 v[{o}:{o+3}], v10, {WSR}, s56 offen sc1")
    a(f"s_waitcnt lgkmcnt(0)\nbuffer_store_dwordx4 v[{o+4}:{o+7}], v10, {WSR}, s57 offen sc1")
    a("K_NOKEY:")
    prefetch("d")
    a(f"s_lshr_b32 s56, s34, 10\ns_sub_u32 s56, s56, {sNs}\ns_sub_u32 s56, s56, 39\ns_lshl_b32 s56, s56, 6\ns_add_u32 s56, s56, {L_MAP}")
    a(f"v_add_u32 v2, s56, v1\nv_add_u32 v13, {L_WR}, v15\nds_read_u8 v2, v2")
    a(f"ds_read2st64_b32 v[{RW}:{RW+1}], v13 offset0:0 offset1:1\nds_read2st64_b32 v[{RW+2}:{RW+3}], v13 offset0:2 offset1:3")
    a(f"v_and_b32 v12, 3, v1\nv_lshlrev_b32 v12, 5, v12\nv_bfe_u32 v13, v1, 2, 2\nv_lshl_or_b32 v12, v13, 1, v12\nv_add_u32 v12, {L_CG}, v12")
    for f_ in range(4): a(f"ds_read_u16 v{RC+f_}, v12 offset:{f_*8}")
    a(f"v_mov_b32 v{TA}, 0\ns_waitcnt lgkmcnt(0)")
    def constprep():
        a(f"s_mov_b32 s56, {f32(-LOG2E)}")
        w = TP + 16
        for h in range(2):
            for k in range(4):
                a(f"v_lshlrev_b32 v{w+k}, 16, v{RW+k}" if h == 0 else f"v_and_b32 v{w+k}, 0xffff0000, v{RW+k}")
                a(f"v_mul_f32 v{w+4+k}, s56, v{w+k}")
            oo = WF + 4*h
            a(f"v_cvt_pk_bf16_f32 v{oo}, v{w+4}, v{w+5}\nv_cvt_pk_bf16_f32 v{oo+1}, v{w+6}, v{w+7}")
            for k in range(4):
                a(f"v_lshlrev_b32 v{w+4+k}, 16, v{oo + k//2}" if k % 2 == 0 else f"v_and_b32 v{w+4+k}, 0xffff0000, v{oo + k//2}")
                a(f"v_fma_f32 v{w+4+k}, s56, v{w+k}, -v{w+4+k}")
            a(f"v_cvt_pk_bf16_f32 v{oo+2}, v{w+4}, v{w+5}\nv_cvt_pk_bf16_f32 v{oo+3}, v{w+6}, v{w+7}")
        a(f"v_lshl_or_b32 v{w}, v{RC+1}, 16, v{RC}\nv_lshl_or_b32 v{w+1}, v{RC+3}, 16, v{RC+2}\nv_lshrrev_b32 v13, 4, v1")
        for gg in range(4):
            a(f"v_cmp_eq_u32 vcc, {gg}, v13")
            a(f"v_cndmask_b32 v{CGF+2*gg}, 0, v{w}, vcc\nv_cndmask_b32 v{CGF+2*gg+1}, 0, v{w+1}, vcc")
    def wmextract():
        a(f"s_and_b32 s56, {sW}, 3\ns_lshl_b32 s56, s56, 6\ns_add_u32 s56, s56, {L_WM}")
        a("v_lshrrev_b32 v10, 4, v1\nv_lshlrev_b32 v10, 11, v10\nv_and_b32 v12, 15, v1\nv_lshl_or_b32 v10, v12, 2, v10\nv_add_u32 v10, s56, v10")
        a("s_mov_b32 s56, 0x05040100\ns_mov_b32 s57, 0x07060302")
        def rd(ks):
            for i in range(4): a(f"ds_read2st64_b32 v[{RM+8*ks+2*i}:{RM+8*ks+2*i+1}], v10 offset0:{32*ks+2*i} offset1:{32*ks+2*i+1}")
        for ks in range(3): rd(ks)
        for ks in range(4):
            if ks == 0: rd(3)
            for i in range(4):
                a(f"s_waitcnt lgkmcnt({15 - 4*ks - i})")
                a(f"v_perm_b32 v{BF+4*ks+i}, v{RM+8*ks+2*i+1}, v{RM+8*ks+2*i}, s56")
                a(f"v_perm_b32 v{BF+16+4*ks+i}, v{RM+8*ks+2*i+1}, v{RM+8*ks+2*i}, s57")
    constprep()
    wmextract()
    a(f"v_and_b32 v{vPm}, 0x1ff, v0\nv_lshlrev_b32 v{vPm}, 2, v{vPm}\nv_xor_b32 v{vPo}, 1024, v{vPm}")
    a(f"v_mul_u32_u24 v13, {4*CS}, v1")
    a(f"s_cmp_ge_u32 {sW}, 4\ns_cbranch_scc1 K_TABOK")
    a(f"s_mov_b32 s59, {P.get('timeout', 40000)}\ns_lshr_b32 s58, s58, 22\nv_cmp_gt_u32 vcc, {NP}, v0\ns_mov_b64 exec, vcc")
    for i in range(P.get("delayA", 0)): a("s_nop 15")
    a(f"buffer_load_dwordx2 v[{TA}:{TA+1}], v11, {WSR}, s61 offen sc1")
    a("K_POLLA:\ns_waitcnt vmcnt(0)")
    a(f"v_lshrrev_b32 v{TA+2}, 22, v{TA}\nv_cmp_ne_u32 vcc, {sTag}, v{TA+1}\nv_cmp_ne_u32 s[56:57], s58, v{TA+2}\ns_or_b64 vcc, vcc, s[56:57]")
    if P.get("force_fb"): a("s_mov_b64 vcc, -1")
    a("s_cbranch_vccz K_POLLAOK")
    a(f"s_sub_u32 s59, s59, 1\ns_cbranch_scc1 K_POLLAFAIL")
    a(f"buffer_load_dwordx2 v[{TA}:{TA+1}], v11, {WSR}, s61 offen sc1\ns_branch K_POLLA")
    FS = P.get("FS", 128)
    a(f"K_POLLAFAIL:\nds_write_b32 v4, v14 offset:{L_FB}")
    a(f"s_mul_i32 s56, s2, {FS}\ns_add_u32 s56, s56, {WS_FLG}\nv_mov_b32 v10, {sTag}\ns_mov_b64 exec, 1")
    a(f"buffer_store_dword v10, v4, {WSR}, s56 offen offset:4 sc1\ns_mov_b64 exec, -1")
    a(f"K_POLLAOK:\ns_mov_b64 exec, -1\nds_write_b32 v3, v{TA} offset:{L_TABL}")
    a("K_TABOK:\ns_waitcnt vmcnt(0) lgkmcnt(0)\ns_barrier")
    stamp()
    a(f"s_cmp_lg_u32 {sW}, 4\ns_cbranch_scc1 K_NOFLAG")
    a(f"s_mul_i32 s56, s2, {FS}\ns_add_u32 s56, s56, {WS_FLG}\nv_mov_b32 v10, {sTag}\ns_mov_b64 exec, 1")
    a(f"buffer_store_dword v10, v4, {WSR}, s56 offen sc1\ns_mov_b64 exec, -1\nK_NOFLAG:")
    FL = TA
    a(f"ds_read_b128 v[{TP}:{TP+3}], v9 offset:{L_TABL}\nds_read_b32 v10, v4 offset:{L_FB}")
    a(f"v_mul_u32_u24 v{FL+2}, {FS}, v0\ns_mov_b32 {sEp}, 0")
    prefetch(0)
    a("s_waitcnt lgkmcnt(0)")
    a(f"v_readfirstlane_b32 {sFB}, v10")
    c = TP + 4; p = TP + 8
    for i in range(4): a(f"v_bfe_u32 v{c+i}, v{TP+i}, 11, 11")
    a(f"v_add_u32 v{p+1}, v{c}, v{c+1}\nv_add_u32 v{p+2}, v{p+1}, v{c+2}\nv_add_u32 v{p+3}, v{p+2}, v{c+3}\nv_mov_b32 v{p+4}, v{p+3}")
    fill = []
    for i in range(4):
        fill.append(f"v_and_b32 v{TP+i}, 0x7ff, v{TP+i}")
        fill.append(f"v_add_u32 v{PD+i}, v13, v{TP+i}")
        if i: fill.append(f"v_add_u32 v{PD+i}, {i*CS}, v{PD+i}")
    ctl = ["row_shr:1 row_mask:0xf bank_mask:0xf", "row_shr:2 row_mask:0xf bank_mask:0xf", "row_shr:4 row_mask:0xf bank_mask:0xf",
           "row_shr:8 row_mask:0xf bank_mask:0xf", "row_bcast:15 row_mask:0xa bank_mask:0xf", "row_bcast:31 row_mask:0xc bank_mask:0xf"]
    for k in range(6):
        for x in fill[2*k:2*k+2]: a(x)
        a(f"v_add_u32_dpp v{p+4}, v{p+4}, v{p+4} {ctl[k]}")
    a(f"s_cmp_lg_u32 {sFB}, 0\ns_cbranch_scc1 K_FB0")
    a(f"v_readlane_b32 {sT}, v{p+4}, 63")
    a(f"v_sub_u32 v{PP}, v{p+4}, v{p+3}")
    a(f"v_add_u32 v{PP+1}, v{PP}, v{c}\nv_add_u32 v{PP+2}, v{PP}, v{p+1}\nv_add_u32 v{PP+3}, v{PP}, v{p+2}")
    for i in range(4):
        a(f"v_sub_u32 v{PD+i}, v{PD+i}, v{PP+i}\nv_add_u32 v{PL+i}, v{PP+i}, v{c+i}")
    m = XR; f = m + 12; KEY = m + 16; PAYR = m + 24; ad = m + 36; RK = m + 42; CI = m + 45; q = m + 48
    a("K_ROUND:")
    a(f"s_mul_i32 s56, {sW}, {CAPW}\ns_add_u32 s56, s56, {sRB}\ns_add_u32 s57, s56, {CAPW}")
    a(f"s_lshl_b32 s58, {sW}, 10\ns_add_u32 s58, s58, {L_MARK}")
    for i in range(4):
        a(f"v_cmp_lt_u32 vcc, s56, v{PL+i}\nv_cmp_gt_u32 s[60:61], s57, v{PP+i}")
        a(f"v_subrev_u32 v{m+i}, s56, v{PP+i}\nv_max_i32 v{m+i}, 0, v{m+i}\nv_lshl_add_u32 v{m+i}, v{m+i}, 2, s58")
        a(f"s_and_b64 exec, vcc, s[60:61]\nds_max_u32 v{m+i}, v{PD+i}\ns_mov_b64 exec, -1")
    a(f"v_add_u32 v{m+4}, s58, v15")
    for u in range(3): a(f"ds_read_b32 v{m+8+u}, v{m+4} offset:{u*256}")
    a(f"v_add_u32 v{f}, s56, v1\nv_add_u32 v{f+1}, 64, v{f}\nv_add_u32 v{f+2}, 128, v{f}")
    for u in range(3): a(f"v_cmp_gt_u32 {M(u)}, {sT}, v{f+u}")
    a(f"s_mov_b32 s60, {WS_KEY}\ns_mov_b32 s61, {WS_PAY}")
    a("s_waitcnt lgkmcnt(0)")
    scan_incl(a, "v_max_u32", [m+8, m+9, m+10])
    a(f"v_readlane_b32 s56, v{m+8}, 63\nv_readlane_b32 s57, v{m+9}, 63\nv_add_u32 v{f}, v{f}, v{m+8}")
    a(f"s_max_u32 s57, s56, s57")
    a(f"v_max_u32 v{m+9}, s56, v{m+9}\nv_max_u32 v{m+10}, s57, v{m+10}")
    a(f"v_add_u32 v{f+1}, v{f+1}, v{m+9}\nv_add_u32 v{f+2}, v{f+2}, v{m+10}")
    for u in range(3): a(f"v_lshlrev_b32 v{ad+u}, 3, v{f+u}\nv_lshlrev_b32 v{ad+3+u}, 4, v{f+u}")
    stamp()
    def payloads():
        for u in range(3):
            a(f"s_mov_b64 exec, {M(u)}\nbuffer_load_dwordx4 v[{PAYR+4*u}:{PAYR+4*u+3}], v{ad+3+u}, {WSR}, s61 offen sc1")
        a("s_mov_b64 exec, -1")
    a(f"v_mov_b32 v14, {f32(64.0)}\ns_lshr_b32 s62, {sT8}, 24")
    a("K_KEYS:")
    for u in range(3):
        a(f"s_mov_b64 exec, {M(u)}\nbuffer_load_dwordx2 v[{KEY+2*u}:{KEY+2*u+1}], v{ad+u}, {WSR}, s60 offen sc1")
    a("s_mov_b64 exec, -1\ns_mov_b64 s[58:59], 0")
    for u in range(3):
        a(f"s_waitcnt vmcnt({2-u})")
        a(f"v_lshrrev_b32 v{RK+u}, 24, v{KEY+2*u}\nv_cmp_ne_u32 vcc, {sTag}, v{KEY+2*u+1}\nv_cmp_ne_u32 s[56:57], s62, v{RK+u}")
        a(f"s_or_b64 vcc, vcc, s[56:57]\ns_and_b64 vcc, vcc, {M(u)}\ns_or_b64 s[58:59], s[58:59], vcc")
    a("s_cbranch_scc1 K_KEYS")
    stamp()
    a(f"s_cmp_lg_u32 {sRB}, 0\ns_cbranch_scc1 K_NOBAL")
    a(f"s_mov_b32 s62, {WS_FLG}\ns_cmp_ge_u32 {sW}, 4\ns_cbranch_scc1 K_NOB0\nbuffer_load_dwordx2 v[{FL}:{FL+1}], v{FL+2}, {WSR}, s62 offen sc1\nK_NOB0:")
    for u in range(3):
        a(f"s_mov_b64 exec, {M(u)}")
        a(f"v_lshrrev_b32 v{ad+u}, 2, v{KEY+2*u}\nv_and_b32 v{ad+u}, 0xfc, v{ad+u}")
        a(f"ds_add_f32 v{ad+u}, v14 offset:{L_DEG}")
    a("s_mov_b64 exec, -1")
    a(f"s_cmp_ge_u32 {sW}, 4\ns_cbranch_scc1 K_POLLBOK")
    a(f"K_POLLB:\ns_waitcnt vmcnt(0)\nv_cmp_ne_u32 vcc, {sTag}, v{FL}\ns_cbranch_vccz K_POLLB2")
    a(f"buffer_load_dwordx2 v[{FL}:{FL+1}], v{FL+2}, {WSR}, s62 offen sc1\ns_branch K_POLLB\nK_POLLB2:")
    a(f"v_cmp_eq_u32 vcc, {sTag}, v{FL+1}\ns_or_b32 s56, s2, {sW}\ns_cmp_eq_u32 s56, 0\ns_cselect_b32 {sEp}, 1, 0\ns_or_b32 {sEp}, {sEp}, vcc_lo\ns_or_b32 {sEp}, {sEp}, vcc_hi")
    a("K_POLLBOK:")
    stamp()
    a("s_waitcnt lgkmcnt(0)\ns_barrier")
    payloads(); prefetch(1)
    a("K_BAL0:")
    KK = TP; MI = EE; tt = KK + 8
    if P.get("rank", "full") == "part":
        L_RNK = 1856
        a(f"s_mul_i32 s56, {sW}, 20\nv_mov_b32 v{KK+10}, s56")
        a(f"ds_read_b32 v{MI}, v15 offset:{L_DEG}")
        a(f"ds_read2_b32 v[{KK}:{KK+1}], v{KK+10} offset0:{L_DEG//4} offset1:{L_DEG//4+1}")
        a(f"ds_read2_b32 v[{KK+2}:{KK+3}], v{KK+10} offset0:{L_DEG//4+2} offset1:{L_DEG//4+3}")
        a(f"ds_read_b32 v{KK+4}, v{KK+10} offset:{L_DEG+16}")
        a("v_cmp_gt_u32 vcc, 40, v1\ns_waitcnt lgkmcnt(2)")
        a(f"v_pk_add_f32 v[{KK}:{KK+1}], v[{KK}:{KK+1}], v[{MI}:{MI+1}] op_sel_hi:[1,0] neg_lo:[0,1] neg_hi:[0,1] clamp\ns_waitcnt lgkmcnt(1)")
        a(f"v_pk_add_f32 v[{KK+2}:{KK+3}], v[{KK+2}:{KK+3}], v[{MI}:{MI+1}] op_sel_hi:[1,0] neg_lo:[0,1] neg_hi:[0,1] clamp\ns_waitcnt lgkmcnt(0)")
        a(f"v_sub_f32_e64 v{KK+4}, v{KK+4}, v{MI} clamp")
        a(f"v_pk_add_f32 v[{KK}:{KK+1}], v[{KK}:{KK+1}], v[{KK+2}:{KK+3}]\nv_add_f32 v{KK}, v{KK}, v{KK+4}\nv_add_f32 v{KK}, v{KK}, v{KK+1}")
        a(f"s_mov_b64 exec, vcc\nds_add_f32 v15, v{KK} offset:{L_RNK}\ns_mov_b64 exec, -1")
        a("s_waitcnt lgkmcnt(0)\ns_barrier")
        a(f"ds_read_b32 v{tt}, v15 offset:{L_RNK}\ns_waitcnt lgkmcnt(0)")
        a(f"v_cvt_u32_f32 v{tt}, v{tt}\nv_lshlrev_b32 v{tt}, 2, v{tt}")
    else:
        KK = TP; MI = EE
        a(f"ds_read_b32 v{MI}, v15 offset:{L_DEG}")
        for jj in range(10): a(f"ds_read_b128 v[{KK+4*jj}:{KK+4*jj+3}], v4 offset:{L_DEG+16*jj}")
        a("v_cmp_gt_u32 vcc, 40, v1")
        for jj in range(20):
            if jj % 2 == 0: a(f"s_waitcnt lgkmcnt({9 - jj//2})")
            tt = KK + 2*jj
            a(f"v_pk_add_f32 v[{tt}:{tt+1}], v[{tt}:{tt+1}], v[{MI}:{MI+1}] op_sel_hi:[1,0] neg_lo:[0,1] neg_hi:[0,1] clamp")
            if jj >= 2: a(f"v_pk_add_f32 v[{tt}:{tt+1}], v[{tt}:{tt+1}], v[{tt-4}:{tt-3}]")
        tt = KK + 38
        a(f"v_pk_add_f32 v[{tt}:{tt+1}], v[{tt}:{tt+1}], v[{tt-2}:{tt-1}]")
        a(f"v_add_f32 v{tt}, v{tt}, v{tt+1}\nv_cvt_u32_f32 v{tt}, v{tt}\nv_lshlrev_b32 v{tt}, 2, v{tt}")

    a(f"ds_bpermute_b32 v2, v{tt}, v2")
    a("s_waitcnt lgkmcnt(0)")
    a("v_cndmask_b32 v2, -1, v2, vcc")
    a("K_BAL:")
    for u in range(3): a(f"ds_bpermute_b32 v{ad+3+u}, v{ad+u}, v2")
    a("v_mov_b32 v14, 1\nv_lshlrev_b32 v10, 3, v1")
    if ROT:
        a(f"s_lshr_b32 s56, {sBin}, 4\ns_and_b32 s56, s56, 14")
        for u in range(3): a(f"v_subrev_u32 v{CI+u}, s56, v{KEY+2*u}\nv_and_b32 v{CI+u}, 15, v{CI+u}")
    else:
        for u in range(3): a(f"v_and_b32 v{CI+u}, 15, v{KEY+2*u}")
    for u in range(3):
        a("s_waitcnt lgkmcnt(2)")
        a(f"s_mov_b64 exec, {M(u)}")
        a(f"v_and_b32 v{ad+u}, 7, v{ad+3+u}\nv_lshl_or_b32 v{CI+u}, v{ad+u}, 4, v{CI+u}\nv_lshlrev_b32 v{ad+u}, 2, v{CI+u}")
        a(f"ds_add_rtn_u32 v{RK+u}, v{ad+u}, v14 offset:{L_CNT}")
    a("s_mov_b64 exec, -1")
    for u in range(3):
        a(f"v_lshlrev_b32 v{ad+u}, 1, v{CI+u}\nv_lshlrev_b32 v{CI+u}, 4, v{CI+u}")
        a(f"v_and_b32 v{ad+3+u}, 0x38, v{ad+3+u}")
        a(f"v_and_b32 v{KEY+2*u}, {P.get('xmask', 0xfffc00)}, v{KEY+2*u}")
    a(f"s_lshl_b32 s56, {sW}, 3\ns_add_u32 s57, s56, 7")
    a(f"v_lshrrev_b32 v{q+6}, 3, v1\nv_mul_u32_u24 v{q+6}, 48, v{q+6}")
    a("s_waitcnt lgkmcnt(0)\ns_barrier")
    stamp()
    a(f"ds_read_b64 v[{q}:{q+1}], v10 offset:{L_CNT}")
    a(f"v_and_b32 v12, 15, v1\nv_lshrrev_b32 v11, 4, v1\nv_lshlrev_b32 v11, 3, v11\nv_lshl_add_u32 v11, v12, 5, v11")
    if ROT:
        a(f"s_lshr_b32 {sRot}, {sBin}, 5\ns_mul_i32 {sRot}, {sRot}, 20009\ns_add_u32 {sRot}, {sRot}, 14\ns_lshr_b32 {sRot}, {sRot}, 4\ns_lshl_b32 {sRot}, {sRot}, 10")
        a(f"s_sub_u32 s58, {sRot}, 1024\ns_cselect_b32 s58, {(N-1)*1024}, s58\nv_mov_b32 v{q+7}, s58")
    else: a(f"v_mov_b32 v{q+7}, {(N-1)*1024}")
    a("s_waitcnt lgkmcnt(0)")
    a(f"v_add_u32 v{q+2}, v{q}, v{q+1}\nv_mov_b32 v{q+3}, v{q+2}")
    scan_incl(a, "v_add_u32", [q+3])
    a(f"v_sub_u32 v{q+2}, v{q+3}, v{q+2}")
    a(f"v_readlane_b32 {sLen}, v{q+3}, s57")
    a(f"v_mov_b32_dpp v{q+4}, v{q+2} row_newbcast:0 row_mask:0xf bank_mask:0x3")
    a(f"v_readlane_b32 s58, v{q+2}, s56")
    a(f"v_mov_b32_dpp v{q+4}, v{q+2} row_newbcast:8 row_mask:0xf bank_mask:0xc")
    a(f"v_add_u32 v{q+5}, 15, v{q+4}\nv_and_or_b32 v{q+5}, v{q+5}, -16, 0\nv_add_u32 v{q+5}, v{q+5}, v{q+6}")
    a(f"v_sub_u32 v{q+4}, v{q+5}, v{q+4}\nv_add_u32 v{q+4}, v{q+4}, v{q+2}")
    a(f"v_add_u32 v{q}, v{q+4}, v{q}\nv_lshl_or_b32 v{q}, v{q}, 16, v{q+4}")
    a(f"v_readlane_b32 {sBase}, v{q+5}, s56")
    for u in range(3): a(f"ds_bpermute_b32 v{ad+u}, v{ad+u}, v{q}")
    a(f"s_sub_u32 {sLen}, {sLen}, s58\ns_add_u32 s56, {sBase}, {sLen}")
    a(f"v_add_u32 v{q+1}, s56, v1\nv_lshlrev_b32 v{q+2}, 2, v{q+1}\nv_lshlrev_b32 v{q+3}, 4, v{q+1}")
    a("s_mov_b64 exec, 0xfffff")
    a(f"ds_write_b32 v{q+2}, v{q+7} offset:{L_OFF}\nds_write_b8 v{q+1}, v4 offset:{L_NODE}\nds_write_b128 v{q+3}, v[4:7] offset:{L_PAY}")
    if pfd.get(1, 0):
        a(f"s_cmp_lt_u32 {sW}, {8 - pfd[1]}\ns_cbranch_scc1 K_PW0\ns_cmp_lg_u32 {sRB}, 0\ns_cbranch_scc1 K_PW0\ns_cmp_lg_u32 {sFB}, 0\ns_cbranch_scc1 K_PW0\ns_waitcnt vmcnt(1) lgkmcnt(3)\ns_branch K_PW1\nK_PW0:\ns_waitcnt vmcnt(0) lgkmcnt(3)\nK_PW1:")
    else: a("s_waitcnt vmcnt(0) lgkmcnt(3)")
    for u in range(3):
        a(f"s_mov_b64 exec, {M(u)}")
        a(f"v_bfe_u32 v{ad+u}, v{ad+u}, v{CI+u}, 16\nv_add_u32 v{ad+u}, v{ad+u}, v{RK+u}")
        a(f"v_lshlrev_b32 v{RK+u}, 2, v{ad+u}\nv_lshlrev_b32 v{CI+u}, 4, v{ad+u}")
        a(f"ds_write_b32 v{RK+u}, v{KEY+2*u} offset:{L_OFF}")
        a(f"ds_write_b8 v{ad+u}, v{ad+3+u} offset:{L_NODE}")
        a(f"ds_write_b128 v{CI+u}, v[{PAYR+4*u}:{PAYR+4*u+3}] offset:{L_PAY}")
    a("s_mov_b64 exec, -1")
    a(f"s_lshl_b32 s56, {sBase}, 2\ns_add_u32 s56, s56, {L_OFF}\nv_mov_b32 v{vOffA}, s56")
    a(f"s_add_u32 s56, {sBase}, {L_NODE}\nv_mov_b32 v{vNodeA}, s56")
    a(f"s_lshl_b32 s56, {sBase}, 5\ns_add_u32 s56, s56, {L_A}\nv_add_u32 v{vAA}, s56, v10\nv_add_u32 v11, s56, v11")
    a(f"s_lshl_b32 s57, {sBase}, 4\ns_add_u32 s57, s57, {L_PAY}")
    a(f"v_lshl_add_u32 v{vEfA}, v12, 4, s57\nv_add_u32 v10, s57, v9")
    a(f"s_add_u32 {sG}, {sLen}, 3\ns_lshr_b32 {sG}, {sG}, 2\nv_mov_b32 v{vPv}, 0")
    a("s_waitcnt lgkmcnt(0)\ns_barrier")
    stamp()
    a(f"s_cmp_eq_u32 {sG}, 0\ns_cbranch_scc1 K2_LOOPDONE")
    ng = DE // 4
    xaux = P.get("xaux", "")
    for gg in range(ng): a(f"ds_read_b128 v[{TP+4*gg}:{TP+4*gg+3}], v{vOffA} offset:{16*gg}")
    a(f"ds_read_b64 v[{TA}:{TA+1}], v10")
    a(f"ds_read_b128 v[{OFFS}:{OFFS+3}], v{vOffA} offset:{16*ng}")
    a(f"ds_read_b64 v[{EF}:{EF+1}], v{vEfA} offset:8")
    a(f"ds_read_b128 v[{NODE}:{NODE+3}], v{vNodeA}")
    a(f"s_lshl_b32 s56, {sG}, 2")
    for gg in range(ng):
        a(f"s_waitcnt lgkmcnt({ng - 1 - gg + 4})")
        for e in range(4):
            n = 4*gg + e
            if SAFE: a(f"v_add_u32 v{TP+n}, v9, v{TP+n}")
            a(f"buffer_load_dwordx4 v[{XR+4*n}:{XR+4*n+3}], v{TP+n}, {XS}, 0 offen {xaux}")
    a("K_APREP:")
    a(f"v_cmp_gt_u32 vcc, s56, v1")
    a("s_waitcnt lgkmcnt(0)")
    a(f"v_cndmask_b32 v{TB}, 0, v{TA}, vcc\nv_cndmask_b32 v{TB+1}, 0, v{TA+1}, vcc")
    a(f"ds_read_b64 v[{TA}:{TA+1}], v10 offset:1024\nv_add_u32 v10, 1024, v10")
    for gg in range(4):
        a(f"v_mfma_f32_16x16x16_bf16 v[{TP+16+4*gg}:{TP+19+4*gg}], v[{CGF+2*gg}:{CGF+2*gg+1}], v[{TB}:{TB+1}], 0")
    for gg in range(4):
        a(f"v_cvt_pk_bf16_f32 v{EE+2*gg}, v{TP+16+4*gg}, v{TP+17+4*gg}\nv_cvt_pk_bf16_f32 v{EE+2*gg+1}, v{TP+18+4*gg}, v{TP+19+4*gg}")
        a(f"ds_write_b64 v11, v[{EE+2*gg}:{EE+2*gg+1}] offset:{512*gg}")
        a(f"s_sub_u32 s56, s56, 16\ns_cmp_le_i32 s56, 0\ns_cbranch_scc1 K_APDONE")
    a("v_add_u32 v11, 2048, v11\ns_branch K_APREP")
    a("K_APDONE:")
    a(f"s_waitcnt lgkmcnt(0)\nds_read_b64 v[{AOP}:{AOP+1}], v{vAA}")
    for x in pre_mfmas(dict(EF=EF, WF=WF), TA, 0, P): a(x)
    a(f"s_sub_u32 {sG}, {sG}, 1\ns_nop 3")
    stamp()
    if P.get("ts"): a("s_memtime s[66:67]")
    R = dict(ACC=ACC, XR=XR, TP=TP, TA=TA, TB=TB, EE=EE, WF=WF, AOP=AOP, EF=EF, OFFS=OFFS, NODE=NODE, vOffA=vOffA, vNodeA=vNodeA,
             vAA=vAA, vEfA=vEfA, sG=sG, sN=sN, vPm=vPm, vPo=vPo, vPv=vPv, XS=XS, sRot=sRot if ROT else None, vPt=255)
    gen_loop(a, R, P, dict(PROG=L_PROG))
    if P.get("ts"): a("s_memtime s[68:69]")
    stamp()
    if PR.startswith("pair"):
        a(f"v_mov_b32 v{vPv}, -1\nds_write_b32 v{vPm}, v{vPv} offset:{L_PROG}\ns_setprio 0")
    a(f"s_add_u32 {sRB}, {sRB}, {CAP}\ns_cmp_ge_u32 {sRB}, {sT}\ns_cbranch_scc1 K_EPI")
    a("s_waitcnt vmcnt(0) lgkmcnt(0)\ns_barrier")
    a(f"ds_write_b128 v8, v[4:7]\nds_write_b32 v3, v4 offset:{L_PROG}")
    a(f"v_cmp_gt_u32 vcc, 128, v0\ns_and_saveexec_b64 s[56:57], vcc\nds_write_b32 v3, v4 offset:{L_CNT}\ns_mov_b64 exec, s[56:57]")
    a("s_waitcnt lgkmcnt(0)\ns_barrier")
    a(f"s_cmp_eq_u32 {sFB}, 0\ns_cbranch_scc1 K_ROUND\ns_branch K_FB")
    a("K_NOBAL:")
    payloads()
    a("K_NOBAL2:\ns_waitcnt vmcnt(0)")
    for u in range(3): a(f"v_lshrrev_b32 v{ad+u}, 2, v{KEY+2*u}\nv_and_b32 v{ad+u}, 0xfc, v{ad+u}")
    a("s_branch K_BAL")
    a(f"K_FB0:\ns_mov_b32 {sT}, {E}\ns_waitcnt vmcnt(0)")
    a("K_FB:")
    a(f"s_mul_i32 s56, {sW}, {CAPW}\ns_add_u32 s56, s56, {sRB}")
    a(f"v_add_u32 v{f}, s56, v1\nv_add_u32 v{f+1}, 64, v{f}\nv_add_u32 v{f+2}, 128, v{f}")
    for u in range(3):
        a(f"v_cmp_gt_u32 {M(u)}, {sT}, v{f+u}\nv_min_u32 v{f+u}, {E-1}, v{f+u}\nv_lshlrev_b32 v{ad+u}, 2, v{f+u}\nv_lshlrev_b32 v{ad+3+u}, 3, v{f+u}")
        a(f"global_load_dword v{m+u}, v{ad+u}, s[8:9]\nglobal_load_dword v{m+4+u}, v{ad+u}, s[6:7]")
        a(f"global_load_dwordx2 v[{PAYR+4*u}:{PAYR+4*u+1}], v{ad+3+u}, s[10:11]\nglobal_load_dwordx2 v[{PAYR+4*u+2}:{PAYR+4*u+3}], v{ad+3+u}, s[12:13]")
    a("s_waitcnt vmcnt(0)")
    for u in range(3):
        a(f"v_mul_u32_u24 v{f+u}, 214749, v{m+u}\nv_lshrrev_b32 v{f+u}, 23, v{f+u}\nv_cmp_eq_u32 vcc, {sBin}, v{f+u}\ns_and_b64 {M(u)}, {M(u)}, vcc")
        a(f"v_subrev_u32 v{KEY+2*u}, {sNs}, v{m+u}")
        keycalc2(m+4+u, KEY+2*u, f+u)
    a(f"v_mov_b32 v14, {f32(64.0)}\ns_cmp_lg_u32 {sRB}, 0\ns_cbranch_scc1 K_NOBAL2")
    for u in range(3):
        a(f"s_mov_b64 exec, {M(u)}")
        a(f"v_lshrrev_b32 v{ad+u}, 2, v{KEY+2*u}\nv_and_b32 v{ad+u}, 0xfc, v{ad+u}")
        a(f"ds_add_f32 v{ad+u}, v14 offset:{L_DEG}")
    a("s_mov_b64 exec, -1\ns_waitcnt lgkmcnt(0)\ns_barrier\ns_branch K_BAL0")
    a("K_EPI:")
    a(f"s_mov_b32 s56, {f32(-LN2)}\ns_mov_b32 s57, s56")
    for sl in range(5):
        a(f"s_add_u32 s58, {sW}, {8*sl}\nv_cmp_eq_u32 vcc, s58, v2")
        for k in range(4): a(f"v_pk_mul_f32 v[{ACC+8*sl+2*k}:{ACC+8*sl+2*k+1}], v[{ACC+8*sl+2*k}:{ACC+8*sl+2*k+1}], s[56:57]")
        a(f"s_ff1_i32_b64 s58, vcc\ns_mul_i32 s58, s58, {4*RS}\ns_add_u32 s58, s58, {L_AGG}\nv_add_u32 v{10 + sl%2}, s58, v15")
        for mm in range(4):
            a(f"v_cvt_pk_bf16_f32 v{ACC+8*sl+mm}, v{ACC+8*sl+mm}, v{ACC+8*sl+4+mm}")
            a(f"ds_write_b32 v{10 + sl%2}, v{ACC+8*sl+mm} offset:{RS*mm}")
    a(f"v_and_b32 v12, 15, v1\nv_lshrrev_b32 v13, 4, v1")
    a(f"s_lshr_b32 s58, {sW}, 2\ns_mul_i32 s59, s58, {16*RS}\ns_add_u32 s59, s59, {L_AGG}")
    a(f"v_mul_u32_u24 v14, {RS}, v12\nv_lshl_add_u32 v14, v13, 4, v14\nv_add_u32 v14, s59, v14")
    a(f"s_lshl_b32 s58, s58, 2\ns_add_u32 s58, s58, {sNs}\ns_lshl_b32 s58, s58, 10\ns_and_b32 s59, {sW}, 3\ns_lshl_b32 s59, s59, 8\ns_add_u32 s58, s58, s59")
    a(f"v_lshlrev_b32 v13, 10, v13\nv_lshl_add_u32 v13, v12, 4, v13")
    a("s_waitcnt vmcnt(0) lgkmcnt(0)\ns_barrier")
    stamp()
    FA = XR
    for i in range(4):
        for ks in range(4): a(f"ds_read_b128 v[{FA+16*i+4*ks}:{FA+16*i+4*ks+3}], v14 offset:{32*RS*i + 64*ks}")
    ost = P["out_aux"]
    def outtile(i):
        Dp = TP + 8 * (i % 2); Op = TP + 16 + 4 * (i % 2)
        for k in range(4): a(f"v_cvt_pk_bf16_f32 v{Op+k}, v{Dp+2*k}, v{Dp+2*k+1}")
        a(f"buffer_store_dwordx4 v[{Op}:{Op+3}], v13, {OS}, s58 offen {ost}")
        if i < 4: a("s_add_u32 s58, s58, 8192")
    for i in range(5):
        Dd = TP + 8 * (i % 2); fi = FA + 16 * (i % 4)
        for ks in range(4):
            if i < 4: a(f"s_waitcnt lgkmcnt({min(15, 15 - 4*i - ks + (4 if i >= 1 else 0))})")
            else: a(f"s_waitcnt lgkmcnt({3 - ks})")
            for tt in range(2):
                b = BF + 16*tt + 4*ks
                a(f"v_mfma_f32_16x16x32_bf16 v[{Dd+4*tt}:{Dd+4*tt+3}], v[{fi+4*ks}:{fi+4*ks+3}], v[{b}:{b+3}], " + ("0" if ks == 0 else f"v[{Dd+4*tt}:{Dd+4*tt+3}]"))
        if i == 0:
            for ks in range(4): a(f"ds_read_b128 v[{FA+4*ks}:{FA+4*ks+3}], v14 offset:{32*RS*4 + 64*ks}")
        if i >= 1: outtile(i - 1)
    outtile(4)
    a(f"s_cmp_eq_u32 {sEp}, 0\ns_cbranch_scc1 K_NOEPO")
    a(f"v_mov_b32 v10, {sTag}\ns_mov_b64 exec, 1\nbuffer_store_dword v10, v4, {WSR}, 0 offen offset:{WS_EPO} sc1\nK_NOEPO:")
    if P.get("ts"):
        a("s_waitcnt vmcnt(0)"); stamp()
        a("s_waitcnt lgkmcnt(0)")
        a(f"s_lshl_b32 s98, s2, 3\ns_add_u32 s98, s98, s3\ns_lshl_b32 s98, s98, 6\ns_add_u32 s98, s98, {WS_TS}")
        a("s_mov_b64 exec, 1\nv_mov_b32 v2, s98")
        for i in range(tsn[0]): a(f"v_mov_b32 v3, s{70 + 2*i}\nglobal_store_dword v2, v3, s[24:25] offset:{4*i}")
        a(f"s_sub_u32 s68, s68, s66\nv_mov_b32 v3, s68\nglobal_store_dword v2, v3, s[24:25] offset:56\nv_mov_b32 v3, {sLen}\nglobal_store_dword v2, v3, s[24:25] offset:60")
        assert tsn[0] <= 14
    if P.get("diag_hold"):
        a(f"s_add_u32 s70, s70, {P['diag_hold']}\nK_HOLD:\ns_memrealtime s[68:69]\ns_waitcnt lgkmcnt(0)\ns_sub_u32 s68, s68, s70\ns_cmp_lt_i32 s68, 0\ns_cbranch_scc1 K_HOLD")
    a("K_END:\ns_endpgm")
    a(".p2align 6\n.type K_TAB,@object\nK_TAB:")
    for A in (A39, A40):
        used = [0]*8; codes = []
        for ww in A: codes.append(ww | used[ww] << 3); used[ww] += 1
        assert used == [5]*8
        a(".byte " + ", ".join(str(cc) for cc in codes + [255]*24))
    body = a.text(verbose=verbose)
    ns = 100 if P.get("ts") else 72
    gen.nts = tsn[0]
    nul = P.get("nullpre", 0)
    if nul:
        body = ".globl null_kernel\n.p2align 8\n.type null_kernel,@function\nnull_kernel:\ns_endpgm\n" + body
    launch = f"; @launch grid=({NB},1,1) block=(512,1,1) lds={L_END}\n"
    if nul or P.get("aslist"): launch = "; @launch kernel=null_kernel grid=(256,1,1) block=(64,1,1) lds=0\n" * nul + f"; @launch kernel={NAME} grid=({NB},1,1) block=(512,1,1) lds={L_END}\n"
    return (HEADER + launch + '.amdgcn_target "amdgcn-amd-amdhsa--gfx950"\n.text\n' + body +
f""".section .rodata,"a"
.p2align 6
.amdhsa_kernel {NAME}
  .amdhsa_next_free_vgpr 256
  .amdhsa_next_free_sgpr {ns}
  .amdhsa_accum_offset 256
  .amdhsa_group_segment_fixed_size 0
  .amdhsa_kernarg_size 88
  .amdhsa_user_sgpr_count 2
  .amdhsa_user_sgpr_kernarg_segment_ptr 1
  .amdhsa_system_sgpr_workgroup_id_x 1
  .amdhsa_float_denorm_mode_32 3
.end_amdhsa_kernel
""" + (desc("null_kernel", 8, 16) if nul else ""))

if __name__ == "__main__":
    P = eval(sys.argv[2]) if len(sys.argv) > 2 else {}
    open(sys.argv[1], "w").write(gen(P, verbose=True))
```

```python
def pre_mfmas(R, T, ab, P):
    EF, WF = R["EF"], R["WF"]
    l = [f"v_mfma_f32_4x4x4_16b_bf16 v[{T}:{T+3}], v[{EF}:{EF+1}], v[{WF}:{WF+1}], 0 cbsz:4 abid:{ab}",
         f"v_mfma_f32_4x4x4_16b_bf16 v[{T+4}:{T+7}], v[{EF}:{EF+1}], v[{WF+4}:{WF+5}], 0 cbsz:4 abid:{ab}",
         f"v_mfma_f32_4x4x4_16b_bf16 v[{T}:{T+3}], v[{EF}:{EF+1}], v[{WF+2}:{WF+3}], v[{T}:{T+3}] cbsz:4 abid:{ab}",
         f"v_mfma_f32_4x4x4_16b_bf16 v[{T+4}:{T+7}], v[{EF}:{EF+1}], v[{WF+6}:{WF+7}], v[{T+4}:{T+7}] cbsz:4 abid:{ab}"]
    return l[:2] if P.get("nolo") else l

def gen_loop(a_real, R, P, L):
    g = R.get
    ACC, XR, TP, TA, TB, EE, AOP, EF, OFFS, NODE = (R[k] for k in "ACC XR TP TA TB EE AOP EF OFFS NODE".split())
    vOffA, vNodeA, vAA, vEfA, sG, sN = (R[k] for k in "vOffA vNodeA vAA vEfA sG sN".split())
    vPm, vPo, vPv = R["vPm"], R["vPo"], R["vPv"]
    DE = P.get("DE", 8); ng = DE // 4; RING = R.get("RING", 16)
    PR = P.get("prio", ""); SAFE = P.get("safe"); xaux = P.get("xaux", "")
    sched = P.get("sched", "a"); XS = R.get("XS", "s[8:11]")
    inc = (0, 0, 0, 0) if P.get("bench") else (64, 16, 512, 256)
    drop = tuple(P.get("nocomp", ()))
    def a(t):
        for l in t.split("\n"):
            if l.strip() and not (drop and l.strip().startswith(drop)): a_real(l)
    a(".p2align 4\nK2_LOOP:")
    if P.get("trace"):
        a("s_memtime s[90:91]\ns_memrealtime s[92:93]\ns_waitcnt lgkmcnt(0)\ns_mov_b32 m0, s94\nv_writelane_b32 v250, s90, m0\nv_writelane_b32 v251, s92, m0\ns_add_u32 s94, s94, 1")
    DR = P.get("drain", 0)
    for copy, qq in [(c_, q_) for c_ in range(2 if DR else 1) for q_ in range(4)]:
        if copy: a(f"K2_D{qq}:")
        T = TA if qq % 2 == 0 else TB
        Tn = TB if qq % 2 == 0 else TA
        def tp(e, h):
            s = XR + 4 * ((4*qq + e) % RING) + 2*h
            d = TP + 8*e + 4*h
            return f"v_mfma_f32_4x4x4_16b_bf16 v[{d}:{d+3}], v[{AOP}:{AOP+1}], v[{s}:{s+1}], 0 cbsz:4 abid:{4*qq+e}"
        def ld(e):
            s = XR + 4 * ((4*qq + e + DE) % RING)
            if P.get("noload") or copy: return ""
            return (f"v_add_u32 v{OFFS+e}, v9, v{OFFS+e}\n" if SAFE else "") + f"buffer_load_dwordx4 v[{s}:{s+3}], v{OFFS+e}, {XS}, 0 offen {xaux}"
        ex = [f"v_exp_f32 v{EE+i}, v{T+i}" for i in range(8)]
        rc = [f"v_rcp_f32 v{EE+i}, v{EE+i}" for i in range(8)]
        ad = [f"v_pk_add_f32 v[{EE+2*i}:{EE+2*i+1}], v[{EE+2*i}:{EE+2*i+1}], 1.0 op_sel_hi:[1,0]" for i in range(4)]
        mu = [f"v_pk_mul_f32 v[{EE+2*i}:{EE+2*i+1}], v[{EE+2*i}:{EE+2*i+1}], v[{T+2*i}:{T+2*i+1}]" for i in range(4)]
        pm = pre_mfmas(R, Tn, (qq + 1) % 4, P) + ["", ""]
        def fma(e):
            o = [f"s_set_gpr_idx_on {sN}, gpr_idx(SRC2,DST)" if e == 0 else f"s_lshr_b32 {sN}, {sN}, 8\ns_set_gpr_idx_idx {sN}"]
            for h in range(2):
                r = EE + 4*h + (e & ~1); sel = e & 1
                for i in range(2):
                    d = ACC + 4*h + 2*i; t = TP + 8*e + 4*h + 2*i
                    o.append(f"v_pk_fma_f32 v[{d}:{d+1}], v[{r}:{r+1}], v[{t}:{t+1}], v[{d}:{d+1}] op_sel:[{sel},0,0] op_sel_hi:[{sel},1,1]")
            return "\n".join(o)
        ob = 16*(qq + 1) + 4*DE
        dsoff = "" if copy else (f"ds_read_b128 v[{OFFS}:{OFFS+3}], v{vOffA} offset:{ob}" if ob % 16 == 0 else
                                 f"ds_read2_b64 v[{OFFS}:{OFFS+3}], v{vOffA} offset0:{ob//8} offset1:{ob//8+1}")
        def vw(n, extra, tag):
            if not copy: return f"s_waitcnt vmcnt({n}){extra}"
            first, second = (6, 2) if tag == "A" else (4, 0)
            return f"s_cmp_eq_u32 {sG}, -1\ns_cbranch_scc1 K2_W{tag}{qq}\ns_waitcnt vmcnt({second})\nK2_W{tag}{qq}:\ns_waitcnt vmcnt({first}){extra}"
        dsA = f"ds_read_b64 v[{AOP}:{AOP+1}], v{vAA} offset:512" if qq == 3 else ""
        dsP = f"ds_read_b32 v{vPv}, v{vPo} offset:{L['PROG']}" if not copy and (PR == "pair1" or (PR == "pair2" and qq % 2 == 1) or (PR == "pair4" and qq == 3)) else ""
        dsE = f"ds_read_b64 v[{EF}:{EF+1}], v{vEfA} offset:{256+8}" if qq == 2 else ""
        rfl = f"v_readfirstlane_b32 {sN}, v{NODE+qq}"
        dsN = (f"ds_read_b128 v[{NODE}:{NODE+3}], v{vNodeA} offset:16\n"
               f"v_add_u32 v{vOffA}, {inc[0]}, v{vOffA}\nv_add_u32 v{vNodeA}, {inc[1]}, v{vNodeA}\nv_add_u32 v{vAA}, {inc[2]}, v{vAA}\nv_add_u32 v{vEfA if not P.get('bench') else 3}, {inc[3] if not P.get('bench') else 1}, v{vEfA if not P.get('bench') else 3}") if qq == 3 else ""
        PV = 3 if P.get("bench") else OFFS
        def prio():
            dop = PR == "pair1" or (PR == "pair2" and qq % 2 == 0) or (PR == "pair4" and qq == 0)
            if dop and not copy:
                pv = PV
                if R.get("sRot"): a(f"v_subrev_u32 v{R['vPt']}, {R['sRot']}, v{PV}"); pv = R["vPt"]
                a(f"v_cmp_gt_u32 vcc, v{pv}, v{vPv}")
                a(f"ds_write_b32 v{vPm}, v{pv} offset:{L['PROG']}")
                a(f"s_setprio 0\ns_cbranch_vccnz K2_P{qq}\ns_setprio 1\nK2_P{qq}:")
            if PR == "quart" and qq == 0:
                a(f"s_cmp_le_i32 {sG}, s41\ns_cbranch_scc1 K2_PRIO\nK2_PRIOBACK:")
        if sched == "a":
            a("s_waitcnt lgkmcnt(0)")
            prio()
            for e in range(3):
                a(f"s_waitcnt vmcnt({DE-1})")
                a(tp(e, 0)); a(ex[2*e]); a(tp(e, 1)); a(ld(e)); a(ex[2*e+1])
            a(ex[6]); a(ex[7])
            for x in ad: a(x)
            a(f"s_waitcnt vmcnt({DE-1})")
            a(tp(3, 0)); a(rc[0]); a(tp(3, 1)); a(ld(3)); a(rc[1])
            a(dsoff); a(dsA); a(dsP)
            a(pm[0]); a(rc[2]); a(pm[1]); a(rc[3]); a(pm[2]); a(rc[4]); a(pm[3]); a(dsE)
            a(rc[5]); a(rc[6]); a(rc[7]); a(rfl); a(dsN)
            for x in mu: a(x)
            for e in range(4): a(fma(e))
            a("s_set_gpr_idx_off")
        elif sched == "b":
            ph = P.get("phase")
            a(vw(DE-2, " lgkmcnt(0)", "A"))
            prio()
            if ph: a(f"s_setprio {ph[0]}")
            a(tp(0, 0)); a(ex[0]); a(tp(0, 1)); a(ex[1]); a(tp(1, 0)); a(ex[2]); a(tp(1, 1)); a(ld(0)); a(ld(1)); a(ex[3])
            a(vw(DE-2, "", "B"))
            a(tp(2, 0)); a(ex[4]); a(tp(2, 1)); a(ex[5]); a(ex[6]); a(ex[7])
            for x in ad: a(x)
            a(tp(3, 0)); a(rc[0]); a(tp(3, 1)); a(ld(2)); a(ld(3)); a(rc[1])
            a(dsoff); a(dsA); a(dsP)
            a(pm[0]); a(rc[2]); a(pm[1]); a(rc[3]); a(pm[2]); a(rc[4]); a(pm[3]); a(dsE)
            a(rc[5]); a(rc[6]); a(rc[7]); a(rfl); a(dsN)
            if ph: a(f"s_setprio {ph[1]}")
            for x in mu: a(x)
            for e in range(4): a(fma(e))
            a("s_set_gpr_idx_off")
        elif sched == "d":
            adp = [f"v_add_f32 v{EE+i}, 1.0, v{EE+i}" for i in range(8)]
            a(vw(DE-2, " lgkmcnt(0)", "A"))
            prio()
            a(tp(0, 0)); a(ex[0]); a(tp(0, 1)); a(ex[1]); a(tp(1, 0)); a(ex[2]); a(tp(1, 1)); a(ld(0)); a(ld(1)); a(ex[3])
            a(vw(DE-2, "", "B"))
            a(tp(2, 0)); a(ex[4]); a(tp(2, 1)); a(ex[5]); a(tp(3, 0)); a(ex[6]); a(tp(3, 1)); a(ld(2)); a(ld(3)); a(ex[7])
            a(dsoff); a(dsA); a(dsP)
            a(rfl)
            for x in ad: a(x)
            a(pm[0]); a(rc[0]); a(pm[1]); a(rc[1]); a(pm[2]); a(rc[2]); a(pm[3]); a(dsE); a(rc[3])
            a(rc[4]); a(rc[5]); a(rc[6]); a(rc[7]); a(dsN)
            for x in mu: a(x)
            for e in range(4): a(fma(e))
            a("s_set_gpr_idx_off")
        elif sched == "e":
            a(vw(DE-2, " lgkmcnt(0)", "A"))
            prio()
            a(rfl)
            a(tp(0, 0)); a(ex[0]); a(tp(0, 1)); a(ex[1]); a(tp(1, 0)); a(ex[2]); a(tp(1, 1)); a(ld(0)); a(ld(1)); a(ex[3])
            a(vw(DE-2, "", "B"))
            a(tp(2, 0)); a(ex[4]); a(tp(2, 1)); a(ex[5]); a(f"s_lshr_b32 s64, {sN}, 8"); a(ex[6]); a(f"s_lshr_b32 s65, {sN}, 16"); a(ex[7])
            for x in ad: a(x)
            a(tp(3, 0)); a(rc[0]); a(tp(3, 1)); a(ld(2)); a(ld(3)); a(rc[1])
            a(dsoff); a(dsA); a(dsP)
            a(pm[0]); a(rc[2]); a(pm[1]); a(rc[3]); a(pm[2]); a(rc[4]); a(pm[3]); a(dsE)
            a(rc[5]); a(f"s_lshr_b32 s62, {sN}, 24"); a(rc[6]); a(dsN); a(rc[7]); a("s_nop 0" if qq != 3 else "")
            for x in mu: a(x)
            for e in range(4):
                t_ = fma(e).split("\n")
                body = t_[1:] if e == 0 else t_[2:]
                a(t_[0] if e == 0 else f"s_set_gpr_idx_idx {('s64','s65','s62')[e-1]}")
                for x in body: a(x)
            a("s_set_gpr_idx_off")
        elif sched == "c":
            a(f"s_waitcnt vmcnt({DE-4}) lgkmcnt(0)")
            prio()
            a(tp(0, 0)); a(ld(0)); a(ex[0]); a(tp(0, 1)); a(ld(1)); a(ex[1]); a(tp(1, 0)); a(ld(2)); a(ex[2]); a(tp(1, 1)); a(ld(3)); a(ex[3])
            a(tp(2, 0)); a(dsoff); a(ex[4]); a(tp(2, 1)); a(ex[5]); a(ex[6]); a(ex[7])
            for x in ad: a(x)
            a(tp(3, 0)); a(rc[0]); a(tp(3, 1)); a(rc[1])
            a(dsA); a(dsP)
            a(pm[0]); a(rc[2]); a(pm[1]); a(rc[3]); a(pm[2]); a(rc[4]); a(pm[3]); a(dsE)
            a(rc[5]); a(rc[6]); a(rc[7]); a(rfl); a(dsN)
            for x in mu: a(x)
            for e in range(4): a(fma(e))
            a("s_set_gpr_idx_off")
        else:
            from loopx import extra
            extra(sched, a, locals())
        if DR:
            assert sched == "b" and DE == 8
            if not copy:
                a(f"s_sub_u32 {sG}, {sG}, 1")
                a(f"s_cbranch_scc1 K2_D{qq+1}" if qq < 3 else "s_cbranch_scc0 K2_LOOP")
            else:
                a(f"s_sub_u32 {sG}, {sG}, 1\ns_cmp_eq_u32 {sG}, -3")
                a("s_cbranch_scc1 K2_LOOPDONE" if qq < 3 else "s_cbranch_scc0 K2_D0")
        else:
            a(f"s_sub_u32 {sG}, {sG}, 1\ns_cmp_eq_u32 {sG}, 0" if not P.get("subcc") else f"s_sub_u32 {sG}, {sG}, 1")
            a("s_cbranch_scc1 K2_LOOPDONE" if qq < 3 else "s_cbranch_scc0 K2_LOOP")
    a = a_real
    if PR == "quart":
        a("s_branch K2_LOOPDONE\nK2_PRIO:\ns_sub_i32 s41, s41, s40\ns_add_u32 s42, s42, 1")
        a("s_setprio 2\ns_cmp_eq_u32 s42, 1\ns_cbranch_scc1 K2_PRIOBACK\ns_setprio 1\ns_cmp_eq_u32 s42, 2\ns_cbranch_scc1 K2_PRIOBACK\ns_setprio 0\ns_branch K2_PRIOBACK")
    a("K2_LOOPDONE:")
```

```python
import sys
from asmlib import Asm
from loopgen import gen_loop, pre_mfmas
from gen import HEADER as _H, scan_incl, f32, LOG2E, LN2, desc

N, E = 10000, 320000
NB, NP, CH = 256, 250, 1280
WS_EPO, WS_TAB, WS_KEY, WS_PAY, WS_FLG, WS_END = 0, 0x2000, 0x82000, 0x300000, 0x7F0000, 0x800000
WS_TS = 0x8000000
FS = 128
NAME = "gather_scatter__tensor_product_equiv_tfn__graph_kernel"
HEADER = _H[:_H.index("; Launch 1")] + """; One launch, 256 workgroups (one per CU).
; Phase 1: 250 workgroups each bin a chunk of 1280 edges by destination block (256 bins) and publish it in d_ws with
;          write-through stores: table row and keys as 8-byte pieces carrying this launch's tag, Y/edge_feat behind a flag.
;          (tag = epoch word of d_ws + 1; workgroups that saw all 256 rows store the tag back as the next epoch.)
; Phase 2: every workgroup collects its own bin, sorts it by (owner wave, source bucket), gathers x rows, does the
;          tensor product + radial gate in registers, mixes the channels and stores.
; If the hand-off never arrives (workgroups not co-resident) a workgroup scans the raw edge list on its own.
"""
A39 = [6, 5, 6, 7, 4, 2, 0, 1, 3, 4, 6, 3, 2, 0, 6, 1, 3, 5, 7, 1, 0, 5, 7, 4, 2, 1, 5, 4, 7, 3, 2, 0, 2, 0, 7, 1, 3, 4, 5, 6]
A40 = [3, 2, 4, 7, 0, 1, 6, 0, 5, 1, 7, 5, 6, 3, 4, 6, 5, 0, 2, 7, 1, 4, 6, 3, 2, 1, 3, 0, 5, 4, 2, 7, 2, 5, 4, 7, 1, 6, 0, 3]
DPP = ["row_shr:1 row_mask:0xf bank_mask:0xf", "row_shr:2 row_mask:0xf bank_mask:0xf", "row_shr:4 row_mask:0xf bank_mask:0xf",
       "row_shr:8 row_mask:0xf bank_mask:0xf", "row_bcast:15 row_mask:0xa bank_mask:0xf", "row_bcast:31 row_mask:0xc bank_mask:0xf"]

def gen(P=None, verbose=False):
    P = dict(dict(prio="pair2", sched="b", subcc=1, out_aux="sc1", pf=3), **(P or {}))
    a = Asm()
    DE = P.setdefault("DE", 8); ngr = (DE + 3) // 4; SAFE = P.get("safe"); PR = P["prio"]
    CAPW = 192; CAP = 8 * CAPW; NE = CAP + 8 * 48 + 16
    L_CNT, L_DEG, L_HCNT, L_FB, L_PROG, L_OFF = 0, 512, 768, 1792, 2048, 4096
    L_NODE = L_OFF + NE * 4
    L_PAY = (L_NODE + NE + 63) // 64 * 64
    L_A = L_PAY + NE * 16
    L_AGG = (L_A + NE * 32 + 255) // 256 * 256
    RS = 288
    L_END = L_AGG + 160 * RS
    L_MARK = L_AGG; L_WM = L_AGG + 8192; L_WR = L_WM + 32768; L_CG = L_WR + 1024; L_MAP = L_CG + 128
    L_PRE = L_OFF; L_TABL = L_OFF + 1024; L_SKEY = L_PAY; L_SPAY = L_A
    assert L_SPAY + 16384 < 65536 and L_MAP + 128 <= L_END
    ACC, XR, TP, TA, TB, EE, WF, AOP, EF, OFFS, NODE = 16, 56, 120, 152, 160, 168, 176, 184, 186, 188, 192
    vOffA, vNodeA, vAA, vEfA = 196, 197, 198, 199
    BF, CGF, PP, PL, PD = 200, 232, 240, 244, 248
    vPm, vPo, vPv = 252, 253, 254
    sW, sT, sRB, sG, sN, sBase, sLen, sTag, sBin, sNs, sFB = "s3", "s46", "s47", "s48", "s49", "s50", "s51", "s52", "s53", "s54", "s55"
    sRole, sT8, sRot = "s40", "s26", "s27"
    XS, OS, WSR = "s[28:31]", "s[32:35]", "s[36:39]"
    M = lambda u: f"s[{40+2*u}:{41+2*u}]"
    tsn = [0]; gen.names = []
    DEFST = ["start", "Bb", "Bc1", "Bc", "Bx", "keys", "pollP", "Bd", "Be", "Bf", "loop0", "loop1", "Bg", "end"]
    def stamp(name):
        if P.get("hold_at") == name:
            a(f"s_waitcnt lgkmcnt(0)\ns_add_u32 s70, s70, {P['hold_x']}\nK_HOLDP:\ns_memrealtime s[68:69]\ns_waitcnt lgkmcnt(0)\ns_sub_u32 s68, s68, s70\ns_cmp_lt_i32 s68, 0\ns_cbranch_scc1 K_HOLDP")
        if P.get("ts") and name in P.get("stamps", DEFST):
            gen.names.append(name)
            r = 70 + 2 * tsn[0]; a(f"s_memrealtime s[{r}:{r+1}]"); tsn[0] += 1

    a(f".globl {NAME}\n.p2align 8\n.type {NAME},@function\n{NAME}:")
    a(f"s_cmp_ge_u32 s2, {NB}\ns_cbranch_scc1 K_END")
    a("s_load_dwordx16 s[4:19], s[0:1], 0\ns_load_dwordx2 s[20:21], s[0:1], 64\ns_load_dwordx2 s[24:25], s[0:1], 80")
    stamp("start")
    if P.get("hold_at"): a("s_memrealtime s[70:71]")
    D, S, Y, F, B4, RK1 = TP, TP + 4, TP + 8, TP + 16, TP + 24, TP + 28
    KY, t, tmp, KG = XR, XR + 4, XR + 8, XR + 10
    la = P.get("load_aux", "")
    a("v_lshrrev_b32 v2, 6, v0\nv_and_b32 v1, 63, v0\nv_readfirstlane_b32 s3, v2")
    a(f"v_lshlrev_b32 v10, 4, v0\ns_mul_i32 s57, s2, {CH*4}\nv_lshlrev_b32 v3, 2, v0")
    if P.get("pfcode0", 1):
        a(f"s_cmp_lg_u32 s3, 5\ns_cbranch_scc1 K_PF0\ns_getpc_b64 s[26:27]\nK_PC3:\nv_lshlrev_b32 v13, 7, v1\nglobal_load_dword v255, v13, s[26:27]")
        a(f"v_add_u32 v13, 8192, v13\nv_min_u32 v13, K_TAB-K_PC3, v13\nglobal_load_dword v255, v13, s[26:27]\nK_PF0:")
    a("v_or_b32 v13, 0x4b000000, v1\ns_cmp_eq_u32 s3, 2\ns_cselect_b32 s56, -1, 0")
    a("v_add_u32 v11, s57, v10\nv_and_b32 v13, s56, v13\nv_lshlrev_b32 v12, 1, v11")
    a("ds_write_b32 v3, v13")
    a(f"s_cmp_lt_u32 s2, {NP}\ns_cselect_b32 s56, 5, 0\ns_cmp_lt_u32 {sW}, s56")
    stamp("prek")
    a("s_waitcnt lgkmcnt(0)")
    stamp("karg")
    def setup0():
        a(f"s_load_dword {sTag}, s[24:25], {WS_EPO}")
        for k in range(4, 8): a(f"v_mov_b32 v{k}, 0")
        a(f"v_add_u32 v8, {L_MARK}, v10\nv_lshlrev_b32 v9, 4, v1\nv_lshlrev_b32 v15, 2, v1")
        a(f"ds_write_b128 v8, v[4:7]\nds_write_b32 v3, v4 offset:{L_PROG}")
        a(f"s_and_b32 {sBin}, s2, 7\ns_lshr_b32 s56, s2, 3\ns_lshl_b32 {sBin}, {sBin}, 5\ns_or_b32 {sBin}, {sBin}, s56")
    def setup():
        a(f"s_mul_i32 {sNs}, {sBin}, 625\ns_add_u32 s57, {sNs}, 640\ns_add_u32 {sNs}, {sNs}, 15\ns_lshr_b32 {sNs}, {sNs}, 4\ns_lshr_b32 s57, s57, 4")
        if SAFE: a("s_mov_b32 s28, s4\ns_mov_b32 s29, s5\ns_mov_b32 s30, 10240000\ns_mov_b32 s31, 0x20000")
        else: a("s_mov_b32 s28, s4\ns_and_b32 s29, s5, 0xffff\ns_or_b32 s29, s29, 0x100000\ns_mov_b32 s30, 10240000\ns_mov_b32 s31, 0x800000")
        a("s_mov_b32 s32, s20\ns_mov_b32 s33, s21\ns_lshl_b32 s34, s57, 10\ns_mov_b32 s35, 0x20000")
        a(f"s_mov_b32 s36, s24\ns_mov_b32 s37, s25\ns_mov_b32 s38, {WS_END}\ns_mov_b32 s39, 0x20000")
        a(f"s_mov_b32 {sRB}, 0\ns_mov_b32 s63, 0\nv_mov_b32 v14, 1")
        a(f"s_lshr_b32 {sRot}, {sBin}, 5\ns_mul_i32 {sRot}, {sRot}, 20009\ns_add_u32 {sRot}, {sRot}, 14\ns_lshr_b32 {sRot}, {sRot}, 4\ns_lshl_b32 {sRot}, {sRot}, 10")
        for k in range(40): a(f"v_mov_b32 v{ACC+k}, 0")
    def keycalc(Dr, Br, Kr, tm):
        a(f"v_mul_u32_u24 v{tm}, 625, v{Br}\nv_add_u32 v{tm}, 15, v{tm}\nv_lshrrev_b32 v{tm}, 4, v{tm}\nv_sub_u32 v{Kr}, v{Dr}, v{tm}")
    def keycalc2(Sr, Kr, tm):
        a(f"v_mul_u32_u24 v{tm}, 1677, v{Sr}\nv_lshrrev_b32 v{tm}, 20, v{tm}\nv_lshl_or_b32 v{Kr}, v{Kr}, 4, v{tm}\nv_lshl_or_b32 v{Kr}, v{Sr}, 10, v{Kr}")
    a("s_cbranch_scc0 K_BA")
    a(f"global_load_dwordx4 v[{D}:{D+3}], v11, s[8:9] {la}")
    if P.get("sfirst", 1): a(f"global_load_dwordx4 v[{S}:{S+3}], v11, s[6:7] {la}")
    a("K_BA:\ns_barrier\ns_cbranch_scc0 K_HELP")
    if not P.get("sfirst", 1): a(f"global_load_dwordx4 v[{S}:{S+3}], v11, s[6:7] {la}")
    for i in range(P.get("ydelay", 0)): a("s_nop 15")
    for h in range(2): a(f"global_load_dwordx4 v[{Y+4*h}:{Y+4*h+3}], v12, s[10:11] offset:{16*h} {la}")
    for h in range(2): a(f"global_load_dwordx4 v[{F+4*h}:{F+4*h+3}], v12, s[12:13] offset:{16*h} {la}")
    stamp("ldiss")
    a(f"s_mov_b32 {sRole}, 1")
    setup0(); setup()
    stamp("setup")
    a("s_waitcnt vmcnt(5)")
    stamp("dst")
    for u in range(4):
        a(f"v_mul_u32_u24 v{t+u}, 214749, v{D+u}\nv_lshrrev_b32 v{t+u}, 23, v{t+u}\nv_lshlrev_b32 v{B4+u}, 2, v{t+u}")
        a(f"ds_add_rtn_u32 v{RK1+u}, v{B4+u}, v14 offset:{L_HCNT}")
    for u in range(4): keycalc(D+u, t+u, KY+u, tmp)
    a("s_branch K_BB")
    a(f"K_HELP:\ns_mov_b32 {sRole}, 0")
    setup0()
    if P.get("pfcode"):
        a(f"s_cmp_lg_u32 {sW}, 5\ns_cbranch_scc1 K_HELP1\ns_getpc_b64 s[26:27]\nK_PC2:\nv_lshlrev_b32 v13, 7, v1\nglobal_load_dword v255, v13, s[26:27]")
        a(f"v_add_u32 v13, 8192, v13\nv_min_u32 v13, K_TAB-K_PC2, v13\nglobal_load_dword v255, v13, s[26:27]\nK_HELP1:")
    a(f"s_cmp_eq_u32 {sW}, 7\ns_cbranch_scc1 K_HELP7\ns_cmp_lg_u32 {sW}, 6\ns_cbranch_scc1 K_HELP2")
    a(f"s_and_b32 s56, {sBin}, 31\ns_lshl_b32 s56, s56, 10\nv_lshl_add_u32 v13, v1, 7, s56\ns_mov_b64 exec, 0xff")
    a("global_load_dword v255, v13, s[18:19]\ns_mov_b64 exec, -1\ns_branch K_HELP2\nK_HELP7:")
    a(f"s_mov_b32 m0, {L_WR}\ns_getpc_b64 s[26:27]\nK_PC:\nglobal_load_lds_dwordx4 v9, s[14:15]")
    a(f"s_add_u32 s26, s26, K_TAB-K_PC\ns_addc_u32 s27, s27, 0\ns_mov_b32 m0, {L_CG}\ns_mov_b64 exec, 0xff\nglobal_load_lds_dwordx4 v9, s[16:17]")
    a(f"s_mov_b32 m0, {L_MAP}\ns_nop 0\nglobal_load_lds_dwordx4 v9, s[26:27]\ns_mov_b64 exec, -1")
    a("K_HELP2:")
    setup()
    a("K_BB:\ns_waitcnt lgkmcnt(0)\ns_barrier")
    stamp("Bb")
    c = TA; q = TB
    a(f"s_add_u32 {sTag}, {sTag}, 1\ns_and_b32 s56, {sTag}, 0x3ff\ns_lshl_b32 s58, s56, 22\ns_lshl_b32 {sT8}, {sTag}, 24")
    a(f"s_cmp_eq_u32 {sW}, 7\ns_cselect_b32 s56, 1, {sRole}\ns_cmp_eq_u32 s56, 0\ns_cbranch_scc1 K_BC1")
    a(f"ds_read_b128 v[{c}:{c+3}], v9 offset:{L_HCNT}")
    a(f"s_cmp_eq_u32 {sW}, 7\ns_cbranch_scc1 K_SC\ns_waitcnt vmcnt(4)")
    for u in range(4): keycalc2(S+u, KY+u, t+u)
    a("K_SC:\ns_waitcnt lgkmcnt(0)")
    a(f"v_add_u32 v{c+4}, v{c}, v{c+1}\nv_add_u32 v{c+5}, v{c+4}, v{c+2}\nv_add_u32 v{c+6}, v{c+5}, v{c+3}\nv_mov_b32 v{q}, v{c+6}")
    fill = [x for u in range(4) for x in (f"v_or_b32 v{KG+2*u}, {sT8}, v{KY+u}", f"v_mov_b32 v{KG+2*u+1}, {sTag}")]
    for k in range(6):
        for x in fill[2*k:2*k+2]: a(x)
        a(f"v_add_u32_dpp v{q}, v{q}, v{q} {DPP[k]}")
    a(f"v_sub_u32 v{q}, v{q}, v{c+6}\nv_add_u32 v{q+1}, v{q}, v{c}\nv_add_u32 v{q+2}, v{q}, v{c+4}\nv_add_u32 v{q+3}, v{q}, v{c+5}")
    a(f"s_cmp_lg_u32 {sW}, 7\ns_cbranch_scc1 K_NOROW")
    g = EE
    for i in range(4):
        a(f"v_lshl_or_b32 v{g+2*i}, v{c+i}, 11, v{q+i}\nv_or_b32 v{g+2*i}, s58, v{g+2*i}\nv_mov_b32 v{g+2*i+1}, {sTag}")
    a(f"s_lshl_b32 s57, s2, 11\ns_add_u32 s57, s57, {WS_TAB}\nv_lshlrev_b32 v12, 5, v1")
    a(f"buffer_store_dwordx4 v[{g}:{g+3}], v12, {WSR}, s57 offen sc1\nbuffer_store_dwordx4 v[{g+4}:{g+7}], v12, {WSR}, s57 offen offset:16 sc1")
    a("s_branch K_BC1\nK_NOROW:")
    a(f"ds_write_b128 v9, v[{q}:{q+3}] offset:{L_PRE}")
    for u in range(4): a(f"ds_read_b32 v{t+u}, v{B4+u} offset:{L_PRE}")
    for u in range(4):
        a(f"s_waitcnt lgkmcnt(3)\nv_add_lshl_u32 v{B4+u}, v{t+u}, v{RK1+u}, 3")
        a(f"ds_write_b64 v{B4+u}, v[{KG+2*u}:{KG+2*u+1}] offset:{L_SKEY}")
    a(f"s_mov_b32 s56, {L_SPAY}")
    for u in range(4): a(f"v_lshl_add_u32 v{B4+u}, v{B4+u}, 1, s56")
    a("K_BC1:")
    a(f"s_mul_i32 s60, s2, {CH*8}\ns_add_u32 s60, s60, {WS_KEY}")
    a(f"s_sub_u32 s56, {sW}, 5\ns_lshl_b32 s57, s56, 14\nv_add_u32 v13, s57, v9\ns_add_u32 s57, s57, {L_WM}")
    a("s_waitcnt lgkmcnt(0)\ns_barrier")
    stamp("Bc1")
    o = XR + 20
    a(f"s_cmp_ge_u32 s2, {NP}\ns_cbranch_scc1 K_KS2")
    a(f"ds_read_b128 v[{o}:{o+3}], v10 offset:{L_SKEY}")
    a(f"s_cmp_lt_u32 s56, 2\ns_cbranch_scc0 K_KS1")
    a(f"ds_read_b128 v[{o+4}:{o+7}], v10 offset:{L_SKEY + 8192 - 5120}\ns_add_u32 s59, s60, {8192 - 5120}")
    a(f"s_waitcnt lgkmcnt(0)\nbuffer_store_dwordx4 v[{o+4}:{o+7}], v10, {WSR}, s59 offen sc1")
    a(f"K_KS1:\ns_waitcnt lgkmcnt(0)\nbuffer_store_dwordx4 v[{o}:{o+3}], v10, {WSR}, s60 offen sc1")
    a(f"K_KS2:\ns_cmp_lt_u32 s56, 2\ns_cbranch_scc1 K_DMA\ns_cmp_eq_u32 {sRole}, 0\ns_cbranch_scc1 K_BC7")
    for h in range(2):
        a(f"s_waitcnt vmcnt({2 - h})")
        for u in (2*h, 2*h+1): a(f"ds_write2_b64 v{B4+u}, v[{Y+2*u}:{Y+2*u+1}], v[{F+2*u}:{F+2*u+1}] offset0:0 offset1:1")
    a("s_branch K_BC\nK_DMA:")
    for gidx in range(4):
        a("s_mov_b32 m0, s57\ns_add_u32 s57, s57, 4096")
        for i in range(4): a(f"global_load_lds_dwordx4 v13, s[18:19] offset:{i*1024}")
        if gidx < 3: a("v_add_u32 v13, 4096, v13")
    a(f"s_branch K_BC\nK_BC7:\ns_cmp_ge_u32 s2, {NP}\ns_cbranch_scc0 K_BC8\ns_waitcnt vmcnt(2)\nK_BC8:\ns_waitcnt vmcnt(3)")
    a("K_BC:")
    a(f"s_mul_i32 s56, s2, {CH*16}\ns_add_u32 s56, s56, {WS_PAY}\ns_add_u32 s57, s56, 8192\ns_add_u32 s59, s56, 16384")
    a(f"v_lshlrev_b32 v11, 11, v0\ns_lshl_b32 s61, {sBin}, 3\ns_add_u32 s61, s61, {WS_TAB}")
    a("s_waitcnt lgkmcnt(0)\ns_barrier")
    stamp("Bc")
    o = XR
    a(f"s_cmp_ge_u32 s2, {NP}\ns_cbranch_scc1 K_NOST")
    for u in range(2): a(f"ds_read_b128 v[{o+4*u}:{o+4*u+3}], v10 offset:{L_SPAY + 8192*u}")
    a(f"s_cmp_ge_u32 {sW}, 4\ns_cbranch_scc1 K_ST1")
    a(f"ds_read_b128 v[{o+8}:{o+11}], v10 offset:{L_SPAY + 16384}")
    a(f"s_waitcnt lgkmcnt(0)\nbuffer_store_dwordx4 v[{o+8}:{o+11}], v10, {WSR}, s59 offen sc1")
    a(f"K_ST1:\ns_waitcnt lgkmcnt(1)\nbuffer_store_dwordx4 v[{o}:{o+3}], v10, {WSR}, s56 offen sc1")
    a(f"s_waitcnt lgkmcnt(0)\nbuffer_store_dwordx4 v[{o+4}:{o+7}], v10, {WSR}, s57 offen sc1")
    a("K_NOST:")
    RW, RC, RM = OFFS, NODE, TP
    a(f"s_lshr_b32 s56, s34, 10\ns_sub_u32 s56, s56, {sNs}\ns_sub_u32 s56, s56, 39\ns_lshl_b32 s56, s56, 6\ns_add_u32 s56, s56, {L_MAP}")
    a(f"v_add_u32 v2, s56, v1\nv_add_u32 v13, {L_WR}, v15\nds_read_u8 v2, v2")
    a(f"ds_read2st64_b32 v[{RW}:{RW+1}], v13 offset0:0 offset1:1\nds_read2st64_b32 v[{RW+2}:{RW+3}], v13 offset0:2 offset1:3")
    a(f"v_and_b32 v12, 3, v1\nv_lshlrev_b32 v12, 5, v12\nv_bfe_u32 v13, v1, 2, 2\nv_lshl_or_b32 v12, v13, 1, v12\nv_add_u32 v12, {L_CG}, v12")
    for f_ in range(4): a(f"ds_read_u16 v{RC+f_}, v12 offset:{f_*8}")
    a(f"v_mov_b32 v{vPm}, v3\nv_xor_b32 v{vPo}, 1024, v3\nv_mul_u32_u24 v{AOP+1}, {FS}, v0")
    a(f"s_mov_b32 s56, {f32(-LOG2E)}\ns_waitcnt lgkmcnt(0)")
    w = TP + 16
    for h in range(2):
        for k in range(4):
            a(f"v_lshlrev_b32 v{w+k}, 16, v{RW+k}" if h == 0 else f"v_and_b32 v{w+k}, 0xffff0000, v{RW+k}")
            a(f"v_mul_f32 v{w+4+k}, s56, v{w+k}")
        oo = WF + 4*h
        a(f"v_cvt_pk_bf16_f32 v{oo}, v{w+4}, v{w+5}\nv_cvt_pk_bf16_f32 v{oo+1}, v{w+6}, v{w+7}")
        for k in range(4):
            a(f"v_lshlrev_b32 v{w+4+k}, 16, v{oo + k//2}" if k % 2 == 0 else f"v_and_b32 v{w+4+k}, 0xffff0000, v{oo + k//2}")
            a(f"v_fma_f32 v{w+4+k}, s56, v{w+k}, -v{w+4+k}")
        a(f"v_cvt_pk_bf16_f32 v{oo+2}, v{w+4}, v{w+5}\nv_cvt_pk_bf16_f32 v{oo+3}, v{w+6}, v{w+7}")
    a(f"v_lshl_or_b32 v{w}, v{RC+1}, 16, v{RC}\nv_lshl_or_b32 v{w+1}, v{RC+3}, 16, v{RC+2}\nv_lshrrev_b32 v13, 4, v1")
    for gg in range(4):
        a(f"v_cmp_eq_u32 vcc, {gg}, v13")
        a(f"v_cndmask_b32 v{CGF+2*gg}, 0, v{w}, vcc\nv_cndmask_b32 v{CGF+2*gg+1}, 0, v{w+1}, vcc")
    a(f"v_mul_u32_u24 v13, {4*CH}, v1")
    def wmextract():
        a(f"s_and_b32 s56, {sW}, 3\ns_lshl_b32 s56, s56, 6\ns_add_u32 s56, s56, {L_WM}")
        a("v_lshrrev_b32 v10, 4, v1\nv_lshlrev_b32 v10, 11, v10\nv_and_b32 v12, 15, v1\nv_lshl_or_b32 v10, v12, 2, v10\nv_add_u32 v10, s56, v10")
        a("s_mov_b32 s56, 0x05040100\ns_mov_b32 s57, 0x07060302")
        for ks in range(4):
            for i in range(4): a(f"ds_read2st64_b32 v[{RM+8*ks+2*i}:{RM+8*ks+2*i+1}], v10 offset0:{32*ks+2*i} offset1:{32*ks+2*i+1}")
        for ks in range(4):
            for i in range(4):
                a(f"s_waitcnt lgkmcnt({15 - 4*ks - i})")
                a(f"v_perm_b32 v{BF+4*ks+i}, v{RM+8*ks+2*i+1}, v{RM+8*ks+2*i}, s56")
                a(f"v_perm_b32 v{BF+16+4*ks+i}, v{RM+8*ks+2*i+1}, v{RM+8*ks+2*i}, s57")
    a(f"s_cmp_ge_u32 {sW}, 4\ns_cbranch_scc1 K_TABOK")
    a(f"s_mov_b32 s59, {P.get('timeout', 40000)}\ns_lshr_b32 s58, s58, 22")
    a(f"K_POLLA:\nbuffer_load_dwordx2 v[{TA}:{TA+1}], v11, {WSR}, s61 offen sc1\ns_waitcnt vmcnt(0)")
    a(f"v_lshrrev_b32 v{TA+2}, 22, v{TA}\nv_cmp_ne_u32 vcc, {sTag}, v{TA+1}\nv_cmp_ne_u32 s[56:57], s58, v{TA+2}\ns_or_b64 vcc, vcc, s[56:57]")
    if P.get("force_fb"): a("s_mov_b64 vcc, -1")
    a("s_cbranch_vccz K_POLLAOK")
    a(f"s_sub_u32 s59, s59, 1\ns_cbranch_scc0 K_POLLA")
    a(f"ds_write_b32 v4, v14 offset:{L_FB}")
    a(f"K_POLLAOK:\nds_write_b32 v3, v{TA} offset:{L_TABL}")
    a("K_TABOK:\ns_waitcnt vmcnt(0) lgkmcnt(0)\ns_barrier")
    stamp("Bx")
    a(f"s_cmp_lg_u32 {sW}, 4\ns_cbranch_scc1 K_NOFLAG")
    a(f"s_mul_i32 s56, s2, {FS}\ns_add_u32 s56, s56, {WS_FLG}\nv_mov_b32 v10, {sTag}\ns_mov_b64 exec, 1")
    a(f"buffer_store_dword v10, v4, {WSR}, s56 offen sc1\ns_mov_b64 exec, -1\nK_NOFLAG:")
    a(f"ds_read_b128 v[{TP}:{TP+3}], v9 offset:{L_TABL}\nds_read_b32 v10, v4 offset:{L_FB}")
    a("s_waitcnt lgkmcnt(0)")
    a(f"v_readfirstlane_b32 {sFB}, v10")
    c = TP + 4; p = TP + 8
    for i in range(4): a(f"v_bfe_u32 v{c+i}, v{TP+i}, 11, 11")
    a(f"v_add_u32 v{p+1}, v{c}, v{c+1}\nv_add_u32 v{p+2}, v{p+1}, v{c+2}\nv_add_u32 v{p+3}, v{p+2}, v{c+3}\nv_mov_b32 v{p+4}, v{p+3}")
    fill = []
    for i in range(4):
        fill.append(f"v_and_b32 v{TP+i}, 0x7ff, v{TP+i}")
        fill.append(f"v_add_u32 v{PD+i}, v13, v{TP+i}")
        if i: fill.append(f"v_add_u32 v{PD+i}, {i*CH}, v{PD+i}")
    for k in range(6):
        for x in fill[2*k:2*k+2]: a(x)
        a(f"v_add_u32_dpp v{p+4}, v{p+4}, v{p+4} {DPP[k]}")
    a(f"s_cmp_lg_u32 {sFB}, 0\ns_cbranch_scc1 K_FB0")
    a(f"v_readlane_b32 {sT}, v{p+4}, 63")
    a(f"v_sub_u32 v{PP}, v{p+4}, v{p+3}")
    a(f"v_add_u32 v{PP+1}, v{PP}, v{c}\nv_add_u32 v{PP+2}, v{PP}, v{p+1}\nv_add_u32 v{PP+3}, v{PP}, v{p+2}")
    for i in range(4):
        a(f"v_sub_u32 v{PD+i}, v{PD+i}, v{PP+i}\nv_add_u32 v{PL+i}, v{PP+i}, v{c+i}")
    m = XR; f = m + 12; KEY = m + 16; RK = m + 22; ad = m + 25; CD = m + 28; PAYR = m + 32; PA = m + 44; CI = m + 47; q = m + 52
    FL = AOP
    a("K_ROUND:")
    a(f"s_mul_i32 s56, {sW}, {CAPW}\ns_add_u32 s56, s56, {sRB}\ns_add_u32 s57, s56, {CAPW}")
    a(f"s_lshl_b32 s58, {sW}, 10\ns_add_u32 s58, s58, {L_MARK}")
    for i in range(4):
        a(f"v_cmp_lt_u32 vcc, s56, v{PL+i}\nv_cmp_gt_u32 s[60:61], s57, v{PP+i}")
        a(f"v_subrev_u32 v{m+i}, s56, v{PP+i}\nv_max_i32 v{m+i}, 0, v{m+i}\nv_lshl_add_u32 v{m+i}, v{m+i}, 2, s58")
        a(f"s_and_b64 exec, vcc, s[60:61]\nds_max_u32 v{m+i}, v{PD+i}\ns_mov_b64 exec, -1")
    a(f"v_add_u32 v{m+4}, s58, v15")
    for u in range(3): a(f"ds_read_b32 v{m+8+u}, v{m+4} offset:{u*256}")
    a(f"v_add_u32 v{f}, s56, v1\nv_add_u32 v{f+1}, 64, v{f}\nv_add_u32 v{f+2}, 128, v{f}")
    for u in range(3): a(f"v_cmp_gt_u32 {M(u)}, {sT}, v{f+u}")
    a(f"s_mov_b32 s60, {WS_KEY}\ns_mov_b32 s61, {WS_PAY}\ns_lshr_b32 s62, {sT8}, 24")
    a("s_waitcnt lgkmcnt(0)")
    scan_incl(a, "v_max_u32", [m+8, m+9, m+10])
    a(f"v_readlane_b32 s56, v{m+8}, 63\nv_readlane_b32 s57, v{m+9}, 63\nv_add_u32 v{f}, v{f}, v{m+8}")
    a(f"s_max_u32 s57, s56, s57")
    a(f"v_max_u32 v{m+9}, s56, v{m+9}\nv_max_u32 v{m+10}, s57, v{m+10}")
    a(f"v_add_u32 v{f+1}, v{f+1}, v{m+9}\nv_add_u32 v{f+2}, v{f+2}, v{m+10}")
    for u in range(3): a(f"v_lshlrev_b32 v{ad+u}, 3, v{f+u}")
    stamp("marks")
    def keyloads():
        for u in range(3):
            a(f"s_mov_b64 exec, {M(u)}\nbuffer_load_dwordx2 v[{KEY+2*u}:{KEY+2*u+1}], v{ad+u}, {WSR}, s60 offen sc1")
        a("s_mov_b64 exec, -1")
    keyloads()
    for u in range(3): a(f"v_lshlrev_b32 v{PA+u}, 4, v{f+u}")
    a(f"s_cmp_lg_u32 {sRB}, 0\ns_cbranch_scc1 K_KEYS1")
    TWO = P.get("two", 0); M2 = lambda u: ("s[0:1]", "s[20:21]", "s[22:23]")[u]
    if TWO:
        for u in range(3): a(f"v_lshrrev_b32 v{f+u}, 8, v{f+u}\nv_mul_u32_u24 v{f+u}, 52429, v{f+u}\nv_lshrrev_b32 v{f+u}, 18, v{f+u}\nv_lshlrev_b32 v{f+u}, 2, v{f+u}")
    wmextract()
    stamp("wmx")
    a("s_branch K_KEYS1\nK_KEYS:")
    keyloads()
    a(f"K_KEYS1:\nv_mov_b32 v14, 64\ns_mov_b64 s[58:59], 0")
    for u in range(3):
        a(f"s_waitcnt vmcnt({2-u})")
        a(f"v_lshrrev_b32 v{RK+u}, 24, v{KEY+2*u}\nv_cmp_ne_u32 vcc, {sTag}, v{KEY+2*u+1}\nv_cmp_ne_u32 s[56:57], s62, v{RK+u}")
        a(f"s_or_b64 vcc, vcc, s[56:57]\ns_and_b64 vcc, vcc, {M(u)}\ns_or_b64 s[58:59], s[58:59], vcc")
    a("s_cbranch_scc1 K_KEYS")
    stamp("keys")
    def payloads():
        for u in range(3):
            a(f"s_mov_b64 exec, {M(u)}\nbuffer_load_dwordx4 v[{PAYR+4*u}:{PAYR+4*u+3}], v{PA+u}, {WSR}, s61 offen sc1")
        a("s_mov_b64 exec, -1")
    a(f"s_cmp_lg_u32 {sRB}, 0\ns_cbranch_scc1 K_LATER")
    a(f"s_mov_b32 s62, {WS_FLG}\ns_cmp_lt_u32 {sW}, 4\ns_cbranch_scc0 K_GOT\nbuffer_load_dword v{FL}, v{FL+1}, {WSR}, s62 offen sc1")
    a("K_GOT:")
    for u in range(3):
        a(f"v_lshrrev_b32 v{ad+u}, 2, v{KEY+2*u}\nv_and_b32 v{ad+u}, 0xfc, v{ad+u}")
    for u in range(3): a(f"s_mov_b64 exec, {M(u)}\nds_add_u32 v{ad+u}, v14 offset:{L_DEG}")
    a("s_mov_b64 exec, -1")
    a(f"s_lshr_b32 s56, {sW}, 2\ns_or_b32 s56, s56, {sFB}\ns_cbranch_scc1 K_POLLBOK")
    def pfetch(lab):
        n = P["pf"]
        a(f"s_cmp_lt_u32 {sW}, {8-n}\ns_cbranch_scc1 {lab}")
        a("s_mov_b32 s64, s4\ns_mov_b32 s65, s5\ns_mov_b32 s66, 10240000\ns_mov_b32 s67, 0x20000")
        a(f"s_sub_u32 s68, 7, {sW}\ns_lshl_b32 s68, s68, 5\ns_and_b32 s69, {sBin}, 31\ns_add_u32 s68, s68, s69\ns_lshl_b32 s68, s68, 13\ns_add_u32 s68, s68, {sRot}")
        a(f"v_lshlrev_b32 v13, 7, v1\nbuffer_load_dword v255, v13, s[64:67], s68 offen")
    if not TWO:
        a(f"K_POLLB:\ns_waitcnt vmcnt(0)\nv_cmp_ne_u32 vcc, {sTag}, v{FL}\ns_cbranch_vccz K_POLLBOK")
        a(f"buffer_load_dword v{FL}, v{FL+1}, {WSR}, s62 offen sc1\ns_branch K_POLLB")
        a("K_POLLBOK:\ns_waitcnt lgkmcnt(0)")
        stamp("pollP")
        a("s_barrier")
        stamp("Bd")
        a(f"s_cmp_lg_u32 {sFB}, 0\ns_cbranch_scc1 K_NOPF")
        payloads()
        if P["pf"]: pfetch("K_NOPF")
        a("K_NOPF:")
    else:
        a(f"s_waitcnt vmcnt(0)\nds_write_b32 v3, v{FL} offset:{L_PRE}")
        a("K_POLLBOK:\ns_waitcnt lgkmcnt(0)")
        stamp("pollP")
        a("s_barrier")
        stamp("Bd")
        a(f"s_cmp_lg_u32 {sFB}, 0\ns_cbranch_scc1 K_NOPF")
        for u in range(3): a(f"ds_read_b32 v{f+u}, v{f+u} offset:{L_PRE}")
        for u in range(3):
            a(f"s_waitcnt lgkmcnt({2-u})\nv_cmp_eq_u32 vcc, {sTag}, v{f+u}\ns_andn2_b64 {M2(u)}, {M(u)}, vcc\ns_and_b64 exec, {M(u)}, vcc")
            a(f"buffer_load_dwordx4 v[{PAYR+4*u}:{PAYR+4*u+3}], v{PA+u}, {WSR}, s61 offen sc1\ns_mov_b64 exec, -1")
        a(f"s_cmp_lt_u32 {sW}, 4\ns_cbranch_scc0 K_NOPF\nv_cmp_ne_u32 vcc, {sTag}, v{FL}\ns_cbranch_vccz K_NOPF\nbuffer_load_dword v{FL}, v{FL+1}, {WSR}, s62 offen sc1\ns_mov_b32 s63, 1")
        a("K_NOPF:")
    KK = TP; MI = EE
    a(f"ds_read_b32 v{MI}, v15 offset:{L_DEG}")
    for jj in range(10): a(f"ds_read_b128 v[{KK+4*jj}:{KK+4*jj+3}], v4 offset:{L_DEG+16*jj}")
    a("v_cmp_gt_u32 vcc, 40, v1")
    for jj in range(20):
        if jj % 2 == 0: a(f"s_waitcnt lgkmcnt({9 - jj//2})")
        tt = KK + 2*jj
        a(f"v_pk_add_f32 v[{tt}:{tt+1}], v[{tt}:{tt+1}], v[{MI}:{MI+1}] op_sel_hi:[1,0] neg_lo:[0,1] neg_hi:[0,1] clamp")
        if jj >= 2: a(f"v_pk_add_f32 v[{tt}:{tt+1}], v[{tt}:{tt+1}], v[{tt-4}:{tt-3}]")
    tt = KK + 38
    a(f"v_pk_add_f32 v[{tt}:{tt+1}], v[{tt}:{tt+1}], v[{tt-2}:{tt-1}]")
    a(f"v_add_f32 v{tt}, v{tt}, v{tt+1}\nv_cvt_u32_f32 v{tt}, v{tt}\nv_lshlrev_b32 v{tt}, 2, v{tt}")
    a(f"ds_bpermute_b32 v2, v{tt}, v2\ns_waitcnt lgkmcnt(0)\nv_cndmask_b32 v2, -1, v2, vcc")
    a("K_BAL:")
    for u in range(3): a(f"ds_bpermute_b32 v{CD+u}, v{ad+u}, v2")
    a("v_mov_b32 v14, 1\nv_lshlrev_b32 v10, 3, v1")
    a(f"s_lshr_b32 s56, {sBin}, 4\ns_and_b32 s56, s56, 14")
    for u in range(3): a(f"v_subrev_u32 v{CI+u}, s56, v{KEY+2*u}\nv_and_b32 v{CI+u}, 15, v{CI+u}")
    for u in range(3):
        a(f"s_waitcnt lgkmcnt(2)\ns_mov_b64 exec, {M(u)}")
        a(f"v_and_b32 v{ad+u}, 7, v{CD+u}\nv_lshl_or_b32 v{CI+u}, v{ad+u}, 4, v{CI+u}\nv_lshlrev_b32 v{ad+u}, 2, v{CI+u}")
        a(f"ds_add_rtn_u32 v{RK+u}, v{ad+u}, v14 offset:{L_CNT}")
    a("s_mov_b64 exec, -1")
    for u in range(3):
        a(f"v_lshlrev_b32 v{ad+u}, 1, v{CI+u}\nv_lshlrev_b32 v{CI+u}, 4, v{CI+u}")
        a(f"v_and_b32 v{CD+u}, 0x38, v{CD+u}\nv_and_b32 v{KEY+2*u}, {P.get('xmask', 0xfffc00)}, v{KEY+2*u}")
    a(f"s_lshl_b32 s56, {sW}, 3\ns_add_u32 s57, s56, 7")
    a(f"v_lshrrev_b32 v{q+6}, 3, v1\nv_mul_u32_u24 v{q+6}, 48, v{q+6}")
    if TWO:
        a("s_cmp_eq_u32 s63, 0\ns_mov_b32 s63, 0\ns_cbranch_scc1 K_POLLCOK")
        a(f"K_POLLC:\ns_waitcnt vmcnt(0)\nv_cmp_ne_u32 vcc, {sTag}, v{FL}\ns_cbranch_vccz K_POLLCOK")
        a(f"buffer_load_dword v{FL}, v{FL+1}, {WSR}, s62 offen sc1\ns_branch K_POLLC\nK_POLLCOK:")
    a("s_waitcnt lgkmcnt(0)\ns_barrier")
    stamp("Be")
    a(f"ds_read_b64 v[{q}:{q+1}], v10 offset:{L_CNT}")
    if TWO:
        a(f"s_or_b32 s58, {sFB}, {sRB}\ns_cbranch_scc1 K_NOREST")
        a(f"s_or_b64 s[58:59], {M2(0)}, {M2(1)}\ns_or_b64 s[58:59], s[58:59], {M2(2)}\ns_cbranch_scc0 K_NOREST1")
        for u in range(3):
            a(f"s_mov_b64 exec, {M2(u)}\nbuffer_load_dwordx4 v[{PAYR+4*u}:{PAYR+4*u+3}], v{PA+u}, {WSR}, s61 offen sc1")
        a("s_mov_b64 exec, -1\nK_NOREST1:")
        if P["pf"]: pfetch("K_NOREST")
        a("K_NOREST:")
    a(f"s_sub_u32 s58, {sRot}, 1024\ns_cselect_b32 s58, {(N-1)*1024}, s58")
    a("s_waitcnt lgkmcnt(0)")
    a(f"v_add_u32 v{q+2}, v{q}, v{q+1}\nv_mov_b32 v{q+3}, v{q+2}")
    fill = ["v_and_b32 v12, 15, v1", "v_lshrrev_b32 v11, 4, v1", "v_lshlrev_b32 v11, 3, v11", "v_lshl_add_u32 v11, v12, 5, v11",
            f"v_mov_b32 v{q+7}, s58", f"v_mov_b32 v{vPv}, 0"]
    for k in range(6):
        for x in fill[2*k:2*k+2]: a(x)
        a(f"v_add_u32_dpp v{q+3}, v{q+3}, v{q+3} {DPP[k]}")
    a(f"v_sub_u32 v{q+2}, v{q+3}, v{q+2}")
    a(f"v_readlane_b32 {sLen}, v{q+3}, s57")
    a(f"v_mov_b32_dpp v{q+4}, v{q+2} row_newbcast:0 row_mask:0xf bank_mask:0x3")
    a(f"v_readlane_b32 s58, v{q+2}, s56")
    a(f"v_mov_b32_dpp v{q+4}, v{q+2} row_newbcast:8 row_mask:0xf bank_mask:0xc")
    a(f"v_add_u32 v{q+5}, 15, v{q+4}\nv_and_b32 v{q+5}, -16, v{q+5}\nv_add_u32 v{q+5}, v{q+5}, v{q+6}")
    a(f"v_sub_u32 v{q+4}, v{q+5}, v{q+4}\nv_add_u32 v{q+4}, v{q+4}, v{q+2}")
    a(f"v_add_u32 v{q}, v{q+4}, v{q}\nv_lshl_or_b32 v{q}, v{q}, 16, v{q+4}")
    a(f"v_readlane_b32 {sBase}, v{q+5}, s56")
    for u in range(3): a(f"ds_bpermute_b32 v{ad+u}, v{ad+u}, v{q}")
    a(f"s_sub_u32 {sLen}, {sLen}, s58\ns_add_u32 s56, {sBase}, {sLen}")
    a(f"v_add_u32 v{q+1}, s56, v1\nv_lshlrev_b32 v{q+2}, 2, v{q+1}\nv_lshlrev_b32 v{q+3}, 4, v{q+1}")
    a("s_mov_b64 exec, 0xfffff")
    a(f"ds_write_b32 v{q+2}, v{q+7} offset:{L_OFF}\nds_write_b8 v{q+1}, v4 offset:{L_NODE}\nds_write_b128 v{q+3}, v[4:7] offset:{L_PAY}")
    for u in range(3):
        a(f"s_mov_b64 exec, {M(u)}\ns_waitcnt lgkmcnt({5 + u})")
        a(f"v_bfe_u32 v{ad+u}, v{ad+u}, v{CI+u}, 16\nv_add_u32 v{ad+u}, v{ad+u}, v{RK+u}")
        a(f"v_lshlrev_b32 v{RK+u}, 2, v{ad+u}\nv_lshlrev_b32 v{CI+u}, 4, v{ad+u}")
        a(f"ds_write_b32 v{RK+u}, v{KEY+2*u} offset:{L_OFF}\nds_write_b8 v{ad+u}, v{CD+u} offset:{L_NODE}")
    if P["pf"]:
        a(f"s_cmp_lt_u32 {sW}, {8-P['pf']}\ns_cselect_b32 s56, 1, {sRB}\ns_or_b32 s56, s56, {sFB}\ns_cbranch_scc0 K_PW1\ns_waitcnt vmcnt(0)\nK_PW1:\ns_waitcnt vmcnt(1)")
    else: a("s_waitcnt vmcnt(0)")
    for u in range(3): a(f"s_mov_b64 exec, {M(u)}\nds_write_b128 v{CI+u}, v[{PAYR+4*u}:{PAYR+4*u+3}] offset:{L_PAY}")
    a("s_mov_b64 exec, -1")
    a(f"s_lshl_b32 s56, {sBase}, 2\ns_add_u32 s56, s56, {L_OFF}\nv_mov_b32 v{vOffA}, s56")
    a(f"s_add_u32 s56, {sBase}, {L_NODE}\nv_mov_b32 v{vNodeA}, s56")
    a(f"s_lshl_b32 s56, {sBase}, 5\ns_add_u32 s56, s56, {L_A}\nv_add_u32 v{vAA}, s56, v10\nv_add_u32 v11, s56, v11")
    a(f"s_lshl_b32 s57, {sBase}, 4\ns_add_u32 s57, s57, {L_PAY}")
    a(f"v_lshl_add_u32 v{vEfA}, v12, 4, s57\nv_add_u32 v10, s57, v9")
    a(f"s_add_u32 {sG}, {sLen}, 3\ns_lshr_b32 {sG}, {sG}, 2")
    a("s_waitcnt lgkmcnt(0)\ns_barrier")
    stamp("Bf")
    a(f"s_cmp_eq_u32 {sG}, 0\ns_cbranch_scc1 K2_LOOPDONE")
    xaux = P.get("xaux", "")
    for gg in range(ngr): a(f"ds_read_b128 v[{TP+4*gg}:{TP+4*gg+3}], v{vOffA} offset:{16*gg}")
    a(f"ds_read_b64 v[{TA}:{TA+1}], v10\nds_read2_b64 v[{OFFS}:{OFFS+3}], v{vOffA} offset0:{DE//2} offset1:{DE//2+1}")
    a(f"ds_read_b64 v[{EF}:{EF+1}], v{vEfA} offset:8\nds_read_b128 v[{NODE}:{NODE+3}], v{vNodeA}\ns_lshl_b32 s56, {sG}, 2")
    for n in range(DE):
        if n % 4 == 0: a(f"s_waitcnt lgkmcnt({ngr - 1 - n//4 + 4})")
        if SAFE: a(f"v_add_u32 v{TP+n}, v9, v{TP+n}")
        a(f"buffer_load_dwordx4 v[{XR+4*n}:{XR+4*n+3}], v{TP+n}, {XS}, 0 offen {xaux}")
    stamp("xiss")
    a("K_APREP:")
    a(f"v_cmp_gt_u32 vcc, s56, v1")
    a("s_waitcnt lgkmcnt(0)")
    a(f"v_cndmask_b32 v{TB}, 0, v{TA}, vcc\nv_cndmask_b32 v{TB+1}, 0, v{TA+1}, vcc")
    a(f"ds_read_b64 v[{TA}:{TA+1}], v10 offset:1024\nv_add_u32 v10, 1024, v10")
    for gg in range(4):
        a(f"v_mfma_f32_16x16x16_bf16 v[{TP+16+4*gg}:{TP+19+4*gg}], v[{CGF+2*gg}:{CGF+2*gg+1}], v[{TB}:{TB+1}], 0")
    for gg in range(4):
        a(f"v_cvt_pk_bf16_f32 v{EE+2*gg}, v{TP+16+4*gg}, v{TP+17+4*gg}\nv_cvt_pk_bf16_f32 v{EE+2*gg+1}, v{TP+18+4*gg}, v{TP+19+4*gg}")
        a(f"ds_write_b64 v11, v[{EE+2*gg}:{EE+2*gg+1}] offset:{512*gg}")
        a(f"s_sub_u32 s56, s56, 16\ns_cmp_le_i32 s56, 0\ns_cbranch_scc1 K_APDONE")
    a("v_add_u32 v11, 2048, v11\ns_branch K_APREP")
    a("K_APDONE:")
    a(f"s_waitcnt lgkmcnt(0)\nds_read_b64 v[{AOP}:{AOP+1}], v{vAA}")
    for x in pre_mfmas(dict(EF=EF, WF=WF), TA, 0, P): a(x)
    stamp("loop0")
    if P.get("ts"): a("s_memtime s[66:67]")
    if P.get("drain"): a(f"s_sub_u32 {sG}, {sG}, 3\ns_nop 2\ns_cbranch_scc1 K2_D0")
    else: a(f"s_sub_u32 {sG}, {sG}, 1\ns_nop 3")
    R = dict(ACC=ACC, XR=XR, TP=TP, TA=TA, TB=TB, EE=EE, WF=WF, AOP=AOP, EF=EF, OFFS=OFFS, NODE=NODE, vOffA=vOffA, vNodeA=vNodeA,
             vAA=vAA, vEfA=vEfA, sG=sG, sN=sN, vPm=vPm, vPo=vPo, vPv=vPv, XS=XS, sRot=sRot, vPt=255, RING=P.get("ring", 16))
    gen_loop(a, R, P, dict(PROG=L_PROG))
    if P.get("ts"): a("s_memtime s[68:69]")
    stamp("loop1")
    if PR.startswith("pair"):
        a(f"v_mov_b32 v{vPv}, -1\nds_write_b32 v{vPm}, v{vPv} offset:{L_PROG}\ns_setprio 0")
    a(f"s_add_u32 {sRB}, {sRB}, {CAP}\ns_cmp_ge_u32 {sRB}, {sT}\ns_cbranch_scc1 K_EPI")
    a("s_waitcnt vmcnt(0) lgkmcnt(0)\ns_barrier")
    a(f"ds_write_b128 v8, v[4:7]\nds_write_b32 v3, v4 offset:{L_PROG}")
    a(f"v_cmp_gt_u32 vcc, 128, v0\ns_and_saveexec_b64 s[56:57], vcc\nds_write_b32 v3, v4 offset:{L_CNT}\ns_mov_b64 exec, s[56:57]")
    a("s_waitcnt lgkmcnt(0)\ns_barrier")
    a(f"s_cmp_eq_u32 {sFB}, 0\ns_cbranch_scc1 K_ROUND\ns_branch K_FB")
    a("K_LATER:")
    payloads()
    a("K_LATER2:")
    for u in range(3): a(f"v_lshrrev_b32 v{ad+u}, 2, v{KEY+2*u}\nv_and_b32 v{ad+u}, 0xfc, v{ad+u}")
    a("s_branch K_BAL")
    a(f"K_FB0:\ns_mov_b32 {sT}, {E}")
    wmextract()
    a("K_FB:")
    a(f"s_mul_i32 s56, {sW}, {CAPW}\ns_add_u32 s56, s56, {sRB}")
    a(f"v_add_u32 v{f}, s56, v1\nv_add_u32 v{f+1}, 64, v{f}\nv_add_u32 v{f+2}, 128, v{f}")
    for u in range(3):
        a(f"v_cmp_gt_u32 {M(u)}, {sT}, v{f+u}\nv_min_u32 v{f+u}, {E-1}, v{f+u}\nv_lshlrev_b32 v{ad+u}, 2, v{f+u}\nv_lshlrev_b32 v{PA+u}, 3, v{f+u}")
        a(f"global_load_dword v{m+u}, v{ad+u}, s[8:9]\nglobal_load_dword v{m+4+u}, v{ad+u}, s[6:7]")
        a(f"global_load_dwordx2 v[{PAYR+4*u}:{PAYR+4*u+1}], v{PA+u}, s[10:11]\nglobal_load_dwordx2 v[{PAYR+4*u+2}:{PAYR+4*u+3}], v{PA+u}, s[12:13]")
    a(f"v_mov_b32 v14, 64\ns_waitcnt vmcnt(0)")
    for u in range(3):
        a(f"v_mul_u32_u24 v{f+u}, 214749, v{m+u}\nv_lshrrev_b32 v{f+u}, 23, v{f+u}\nv_cmp_eq_u32 vcc, {sBin}, v{f+u}\ns_and_b64 {M(u)}, {M(u)}, vcc")
        a(f"v_subrev_u32 v{KEY+2*u}, {sNs}, v{m+u}")
        keycalc2(m+4+u, KEY+2*u, f+u)
    a(f"s_cmp_lg_u32 {sRB}, 0\ns_cbranch_scc1 K_LATER2\ns_branch K_GOT")
    a("K_EPI:")
    SPLIT = P.get("split", 0)
    if SPLIT:
        L_GC = 1800
        NO = TA
        a(f"v_and_b32 v10, 7, v2\nv_bfe_u32 v11, v2, 3, 3\nv_mad_u32_u24 v10, v10, 5, v11\nv_lshlrev_b32 v10, 2, v10")
        a(f"s_lshr_b32 s59, {sW}, 2\ns_mul_i32 s60, s59, 80\nv_lshrrev_b32 v13, 4, v1\nv_lshl_add_u32 v11, v13, 2, s60")
        a("ds_permute_b32 v10, v10, v1")
        a(f"s_mov_b32 s56, {f32(-LN2)}\ns_mov_b32 s57, s56\ns_mul_i32 s58, {sW}, {20*RS}\ns_add_u32 s58, s58, {L_AGG}\nv_add_u32 v14, s58, v15")
        for k in range(4): a(f"v_pk_mul_f32 v[{ACC+2*k}:{ACC+2*k+1}], v[{ACC+2*k}:{ACC+2*k+1}], s[56:57]")
        a("s_waitcnt lgkmcnt(0)")
        for i_ in range(5): a(f"ds_bpermute_b32 v{NO+i_}, v11, v10 offset:{16*i_}")
        for sl in range(5):
            if sl:
                for k in range(4): a(f"v_pk_mul_f32 v[{ACC+8*sl+2*k}:{ACC+8*sl+2*k+1}], v[{ACC+8*sl+2*k}:{ACC+8*sl+2*k+1}], s[56:57]")
            for mm in range(4):
                a(f"v_cvt_pk_bf16_f32 v{ACC+8*sl+mm}, v{ACC+8*sl+mm}, v{ACC+8*sl+4+mm}")
                a(f"ds_write_b32 v14, v{ACC+8*sl+mm} offset:{RS*(4*sl+mm)}")
        a(f"s_lshl_b32 s61, s59, 2\nv_mov_b32 v10, s61\nv_mov_b32 v11, 1\nv_and_b32 v12, 15, v1")
        a(f"s_mul_i32 s59, s59, {80*RS}\ns_add_u32 s59, s59, {L_AGG}")
        a(f"v_mul_u32_u24 v14, {RS}, v12\nv_lshl_add_u32 v14, v13, 4, v14\nv_add_u32 v14, s59, v14")
        a(f"s_lshl_b32 s58, {sNs}, 10\ns_and_b32 s59, {sW}, 3\ns_lshl_b32 s59, s59, 8\ns_add_u32 s58, s58, s59\nv_lshlrev_b32 v12, 4, v12")
        a(f"s_waitcnt lgkmcnt(0)\ns_mov_b64 exec, 1\nds_add_u32 v10, v11 offset:{L_GC}\ns_mov_b64 exec, -1")
        for i_ in range(5): a(f"v_lshl_add_u32 v{NO+i_}, v{NO+i_}, 10, v12")
        a(f"K_GW:\nds_read_b32 v11, v10 offset:{L_GC}\ns_waitcnt lgkmcnt(0)\nv_readfirstlane_b32 s59, v11\ns_cmp_ge_u32 s59, 4\ns_cbranch_scc1 K_GW1\ns_sleep 1\ns_branch K_GW\nK_GW1:")
        a("s_waitcnt vmcnt(0)")
        stamp("Bg")
    else:
        a(f"s_mov_b32 s56, {f32(-LN2)}\ns_mov_b32 s57, s56")
        for sl in range(5):
            a(f"s_add_u32 s58, {sW}, {8*sl}\nv_cmp_eq_u32 vcc, s58, v2")
            for k in range(4): a(f"v_pk_mul_f32 v[{ACC+8*sl+2*k}:{ACC+8*sl+2*k+1}], v[{ACC+8*sl+2*k}:{ACC+8*sl+2*k+1}], s[56:57]")
            a(f"s_ff1_i32_b64 s58, vcc\ns_mul_i32 s58, s58, {4*RS}\ns_add_u32 s58, s58, {L_AGG}\nv_add_u32 v{10 + sl%2}, s58, v15")
            for mm in range(4):
                a(f"v_cvt_pk_bf16_f32 v{ACC+8*sl+mm}, v{ACC+8*sl+mm}, v{ACC+8*sl+4+mm}")
                a(f"ds_write_b32 v{10 + sl%2}, v{ACC+8*sl+mm} offset:{RS*mm}")
        a(f"v_and_b32 v12, 15, v1\nv_lshrrev_b32 v13, 4, v1")
        a(f"s_lshr_b32 s58, {sW}, 2\ns_mul_i32 s59, s58, {16*RS}\ns_add_u32 s59, s59, {L_AGG}")
        a(f"v_mul_u32_u24 v14, {RS}, v12\nv_lshl_add_u32 v14, v13, 4, v14\nv_add_u32 v14, s59, v14")
        a(f"s_lshl_b32 s58, s58, 2\ns_add_u32 s58, s58, {sNs}\ns_lshl_b32 s58, s58, 10\ns_and_b32 s59, {sW}, 3\ns_lshl_b32 s59, s59, 8\ns_add_u32 s58, s58, s59")
        a(f"v_lshlrev_b32 v13, 10, v13\nv_lshl_add_u32 v13, v12, 4, v13")
        a("s_waitcnt vmcnt(0) lgkmcnt(0)\ns_barrier")
        stamp("Bg")
    TS_ = 16 * RS if SPLIT else 32 * RS
    FA = XR
    for i in range(4):
        for ks in range(4): a(f"ds_read_b128 v[{FA+16*i+4*ks}:{FA+16*i+4*ks+3}], v14 offset:{TS_*i + 64*ks}")
    ost = P["out_aux"]
    def outtile(i):
        Dp = TP + 8 * (i % 2); Op = TP + 16 + 4 * (i % 2)
        for k in range(4): a(f"v_cvt_pk_bf16_f32 v{Op+k}, v{Dp+2*k}, v{Dp+2*k+1}")
        a(f"buffer_store_dwordx4 v[{Op}:{Op+3}], v{TA+i if SPLIT else 13}, {OS}, s58 offen {ost}")
        if i < 4 and not SPLIT: a("s_add_u32 s58, s58, 8192")
    for i in range(5):
        Dd = TP + 8 * (i % 2); fi = FA + 16 * (i % 4)
        for ks in range(4):
            if i < 4: a(f"s_waitcnt lgkmcnt({min(15, 15 - 4*i - ks + (4 if i >= 1 else 0))})")
            else: a(f"s_waitcnt lgkmcnt({3 - ks})")
            for tt in range(2):
                b = BF + 16*tt + 4*ks
                a(f"v_mfma_f32_16x16x32_bf16 v[{Dd+4*tt}:{Dd+4*tt+3}], v[{fi+4*ks}:{fi+4*ks+3}], v[{b}:{b+3}], " + ("0" if ks == 0 else f"v[{Dd+4*tt}:{Dd+4*tt+3}]"))
        if i == 0:
            for ks in range(4): a(f"ds_read_b128 v[{FA+4*ks}:{FA+4*ks+3}], v14 offset:{TS_*4 + 64*ks}")
        if i >= 1: outtile(i - 1)
    outtile(4)
    a(f"s_or_b32 s56, {sFB}, {sW}\ns_cmp_lg_u32 s56, 0\ns_cbranch_scc1 K_NOEPO")
    a(f"v_mov_b32 v10, {sTag}\ns_mov_b64 exec, 1\nbuffer_store_dword v10, v4, {WSR}, 0 offen offset:{WS_EPO}\nK_NOEPO:")
    if P.get("ts"):
        a("s_waitcnt vmcnt(0)"); stamp("end")
        a("s_waitcnt lgkmcnt(0)")
        a(f"s_lshl_b32 s98, s2, 3\ns_add_u32 s98, s98, s3\ns_lshl_b32 s98, s98, 6\ns_add_u32 s98, s98, {WS_TS}")
        a("s_mov_b64 exec, 1\nv_mov_b32 v2, s98")
        for i in range(tsn[0]): a(f"v_mov_b32 v3, s{70 + 2*i}\nglobal_store_dword v2, v3, s[24:25] offset:{4*i}")
        a(f"s_sub_u32 s68, s68, s66\nv_mov_b32 v3, s68\nglobal_store_dword v2, v3, s[24:25] offset:56\nv_mov_b32 v3, {sLen}\nglobal_store_dword v2, v3, s[24:25] offset:60")
        assert tsn[0] <= 14
    a("K_END:\ns_endpgm")
    a(".p2align 6\n.type K_TAB,@object\nK_TAB:")
    for A in (A39, A40):
        used = [0]*8; codes = []
        for ww in A: codes.append(ww | used[ww] << 3); used[ww] += 1
        assert used == [5]*8
        a(".byte " + ", ".join(str(cc) for cc in codes + [255]*24))
    body = a.text(verbose=verbose)
    ns = 100 if P.get("ts") else 72
    gen.nts = tsn[0]
    return (HEADER + f"; @launch grid=({NB},1,1) block=(512,1,1) lds={L_END}\n" + '.amdgcn_target "amdgcn-amd-amdhsa--gfx950"\n.text\n' + body
            + '.section .rodata,"a"\n' + desc(NAME, 256, ns))

if __name__ == "__main__":
    P = eval(sys.argv[2]) if len(sys.argv) > 2 else {}
    open(sys.argv[1], "w").write(gen(P, verbose=True))
```

```python
def pre_mfmas(R, T, ab, P):
    EF, WF = R["EF"], R["WF"]
    l = [f"v_mfma_f32_4x4x4_16b_bf16 v[{T}:{T+3}], v[{EF}:{EF+1}], v[{WF}:{WF+1}], 0 cbsz:4 abid:{ab}",
         f"v_mfma_f32_4x4x4_16b_bf16 v[{T+4}:{T+7}], v[{EF}:{EF+1}], v[{WF+4}:{WF+5}], 0 cbsz:4 abid:{ab}",
         f"v_mfma_f32_4x4x4_16b_bf16 v[{T}:{T+3}], v[{EF}:{EF+1}], v[{WF+2}:{WF+3}], v[{T}:{T+3}] cbsz:4 abid:{ab}",
         f"v_mfma_f32_4x4x4_16b_bf16 v[{T+4}:{T+7}], v[{EF}:{EF+1}], v[{WF+6}:{WF+7}], v[{T+4}:{T+7}] cbsz:4 abid:{ab}"]
    return l[:2] if P.get("nolo") else l

def gen_loop(a_real, R, P, L):
    g = R.get
    ACC, XR, TP, TA, TB, EE, AOP, EF, OFFS, NODE = (R[k] for k in "ACC XR TP TA TB EE AOP EF OFFS NODE".split())
    vOffA, vNodeA, vAA, vEfA, sG, sN = (R[k] for k in "vOffA vNodeA vAA vEfA sG sN".split())
    vPm, vPo, vPv = R["vPm"], R["vPo"], R["vPv"]
    DE = P.get("DE", 8); ng = DE // 4; RING = R.get("RING", 16)
    PR = P.get("prio", ""); SAFE = P.get("safe"); xaux = P.get("xaux", "")
    sched = P.get("sched", "a"); XS = R.get("XS", "s[8:11]")
    inc = (0, 0, 0, 0) if P.get("bench") else (64, 16, 512, 256)
    drop = tuple(P.get("nocomp", ()))
    def a(t):
        for l in t.split("\n"):
            if l.strip() and not (drop and l.strip().startswith(drop)): a_real(l)
    a(".p2align 4\nK2_LOOP:")
    if P.get("trace"):
        a("s_memtime s[90:91]\ns_memrealtime s[92:93]\ns_waitcnt lgkmcnt(0)\ns_mov_b32 m0, s94\nv_writelane_b32 v250, s90, m0\nv_writelane_b32 v251, s92, m0\ns_add_u32 s94, s94, 1")
    DR = P.get("drain", 0)
    UN = P.get("unroll", 1); NQ = 4 * UN
    for copy, QQ in [(c_, q_) for c_ in range(2 if DR else 1) for q_ in range(NQ)]:
        qq = QQ % 4; bi = QQ // 4; last = QQ == NQ - 1
        if copy: a(f"K2_D{QQ}:")
        T = TA if qq % 2 == 0 else TB
        Tn = TB if qq % 2 == 0 else TA
        def tp(e, h):
            s = XR + 4 * ((4*qq + e) % RING) + 2*h
            d = TP + 8*e + 4*h
            return f"v_mfma_f32_4x4x4_16b_bf16 v[{d}:{d+3}], v[{AOP}:{AOP+1}], v[{s}:{s+1}], 0 cbsz:4 abid:{4*qq+e}"
        def ld(e):
            s = XR + 4 * ((4*qq + e + DE) % RING)
            if P.get("noload") or copy: return ""
            return (f"v_add_u32 v{OFFS+e}, v9, v{OFFS+e}\n" if SAFE else "") + f"buffer_load_dwordx4 v[{s}:{s+3}], v{OFFS+e}, {XS}, 0 offen {xaux}"
        ex = [f"v_exp_f32 v{EE+i}, v{T+i}" for i in range(8)]
        rc = [f"v_rcp_f32 v{EE+i}, v{EE+i}" for i in range(8)]
        ad = [f"v_pk_add_f32 v[{EE+2*i}:{EE+2*i+1}], v[{EE+2*i}:{EE+2*i+1}], 1.0 op_sel_hi:[1,0]" for i in range(4)]
        mu = [f"v_pk_mul_f32 v[{EE+2*i}:{EE+2*i+1}], v[{EE+2*i}:{EE+2*i+1}], v[{T+2*i}:{T+2*i+1}]" for i in range(4)]
        pm = pre_mfmas(R, Tn, (qq + 1) % 4, P) + ["", ""]
        def fma(e):
            o = [f"s_set_gpr_idx_on {sN}, gpr_idx(SRC2,DST)" if e == 0 else f"s_lshr_b32 {sN}, {sN}, 8\ns_set_gpr_idx_idx {sN}"]
            for h in range(2):
                r = EE + 4*h + (e & ~1); sel = e & 1
                for i in range(2):
                    d = ACC + 4*h + 2*i; t = TP + 8*e + 4*h + 2*i
                    o.append(f"v_pk_fma_f32 v[{d}:{d+1}], v[{r}:{r+1}], v[{t}:{t+1}], v[{d}:{d+1}] op_sel:[{sel},0,0] op_sel_hi:[{sel},1,1]")
            return "\n".join(o)
        ob = 16*(QQ + 1) + 4*DE
        dsoff = "" if copy else (f"ds_read_b128 v[{OFFS}:{OFFS+3}], v{vOffA} offset:{ob}" if ob % 16 == 0 else
                                 f"ds_read2_b64 v[{OFFS}:{OFFS+3}], v{vOffA} offset0:{ob//8} offset1:{ob//8+1}")
        def vw(n, extra, tag):
            if not copy: return f"s_waitcnt vmcnt({n}){extra}"
            first, second = (6, 2) if tag == "A" else (4, 0)
            return f"s_cmp_eq_u32 {sG}, -1\ns_cbranch_scc1 K2_W{tag}{QQ}\ns_waitcnt vmcnt({second})\nK2_W{tag}{QQ}:\ns_waitcnt vmcnt({first}){extra}"
        dsA = f"ds_read_b64 v[{AOP}:{AOP+1}], v{vAA} offset:{512*(bi+1)}" if qq == 3 else ""
        dsP = f"ds_read_b32 v{vPv}, v{vPo} offset:{L['PROG']}" if not copy and (PR == "pair1" or (PR == "pair2" and qq % 2 == 1) or (PR == "pair4" and qq == 3)) else ""
        dsE = f"ds_read_b64 v[{EF}:{EF+1}], v{vEfA} offset:{256*(bi+1)+8}" if qq == 2 else ""
        rfl = f"v_readfirstlane_b32 {sN}, v{NODE+qq}"
        dsN = f"ds_read_b128 v[{NODE}:{NODE+3}], v{vNodeA} offset:{16*(bi+1)}" if qq == 3 else ""
        if last:
            pr = vEfA if not P.get("bench") else 3
            dsN += (f"\nv_add_u32 v{vOffA}, {inc[0]*UN}, v{vOffA}\nv_add_u32 v{vNodeA}, {inc[1]*UN}, v{vNodeA}\nv_add_u32 v{vAA}, {inc[2]*UN}, v{vAA}"
                    f"\nv_add_u32 v{pr}, {inc[3]*UN if not P.get('bench') else 1}, v{pr}")
        PV = 3 if P.get("bench") else OFFS
        def prio():
            dop = PR == "pair1" or (PR == "pair2" and qq % 2 == 0) or (PR == "pair4" and qq == 0)
            if dop and not copy:
                pv = PV
                if R.get("sRot"): a(f"v_subrev_u32 v{R['vPt']}, {R['sRot']}, v{PV}"); pv = R["vPt"]
                a(f"v_cmp_gt_u32 vcc, v{pv}, v{vPv}")
                a(f"ds_write_b32 v{vPm}, v{pv} offset:{L['PROG']}")
                a(f"s_setprio 0\ns_cbranch_vccnz K2_P{QQ}\ns_setprio 1\nK2_P{QQ}:")
            if PR == "quart" and qq == 0:
                a(f"s_cmp_le_i32 {sG}, s41\ns_cbranch_scc1 K2_PRIO\nK2_PRIOBACK:")
        if sched == "a":
            a("s_waitcnt lgkmcnt(0)")
            prio()
            for e in range(3):
                a(f"s_waitcnt vmcnt({DE-1})")
                a(tp(e, 0)); a(ex[2*e]); a(tp(e, 1)); a(ld(e)); a(ex[2*e+1])
            a(ex[6]); a(ex[7])
            for x in ad: a(x)
            a(f"s_waitcnt vmcnt({DE-1})")
            a(tp(3, 0)); a(rc[0]); a(tp(3, 1)); a(ld(3)); a(rc[1])
            a(dsoff); a(dsA); a(dsP)
            a(pm[0]); a(rc[2]); a(pm[1]); a(rc[3]); a(pm[2]); a(rc[4]); a(pm[3]); a(dsE)
            a(rc[5]); a(rc[6]); a(rc[7]); a(rfl); a(dsN)
            for x in mu: a(x)
            for e in range(4): a(fma(e))
            a("s_set_gpr_idx_off")
        elif sched == "b":
            ph = P.get("phase")
            a(vw(DE-2, " lgkmcnt(0)", "A"))
            prio()
            if ph: a(f"s_setprio {ph[0]}")
            if P.get("bar") == 1 or (P.get("bar") == 2 and qq % 2 == 0) or (P.get("bar") == 4 and qq == 0): a("s_barrier")
            a(tp(0, 0)); a(ex[0]); a(tp(0, 1)); a(ex[1]); a(tp(1, 0)); a(ex[2]); a(tp(1, 1)); a(ld(0)); a(ld(1)); a(ex[3])
            a(vw(DE-2, "", "B"))
            a(tp(2, 0)); a(ex[4]); a(tp(2, 1)); a(ex[5]); a(ex[6]); a(ex[7])
            for x in ad: a(x)
            a(tp(3, 0)); a(rc[0]); a(tp(3, 1)); a(ld(2)); a(ld(3)); a(rc[1])
            a(dsoff); a(dsA); a(dsP)
            a(pm[0]); a(rc[2]); a(pm[1]); a(rc[3]); a(pm[2]); a(rc[4]); a(pm[3]); a(dsE)
            a(rc[5]); a(rc[6]); a(rc[7]); a(rfl); a(dsN)
            if ph: a(f"s_setprio {ph[1]}")
            if P.get("bar2"): a("s_barrier")
            for x in mu: a(x)
            for e in range(4): a(fma(e))
            a("s_set_gpr_idx_off")
        elif sched == "d":
            adp = [f"v_add_f32 v{EE+i}, 1.0, v{EE+i}" for i in range(8)]
            a(vw(DE-2, " lgkmcnt(0)", "A"))
            prio()
            a(tp(0, 0)); a(ex[0]); a(tp(0, 1)); a(ex[1]); a(tp(1, 0)); a(ex[2]); a(tp(1, 1)); a(ld(0)); a(ld(1)); a(ex[3])
            a(vw(DE-2, "", "B"))
            a(tp(2, 0)); a(ex[4]); a(tp(2, 1)); a(ex[5]); a(tp(3, 0)); a(ex[6]); a(tp(3, 1)); a(ld(2)); a(ld(3)); a(ex[7])
            a(dsoff); a(dsA); a(dsP)
            a(rfl)
            for x in ad: a(x)
            a(pm[0]); a(rc[0]); a(pm[1]); a(rc[1]); a(pm[2]); a(rc[2]); a(pm[3]); a(dsE); a(rc[3])
            a(rc[4]); a(rc[5]); a(rc[6]); a(rc[7]); a(dsN)
            for x in mu: a(x)
            for e in range(4): a(fma(e))
            a("s_set_gpr_idx_off")
        elif sched == "e":
            a(vw(DE-2, " lgkmcnt(0)", "A"))
            prio()
            a(rfl)
            a(tp(0, 0)); a(ex[0]); a(tp(0, 1)); a(ex[1]); a(tp(1, 0)); a(ex[2]); a(tp(1, 1)); a(ld(0)); a(ld(1)); a(ex[3])
            a(vw(DE-2, "", "B"))
            a(tp(2, 0)); a(ex[4]); a(tp(2, 1)); a(ex[5]); a(f"s_lshr_b32 s64, {sN}, 8"); a(ex[6]); a(f"s_lshr_b32 s65, {sN}, 16"); a(ex[7])
            for x in ad: a(x)
            a(tp(3, 0)); a(rc[0]); a(tp(3, 1)); a(ld(2)); a(ld(3)); a(rc[1])
            a(dsoff); a(dsA); a(dsP)
            a(pm[0]); a(rc[2]); a(pm[1]); a(rc[3]); a(pm[2]); a(rc[4]); a(pm[3]); a(dsE)
            a(rc[5]); a(f"s_lshr_b32 s62, {sN}, 24"); a(rc[6]); a(dsN); a(rc[7]); a("s_nop 0" if qq != 3 else "")
            for x in mu: a(x)
            for e in range(4):
                t_ = fma(e).split("\n")
                body = t_[1:] if e == 0 else t_[2:]
                a(t_[0] if e == 0 else f"s_set_gpr_idx_idx {('s64','s65','s62')[e-1]}")
                for x in body: a(x)
            a("s_set_gpr_idx_off")
        elif sched == "c":
            a(f"s_waitcnt vmcnt({DE-4}) lgkmcnt(0)")
            prio()
            a(tp(0, 0)); a(ld(0)); a(ex[0]); a(tp(0, 1)); a(ld(1)); a(ex[1]); a(tp(1, 0)); a(ld(2)); a(ex[2]); a(tp(1, 1)); a(ld(3)); a(ex[3])
            a(tp(2, 0)); a(dsoff); a(ex[4]); a(tp(2, 1)); a(ex[5]); a(ex[6]); a(ex[7])
            for x in ad: a(x)
            a(tp(3, 0)); a(rc[0]); a(tp(3, 1)); a(rc[1])
            a(dsA); a(dsP)
            a(pm[0]); a(rc[2]); a(pm[1]); a(rc[3]); a(pm[2]); a(rc[4]); a(pm[3]); a(dsE)
            a(rc[5]); a(rc[6]); a(rc[7]); a(rfl); a(dsN)
            for x in mu: a(x)
            for e in range(4): a(fma(e))
            a("s_set_gpr_idx_off")
        else:
            from loopx import extra
            extra(sched, a, locals())
        if DR:
            assert sched == "b" and DE == 8
            if not copy:
                a(f"s_sub_u32 {sG}, {sG}, 1")
                a(f"s_cbranch_scc1 K2_D{QQ+1}" if not last else "s_cbranch_scc0 K2_LOOP")
            else:
                a(f"s_sub_u32 {sG}, {sG}, 1\ns_cmp_eq_u32 {sG}, -3")
                a("s_cbranch_scc1 K2_LOOPDONE" if not last else "s_cbranch_scc0 K2_D0")
        else:
            a(f"s_sub_u32 {sG}, {sG}, 1\ns_cmp_eq_u32 {sG}, 0" if not P.get("subcc") else f"s_sub_u32 {sG}, {sG}, 1")
            a("s_cbranch_scc1 K2_LOOPDONE" if not last else "s_cbranch_scc0 K2_LOOP")
    a = a_real
    if PR == "quart":
        a("s_branch K2_LOOPDONE\nK2_PRIO:\ns_sub_i32 s41, s41, s40\ns_add_u32 s42, s42, 1")
        a("s_setprio 2\ns_cmp_eq_u32 s42, 1\ns_cbranch_scc1 K2_PRIOBACK\ns_setprio 1\ns_cmp_eq_u32 s42, 2\ns_cbranch_scc1 K2_PRIOBACK\ns_setprio 0\ns_branch K2_PRIOBACK")
    a("K2_LOOPDONE:")
```

```python
import sys
from asmlib import Asm
from loopgen import gen_loop, pre_mfmas
from gen import HEADER as _H, scan_incl, f32, LOG2E, LN2, desc

N, E = 10000, 320000
NB, NP, CH = 256, 250, 1280
WS_EPO, WS_TAB, WS_KEY, WS_PAY, WS_FLG, WS_END = 0, 0x2000, 0x82000, 0x300000, 0x7F0000, 0x800000
WS_TS = 0x8000000
FS = 128
NAME = "gather_scatter__tensor_product_equiv_tfn__graph_kernel"
HEADER = _H[:_H.index("; Launch 1")] + """; One launch, 256 workgroups (one per CU).
; Phase 1: 250 workgroups each bin a chunk of 1280 edges by destination block (256 bins) and publish it in d_ws with
;          write-through stores: table row and keys as 8-byte pieces carrying this launch's tag, Y/edge_feat behind a flag.
;          (tag = epoch word of d_ws + 1; workgroups that saw all 256 rows store the tag back as the next epoch.)
; Phase 2: every workgroup collects its own bin, sorts it by (owner wave, source bucket), gathers x rows, does the
;          tensor product + radial gate in registers, mixes the channels and stores.
; If the hand-off never arrives (workgroups not co-resident) a workgroup scans the raw edge list on its own.
"""
A39 = [6, 5, 6, 7, 4, 2, 0, 1, 3, 4, 6, 3, 2, 0, 6, 1, 3, 5, 7, 1, 0, 5, 7, 4, 2, 1, 5, 4, 7, 3, 2, 0, 2, 0, 7, 1, 3, 4, 5, 6]
A40 = [3, 2, 4, 7, 0, 1, 6, 0, 5, 1, 7, 5, 6, 3, 4, 6, 5, 0, 2, 7, 1, 4, 6, 3, 2, 1, 3, 0, 5, 4, 2, 7, 2, 5, 4, 7, 1, 6, 0, 3]
DPP = ["row_shr:1 row_mask:0xf bank_mask:0xf", "row_shr:2 row_mask:0xf bank_mask:0xf", "row_shr:4 row_mask:0xf bank_mask:0xf",
       "row_shr:8 row_mask:0xf bank_mask:0xf", "row_bcast:15 row_mask:0xa bank_mask:0xf", "row_bcast:31 row_mask:0xc bank_mask:0xf"]

def gen(P=None, verbose=False):
    P = dict(dict(prio="pair2", sched="b", subcc=1, out_aux="sc1", pf=3), **(P or {}))
    a = Asm()
    DE = P.setdefault("DE", 8); ngr = (DE + 3) // 4; SAFE = P.get("safe"); PR = P["prio"]
    CAPW = 192; CAP = 8 * CAPW; NE = CAP + 8 * 48 + 16
    L_CNT, L_DEG, L_HCNT, L_FB, L_PROG, L_OFF = 0, 512, 768, 1792, 2048, 4096
    L_NODE = L_OFF + NE * 4
    L_PAY = (L_NODE + NE + 63) // 64 * 64
    L_A = L_PAY + NE * 16
    L_AGG = (L_A + NE * 32 + 255) // 256 * 256
    RS = 288
    L_END = L_AGG + 160 * RS
    L_MARK = L_AGG; L_WM = L_AGG + 8192; L_WR = L_WM + 32768; L_CG = L_WR + 1024; L_MAP = L_CG + 128
    L_PRE = L_OFF; L_TABL = L_OFF + 1024; L_SKEY = L_PAY; L_SPAY = L_A
    assert L_SPAY + 16384 < 65536 and L_MAP + 128 <= L_END
    ACC, XR, TP, TA, TB, EE, WF, AOP, EF, OFFS, NODE = 16, 56, 120, 152, 160, 168, 176, 184, 186, 188, 192
    vOffA, vNodeA, vAA, vEfA = 196, 197, 198, 199
    BF, CGF, PP, PL, PD = 200, 232, 240, 244, 248
    vPm, vPo, vPv = 252, 253, 254
    sW, sT, sRB, sG, sN, sBase, sLen, sTag, sBin, sNs, sFB = "s3", "s46", "s47", "s48", "s49", "s50", "s51", "s52", "s53", "s54", "s55"
    sRole, sT8, sRot = "s40", "s26", "s27"
    XS, OS, WSR = "s[28:31]", "s[32:35]", "s[36:39]"
    M = lambda u: f"s[{40+2*u}:{41+2*u}]"
    tsn = [0]; gen.names = []
    DEFST = ["start", "Bb", "Bc1", "Bc", "Bx", "keys", "pollP", "Bd", "Be", "Bf", "loop0", "loop1", "Bg", "end"]
    def stamp(name):
        if P.get("hold_at") == name:
            a(f"s_waitcnt lgkmcnt(0)\ns_add_u32 s70, s70, {P['hold_x']}\nK_HOLDP:\ns_memrealtime s[68:69]\ns_waitcnt lgkmcnt(0)\ns_sub_u32 s68, s68, s70\ns_cmp_lt_i32 s68, 0\ns_cbranch_scc1 K_HOLDP")
        if P.get("ts") and name in P.get("stamps", DEFST):
            gen.names.append(name)
            r = 70 + 2 * tsn[0]; a(f"s_memrealtime s[{r}:{r+1}]"); tsn[0] += 1

    a(f".globl {NAME}\n.p2align 8\n.type {NAME},@function\n{NAME}:")
    a(f"s_cmp_ge_u32 s2, {NB}\ns_cbranch_scc1 K_END")
    a("s_load_dwordx16 s[4:19], s[0:1], 0\ns_load_dwordx2 s[20:21], s[0:1], 64\ns_load_dwordx2 s[24:25], s[0:1], 80")
    stamp("start")
    if P.get("hold_at"): a("s_memrealtime s[70:71]")
    D, S, Y, F, B4, RK1 = TP, TP + 4, TP + 8, TP + 16, TP + 24, TP + 28
    KY, t, tmp, KG = XR, XR + 4, XR + 8, XR + 10
    la = P.get("load_aux", "")
    a("v_lshrrev_b32 v2, 6, v0\nv_and_b32 v1, 63, v0\nv_readfirstlane_b32 s3, v2")
    a(f"v_lshlrev_b32 v10, 4, v0\ns_mul_i32 s57, s2, {CH*4}\nv_lshlrev_b32 v3, 2, v0")
    if P.get("pfcode0", 1):
        a(f"s_cmp_lg_u32 s3, 5\ns_cbranch_scc1 K_PF0\ns_getpc_b64 s[26:27]\nK_PC3:\nv_lshlrev_b32 v13, 7, v1\nglobal_load_dword v255, v13, s[26:27]")
        a(f"v_add_u32 v13, 8192, v13\nv_min_u32 v13, K_TAB-K_PC3, v13\nglobal_load_dword v255, v13, s[26:27]\nK_PF0:")
    a("v_or_b32 v13, 0x4b000000, v1\ns_cmp_eq_u32 s3, 2\ns_cselect_b32 s56, -1, 0")
    a("v_add_u32 v11, s57, v10\nv_and_b32 v13, s56, v13\nv_lshlrev_b32 v12, 1, v11")
    a("ds_write_b32 v3, v13")
    a(f"s_cmp_lt_u32 s2, {NP}\ns_cselect_b32 s56, 5, 0\ns_cmp_lt_u32 {sW}, s56")
    stamp("prek")
    a("s_waitcnt lgkmcnt(0)")
    stamp("karg")
    def setup0():
        a(f"s_load_dword {sTag}, s[24:25], {WS_EPO}")
        for k in range(4, 8): a(f"v_mov_b32 v{k}, 0")
        a(f"v_add_u32 v8, {L_MARK}, v10\nv_lshlrev_b32 v9, 4, v1\nv_lshlrev_b32 v15, 2, v1")
        a(f"ds_write_b128 v8, v[4:7]\nds_write_b32 v3, v4 offset:{L_PROG}")
        a(f"s_and_b32 {sBin}, s2, 7\ns_lshr_b32 s56, s2, 3\ns_lshl_b32 {sBin}, {sBin}, 5\ns_or_b32 {sBin}, {sBin}, s56")
    def setup():
        a(f"s_mul_i32 {sNs}, {sBin}, 625\ns_add_u32 s57, {sNs}, 640\ns_add_u32 {sNs}, {sNs}, 15\ns_lshr_b32 {sNs}, {sNs}, 4\ns_lshr_b32 s57, s57, 4")
        if SAFE: a("s_mov_b32 s28, s4\ns_mov_b32 s29, s5\ns_mov_b32 s30, 10240000\ns_mov_b32 s31, 0x20000")
        else: a("s_mov_b32 s28, s4\ns_and_b32 s29, s5, 0xffff\ns_or_b32 s29, s29, 0x100000\ns_mov_b32 s30, 10240000\ns_mov_b32 s31, 0x800000")
        a("s_mov_b32 s32, s20\ns_mov_b32 s33, s21\ns_lshl_b32 s34, s57, 10\ns_mov_b32 s35, 0x20000")
        a(f"s_mov_b32 s36, s24\ns_mov_b32 s37, s25\ns_mov_b32 s38, {WS_END}\ns_mov_b32 s39, 0x20000")
        a(f"s_mov_b32 {sRB}, 0\ns_mov_b32 s63, 0\nv_mov_b32 v14, 1")
        a(f"s_lshr_b32 {sRot}, {sBin}, 5\ns_mul_i32 {sRot}, {sRot}, 20009\ns_add_u32 {sRot}, {sRot}, 14\ns_lshr_b32 {sRot}, {sRot}, 4\ns_lshl_b32 {sRot}, {sRot}, 10")
        for k in range(40): a(f"v_mov_b32 v{ACC+k}, 0")
    def keycalc(Dr, Br, Kr, tm):
        a(f"v_mul_u32_u24 v{tm}, 625, v{Br}\nv_add_u32 v{tm}, 15, v{tm}\nv_lshrrev_b32 v{tm}, 4, v{tm}\nv_sub_u32 v{Kr}, v{Dr}, v{tm}")
    def keycalc2(Sr, Kr, tm):
        a(f"v_mul_u32_u24 v{tm}, 1677, v{Sr}\nv_lshrrev_b32 v{tm}, 20, v{tm}\nv_lshl_or_b32 v{Kr}, v{Kr}, 4, v{tm}\nv_lshl_or_b32 v{Kr}, v{Sr}, 10, v{Kr}")
    a("s_cbranch_scc0 K_BA")
    a(f"global_load_dwordx4 v[{D}:{D+3}], v11, s[8:9] {la}")
    if P.get("sfirst", 1): a(f"global_load_dwordx4 v[{S}:{S+3}], v11, s[6:7] {la}")
    a("K_BA:\ns_barrier\ns_cbranch_scc0 K_HELP")
    if not P.get("sfirst", 1): a(f"global_load_dwordx4 v[{S}:{S+3}], v11, s[6:7] {la}")
    for i in range(P.get("ydelay", 0)): a("s_nop 15")
    for h in range(2): a(f"global_load_dwordx4 v[{Y+4*h}:{Y+4*h+3}], v12, s[10:11] offset:{16*h} {la}")
    for h in range(2): a(f"global_load_dwordx4 v[{F+4*h}:{F+4*h+3}], v12, s[12:13] offset:{16*h} {la}")
    stamp("ldiss")
    a(f"s_mov_b32 {sRole}, 1")
    setup0(); setup()
    stamp("setup")
    a("s_waitcnt vmcnt(5)")
    stamp("dst")
    for u in range(4):
        a(f"v_mul_u32_u24 v{t+u}, 214749, v{D+u}\nv_lshrrev_b32 v{t+u}, 23, v{t+u}\nv_lshlrev_b32 v{B4+u}, 2, v{t+u}")
        a(f"ds_add_rtn_u32 v{RK1+u}, v{B4+u}, v14 offset:{L_HCNT}")
    for u in range(4): keycalc(D+u, t+u, KY+u, tmp)
    a("s_branch K_BB")
    a(f"K_HELP:\ns_mov_b32 {sRole}, 0")
    setup0()
    if P.get("pfcode"):
        a(f"s_cmp_lg_u32 {sW}, 5\ns_cbranch_scc1 K_HELP1\ns_getpc_b64 s[26:27]\nK_PC2:\nv_lshlrev_b32 v13, 7, v1\nglobal_load_dword v255, v13, s[26:27]")
        a(f"v_add_u32 v13, 8192, v13\nv_min_u32 v13, K_TAB-K_PC2, v13\nglobal_load_dword v255, v13, s[26:27]\nK_HELP1:")
    a(f"s_cmp_eq_u32 {sW}, 7\ns_cbranch_scc1 K_HELP7\ns_cmp_lg_u32 {sW}, 6\ns_cbranch_scc1 K_HELP2")
    a(f"s_and_b32 s56, {sBin}, 31\ns_lshl_b32 s56, s56, 10\nv_lshl_add_u32 v13, v1, 7, s56\ns_mov_b64 exec, 0xff")
    a("global_load_dword v255, v13, s[18:19]\ns_mov_b64 exec, -1\ns_branch K_HELP2\nK_HELP7:")
    a(f"s_mov_b32 m0, {L_WR}\ns_getpc_b64 s[26:27]\nK_PC:\nglobal_load_lds_dwordx4 v9, s[14:15]")
    a(f"s_add_u32 s26, s26, K_TAB-K_PC\ns_addc_u32 s27, s27, 0\ns_mov_b32 m0, {L_CG}\ns_mov_b64 exec, 0xff\nglobal_load_lds_dwordx4 v9, s[16:17]")
    a(f"s_mov_b32 m0, {L_MAP}\ns_nop 0\nglobal_load_lds_dwordx4 v9, s[26:27]\ns_mov_b64 exec, -1")
    a("K_HELP2:")
    setup()
    a("K_BB:\ns_waitcnt lgkmcnt(0)\ns_barrier")
    stamp("Bb")
    c = TA; q = TB
    a(f"s_add_u32 {sTag}, {sTag}, 1\ns_and_b32 s56, {sTag}, 0x3ff\ns_lshl_b32 s58, s56, 22\ns_lshl_b32 {sT8}, {sTag}, 24")
    a(f"s_cmp_eq_u32 {sW}, 7\ns_cselect_b32 s56, 1, {sRole}\ns_cmp_eq_u32 s56, 0\ns_cbranch_scc1 K_BC1")
    a(f"ds_read_b128 v[{c}:{c+3}], v9 offset:{L_HCNT}")
    a(f"s_cmp_eq_u32 {sW}, 7\ns_cbranch_scc1 K_SC\ns_waitcnt vmcnt(4)")
    for u in range(4): keycalc2(S+u, KY+u, t+u)
    a("K_SC:\ns_waitcnt lgkmcnt(0)")
    a(f"v_add_u32 v{c+4}, v{c}, v{c+1}\nv_add_u32 v{c+5}, v{c+4}, v{c+2}\nv_add_u32 v{c+6}, v{c+5}, v{c+3}\nv_mov_b32 v{q}, v{c+6}")
    fill = [x for u in range(4) for x in (f"v_or_b32 v{KG+2*u}, {sT8}, v{KY+u}", f"v_mov_b32 v{KG+2*u+1}, {sTag}")]
    for k in range(6):
        for x in fill[2*k:2*k+2]: a(x)
        a(f"v_add_u32_dpp v{q}, v{q}, v{q} {DPP[k]}")
    a(f"v_sub_u32 v{q}, v{q}, v{c+6}\nv_add_u32 v{q+1}, v{q}, v{c}\nv_add_u32 v{q+2}, v{q}, v{c+4}\nv_add_u32 v{q+3}, v{q}, v{c+5}")
    a(f"s_cmp_lg_u32 {sW}, 7\ns_cbranch_scc1 K_NOROW")
    g = EE
    for i in range(4):
        a(f"v_lshl_or_b32 v{g+2*i}, v{c+i}, 11, v{q+i}\nv_or_b32 v{g+2*i}, s58, v{g+2*i}\nv_mov_b32 v{g+2*i+1}, {sTag}")
    a(f"s_lshl_b32 s57, s2, 11\ns_add_u32 s57, s57, {WS_TAB}\nv_lshlrev_b32 v12, 5, v1")
    a(f"buffer_store_dwordx4 v[{g}:{g+3}], v12, {WSR}, s57 offen sc1\nbuffer_store_dwordx4 v[{g+4}:{g+7}], v12, {WSR}, s57 offen offset:16 sc1")
    a("s_branch K_BC1\nK_NOROW:")
    a(f"ds_write_b128 v9, v[{q}:{q+3}] offset:{L_PRE}")
    for u in range(4): a(f"ds_read_b32 v{t+u}, v{B4+u} offset:{L_PRE}")
    for u in range(4):
        a(f"s_waitcnt lgkmcnt(3)\nv_add_lshl_u32 v{B4+u}, v{t+u}, v{RK1+u}, 3")
        a(f"ds_write_b64 v{B4+u}, v[{KG+2*u}:{KG+2*u+1}] offset:{L_SKEY}")
    a(f"s_mov_b32 s56, {L_SPAY}")
    for u in range(4): a(f"v_lshl_add_u32 v{B4+u}, v{B4+u}, 1, s56")
    a("K_BC1:")
    a(f"s_mul_i32 s60, s2, {CH*8}\ns_add_u32 s60, s60, {WS_KEY}")
    a(f"s_sub_u32 s56, {sW}, 5\ns_lshl_b32 s57, s56, 14\nv_add_u32 v13, s57, v9\ns_add_u32 s57, s57, {L_WM}")
    a("s_waitcnt lgkmcnt(0)\ns_barrier")
    stamp("Bc1")
    o = XR + 20
    a(f"s_cmp_ge_u32 s2, {NP}\ns_cbranch_scc1 K_KS2")
    a(f"ds_read_b128 v[{o}:{o+3}], v10 offset:{L_SKEY}")
    a(f"s_cmp_lt_u32 s56, 2\ns_cbranch_scc0 K_KS1")
    a(f"ds_read_b128 v[{o+4}:{o+7}], v10 offset:{L_SKEY + 8192 - 5120}\ns_add_u32 s59, s60, {8192 - 5120}")
    a(f"s_waitcnt lgkmcnt(0)\nbuffer_store_dwordx4 v[{o+4}:{o+7}], v10, {WSR}, s59 offen sc1")
    a(f"K_KS1:\ns_waitcnt lgkmcnt(0)\nbuffer_store_dwordx4 v[{o}:{o+3}], v10, {WSR}, s60 offen sc1")
    a(f"K_KS2:\ns_cmp_lt_u32 s56, 2\ns_cbranch_scc1 K_DMA\ns_cmp_eq_u32 {sRole}, 0\ns_cbranch_scc1 K_BC7")
    for h in range(2):
        a(f"s_waitcnt vmcnt({2 - h})")
        for u in (2*h, 2*h+1): a(f"ds_write2_b64 v{B4+u}, v[{Y+2*u}:{Y+2*u+1}], v[{F+2*u}:{F+2*u+1}] offset0:0 offset1:1")
    a("s_branch K_BC\nK_DMA:")
    for gidx in range(4):
        a("s_mov_b32 m0, s57\ns_add_u32 s57, s57, 4096")
        for i in range(4): a(f"global_load_lds_dwordx4 v13, s[18:19] offset:{i*1024}")
        if gidx < 3: a("v_add_u32 v13, 4096, v13")
    a(f"s_branch K_BC\nK_BC7:\ns_cmp_ge_u32 s2, {NP}\ns_cbranch_scc0 K_BC8\ns_waitcnt vmcnt(2)\nK_BC8:\ns_waitcnt vmcnt(3)")
    a("K_BC:")
    a(f"s_mul_i32 s56, s2, {CH*16}\ns_add_u32 s56, s56, {WS_PAY}\ns_add_u32 s57, s56, 8192\ns_add_u32 s59, s56, 16384")
    a(f"v_lshlrev_b32 v11, 11, v0\ns_lshl_b32 s61, {sBin}, 3\ns_add_u32 s61, s61, {WS_TAB}")
    a("s_waitcnt lgkmcnt(0)\ns_barrier")
    stamp("Bc")
    o = XR
    a(f"s_cmp_ge_u32 s2, {NP}\ns_cbranch_scc1 K_NOST")
    for u in range(2): a(f"ds_read_b128 v[{o+4*u}:{o+4*u+3}], v10 offset:{L_SPAY + 8192*u}")
    a(f"s_cmp_ge_u32 {sW}, 4\ns_cbranch_scc1 K_ST1")
    a(f"ds_read_b128 v[{o+8}:{o+11}], v10 offset:{L_SPAY + 16384}")
    a(f"s_waitcnt lgkmcnt(0)\nbuffer_store_dwordx4 v[{o+8}:{o+11}], v10, {WSR}, s59 offen sc1")
    a(f"K_ST1:\ns_waitcnt lgkmcnt(1)\nbuffer_store_dwordx4 v[{o}:{o+3}], v10, {WSR}, s56 offen sc1")
    a(f"s_waitcnt lgkmcnt(0)\nbuffer_store_dwordx4 v[{o+4}:{o+7}], v10, {WSR}, s57 offen sc1")
    a("K_NOST:")
    RW, RC, RM = OFFS, NODE, TP
    a(f"s_lshr_b32 s56, s34, 10\ns_sub_u32 s56, s56, {sNs}\ns_sub_u32 s56, s56, 39\ns_lshl_b32 s56, s56, 6\ns_add_u32 s56, s56, {L_MAP}")
    a(f"v_add_u32 v2, s56, v1\nv_add_u32 v13, {L_WR}, v15\nds_read_u8 v2, v2")
    a(f"ds_read2st64_b32 v[{RW}:{RW+1}], v13 offset0:0 offset1:1\nds_read2st64_b32 v[{RW+2}:{RW+3}], v13 offset0:2 offset1:3")
    a(f"v_and_b32 v12, 3, v1\nv_lshlrev_b32 v12, 5, v12\nv_bfe_u32 v13, v1, 2, 2\nv_lshl_or_b32 v12, v13, 1, v12\nv_add_u32 v12, {L_CG}, v12")
    for f_ in range(4): a(f"ds_read_u16 v{RC+f_}, v12 offset:{f_*8}")
    a(f"v_mov_b32 v{vPm}, v3\nv_xor_b32 v{vPo}, 1024, v3\nv_mul_u32_u24 v{AOP+1}, {FS}, v0")
    a(f"s_mov_b32 s56, {f32(-LOG2E)}\ns_waitcnt lgkmcnt(0)")
    w = TP + 16
    for h in range(2):
        for k in range(4):
            a(f"v_lshlrev_b32 v{w+k}, 16, v{RW+k}" if h == 0 else f"v_and_b32 v{w+k}, 0xffff0000, v{RW+k}")
            a(f"v_mul_f32 v{w+4+k}, s56, v{w+k}")
        oo = WF + 4*h
        a(f"v_cvt_pk_bf16_f32 v{oo}, v{w+4}, v{w+5}\nv_cvt_pk_bf16_f32 v{oo+1}, v{w+6}, v{w+7}")
        for k in range(4):
            a(f"v_lshlrev_b32 v{w+4+k}, 16, v{oo + k//2}" if k % 2 == 0 else f"v_and_b32 v{w+4+k}, 0xffff0000, v{oo + k//2}")
            a(f"v_fma_f32 v{w+4+k}, s56, v{w+k}, -v{w+4+k}")
        a(f"v_cvt_pk_bf16_f32 v{oo+2}, v{w+4}, v{w+5}\nv_cvt_pk_bf16_f32 v{oo+3}, v{w+6}, v{w+7}")
    a(f"v_lshl_or_b32 v{w}, v{RC+1}, 16, v{RC}\nv_lshl_or_b32 v{w+1}, v{RC+3}, 16, v{RC+2}\nv_lshrrev_b32 v13, 4, v1")
    for gg in range(4):
        a(f"v_cmp_eq_u32 vcc, {gg}, v13")
        a(f"v_cndmask_b32 v{CGF+2*gg}, 0, v{w}, vcc\nv_cndmask_b32 v{CGF+2*gg+1}, 0, v{w+1}, vcc")
    a(f"v_mul_u32_u24 v13, {4*CH}, v1")
    def wmextract():
        a(f"s_and_b32 s56, {sW}, 3\ns_lshl_b32 s56, s56, 6\ns_add_u32 s56, s56, {L_WM}")
        a("v_lshrrev_b32 v10, 4, v1\nv_lshlrev_b32 v10, 11, v10\nv_and_b32 v12, 15, v1\nv_lshl_or_b32 v10, v12, 2, v10\nv_add_u32 v10, s56, v10")
        a("s_mov_b32 s56, 0x05040100\ns_mov_b32 s57, 0x07060302")
        for ks in range(4):
            for i in range(4): a(f"ds_read2st64_b32 v[{RM+8*ks+2*i}:{RM+8*ks+2*i+1}], v10 offset0:{32*ks+2*i} offset1:{32*ks+2*i+1}")
        for ks in range(4):
            for i in range(4):
                a(f"s_waitcnt lgkmcnt({15 - 4*ks - i})")
                a(f"v_perm_b32 v{BF+4*ks+i}, v{RM+8*ks+2*i+1}, v{RM+8*ks+2*i}, s56")
                a(f"v_perm_b32 v{BF+16+4*ks+i}, v{RM+8*ks+2*i+1}, v{RM+8*ks+2*i}, s57")
    a(f"s_cmp_ge_u32 {sW}, 4\ns_cbranch_scc1 K_TABOK")
    a(f"s_mov_b32 s59, {P.get('timeout', 40000)}\ns_lshr_b32 s58, s58, 22")
    a(f"K_POLLA:\nbuffer_load_dwordx2 v[{TA}:{TA+1}], v11, {WSR}, s61 offen sc1\ns_waitcnt vmcnt(0)")
    a(f"v_lshrrev_b32 v{TA+2}, 22, v{TA}\nv_cmp_ne_u32 vcc, {sTag}, v{TA+1}\nv_cmp_ne_u32 s[56:57], s58, v{TA+2}\ns_or_b64 vcc, vcc, s[56:57]")
    if P.get("force_fb"): a("s_mov_b64 vcc, -1")
    a("s_cbranch_vccz K_POLLAOK")
    a(f"s_sub_u32 s59, s59, 1\ns_cbranch_scc0 K_POLLA")
    a(f"ds_write_b32 v4, v14 offset:{L_FB}")
    a(f"K_POLLAOK:\nds_write_b32 v3, v{TA} offset:{L_TABL}")
    a("K_TABOK:\ns_waitcnt vmcnt(0) lgkmcnt(0)\ns_barrier")
    stamp("Bx")
    a(f"s_cmp_lg_u32 {sW}, 4\ns_cbranch_scc1 K_NOFLAG")
    a(f"s_mul_i32 s56, s2, {FS}\ns_add_u32 s56, s56, {WS_FLG}\nv_mov_b32 v10, {sTag}\ns_mov_b64 exec, 1")
    a(f"buffer_store_dword v10, v4, {WSR}, s56 offen sc1\ns_mov_b64 exec, -1\nK_NOFLAG:")
    a(f"ds_read_b128 v[{TP}:{TP+3}], v9 offset:{L_TABL}\nds_read_b32 v10, v4 offset:{L_FB}")
    a("s_waitcnt lgkmcnt(0)")
    a(f"v_readfirstlane_b32 {sFB}, v10")
    c = TP + 4; p = TP + 8
    for i in range(4): a(f"v_bfe_u32 v{c+i}, v{TP+i}, 11, 11")
    a(f"v_add_u32 v{p+1}, v{c}, v{c+1}\nv_add_u32 v{p+2}, v{p+1}, v{c+2}\nv_add_u32 v{p+3}, v{p+2}, v{c+3}\nv_mov_b32 v{p+4}, v{p+3}")
    fill = []
    for i in range(4):
        fill.append(f"v_and_b32 v{TP+i}, 0x7ff, v{TP+i}")
        fill.append(f"v_add_u32 v{PD+i}, v13, v{TP+i}")
        if i: fill.append(f"v_add_u32 v{PD+i}, {i*CH}, v{PD+i}")
    for k in range(6):
        for x in fill[2*k:2*k+2]: a(x)
        a(f"v_add_u32_dpp v{p+4}, v{p+4}, v{p+4} {DPP[k]}")
    a(f"s_cmp_lg_u32 {sFB}, 0\ns_cbranch_scc1 K_FB0")
    a(f"v_readlane_b32 {sT}, v{p+4}, 63")
    a(f"v_sub_u32 v{PP}, v{p+4}, v{p+3}")
    a(f"v_add_u32 v{PP+1}, v{PP}, v{c}\nv_add_u32 v{PP+2}, v{PP}, v{p+1}\nv_add_u32 v{PP+3}, v{PP}, v{p+2}")
    for i in range(4):
        a(f"v_sub_u32 v{PD+i}, v{PD+i}, v{PP+i}\nv_add_u32 v{PL+i}, v{PP+i}, v{c+i}")
    m = XR; f = m + 12; KEY = m + 16; RK = m + 22; ad = m + 25; CD = m + 28; PAYR = m + 32; PA = m + 44; CI = m + 47; q = m + 52
    FL = AOP
    a("K_ROUND:")
    a(f"s_mul_i32 s56, {sW}, {CAPW}\ns_add_u32 s56, s56, {sRB}\ns_add_u32 s57, s56, {CAPW}")
    a(f"s_lshl_b32 s58, {sW}, 10\ns_add_u32 s58, s58, {L_MARK}")
    for i in range(4):
        a(f"v_cmp_lt_u32 vcc, s56, v{PL+i}\nv_cmp_gt_u32 s[60:61], s57, v{PP+i}")
        a(f"v_subrev_u32 v{m+i}, s56, v{PP+i}\nv_max_i32 v{m+i}, 0, v{m+i}\nv_lshl_add_u32 v{m+i}, v{m+i}, 2, s58")
        a(f"s_and_b64 exec, vcc, s[60:61]\nds_max_u32 v{m+i}, v{PD+i}\ns_mov_b64 exec, -1")
    a(f"v_add_u32 v{m+4}, s58, v15")
    for u in range(3): a(f"ds_read_b32 v{m+8+u}, v{m+4} offset:{u*256}")
    a(f"v_add_u32 v{f}, s56, v1\nv_add_u32 v{f+1}, 64, v{f}\nv_add_u32 v{f+2}, 128, v{f}")
    for u in range(3): a(f"v_cmp_gt_u32 {M(u)}, {sT}, v{f+u}")
    a(f"s_mov_b32 s60, {WS_KEY}\ns_mov_b32 s61, {WS_PAY}\ns_lshr_b32 s62, {sT8}, 24")
    a("s_waitcnt lgkmcnt(0)")
    scan_incl(a, "v_max_u32", [m+8, m+9, m+10])
    a(f"v_readlane_b32 s56, v{m+8}, 63\nv_readlane_b32 s57, v{m+9}, 63\nv_add_u32 v{f}, v{f}, v{m+8}")
    a(f"s_max_u32 s57, s56, s57")
    a(f"v_max_u32 v{m+9}, s56, v{m+9}\nv_max_u32 v{m+10}, s57, v{m+10}")
    a(f"v_add_u32 v{f+1}, v{f+1}, v{m+9}\nv_add_u32 v{f+2}, v{f+2}, v{m+10}")
    for u in range(3): a(f"v_lshlrev_b32 v{ad+u}, 3, v{f+u}")
    stamp("marks")
    def keyloads():
        for u in range(3):
            a(f"s_mov_b64 exec, {M(u)}\nbuffer_load_dwordx2 v[{KEY+2*u}:{KEY+2*u+1}], v{ad+u}, {WSR}, s60 offen sc1")
        a("s_mov_b64 exec, -1")
    keyloads()
    for u in range(3): a(f"v_lshlrev_b32 v{PA+u}, 4, v{f+u}")
    a(f"s_cmp_lg_u32 {sRB}, 0\ns_cbranch_scc1 K_KEYS1")
    TWO = P.get("two", 0); M2 = lambda u: ("s[0:1]", "s[20:21]", "s[22:23]")[u]
    if TWO:
        for u in range(3): a(f"v_lshrrev_b32 v{f+u}, 8, v{f+u}\nv_mul_u32_u24 v{f+u}, 52429, v{f+u}\nv_lshrrev_b32 v{f+u}, 18, v{f+u}\nv_lshlrev_b32 v{f+u}, 2, v{f+u}")
    wmextract()
    stamp("wmx")
    a("s_branch K_KEYS1\nK_KEYS:")
    keyloads()
    a(f"K_KEYS1:\nv_mov_b32 v14, 64\ns_mov_b64 s[58:59], 0")
    for u in range(3):
        a(f"s_waitcnt vmcnt({2-u})")
        a(f"v_lshrrev_b32 v{RK+u}, 24, v{KEY+2*u}\nv_cmp_ne_u32 vcc, {sTag}, v{KEY+2*u+1}\nv_cmp_ne_u32 s[56:57], s62, v{RK+u}")
        a(f"s_or_b64 vcc, vcc, s[56:57]\ns_and_b64 vcc, vcc, {M(u)}\ns_or_b64 s[58:59], s[58:59], vcc")
    a("s_cbranch_scc1 K_KEYS")
    stamp("keys")
    def payloads():
        for u in range(3):
            a(f"s_mov_b64 exec, {M(u)}\nbuffer_load_dwordx4 v[{PAYR+4*u}:{PAYR+4*u+3}], v{PA+u}, {WSR}, s61 offen sc1")
        a("s_mov_b64 exec, -1")
    a(f"s_cmp_lg_u32 {sRB}, 0\ns_cbranch_scc1 K_LATER")
    a(f"s_mov_b32 s62, {WS_FLG}\ns_cmp_lt_u32 {sW}, 4\ns_cbranch_scc0 K_GOT\nbuffer_load_dword v{FL}, v{FL+1}, {WSR}, s62 offen sc1")
    a("K_GOT:")
    for u in range(3):
        a(f"v_lshrrev_b32 v{ad+u}, 2, v{KEY+2*u}\nv_and_b32 v{ad+u}, 0xfc, v{ad+u}")
    for u in range(3): a(f"s_mov_b64 exec, {M(u)}\nds_add_u32 v{ad+u}, v14 offset:{L_DEG}")
    a("s_mov_b64 exec, -1")
    def pfetch(lab, n=None, first=None):
        n = n or P["pf"]
        first = P.get("pfk", 0) if first is None else first
        a(f"s_cmp_lt_u32 {sW}, {8-n}\ns_cbranch_scc1 {lab}")
        a("s_mov_b32 s64, s4\ns_mov_b32 s65, s5\ns_mov_b32 s66, 10240000\ns_mov_b32 s67, 0x20000")
        a(f"s_sub_u32 s68, {7 + first}, {sW}\ns_lshl_b32 s68, s68, 5\ns_and_b32 s69, {sBin}, 31\ns_add_u32 s68, s68, s69\ns_lshl_b32 s68, s68, 13\ns_add_u32 s68, s68, {sRot}")
        a(f"v_lshlrev_b32 v13, 7, v1\nbuffer_load_dword v255, v13, s[64:67], s68 offen")
    if P.get("pfk"):
        pfetch("K_NOPFK", P["pfk"], 0); a("K_NOPFK:")
    a(f"s_lshr_b32 s56, {sW}, 2\ns_or_b32 s56, s56, {sFB}\ns_cbranch_scc1 K_POLLBOK")
    if not TWO:
        a(f"K_POLLB:\ns_waitcnt vmcnt(0)\nv_cmp_ne_u32 vcc, {sTag}, v{FL}\ns_cbranch_vccz K_POLLBOK")
        a(f"buffer_load_dword v{FL}, v{FL+1}, {WSR}, s62 offen sc1\ns_branch K_POLLB")
        a("K_POLLBOK:\ns_waitcnt lgkmcnt(0)")
        stamp("pollP")
        a("s_barrier")
        stamp("Bd")
        a(f"s_cmp_lg_u32 {sFB}, 0\ns_cbranch_scc1 K_NOPF")
        payloads()
        if P["pf"]: pfetch("K_NOPF")
        a("K_NOPF:")
    else:
        a(f"s_waitcnt vmcnt(0)\nds_write_b32 v3, v{FL} offset:{L_PRE}")
        a("K_POLLBOK:\ns_waitcnt lgkmcnt(0)")
        stamp("pollP")
        a("s_barrier")
        stamp("Bd")
        a(f"s_cmp_lg_u32 {sFB}, 0\ns_cbranch_scc1 K_NOPF")
        for u in range(3): a(f"ds_read_b32 v{f+u}, v{f+u} offset:{L_PRE}")
        for u in range(3):
            a(f"s_waitcnt lgkmcnt({2-u})\nv_cmp_eq_u32 vcc, {sTag}, v{f+u}\ns_andn2_b64 {M2(u)}, {M(u)}, vcc\ns_and_b64 exec, {M(u)}, vcc")
            a(f"buffer_load_dwordx4 v[{PAYR+4*u}:{PAYR+4*u+3}], v{PA+u}, {WSR}, s61 offen sc1\ns_mov_b64 exec, -1")
        a(f"s_cmp_lt_u32 {sW}, 4\ns_cbranch_scc0 K_NOPF\nv_cmp_ne_u32 vcc, {sTag}, v{FL}\ns_cbranch_vccz K_NOPF\nbuffer_load_dword v{FL}, v{FL+1}, {WSR}, s62 offen sc1\ns_mov_b32 s63, 1")
        a("K_NOPF:")
    KK = TP; MI = EE
    a(f"ds_read_b32 v{MI}, v15 offset:{L_DEG}")
    for jj in range(10): a(f"ds_read_b128 v[{KK+4*jj}:{KK+4*jj+3}], v4 offset:{L_DEG+16*jj}")
    a("v_cmp_gt_u32 vcc, 40, v1")
    for jj in range(20):
        if jj % 2 == 0: a(f"s_waitcnt lgkmcnt({9 - jj//2})")
        tt = KK + 2*jj
        a(f"v_pk_add_f32 v[{tt}:{tt+1}], v[{tt}:{tt+1}], v[{MI}:{MI+1}] op_sel_hi:[1,0] neg_lo:[0,1] neg_hi:[0,1] clamp")
        if jj >= 2: a(f"v_pk_add_f32 v[{tt}:{tt+1}], v[{tt}:{tt+1}], v[{tt-4}:{tt-3}]")
    tt = KK + 38
    a(f"v_pk_add_f32 v[{tt}:{tt+1}], v[{tt}:{tt+1}], v[{tt-2}:{tt-1}]")
    a(f"v_add_f32 v{tt}, v{tt}, v{tt+1}\nv_cvt_u32_f32 v{tt}, v{tt}\nv_lshlrev_b32 v{tt}, 2, v{tt}")
    a(f"ds_bpermute_b32 v2, v{tt}, v2\ns_waitcnt lgkmcnt(0)\nv_cndmask_b32 v2, -1, v2, vcc")
    a("K_BAL:")
    for u in range(3): a(f"ds_bpermute_b32 v{CD+u}, v{ad+u}, v2")
    a("v_mov_b32 v14, 1\nv_lshlrev_b32 v10, 3, v1")
    a(f"s_lshr_b32 s56, {sBin}, 4\ns_and_b32 s56, s56, 14")
    for u in range(3): a(f"v_subrev_u32 v{CI+u}, s56, v{KEY+2*u}\nv_and_b32 v{CI+u}, {P.get('bmask', 15)}, v{CI+u}")
    for u in range(3):
        a(f"s_waitcnt lgkmcnt(2)\ns_mov_b64 exec, {M(u)}")
        a(f"v_and_b32 v{ad+u}, 7, v{CD+u}\nv_lshl_or_b32 v{CI+u}, v{ad+u}, 4, v{CI+u}\nv_lshlrev_b32 v{ad+u}, 2, v{CI+u}")
        a(f"ds_add_rtn_u32 v{RK+u}, v{ad+u}, v14 offset:{L_CNT}")
    a("s_mov_b64 exec, -1")
    for u in range(3):
        a(f"v_lshlrev_b32 v{ad+u}, 1, v{CI+u}\nv_lshlrev_b32 v{CI+u}, 4, v{CI+u}")
        a(f"v_and_b32 v{CD+u}, 0x38, v{CD+u}\nv_and_b32 v{KEY+2*u}, {P.get('xmask', 0xfffc00)}, v{KEY+2*u}")
    a(f"s_lshl_b32 s56, {sW}, 3\ns_add_u32 s57, s56, 7")
    a(f"v_lshrrev_b32 v{q+6}, 3, v1\nv_mul_u32_u24 v{q+6}, 48, v{q+6}")
    if TWO:
        a("s_cmp_eq_u32 s63, 0\ns_mov_b32 s63, 0\ns_cbranch_scc1 K_POLLCOK")
        a(f"K_POLLC:\ns_waitcnt vmcnt(0)\nv_cmp_ne_u32 vcc, {sTag}, v{FL}\ns_cbranch_vccz K_POLLCOK")
        a(f"buffer_load_dword v{FL}, v{FL+1}, {WSR}, s62 offen sc1\ns_branch K_POLLC\nK_POLLCOK:")
    a("s_waitcnt lgkmcnt(0)\ns_barrier")
    stamp("Be")
    a(f"ds_read_b64 v[{q}:{q+1}], v10 offset:{L_CNT}")
    if TWO:
        a(f"s_or_b32 s58, {sFB}, {sRB}\ns_cbranch_scc1 K_NOREST")
        a(f"s_or_b64 s[58:59], {M2(0)}, {M2(1)}\ns_or_b64 s[58:59], s[58:59], {M2(2)}\ns_cbranch_scc0 K_NOREST1")
        for u in range(3):
            a(f"s_mov_b64 exec, {M2(u)}\nbuffer_load_dwordx4 v[{PAYR+4*u}:{PAYR+4*u+3}], v{PA+u}, {WSR}, s61 offen sc1")
        a("s_mov_b64 exec, -1\nK_NOREST1:")
        if P["pf"]: pfetch("K_NOREST")
        a("K_NOREST:")
    a(f"s_sub_u32 s58, {sRot}, 1024\ns_cselect_b32 s58, {(N-1)*1024}, s58")
    a("s_waitcnt lgkmcnt(0)")
    a(f"v_add_u32 v{q+2}, v{q}, v{q+1}\nv_mov_b32 v{q+3}, v{q+2}")
    fill = ["v_and_b32 v12, 15, v1", "v_lshrrev_b32 v11, 4, v1", "v_lshlrev_b32 v11, 3, v11", "v_lshl_add_u32 v11, v12, 5, v11",
            f"v_mov_b32 v{q+7}, s58", f"v_mov_b32 v{vPv}, 0"]
    for k in range(6):
        for x in fill[2*k:2*k+2]: a(x)
        a(f"v_add_u32_dpp v{q+3}, v{q+3}, v{q+3} {DPP[k]}")
    a(f"v_sub_u32 v{q+2}, v{q+3}, v{q+2}")
    a(f"v_readlane_b32 {sLen}, v{q+3}, s57")
    a(f"v_mov_b32_dpp v{q+4}, v{q+2} row_newbcast:0 row_mask:0xf bank_mask:0x3")
    a(f"v_readlane_b32 s58, v{q+2}, s56")
    a(f"v_mov_b32_dpp v{q+4}, v{q+2} row_newbcast:8 row_mask:0xf bank_mask:0xc")
    a(f"v_add_u32 v{q+5}, 15, v{q+4}\nv_and_b32 v{q+5}, -16, v{q+5}\nv_add_u32 v{q+5}, v{q+5}, v{q+6}")
    a(f"v_sub_u32 v{q+4}, v{q+5}, v{q+4}\nv_add_u32 v{q+4}, v{q+4}, v{q+2}")
    a(f"v_add_u32 v{q}, v{q+4}, v{q}\nv_lshl_or_b32 v{q}, v{q}, 16, v{q+4}")
    a(f"v_readlane_b32 {sBase}, v{q+5}, s56")
    for u in range(3): a(f"ds_bpermute_b32 v{ad+u}, v{ad+u}, v{q}")
    a(f"s_sub_u32 {sLen}, {sLen}, s58\ns_add_u32 s56, {sBase}, {sLen}")
    a(f"v_add_u32 v{q+1}, s56, v1\nv_lshlrev_b32 v{q+2}, 2, v{q+1}\nv_lshlrev_b32 v{q+3}, 4, v{q+1}")
    a("s_mov_b64 exec, 0xfffff")
    a(f"ds_write_b32 v{q+2}, v{q+7} offset:{L_OFF}\nds_write_b8 v{q+1}, v4 offset:{L_NODE}\nds_write_b128 v{q+3}, v[4:7] offset:{L_PAY}")
    for u in range(3):
        a(f"s_mov_b64 exec, {M(u)}\ns_waitcnt lgkmcnt({5 + u})")
        a(f"v_bfe_u32 v{ad+u}, v{ad+u}, v{CI+u}, 16\nv_add_u32 v{ad+u}, v{ad+u}, v{RK+u}")
        a(f"v_lshlrev_b32 v{RK+u}, 2, v{ad+u}\nv_lshlrev_b32 v{CI+u}, 4, v{ad+u}")
        a(f"ds_write_b32 v{RK+u}, v{KEY+2*u} offset:{L_OFF}\nds_write_b8 v{ad+u}, v{CD+u} offset:{L_NODE}")
    if P["pf"]:
        a(f"s_cmp_lt_u32 {sW}, {8-P['pf']}\ns_cselect_b32 s56, 1, {sRB}\ns_or_b32 s56, s56, {sFB}\ns_cbranch_scc0 K_PW1\ns_waitcnt vmcnt(0)\nK_PW1:\ns_waitcnt vmcnt(1)")
    else: a("s_waitcnt vmcnt(0)")
    for u in range(3): a(f"s_mov_b64 exec, {M(u)}\nds_write_b128 v{CI+u}, v[{PAYR+4*u}:{PAYR+4*u+3}] offset:{L_PAY}")
    a("s_mov_b64 exec, -1")
    a(f"s_lshl_b32 s56, {sBase}, 2\ns_add_u32 s56, s56, {L_OFF}\nv_mov_b32 v{vOffA}, s56")
    a(f"s_add_u32 s56, {sBase}, {L_NODE}\nv_mov_b32 v{vNodeA}, s56")
    a(f"s_lshl_b32 s56, {sBase}, 5\ns_add_u32 s56, s56, {L_A}\nv_add_u32 v{vAA}, s56, v10\nv_add_u32 v11, s56, v11")
    a(f"s_lshl_b32 s57, {sBase}, 4\ns_add_u32 s57, s57, {L_PAY}")
    a(f"v_lshl_add_u32 v{vEfA}, v12, 4, s57\nv_add_u32 v10, s57, v9")
    a(f"s_add_u32 {sG}, {sLen}, 3\ns_lshr_b32 {sG}, {sG}, 2")
    a("s_waitcnt lgkmcnt(0)\ns_barrier")
    stamp("Bf")
    a(f"s_cmp_eq_u32 {sG}, 0\ns_cbranch_scc1 K2_LOOPDONE")
    xaux = P.get("xaux", "")
    for gg in range(ngr): a(f"ds_read_b128 v[{TP+4*gg}:{TP+4*gg+3}], v{vOffA} offset:{16*gg}")
    a(f"ds_read_b64 v[{TA}:{TA+1}], v10\nds_read2_b64 v[{OFFS}:{OFFS+3}], v{vOffA} offset0:{DE//2} offset1:{DE//2+1}")
    a(f"ds_read_b64 v[{EF}:{EF+1}], v{vEfA} offset:8\nds_read_b128 v[{NODE}:{NODE+3}], v{vNodeA}\ns_lshl_b32 s56, {sG}, 2")
    XS2 = P.get("xsplit2", 0)
    for n in range(4 if XS2 else DE):
        if n % 4 == 0: a(f"s_waitcnt lgkmcnt({ngr - 1 - n//4 + 4})")
        if SAFE: a(f"v_add_u32 v{TP+n}, v9, v{TP+n}")
        a(f"buffer_load_dwordx4 v[{XR+4*n}:{XR+4*n+3}], v{TP+n}, {XS}, 0 offen {xaux}")
    stamp("xiss")
    if P.get("afold"): a(f"s_mov_b32 s58, {f32(-LN2)}\ns_mov_b32 s59, s58")
    a("K_APREP:")
    a(f"v_cmp_gt_u32 vcc, s56, v1")
    a("s_waitcnt lgkmcnt(0)")
    a(f"v_cndmask_b32 v{TB}, 0, v{TA}, vcc\nv_cndmask_b32 v{TB+1}, 0, v{TA+1}, vcc")
    a(f"ds_read_b64 v[{TA}:{TA+1}], v10 offset:1024\nv_add_u32 v10, 1024, v10")
    if XS2:
        a("s_cmp_eq_u32 s63, 0\ns_cbranch_scc0 K_X2\ns_mov_b32 s63, 1")
        for n in range(4, DE):
            if SAFE: a(f"v_add_u32 v{TP+n}, v9, v{TP+n}")
            a(f"buffer_load_dwordx4 v[{XR+4*n}:{XR+4*n+3}], v{TP+n}, {XS}, 0 offen {xaux}")
        a("K_X2:")
    for gg in range(4):
        a(f"v_mfma_f32_16x16x16_bf16 v[{TP+16+4*gg}:{TP+19+4*gg}], v[{CGF+2*gg}:{CGF+2*gg+1}], v[{TB}:{TB+1}], 0")
    for gg in range(4):
        if P.get("afold"):
            for k in range(2): a(f"v_pk_mul_f32 v[{TP+16+4*gg+2*k}:{TP+17+4*gg+2*k}], v[{TP+16+4*gg+2*k}:{TP+17+4*gg+2*k}], s[58:59]")
        a(f"v_cvt_pk_bf16_f32 v{EE+2*gg}, v{TP+16+4*gg}, v{TP+17+4*gg}\nv_cvt_pk_bf16_f32 v{EE+2*gg+1}, v{TP+18+4*gg}, v{TP+19+4*gg}")
        a(f"ds_write_b64 v11, v[{EE+2*gg}:{EE+2*gg+1}] offset:{512*gg}")
        a(f"s_sub_u32 s56, s56, 16\ns_cmp_le_i32 s56, 0\ns_cbranch_scc1 K_APDONE")
    a("v_add_u32 v11, 2048, v11\ns_branch K_APREP")
    a("K_APDONE:")
    if XS2: a("s_mov_b32 s63, 0")
    a(f"s_waitcnt lgkmcnt(0)\nds_read_b64 v[{AOP}:{AOP+1}], v{vAA}")
    for x in pre_mfmas(dict(EF=EF, WF=WF), TA, 0, P): a(x)
    stamp("loop0")
    if P.get("ts"): a("s_memtime s[66:67]")
    if P.get("drain"): a(f"s_sub_u32 {sG}, {sG}, 3\ns_nop 2\ns_cbranch_scc1 K2_D0")
    else: a(f"s_sub_u32 {sG}, {sG}, 1\ns_nop 3")
    R = dict(ACC=ACC, XR=XR, TP=TP, TA=TA, TB=TB, EE=EE, WF=WF, AOP=AOP, EF=EF, OFFS=OFFS, NODE=NODE, vOffA=vOffA, vNodeA=vNodeA,
             vAA=vAA, vEfA=vEfA, sG=sG, sN=sN, vPm=vPm, vPo=vPo, vPv=vPv, XS=XS, sRot=sRot, vPt=255, RING=P.get("ring", 16))
    gen_loop(a, R, P, dict(PROG=L_PROG))
    if P.get("ts"): a("s_memtime s[68:69]")
    stamp("loop1")
    if PR.startswith("pair"):
        a(f"v_mov_b32 v{vPv}, -1\nds_write_b32 v{vPm}, v{vPv} offset:{L_PROG}\ns_setprio 0")
    a(f"s_add_u32 {sRB}, {sRB}, {CAP}\ns_cmp_ge_u32 {sRB}, {sT}\ns_cbranch_scc1 K_EPI")
    a("s_waitcnt vmcnt(0) lgkmcnt(0)\ns_barrier")
    a(f"ds_write_b128 v8, v[4:7]\nds_write_b32 v3, v4 offset:{L_PROG}")
    a(f"v_cmp_gt_u32 vcc, 128, v0\ns_and_saveexec_b64 s[56:57], vcc\nds_write_b32 v3, v4 offset:{L_CNT}\ns_mov_b64 exec, s[56:57]")
    a("s_waitcnt lgkmcnt(0)\ns_barrier")
    a(f"s_cmp_eq_u32 {sFB}, 0\ns_cbranch_scc1 K_ROUND\ns_branch K_FB")
    a("K_LATER:")
    payloads()
    a("K_LATER2:")
    for u in range(3): a(f"v_lshrrev_b32 v{ad+u}, 2, v{KEY+2*u}\nv_and_b32 v{ad+u}, 0xfc, v{ad+u}")
    a("s_branch K_BAL")
    a(f"K_FB0:\ns_mov_b32 {sT}, {E}")
    wmextract()
    a("K_FB:")
    a(f"s_mul_i32 s56, {sW}, {CAPW}\ns_add_u32 s56, s56, {sRB}")
    a(f"v_add_u32 v{f}, s56, v1\nv_add_u32 v{f+1}, 64, v{f}\nv_add_u32 v{f+2}, 128, v{f}")
    for u in range(3):
        a(f"v_cmp_gt_u32 {M(u)}, {sT}, v{f+u}\nv_min_u32 v{f+u}, {E-1}, v{f+u}\nv_lshlrev_b32 v{ad+u}, 2, v{f+u}\nv_lshlrev_b32 v{PA+u}, 3, v{f+u}")
        a(f"global_load_dword v{m+u}, v{ad+u}, s[8:9]\nglobal_load_dword v{m+4+u}, v{ad+u}, s[6:7]")
        a(f"global_load_dwordx2 v[{PAYR+4*u}:{PAYR+4*u+1}], v{PA+u}, s[10:11]\nglobal_load_dwordx2 v[{PAYR+4*u+2}:{PAYR+4*u+3}], v{PA+u}, s[12:13]")
    a(f"v_mov_b32 v14, 64\ns_waitcnt vmcnt(0)")
    for u in range(3):
        a(f"v_mul_u32_u24 v{f+u}, 214749, v{m+u}\nv_lshrrev_b32 v{f+u}, 23, v{f+u}\nv_cmp_eq_u32 vcc, {sBin}, v{f+u}\ns_and_b64 {M(u)}, {M(u)}, vcc")
        a(f"v_subrev_u32 v{KEY+2*u}, {sNs}, v{m+u}")
        keycalc2(m+4+u, KEY+2*u, f+u)
    a(f"s_cmp_lg_u32 {sRB}, 0\ns_cbranch_scc1 K_LATER2\ns_branch K_GOT")
    a("K_EPI:")
    SPLIT = P.get("split", 0)
    if SPLIT:
        L_GC = 1800
        NO = TA
        a(f"v_and_b32 v10, 7, v2\nv_bfe_u32 v11, v2, 3, 3\nv_mad_u32_u24 v10, v10, 5, v11\nv_lshlrev_b32 v10, 2, v10")
        a(f"s_lshr_b32 s59, {sW}, 2\ns_mul_i32 s60, s59, 80\nv_lshrrev_b32 v13, 4, v1\nv_lshl_add_u32 v11, v13, 2, s60")
        a("ds_permute_b32 v10, v10, v1")
        a(f"s_mov_b32 s56, {f32(-LN2)}\ns_mov_b32 s57, s56\ns_mul_i32 s58, {sW}, {20*RS}\ns_add_u32 s58, s58, {L_AGG}\nv_add_u32 v14, s58, v15")
        for k in range(0 if P.get("afold") else 4): a(f"v_pk_mul_f32 v[{ACC+2*k}:{ACC+2*k+1}], v[{ACC+2*k}:{ACC+2*k+1}], s[56:57]")
        a("s_waitcnt lgkmcnt(0)")
        for i_ in range(5): a(f"ds_bpermute_b32 v{NO+i_}, v11, v10 offset:{16*i_}")
        for sl in range(5):
            if sl:
                for k in range(0 if P.get("afold") else 4): a(f"v_pk_mul_f32 v[{ACC+8*sl+2*k}:{ACC+8*sl+2*k+1}], v[{ACC+8*sl+2*k}:{ACC+8*sl+2*k+1}], s[56:57]")
            for mm in range(4):
                a(f"v_cvt_pk_bf16_f32 v{ACC+8*sl+mm}, v{ACC+8*sl+mm}, v{ACC+8*sl+4+mm}")
                a(f"ds_write_b32 v14, v{ACC+8*sl+mm} offset:{RS*(4*sl+mm)}")
        a(f"s_lshl_b32 s61, s59, 2\nv_mov_b32 v10, s61\nv_mov_b32 v11, 1\nv_and_b32 v12, 15, v1")
        a(f"s_mul_i32 s59, s59, {80*RS}\ns_add_u32 s59, s59, {L_AGG}")
        a(f"v_mul_u32_u24 v14, {RS}, v12\nv_lshl_add_u32 v14, v13, 4, v14\nv_add_u32 v14, s59, v14")
        a(f"s_lshl_b32 s58, {sNs}, 10\ns_and_b32 s59, {sW}, 3\ns_lshl_b32 s59, s59, 8\ns_add_u32 s58, s58, s59\nv_lshlrev_b32 v12, 4, v12")
        a(f"s_waitcnt lgkmcnt(0)\ns_mov_b64 exec, 1\nds_add_u32 v10, v11 offset:{L_GC}\ns_mov_b64 exec, -1")
        for i_ in range(5): a(f"v_lshl_add_u32 v{NO+i_}, v{NO+i_}, 10, v12")
        a(f"K_GW:\nds_read_b32 v11, v10 offset:{L_GC}\ns_waitcnt lgkmcnt(0)\nv_readfirstlane_b32 s59, v11\ns_cmp_ge_u32 s59, 4\ns_cbranch_scc1 K_GW1\ns_sleep 1\ns_branch K_GW\nK_GW1:")
        a("s_waitcnt vmcnt(0)")
        stamp("Bg")
    else:
        a(f"s_mov_b32 s56, {f32(-LN2)}\ns_mov_b32 s57, s56")
        for sl in range(5):
            a(f"s_add_u32 s58, {sW}, {8*sl}\nv_cmp_eq_u32 vcc, s58, v2")
            for k in range(0 if P.get("afold") else 4): a(f"v_pk_mul_f32 v[{ACC+8*sl+2*k}:{ACC+8*sl+2*k+1}], v[{ACC+8*sl+2*k}:{ACC+8*sl+2*k+1}], s[56:57]")
            a(f"s_ff1_i32_b64 s58, vcc\ns_mul_i32 s58, s58, {4*RS}\ns_add_u32 s58, s58, {L_AGG}\nv_add_u32 v{10 + sl%2}, s58, v15")
            for mm in range(4):
                a(f"v_cvt_pk_bf16_f32 v{ACC+8*sl+mm}, v{ACC+8*sl+mm}, v{ACC+8*sl+4+mm}")
                a(f"ds_write_b32 v{10 + sl%2}, v{ACC+8*sl+mm} offset:{RS*mm}")
        a(f"v_and_b32 v12, 15, v1\nv_lshrrev_b32 v13, 4, v1")
        a(f"s_lshr_b32 s58, {sW}, 2\ns_mul_i32 s59, s58, {16*RS}\ns_add_u32 s59, s59, {L_AGG}")
        a(f"v_mul_u32_u24 v14, {RS}, v12\nv_lshl_add_u32 v14, v13, 4, v14\nv_add_u32 v14, s59, v14")
        a(f"s_lshl_b32 s58, s58, 2\ns_add_u32 s58, s58, {sNs}\ns_lshl_b32 s58, s58, 10\ns_and_b32 s59, {sW}, 3\ns_lshl_b32 s59, s59, 8\ns_add_u32 s58, s58, s59")
        a(f"v_lshlrev_b32 v13, 10, v13\nv_lshl_add_u32 v13, v12, 4, v13")
        a("s_waitcnt vmcnt(0) lgkmcnt(0)\ns_barrier")
        stamp("Bg")
    TS_ = 16 * RS if SPLIT else 32 * RS
    FA = XR
    for i in range(4):
        for ks in range(4): a(f"ds_read_b128 v[{FA+16*i+4*ks}:{FA+16*i+4*ks+3}], v14 offset:{TS_*i + 64*ks}")
    ost = P["out_aux"]
    def outtile(i):
        Dp = TP + 8 * (i % 2); Op = TP + 16 + 4 * (i % 2)
        for k in range(4): a(f"v_cvt_pk_bf16_f32 v{Op+k}, v{Dp+2*k}, v{Dp+2*k+1}")
        a(f"buffer_store_dwordx4 v[{Op}:{Op+3}], v{TA+i if SPLIT else 13}, {OS}, s58 offen {ost}")
        if i < 4 and not SPLIT: a("s_add_u32 s58, s58, 8192")
    for i in range(5):
        Dd = TP + 8 * (i % 2); fi = FA + 16 * (i % 4)
        for ks in range(4):
            if i < 4: a(f"s_waitcnt lgkmcnt({min(15, 15 - 4*i - ks + (4 if i >= 1 else 0))})")
            else: a(f"s_waitcnt lgkmcnt({3 - ks})")
            for tt in range(2):
                b = BF + 16*tt + 4*ks
                a(f"v_mfma_f32_16x16x32_bf16 v[{Dd+4*tt}:{Dd+4*tt+3}], v[{fi+4*ks}:{fi+4*ks+3}], v[{b}:{b+3}], " + ("0" if ks == 0 else f"v[{Dd+4*tt}:{Dd+4*tt+3}]"))
        if i == 0:
            for ks in range(4): a(f"ds_read_b128 v[{FA+4*ks}:{FA+4*ks+3}], v14 offset:{TS_*4 + 64*ks}")
        if i >= 1: outtile(i - 1)
    outtile(4)
    a(f"s_or_b32 s56, {sFB}, {sW}\ns_cmp_lg_u32 s56, 0\ns_cbranch_scc1 K_NOEPO")
    a(f"v_mov_b32 v10, {sTag}\ns_mov_b64 exec, 1\nbuffer_store_dword v10, v4, {WSR}, 0 offen offset:{WS_EPO}\nK_NOEPO:")
    if P.get("ts"):
        a("s_waitcnt vmcnt(0)"); stamp("end")
        a("s_waitcnt lgkmcnt(0)")
        a(f"s_lshl_b32 s98, s2, 3\ns_add_u32 s98, s98, s3\ns_lshl_b32 s98, s98, 6\ns_add_u32 s98, s98, {WS_TS}")
        a("s_mov_b64 exec, 1\nv_mov_b32 v2, s98")
        for i in range(tsn[0]): a(f"v_mov_b32 v3, s{70 + 2*i}\nglobal_store_dword v2, v3, s[24:25] offset:{4*i}")
        a(f"s_sub_u32 s68, s68, s66\nv_mov_b32 v3, s68\nglobal_store_dword v2, v3, s[24:25] offset:56\nv_mov_b32 v3, {sLen}\nglobal_store_dword v2, v3, s[24:25] offset:60")
        assert tsn[0] <= 14
    a("K_END:\ns_endpgm")
    a(".p2align 6\n.type K_TAB,@object\nK_TAB:")
    for A in (A39, A40):
        used = [0]*8; codes = []
        for ww in A: codes.append(ww | used[ww] << 3); used[ww] += 1
        assert used == [5]*8
        a(".byte " + ", ".join(str(cc) for cc in codes + [255]*24))
    body = a.text(verbose=verbose)
    ns = 100 if P.get("ts") else 72
    gen.nts = tsn[0]
    return (HEADER + f"; @launch grid=({NB},1,1) block=(512,1,1) lds={L_END}\n" + '.amdgcn_target "amdgcn-amd-amdhsa--gfx950"\n.text\n' + body
            + '.section .rodata,"a"\n' + desc(NAME, 256, ns))

if __name__ == "__main__":
    P = eval(sys.argv[2]) if len(sys.argv) > 2 else {}
    open(sys.argv[1], "w").write(gen(P, verbose=True))
```

```python
import sys
from asmlib import Asm
from loopgen import gen_loop, pre_mfmas
from gen import HEADER as _H, scan_incl, f32, LOG2E, LN2, desc

N, E = 10000, 320000
NB, NP, CH = 256, 250, 1280
WS_EPO, WS_TAB, WS_KEY, WS_PAY, WS_FLG, WS_END = 0, 0x2000, 0x82000, 0x300000, 0x7F0000, 0x800000
WS_TS = 0x8000000
FS = 128
NAME = "gather_scatter__tensor_product_equiv_tfn__graph_kernel"
HEADER = _H[:_H.index("; Launch 1")] + """; One launch, 256 workgroups (one per CU).
; Phase 1: 250 workgroups each bin a chunk of 1280 edges by destination block (256 bins) and publish it in d_ws with
;          write-through stores: table row and keys as 8-byte pieces carrying this launch's tag, Y/edge_feat behind a flag.
;          (tag = epoch word of d_ws + 1; workgroups that saw all 256 rows store the tag back as the next epoch.)
; Phase 2: every workgroup collects its own bin, sorts it by (owner wave, source bucket), gathers x rows, does the
;          tensor product + radial gate in registers, mixes the channels and stores.
; If the hand-off never arrives (workgroups not co-resident) a workgroup scans the raw edge list on its own.
"""
A39 = [6, 5, 6, 7, 4, 2, 0, 1, 3, 4, 6, 3, 2, 0, 6, 1, 3, 5, 7, 1, 0, 5, 7, 4, 2, 1, 5, 4, 7, 3, 2, 0, 2, 0, 7, 1, 3, 4, 5, 6]
A40 = [3, 2, 4, 7, 0, 1, 6, 0, 5, 1, 7, 5, 6, 3, 4, 6, 5, 0, 2, 7, 1, 4, 6, 3, 2, 1, 3, 0, 5, 4, 2, 7, 2, 5, 4, 7, 1, 6, 0, 3]
DPP = ["row_shr:1 row_mask:0xf bank_mask:0xf", "row_shr:2 row_mask:0xf bank_mask:0xf", "row_shr:4 row_mask:0xf bank_mask:0xf",
       "row_shr:8 row_mask:0xf bank_mask:0xf", "row_bcast:15 row_mask:0xa bank_mask:0xf", "row_bcast:31 row_mask:0xc bank_mask:0xf"]

def gen(P=None, verbose=False):
    P = dict(dict(prio="pair2", sched="b", subcc=1, out_aux="sc1", pf=3, pfx=2, drain=1, nolo=1, epre=1, aswz=1), **(P or {}))
    a = Asm()
    FS = P.get("FS", 128)
    DE = P.setdefault("DE", 8); ngr = (DE + 3) // 4; SAFE = P.get("safe"); PR = P["prio"]
    CAPW = 192; CAP = 8 * CAPW; NE = CAP + 8 * 48 + 16
    L_CNT, L_DEG, L_HCNT, L_FB, L_PROG, L_OFF = 0, 512, 768, 1792, 2048, 4096
    L_NODE = L_OFF + NE * 4
    L_PAY = (L_NODE + NE + 63) // 64 * 64
    L_A = L_PAY + NE * 16
    L_AGG = (L_A + NE * 32 + 255) // 256 * 256
    RS = 288
    L_END = L_AGG + 160 * RS
    L_MARK = L_AGG; L_WM = L_AGG + 8192; L_WR = L_WM + 32768; L_CG = L_WR + 1024; L_MAP = L_CG + 128
    L_PRE = L_OFF; L_TABL = L_OFF + 1024; L_SKEY = L_PAY; L_SPAY = L_A
    assert L_SPAY + 16384 < 65536 and L_MAP + 128 <= L_END
    ACC, XR, TP, TA, TB, EE, WF, AOP, EF, OFFS, NODE = 16, 56, 120, 152, 160, 168, 176, 184, 186, 188, 192
    vOffA, vNodeA, vAA, vEfA = 196, 197, 198, 199
    BF, CGF, PP, PL, PD = 200, 232, 240, 244, 248
    vPm, vPo, vPv = 252, 253, 254
    sW, sT, sRB, sG, sN, sBase, sLen, sTag, sBin, sNs, sFB = "s3", "s46", "s47", "s48", "s49", "s50", "s51", "s52", "s53", "s54", "s55"
    sRole, sT8, sRot = "s40", "s26", "s27"
    XS, OS, WSR = "s[28:31]", "s[32:35]", "s[36:39]"
    M = lambda u: f"s[{40+2*u}:{41+2*u}]"
    tsn = [0]; gen.names = []
    DEFST = ["start", "Bb", "Bc1", "Bc", "Bx", "keys", "pollP", "Bd", "Be", "Bf", "loop0", "loop1", "Bg", "end"]
    def stamp(name):
        if P.get("hold_at") == name:
            a(f"s_waitcnt lgkmcnt(0)\ns_add_u32 s70, s70, {P['hold_x']}\nK_HOLDP:\ns_memrealtime s[68:69]\ns_waitcnt lgkmcnt(0)\ns_sub_u32 s68, s68, s70\ns_cmp_lt_i32 s68, 0\ns_cbranch_scc1 K_HOLDP")
        if P.get("ts") and name in P.get("stamps", DEFST):
            gen.names.append(name)
            r = 70 + 2 * tsn[0]; a(f"s_memrealtime s[{r}:{r+1}]"); tsn[0] += 1

    a(f".globl {NAME}\n.p2align 8\n.type {NAME},@function\n{NAME}:")
    a(f"s_cmp_ge_u32 s2, {NB}\ns_cbranch_scc1 K_END")
    a("s_load_dwordx16 s[4:19], s[0:1], 0\ns_load_dwordx2 s[20:21], s[0:1], 64\ns_load_dwordx2 s[24:25], s[0:1], 80")
    stamp("start")
    if P.get("hold_at"): a("s_memrealtime s[70:71]")
    D, S, Y, F, B4, RK1 = TP, TP + 4, TP + 8, TP + 16, TP + 24, TP + 28
    KY, t, tmp, KG = XR, XR + 4, XR + 8, XR + 10
    la = P.get("load_aux", "")
    a("v_lshrrev_b32 v2, 6, v0\nv_and_b32 v1, 63, v0\nv_readfirstlane_b32 s3, v2")
    a(f"v_lshlrev_b32 v10, 4, v0\ns_mul_i32 s57, s2, {CH*4}\nv_lshlrev_b32 v3, 2, v0")
    if P.get("pfcode0", 1):
        a(f"s_cmp_lg_u32 s3, 5\ns_cbranch_scc1 K_PF0\ns_getpc_b64 s[26:27]\nK_PC3:\nv_lshlrev_b32 v13, 7, v1\nglobal_load_dword v255, v13, s[26:27]")
        a(f"v_add_u32 v13, 8192, v13\nv_min_u32 v13, K_TAB-K_PC3, v13\nglobal_load_dword v255, v13, s[26:27]\nK_PF0:")
    a("v_or_b32 v13, 0x4b000000, v1\ns_cmp_eq_u32 s3, 2\ns_cselect_b32 s56, -1, 0")
    a("v_add_u32 v11, s57, v10\nv_and_b32 v13, s56, v13\nv_lshlrev_b32 v12, 1, v11")
    a("ds_write_b32 v3, v13")
    a(f"s_cmp_lt_u32 s2, {NP}\ns_cselect_b32 s56, 5, 0\ns_cmp_lt_u32 {sW}, s56")
    stamp("prek")
    TL = P.get("tlb", 0)
    if TL:
        a(f"s_cselect_b32 {sRole}, 1, 0\ns_lshr_b32 s58, s2, 3\ns_cmp_lt_u32 s58, 11\ns_cbranch_scc0 K_NOTLB")
        a(f"s_cmp_lg_u32 {sW}, 6\ns_cbranch_scc1 K_TLB1\ns_lshl_b32 s59, s58, 3\ns_load_dwordx2 s[64:65], s[0:1], s59")
        a("s_mov_b32 s66, 128\ns_mov_b32 s67, 0x20000")
        for idx, size in ((0, 10240000), (1, 1280000), (2, 1280000), (3, 2560000), (4, 2560000), (7, 32768), (8, 10240000), (10, WS_END)):
            a(f"s_cmp_eq_u32 s58, {idx}\ns_cselect_b32 s66, {size}, s66")
        a("s_lshr_b32 s59, s66, 6\ns_and_b32 s59, s59, -4\nv_mul_lo_u32 v14, s59, v1\ns_waitcnt lgkmcnt(0)\nbuffer_load_dword v255, v14, s[64:67], 0 offen")
        a("K_TLB1:")
        if TL == 2: a("s_barrier")
        a(f"K_NOTLB:\ns_cmp_lg_u32 {sRole}, 0")
    a("s_waitcnt lgkmcnt(0)")
    stamp("karg")
    def setup0():
        a(f"s_load_dword {sTag}, s[24:25], {WS_EPO}")
        for k in range(4, 8): a(f"v_mov_b32 v{k}, 0")
        a(f"v_add_u32 v8, {L_MARK}, v10\nv_lshlrev_b32 v9, 4, v1\nv_lshlrev_b32 v15, 2, v1")
        a(f"ds_write_b128 v8, v[4:7]\nds_write_b32 v3, v4 offset:{L_PROG}")
        a(f"s_and_b32 {sBin}, s2, 7\ns_lshr_b32 s56, s2, 3\ns_lshl_b32 {sBin}, {sBin}, 5\ns_or_b32 {sBin}, {sBin}, s56")
    def setup():
        a(f"s_mul_i32 {sNs}, {sBin}, 625\ns_add_u32 s57, {sNs}, 640\ns_add_u32 {sNs}, {sNs}, 15\ns_lshr_b32 {sNs}, {sNs}, 4\ns_lshr_b32 s57, s57, 4")
        if SAFE: a("s_mov_b32 s28, s4\ns_mov_b32 s29, s5\ns_mov_b32 s30, 10240000\ns_mov_b32 s31, 0x20000")
        else: a("s_mov_b32 s28, s4\ns_and_b32 s29, s5, 0xffff\ns_or_b32 s29, s29, 0x100000\ns_mov_b32 s30, 10240000\ns_mov_b32 s31, 0x800000")
        a("s_mov_b32 s32, s20\ns_mov_b32 s33, s21\ns_lshl_b32 s34, s57, 10\ns_mov_b32 s35, 0x20000")
        a(f"s_mov_b32 s36, s24\ns_mov_b32 s37, s25\ns_mov_b32 s38, {WS_END}\ns_mov_b32 s39, 0x20000")
        a(f"s_mov_b32 {sRB}, 0\ns_mov_b32 s63, 0\nv_mov_b32 v14, 1")
        a(f"s_lshr_b32 {sRot}, {sBin}, 5\ns_mul_i32 {sRot}, {sRot}, 20009\ns_add_u32 {sRot}, {sRot}, 14\ns_lshr_b32 {sRot}, {sRot}, 4\ns_lshl_b32 {sRot}, {sRot}, 10")
        for k in range(40): a(f"v_mov_b32 v{ACC+k}, 0")
    def keycalc(Dr, Br, Kr, tm):
        a(f"v_mul_u32_u24 v{tm}, 625, v{Br}\nv_add_u32 v{tm}, 15, v{tm}\nv_lshrrev_b32 v{tm}, 4, v{tm}\nv_sub_u32 v{Kr}, v{Dr}, v{tm}")
    def keycalc2(Sr, Kr, tm):
        a(f"v_mul_u32_u24 v{tm}, 1677, v{Sr}\nv_lshrrev_b32 v{tm}, 20, v{tm}\nv_lshl_or_b32 v{Kr}, v{Kr}, 4, v{tm}\nv_lshl_or_b32 v{Kr}, v{Sr}, 10, v{Kr}")
    a("s_cbranch_scc0 K_BA")
    a(f"global_load_dwordx4 v[{D}:{D+3}], v11, s[8:9] {la}")
    if P.get("sfirst", 1): a(f"global_load_dwordx4 v[{S}:{S+3}], v11, s[6:7] {la}")
    a("K_BA:\ns_barrier\ns_cbranch_scc0 K_HELP")
    if not P.get("sfirst", 1): a(f"global_load_dwordx4 v[{S}:{S+3}], v11, s[6:7] {la}")
    for i in range(P.get("ydelay", 0)): a("s_nop 15")
    for h in range(2): a(f"global_load_dwordx4 v[{Y+4*h}:{Y+4*h+3}], v12, s[10:11] offset:{16*h} {la}")
    for h in range(2): a(f"global_load_dwordx4 v[{F+4*h}:{F+4*h+3}], v12, s[12:13] offset:{16*h} {la}")
    stamp("ldiss")
    a(f"s_mov_b32 {sRole}, 1")
    setup0(); setup()
    stamp("setup")
    a("s_waitcnt vmcnt(5)")
    stamp("dst")
    for u in range(4):
        a(f"v_mul_u32_u24 v{t+u}, 214749, v{D+u}\nv_lshrrev_b32 v{t+u}, 23, v{t+u}\nv_lshlrev_b32 v{B4+u}, 2, v{t+u}")
        a(f"ds_add_rtn_u32 v{RK1+u}, v{B4+u}, v14 offset:{L_HCNT}")
    for u in range(4): keycalc(D+u, t+u, KY+u, tmp)
    a("s_branch K_BB")
    a(f"K_HELP:\ns_mov_b32 {sRole}, 0")
    setup0()
    if P.get("pfcode"):
        a(f"s_cmp_lg_u32 {sW}, 5\ns_cbranch_scc1 K_HELP1\ns_getpc_b64 s[26:27]\nK_PC2:\nv_lshlrev_b32 v13, 7, v1\nglobal_load_dword v255, v13, s[26:27]")
        a(f"v_add_u32 v13, 8192, v13\nv_min_u32 v13, K_TAB-K_PC2, v13\nglobal_load_dword v255, v13, s[26:27]\nK_HELP1:")
    a(f"s_cmp_eq_u32 {sW}, 7\ns_cbranch_scc1 K_HELP7\ns_cmp_lg_u32 {sW}, 6\ns_cbranch_scc1 K_HELP2")
    a(f"s_and_b32 s56, {sBin}, 31\ns_lshl_b32 s56, s56, 10\nv_lshl_add_u32 v13, v1, 7, s56\ns_mov_b64 exec, 0xff")
    a("global_load_dword v255, v13, s[18:19]\ns_mov_b64 exec, -1\ns_branch K_HELP2\nK_HELP7:")
    a(f"s_mov_b32 m0, {L_WR}\ns_getpc_b64 s[26:27]\nK_PC:\nglobal_load_lds_dwordx4 v9, s[14:15]")
    a(f"s_add_u32 s26, s26, K_TAB-K_PC\ns_addc_u32 s27, s27, 0\ns_mov_b32 m0, {L_CG}\ns_mov_b64 exec, 0xff\nglobal_load_lds_dwordx4 v9, s[16:17]")
    a(f"s_mov_b32 m0, {L_MAP}\ns_nop 0\nglobal_load_lds_dwordx4 v9, s[26:27]\ns_mov_b64 exec, -1")
    a("K_HELP2:")
    setup()
    a("K_BB:\ns_waitcnt lgkmcnt(0)\ns_barrier")
    stamp("Bb")
    c = TA; q = TB
    a(f"s_add_u32 {sTag}, {sTag}, 1\ns_and_b32 s56, {sTag}, 0x3ff\ns_lshl_b32 s58, s56, 22\ns_lshl_b32 {sT8}, {sTag}, 24")
    a(f"s_cmp_eq_u32 {sW}, 7\ns_cselect_b32 s56, 1, {sRole}\ns_cmp_eq_u32 s56, 0\ns_cbranch_scc1 K_BC1")
    a(f"ds_read_b128 v[{c}:{c+3}], v9 offset:{L_HCNT}")
    a(f"s_cmp_eq_u32 {sW}, 7\ns_cbranch_scc1 K_SC\ns_waitcnt vmcnt(4)")
    for u in range(4): keycalc2(S+u, KY+u, t+u)
    a("K_SC:\ns_waitcnt lgkmcnt(0)")
    a(f"v_add_u32 v{c+4}, v{c}, v{c+1}\nv_add_u32 v{c+5}, v{c+4}, v{c+2}\nv_add_u32 v{c+6}, v{c+5}, v{c+3}\nv_mov_b32 v{q}, v{c+6}")
    fill = [x for u in range(4) for x in (f"v_or_b32 v{KG+2*u}, {sT8}, v{KY+u}", f"v_mov_b32 v{KG+2*u+1}, {sTag}")]
    for k in range(6):
        for x in fill[2*k:2*k+2]: a(x)
        a(f"v_add_u32_dpp v{q}, v{q}, v{q} {DPP[k]}")
    a(f"v_sub_u32 v{q}, v{q}, v{c+6}\nv_add_u32 v{q+1}, v{q}, v{c}\nv_add_u32 v{q+2}, v{q}, v{c+4}\nv_add_u32 v{q+3}, v{q}, v{c+5}")
    a(f"s_cmp_lg_u32 {sW}, 7\ns_cbranch_scc1 K_NOROW")
    g = EE
    for i in range(4):
        a(f"v_lshl_or_b32 v{g+2*i}, v{c+i}, 11, v{q+i}\nv_or_b32 v{g+2*i}, s58, v{g+2*i}\nv_mov_b32 v{g+2*i+1}, {sTag}")
    a(f"s_lshl_b32 s57, s2, 11\ns_add_u32 s57, s57, {WS_TAB}\nv_lshlrev_b32 v12, 5, v1")
    a(f"buffer_store_dwordx4 v[{g}:{g+3}], v12, {WSR}, s57 offen sc1\nbuffer_store_dwordx4 v[{g+4}:{g+7}], v12, {WSR}, s57 offen offset:16 sc1")
    a("s_branch K_BC1\nK_NOROW:")
    a(f"ds_write_b128 v9, v[{q}:{q+3}] offset:{L_PRE}")
    for u in range(4): a(f"ds_read_b32 v{t+u}, v{B4+u} offset:{L_PRE}")
    for u in range(4):
        a(f"s_waitcnt lgkmcnt(3)\nv_add_lshl_u32 v{B4+u}, v{t+u}, v{RK1+u}, 3")
        a(f"ds_write_b64 v{B4+u}, v[{KG+2*u}:{KG+2*u+1}] offset:{L_SKEY}")
    a(f"s_mov_b32 s56, {L_SPAY}")
    for u in range(4): a(f"v_lshl_add_u32 v{B4+u}, v{B4+u}, 1, s56")
    a("K_BC1:")
    a(f"s_mul_i32 s60, s2, {CH*8}\ns_add_u32 s60, s60, {WS_KEY}")
    a(f"s_sub_u32 s56, {sW}, 5\ns_lshl_b32 s57, s56, 14\nv_add_u32 v13, s57, v9\ns_add_u32 s57, s57, {L_WM}")
    a("s_waitcnt lgkmcnt(0)\ns_barrier")
    stamp("Bc1")
    o = XR + 20
    a(f"s_cmp_ge_u32 s2, {NP}\ns_cbranch_scc1 K_KS2")
    a(f"ds_read_b128 v[{o}:{o+3}], v10 offset:{L_SKEY}")
    a(f"s_cmp_lt_u32 s56, 2\ns_cbranch_scc0 K_KS1")
    a(f"ds_read_b128 v[{o+4}:{o+7}], v10 offset:{L_SKEY + 8192 - 5120}\ns_add_u32 s59, s60, {8192 - 5120}")
    a(f"s_waitcnt lgkmcnt(0)\nbuffer_store_dwordx4 v[{o+4}:{o+7}], v10, {WSR}, s59 offen sc1")
    a(f"K_KS1:\ns_waitcnt lgkmcnt(0)\nbuffer_store_dwordx4 v[{o}:{o+3}], v10, {WSR}, s60 offen sc1")
    a(f"K_KS2:\ns_cmp_lt_u32 s56, 2\ns_cbranch_scc1 K_DMA\ns_cmp_eq_u32 {sRole}, 0\ns_cbranch_scc1 K_BC7")
    if P.get("ts") and "y0" in P.get("stamps", []):
        a("s_waitcnt vmcnt(4)"); stamp("y0"); a("s_waitcnt vmcnt(3)"); stamp("y1"); a("s_waitcnt vmcnt(2)"); stamp("f0"); a("s_waitcnt vmcnt(1)"); stamp("f1")
    for h in range(2):
        a(f"s_waitcnt vmcnt({2 - h})")
        for u in (2*h, 2*h+1): a(f"ds_write2_b64 v{B4+u}, v[{Y+2*u}:{Y+2*u+1}], v[{F+2*u}:{F+2*u+1}] offset0:0 offset1:1")
    a("s_branch K_BC\nK_DMA:")
    for gidx in range(4):
        a("s_mov_b32 m0, s57\ns_add_u32 s57, s57, 4096")
        for i in range(4): a(f"global_load_lds_dwordx4 v13, s[18:19] offset:{i*1024}")
        if gidx < 3: a("v_add_u32 v13, 4096, v13")
    a(f"s_branch K_BC\nK_BC7:\ns_cmp_ge_u32 s2, {NP}\ns_cbranch_scc0 K_BC8\ns_waitcnt vmcnt(2)\nK_BC8:\ns_waitcnt vmcnt(3)")
    def pfetch(lab, n=None, first=None):
        n = n or P["pf"]
        first = P.get("pfc", 0) + P.get("pfd", 0) + P.get("pfx", 0) + P.get("pfk", 0) if first is None else first
        a(f"s_cmp_lt_u32 {sW}, {8-n}\ns_cbranch_scc1 {lab}")
        a("s_mov_b32 s64, s4\ns_mov_b32 s65, s5\ns_mov_b32 s66, 10240000\ns_mov_b32 s67, 0x20000")
        a(f"s_sub_u32 s68, {7 + first}, {sW}\ns_lshl_b32 s68, s68, 5\ns_and_b32 s69, {sBin}, 31\ns_add_u32 s68, s68, s69\ns_lshl_b32 s68, s68, 13\ns_add_u32 s68, s68, {sRot}")
        a(f"v_lshlrev_b32 v12, 7, v1\nbuffer_load_dword v255, v12, s[64:67], s68 offen")
    a("K_BC:")
    if P.get("pfc"):
        pfetch("K_NOPFC", P["pfc"], 0); a("K_NOPFC:")
    a(f"s_mul_i32 s56, s2, {CH*16}\ns_add_u32 s56, s56, {WS_PAY}\ns_add_u32 s57, s56, 8192\ns_add_u32 s59, s56, 16384")
    a(f"v_lshlrev_b32 v11, 11, v0\ns_lshl_b32 s61, {sBin}, 3\ns_add_u32 s61, s61, {WS_TAB}")
    a("s_waitcnt lgkmcnt(0)\ns_barrier")
    stamp("Bc")
    o = XR
    a(f"s_cmp_ge_u32 s2, {NP}\ns_cbranch_scc1 K_NOST")
    for u in range(2): a(f"ds_read_b128 v[{o+4*u}:{o+4*u+3}], v10 offset:{L_SPAY + 8192*u}")
    a(f"s_cmp_ge_u32 {sW}, 4\ns_cbranch_scc1 K_ST1")
    a(f"ds_read_b128 v[{o+8}:{o+11}], v10 offset:{L_SPAY + 16384}")
    a(f"s_waitcnt lgkmcnt(0)\nbuffer_store_dwordx4 v[{o+8}:{o+11}], v10, {WSR}, s59 offen sc1")
    a(f"K_ST1:\ns_waitcnt lgkmcnt(1)\nbuffer_store_dwordx4 v[{o}:{o+3}], v10, {WSR}, s56 offen sc1")
    a(f"s_waitcnt lgkmcnt(0)\nbuffer_store_dwordx4 v[{o+4}:{o+7}], v10, {WSR}, s57 offen sc1")
    a("K_NOST:")
    if P.get("pfd"):
        pfetch("K_NOPFD", P["pfd"], P.get("pfc", 0)); a("K_NOPFD:")
    RW, RC, RM = OFFS, NODE, TP
    a(f"s_lshr_b32 s56, s34, 10\ns_sub_u32 s56, s56, {sNs}\ns_sub_u32 s56, s56, 39\ns_lshl_b32 s56, s56, 6\ns_add_u32 s56, s56, {L_MAP}")
    a(f"v_add_u32 v2, s56, v1\nv_add_u32 v13, {L_WR}, v15\nds_read_u8 v2, v2")
    a(f"ds_read2st64_b32 v[{RW}:{RW+1}], v13 offset0:0 offset1:1\nds_read2st64_b32 v[{RW+2}:{RW+3}], v13 offset0:2 offset1:3")
    a(f"v_and_b32 v12, 3, v1\nv_lshlrev_b32 v12, 5, v12\nv_bfe_u32 v13, v1, 2, 2\nv_lshl_or_b32 v12, v13, 1, v12\nv_add_u32 v12, {L_CG}, v12")
    for f_ in range(4): a(f"ds_read_u16 v{RC+f_}, v12 offset:{f_*8}")
    a(f"v_mov_b32 v{vPm}, v3\nv_xor_b32 v{vPo}, 1024, v3\nv_mul_u32_u24 v{AOP+1}, {FS}, v0")
    a(f"s_mov_b32 s56, {f32(-LOG2E)}\ns_waitcnt lgkmcnt(0)")
    w = TP + 16
    for h in range(2):
        for k in range(4):
            a(f"v_lshlrev_b32 v{w+k}, 16, v{RW+k}" if h == 0 else f"v_and_b32 v{w+k}, 0xffff0000, v{RW+k}")
            a(f"v_mul_f32 v{w+4+k}, s56, v{w+k}")
        oo = WF + 4*h
        a(f"v_cvt_pk_bf16_f32 v{oo}, v{w+4}, v{w+5}\nv_cvt_pk_bf16_f32 v{oo+1}, v{w+6}, v{w+7}")
        if not P.get("nolo"):
            for k in range(4):
                a(f"v_lshlrev_b32 v{w+4+k}, 16, v{oo + k//2}" if k % 2 == 0 else f"v_and_b32 v{w+4+k}, 0xffff0000, v{oo + k//2}")
                a(f"v_fma_f32 v{w+4+k}, s56, v{w+k}, -v{w+4+k}")
            a(f"v_cvt_pk_bf16_f32 v{oo+2}, v{w+4}, v{w+5}\nv_cvt_pk_bf16_f32 v{oo+3}, v{w+6}, v{w+7}")
    a(f"v_lshl_or_b32 v{w}, v{RC+1}, 16, v{RC}\nv_lshl_or_b32 v{w+1}, v{RC+3}, 16, v{RC+2}\nv_lshrrev_b32 v13, 4, v1")
    for gg in range(4):
        a(f"v_cmp_eq_u32 vcc, {gg}, v13")
        a(f"v_cndmask_b32 v{CGF+2*gg}, 0, v{w}, vcc\nv_cndmask_b32 v{CGF+2*gg+1}, 0, v{w+1}, vcc")
    a(f"v_mul_u32_u24 v13, {4*CH}, v1")
    def wmextract():
        a(f"s_and_b32 s56, {sW}, 3\ns_lshl_b32 s56, s56, 6\ns_add_u32 s56, s56, {L_WM}")
        a("v_lshrrev_b32 v10, 4, v1\nv_lshlrev_b32 v10, 11, v10\nv_and_b32 v12, 15, v1\nv_lshl_or_b32 v10, v12, 2, v10\nv_add_u32 v10, s56, v10")
        a("s_mov_b32 s56, 0x05040100\ns_mov_b32 s57, 0x07060302")
        for ks in range(4):
            for i in range(4): a(f"ds_read2st64_b32 v[{RM+8*ks+2*i}:{RM+8*ks+2*i+1}], v10 offset0:{32*ks+2*i} offset1:{32*ks+2*i+1}")
        for ks in range(4):
            for i in range(4):
                a(f"s_waitcnt lgkmcnt({15 - 4*ks - i})")
                a(f"v_perm_b32 v{BF+4*ks+i}, v{RM+8*ks+2*i+1}, v{RM+8*ks+2*i}, s56")
                a(f"v_perm_b32 v{BF+16+4*ks+i}, v{RM+8*ks+2*i+1}, v{RM+8*ks+2*i}, s57")
    a(f"s_cmp_ge_u32 {sW}, 4\ns_cbranch_scc1 K_TABOK")
    a(f"s_mov_b32 s59, {P.get('timeout', 40000)}\ns_lshr_b32 s58, s58, 22")
    a(f"K_POLLA:\nbuffer_load_dwordx2 v[{TA}:{TA+1}], v11, {WSR}, s61 offen sc1\ns_waitcnt vmcnt(0)")
    a(f"v_lshrrev_b32 v{TA+2}, 22, v{TA}\nv_cmp_ne_u32 vcc, {sTag}, v{TA+1}\nv_cmp_ne_u32 s[56:57], s58, v{TA+2}\ns_or_b64 vcc, vcc, s[56:57]")
    if P.get("force_fb"): a("s_mov_b64 vcc, -1")
    a("s_cbranch_vccz K_POLLAOK")
    a(f"s_sub_u32 s59, s59, 1\ns_cbranch_scc0 K_POLLA")
    a(f"ds_write_b32 v4, v14 offset:{L_FB}")
    a(f"K_POLLAOK:\nds_write_b32 v3, v{TA} offset:{L_TABL}")
    a("K_TABOK:\ns_waitcnt vmcnt(0) lgkmcnt(0)\ns_barrier")
    stamp("Bx")
    a(f"s_cmp_lg_u32 {sW}, 4\ns_cbranch_scc1 K_NOFLAG")
    a(f"s_mul_i32 s56, s2, {FS}\ns_add_u32 s56, s56, {WS_FLG}\nv_mov_b32 v10, {sTag}\ns_mov_b64 exec, 1")
    a(f"buffer_store_dword v10, v4, {WSR}, s56 offen sc1\ns_mov_b64 exec, -1\nK_NOFLAG:")
    a(f"ds_read_b128 v[{TP}:{TP+3}], v9 offset:{L_TABL}\nds_read_b32 v10, v4 offset:{L_FB}")
    if P.get("pfx"):
        pfetch("K_NOPFX", P["pfx"], P.get("pfc", 0) + P.get("pfd", 0)); a("K_NOPFX:")
    a("s_waitcnt lgkmcnt(0)")
    a(f"v_readfirstlane_b32 {sFB}, v10")
    c = TP + 4; p = TP + 8
    for i in range(4): a(f"v_bfe_u32 v{c+i}, v{TP+i}, 11, 11")
    a(f"v_add_u32 v{p+1}, v{c}, v{c+1}\nv_add_u32 v{p+2}, v{p+1}, v{c+2}\nv_add_u32 v{p+3}, v{p+2}, v{c+3}\nv_mov_b32 v{p+4}, v{p+3}")
    fill = []
    for i in range(4):
        fill.append(f"v_and_b32 v{TP+i}, 0x7ff, v{TP+i}")
        fill.append(f"v_add_u32 v{PD+i}, v13, v{TP+i}")
        if i: fill.append(f"v_add_u32 v{PD+i}, {i*CH}, v{PD+i}")
    for k in range(6):
        for x in fill[2*k:2*k+2]: a(x)
        a(f"v_add_u32_dpp v{p+4}, v{p+4}, v{p+4} {DPP[k]}")
    a(f"s_cmp_lg_u32 {sFB}, 0\ns_cbranch_scc1 K_FB0")
    a(f"v_readlane_b32 {sT}, v{p+4}, 63")
    a(f"v_sub_u32 v{PP}, v{p+4}, v{p+3}")
    a(f"v_add_u32 v{PP+1}, v{PP}, v{c}\nv_add_u32 v{PP+2}, v{PP}, v{p+1}\nv_add_u32 v{PP+3}, v{PP}, v{p+2}")
    for i in range(4):
        a(f"v_sub_u32 v{PD+i}, v{PD+i}, v{PP+i}\nv_add_u32 v{PL+i}, v{PP+i}, v{c+i}")
    m = XR; f = m + 12; KEY = m + 16; RK = m + 22; ad = m + 25; CD = m + 28; PAYR = m + 32; PA = m + 44; CI = m + 47; q = m + 52
    FL = AOP
    a("K_ROUND:")
    a(f"s_mul_i32 s56, {sW}, {CAPW}\ns_add_u32 s56, s56, {sRB}\ns_add_u32 s57, s56, {CAPW}")
    a(f"s_lshl_b32 s58, {sW}, 10\ns_add_u32 s58, s58, {L_MARK}")
    for i in range(4):
        a(f"v_cmp_lt_u32 vcc, s56, v{PL+i}\nv_cmp_gt_u32 s[60:61], s57, v{PP+i}")
        a(f"v_subrev_u32 v{m+i}, s56, v{PP+i}\nv_max_i32 v{m+i}, 0, v{m+i}\nv_lshl_add_u32 v{m+i}, v{m+i}, 2, s58")
        a(f"s_and_b64 exec, vcc, s[60:61]\nds_max_u32 v{m+i}, v{PD+i}\ns_mov_b64 exec, -1")
    a(f"v_add_u32 v{m+4}, s58, v15")
    for u in range(3): a(f"ds_read_b32 v{m+8+u}, v{m+4} offset:{u*256}")
    a(f"v_add_u32 v{f}, s56, v1\nv_add_u32 v{f+1}, 64, v{f}\nv_add_u32 v{f+2}, 128, v{f}")
    for u in range(3): a(f"v_cmp_gt_u32 {M(u)}, {sT}, v{f+u}")
    a(f"s_mov_b32 s60, {WS_KEY}\ns_mov_b32 s61, {WS_PAY}\ns_lshr_b32 s62, {sT8}, 24")
    a("s_waitcnt lgkmcnt(0)")
    scan_incl(a, "v_max_u32", [m+8, m+9, m+10])
    a(f"v_readlane_b32 s56, v{m+8}, 63\nv_readlane_b32 s57, v{m+9}, 63\nv_add_u32 v{f}, v{f}, v{m+8}")
    a(f"s_max_u32 s57, s56, s57")
    a(f"v_max_u32 v{m+9}, s56, v{m+9}\nv_max_u32 v{m+10}, s57, v{m+10}")
    a(f"v_add_u32 v{f+1}, v{f+1}, v{m+9}\nv_add_u32 v{f+2}, v{f+2}, v{m+10}")
    for u in range(3): a(f"v_lshlrev_b32 v{ad+u}, 3, v{f+u}")
    stamp("marks")
    def keyloads():
        for u in range(3):
            a(f"s_mov_b64 exec, {M(u)}\nbuffer_load_dwordx2 v[{KEY+2*u}:{KEY+2*u+1}], v{ad+u}, {WSR}, s60 offen sc1")
        a("s_mov_b64 exec, -1")
    keyloads()
    for u in range(3): a(f"v_lshlrev_b32 v{PA+u}, 4, v{f+u}")
    a(f"s_cmp_lg_u32 {sRB}, 0\ns_cbranch_scc1 K_KEYS1")
    TWO = P.get("two", 0); M2 = lambda u: ("s[0:1]", "s[20:21]", "s[22:23]")[u]
    if TWO:
        for u in range(3): a(f"v_lshrrev_b32 v{f+u}, 8, v{f+u}\nv_mul_u32_u24 v{f+u}, 52429, v{f+u}\nv_lshrrev_b32 v{f+u}, 18, v{f+u}\nv_lshlrev_b32 v{f+u}, 2, v{f+u}")
    wmextract()
    stamp("wmx")
    a("s_branch K_KEYS1\nK_KEYS:")
    keyloads()
    a(f"K_KEYS1:\nv_mov_b32 v14, 64\ns_mov_b64 s[58:59], 0")
    for u in range(3):
        a(f"s_waitcnt vmcnt({2-u})")
        a(f"v_lshrrev_b32 v{RK+u}, 24, v{KEY+2*u}\nv_cmp_ne_u32 vcc, {sTag}, v{KEY+2*u+1}\nv_cmp_ne_u32 s[56:57], s62, v{RK+u}")
        a(f"s_or_b64 vcc, vcc, s[56:57]\ns_and_b64 vcc, vcc, {M(u)}\ns_or_b64 s[58:59], s[58:59], vcc")
    a("s_cbranch_scc1 K_KEYS")
    stamp("keys")
    def payloads():
        for u in range(3):
            a(f"s_mov_b64 exec, {M(u)}\nbuffer_load_dwordx4 v[{PAYR+4*u}:{PAYR+4*u+3}], v{PA+u}, {WSR}, s61 offen sc1")
        a("s_mov_b64 exec, -1")
    a(f"s_cmp_lg_u32 {sRB}, 0\ns_cbranch_scc1 K_LATER")
    a(f"s_mov_b32 s62, {WS_FLG}\ns_cmp_lt_u32 {sW}, 4\ns_cbranch_scc0 K_GOT\nbuffer_load_dword v{FL}, v{FL+1}, {WSR}, s62 offen sc1")
    a("K_GOT:")
    for u in range(3):
        a(f"v_lshrrev_b32 v{ad+u}, 2, v{KEY+2*u}\nv_and_b32 v{ad+u}, 0xfc, v{ad+u}")
    for u in range(3): a(f"s_mov_b64 exec, {M(u)}\nds_add_u32 v{ad+u}, v14 offset:{L_DEG}")
    a("s_mov_b64 exec, -1")
    if P.get("pfk"):
        pfetch("K_NOPFK", P["pfk"], P.get("pfc", 0) + P.get("pfd", 0) + P.get("pfx", 0)); a("K_NOPFK:")
    a(f"s_lshr_b32 s56, {sW}, 2\ns_or_b32 s56, s56, {sFB}\ns_cbranch_scc1 K_POLLBOK")
    if not TWO:
        a(f"K_POLLB:\ns_waitcnt vmcnt(0)\nv_cmp_ne_u32 vcc, {sTag}, v{FL}\ns_cbranch_vccz K_POLLBOK")
        a(f"buffer_load_dword v{FL}, v{FL+1}, {WSR}, s62 offen sc1\ns_branch K_POLLB")
        a("K_POLLBOK:\ns_waitcnt lgkmcnt(0)")
        stamp("pollP")
        a("s_barrier")
        stamp("Bd")
        a(f"s_cmp_lg_u32 {sFB}, 0\ns_cbranch_scc1 K_NOPF")
        payloads()
        if P["pf"]: pfetch("K_NOPF")
        a("K_NOPF:")
    else:
        a(f"s_waitcnt vmcnt(0)\nds_write_b32 v3, v{FL} offset:{L_PRE}")
        a("K_POLLBOK:\ns_waitcnt lgkmcnt(0)")
        stamp("pollP")
        a("s_barrier")
        stamp("Bd")
        a(f"s_cmp_lg_u32 {sFB}, 0\ns_cbranch_scc1 K_NOPF")
        for u in range(3): a(f"ds_read_b32 v{f+u}, v{f+u} offset:{L_PRE}")
        for u in range(3):
            a(f"s_waitcnt lgkmcnt({2-u})\nv_cmp_eq_u32 vcc, {sTag}, v{f+u}\ns_andn2_b64 {M2(u)}, {M(u)}, vcc\ns_and_b64 exec, {M(u)}, vcc")
            a(f"buffer_load_dwordx4 v[{PAYR+4*u}:{PAYR+4*u+3}], v{PA+u}, {WSR}, s61 offen sc1\ns_mov_b64 exec, -1")
        a(f"s_cmp_lt_u32 {sW}, 4\ns_cbranch_scc0 K_NOPF\nv_cmp_ne_u32 vcc, {sTag}, v{FL}\ns_cbranch_vccz K_NOPF\nbuffer_load_dword v{FL}, v{FL+1}, {WSR}, s62 offen sc1\ns_mov_b32 s63, 1")
        a("K_NOPF:")
    KK = TP; MI = EE
    a(f"ds_read_b32 v{MI}, v15 offset:{L_DEG}")
    for jj in range(10): a(f"ds_read_b128 v[{KK+4*jj}:{KK+4*jj+3}], v4 offset:{L_DEG+16*jj}")
    a("v_cmp_gt_u32 vcc, 40, v1")
    for jj in range(20):
        if jj % 2 == 0: a(f"s_waitcnt lgkmcnt({9 - jj//2})")
        tt = KK + 2*jj
        a(f"v_pk_add_f32 v[{tt}:{tt+1}], v[{tt}:{tt+1}], v[{MI}:{MI+1}] op_sel_hi:[1,0] neg_lo:[0,1] neg_hi:[0,1] clamp")
        if jj >= 2: a(f"v_pk_add_f32 v[{tt}:{tt+1}], v[{tt}:{tt+1}], v[{tt-4}:{tt-3}]")
    tt = KK + 38
    a(f"v_pk_add_f32 v[{tt}:{tt+1}], v[{tt}:{tt+1}], v[{tt-2}:{tt-1}]")
    a(f"v_add_f32 v{tt}, v{tt}, v{tt+1}\nv_cvt_u32_f32 v{tt}, v{tt}\nv_lshlrev_b32 v{tt}, 2, v{tt}")
    a(f"ds_bpermute_b32 v2, v{tt}, v2\ns_waitcnt lgkmcnt(0)\nv_cndmask_b32 v2, -1, v2, vcc")
    a("K_BAL:")
    for u in range(3): a(f"ds_bpermute_b32 v{CD+u}, v{ad+u}, v2")
    a("v_mov_b32 v14, 1\nv_lshlrev_b32 v10, 3, v1")
    a(f"s_lshr_b32 s56, {sBin}, 4\ns_and_b32 s56, s56, 14")
    for u in range(3): a(f"v_subrev_u32 v{CI+u}, s56, v{KEY+2*u}\nv_and_b32 v{CI+u}, {P.get('bmask', 15)}, v{CI+u}")
    for u in range(3):
        a(f"s_waitcnt lgkmcnt(2)\ns_mov_b64 exec, {M(u)}")
        a(f"v_and_b32 v{ad+u}, 7, v{CD+u}\nv_lshl_or_b32 v{CI+u}, v{ad+u}, 4, v{CI+u}\nv_lshlrev_b32 v{ad+u}, 2, v{CI+u}")
        a(f"ds_add_rtn_u32 v{RK+u}, v{ad+u}, v14 offset:{L_CNT}")
    a("s_mov_b64 exec, -1")
    for u in range(3):
        a(f"v_lshlrev_b32 v{ad+u}, 1, v{CI+u}\nv_lshlrev_b32 v{CI+u}, 4, v{CI+u}")
        a(f"v_and_b32 v{CD+u}, 0x38, v{CD+u}\nv_and_b32 v{KEY+2*u}, {P.get('xmask', 0xfffc00)}, v{KEY+2*u}")
    a(f"s_lshl_b32 s56, {sW}, 3\ns_add_u32 s57, s56, 7")
    a(f"v_lshrrev_b32 v{q+6}, 3, v1\nv_mul_u32_u24 v{q+6}, 48, v{q+6}")
    if TWO:
        a("s_cmp_eq_u32 s63, 0\ns_mov_b32 s63, 0\ns_cbranch_scc1 K_POLLCOK")
        a(f"K_POLLC:\ns_waitcnt vmcnt(0)\nv_cmp_ne_u32 vcc, {sTag}, v{FL}\ns_cbranch_vccz K_POLLCOK")
        a(f"buffer_load_dword v{FL}, v{FL+1}, {WSR}, s62 offen sc1\ns_branch K_POLLC\nK_POLLCOK:")
    a("s_waitcnt lgkmcnt(0)\ns_barrier")
    stamp("Be")
    a(f"ds_read_b64 v[{q}:{q+1}], v10 offset:{L_CNT}")
    if TWO:
        a(f"s_or_b32 s58, {sFB}, {sRB}\ns_cbranch_scc1 K_NOREST")
        a(f"s_or_b64 s[58:59], {M2(0)}, {M2(1)}\ns_or_b64 s[58:59], s[58:59], {M2(2)}\ns_cbranch_scc0 K_NOREST1")
        for u in range(3):
            a(f"s_mov_b64 exec, {M2(u)}\nbuffer_load_dwordx4 v[{PAYR+4*u}:{PAYR+4*u+3}], v{PA+u}, {WSR}, s61 offen sc1")
        a("s_mov_b64 exec, -1\nK_NOREST1:")
        if P["pf"]: pfetch("K_NOREST")
        a("K_NOREST:")
    a(f"s_sub_u32 s58, {sRot}, 1024\ns_cselect_b32 s58, {(N-1)*1024}, s58")
    a("s_waitcnt lgkmcnt(0)")
    a(f"v_add_u32 v{q+2}, v{q}, v{q+1}\nv_mov_b32 v{q+3}, v{q+2}")
    fill = ["v_and_b32 v12, 15, v1", "v_lshrrev_b32 v11, 4, v1", "v_lshlrev_b32 v11, 3, v11", "v_lshl_add_u32 v11, v12, 5, v11",
            f"v_mov_b32 v{q+7}, s58", f"v_mov_b32 v{vPv}, 0"]
    if P.get("aswz", 0):
        fill = ["v_and_b32 v12, 15, v1", "v_lshrrev_b32 v11, 2, v1", "v_and_b32 v11, 8, v11", "v_xor_b32 v11, v11, v1",
                f"v_mov_b32 v{q+7}, s58", f"v_mov_b32 v{vPv}, 0", "v_lshlrev_b32 v11, 3, v11", "v_lshrrev_b32 v13, 2, v1",
                "v_and_b32 v10, 3, v1", "v_lshl_or_b32 v13, v10, 4, v13", "v_lshlrev_b32 v10, 2, v10", "v_and_b32 v10, 8, v10"]
    for k in range(6):
        for x in fill[2*k:2*k+2]: a(x)
        a(f"v_add_u32_dpp v{q+3}, v{q+3}, v{q+3} {DPP[k]}")
    a(f"v_sub_u32 v{q+2}, v{q+3}, v{q+2}")
    a(f"v_readlane_b32 {sLen}, v{q+3}, s57")
    if P.get("aswz", 0): a("v_xor_b32 v10, v10, v13\nv_lshlrev_b32 v10, 3, v10")
    a(f"v_mov_b32_dpp v{q+4}, v{q+2} row_newbcast:0 row_mask:0xf bank_mask:0x3")
    a(f"v_readlane_b32 s58, v{q+2}, s56")
    a(f"v_mov_b32_dpp v{q+4}, v{q+2} row_newbcast:8 row_mask:0xf bank_mask:0xc")
    a(f"v_add_u32 v{q+5}, 15, v{q+4}\nv_and_b32 v{q+5}, -16, v{q+5}\nv_add_u32 v{q+5}, v{q+5}, v{q+6}")
    a(f"v_sub_u32 v{q+4}, v{q+5}, v{q+4}\nv_add_u32 v{q+4}, v{q+4}, v{q+2}")
    a(f"v_add_u32 v{q}, v{q+4}, v{q}\nv_lshl_or_b32 v{q}, v{q}, 16, v{q+4}")
    a(f"v_readlane_b32 {sBase}, v{q+5}, s56")
    for u in range(3): a(f"ds_bpermute_b32 v{ad+u}, v{ad+u}, v{q}")
    a(f"s_sub_u32 {sLen}, {sLen}, s58\ns_add_u32 s56, {sBase}, {sLen}")
    a(f"v_add_u32 v{q+1}, s56, v1\nv_lshlrev_b32 v{q+2}, 2, v{q+1}\nv_lshlrev_b32 v{q+3}, 4, v{q+1}")
    a("s_mov_b64 exec, 0xfffff")
    a(f"ds_write_b32 v{q+2}, v{q+7} offset:{L_OFF}\nds_write_b8 v{q+1}, v4 offset:{L_NODE}\nds_write_b128 v{q+3}, v[4:7] offset:{L_PAY}")
    for u in range(3):
        a(f"s_mov_b64 exec, {M(u)}\ns_waitcnt lgkmcnt({5 + u})")
        a(f"v_bfe_u32 v{ad+u}, v{ad+u}, v{CI+u}, 16\nv_add_u32 v{ad+u}, v{ad+u}, v{RK+u}")
        a(f"v_lshlrev_b32 v{RK+u}, 2, v{ad+u}\nv_lshlrev_b32 v{CI+u}, 4, v{ad+u}")
        a(f"ds_write_b32 v{RK+u}, v{KEY+2*u} offset:{L_OFF}\nds_write_b8 v{ad+u}, v{CD+u} offset:{L_NODE}")
    EP = P.get("epre", 0); PA5 = [XR + 50, XR + 51, XR + 60, XR + 61, XR + 62]
    if EP:
        P["ring"] = 8
        a("s_mov_b64 exec, -1")
        for sl in range(5):
            a(f"s_add_u32 s58, {sW}, {8*sl}\nv_cmp_eq_u32 vcc, s58, v2\ns_ff1_i32_b64 s58, vcc\ns_mul_i32 s58, s58, {4*RS}\ns_add_u32 s58, s58, {L_AGG}\nv_add_u32 v{PA5[sl]}, s58, v15")
    XE = P.get("xearly", 0); XO = P.get("xorder", 0); xaux = P.get("xaux", "")
    def xloads(wait):
        for n in range(DE):
            if wait is not None and n % 4 == 0: a(f"s_waitcnt lgkmcnt({ngr - 1 - n//4 + wait})")
            if SAFE: a(f"v_add_u32 v{TP+n}, v9, v{TP+n}")
            a(f"buffer_load_dwordx4 v[{XR+4*n}:{XR+4*n+3}], v{TP+n}, {XS}, 0 offen {xaux}")
    def addrs():
        a(f"s_lshl_b32 s56, {sBase}, 2\ns_add_u32 s56, s56, {L_OFF}\nv_mov_b32 v{vOffA}, s56")
        a(f"s_add_u32 s56, {sBase}, {L_NODE}\nv_mov_b32 v{vNodeA}, s56")
        a(f"s_lshl_b32 s56, {sBase}, 5\ns_add_u32 s56, s56, {L_A}\nv_add_u32 v{vAA}, s56, v10\nv_add_u32 v11, s56, v11")
        a(f"s_lshl_b32 s57, {sBase}, 4\ns_add_u32 s57, s57, {L_PAY}")
        a(f"v_lshl_add_u32 v{vEfA}, v12, 4, s57\nv_add_u32 v10, s57, v9")
        a(f"s_add_u32 {sG}, {sLen}, 3\ns_lshr_b32 {sG}, {sG}, 2")
    def paywait(nx):
        if P["pf"]:
            a(f"s_cmp_lt_u32 {sW}, {8-P['pf']}\ns_cselect_b32 s56, 1, {sRB}\ns_or_b32 s56, s56, {sFB}\ns_cbranch_scc0 K_PW1\ns_waitcnt vmcnt({nx})\nK_PW1:\ns_waitcnt vmcnt({nx+1})")
        else: a(f"s_waitcnt vmcnt({nx})")
        for u in range(3): a(f"s_mov_b64 exec, {M(u)}\nds_write_b128 v{CI+u}, v[{PAYR+4*u}:{PAYR+4*u+3}] offset:{L_PAY}")
        a("s_mov_b64 exec, -1")
    if XE:
        assert DE == 8
        a("s_mov_b64 exec, -1")
        addrs()
        a("s_waitcnt lgkmcnt(0)\ns_barrier")
        stamp("Bf1")
        for gg in range(ngr): a(f"ds_read_b128 v[{TP+4*gg}:{TP+4*gg+3}], v{vOffA} offset:{16*gg}")
        a(f"ds_read2_b64 v[{OFFS}:{OFFS+3}], v{vOffA} offset0:{DE//2} offset1:{DE//2+1}\nds_read_b128 v[{NODE}:{NODE+3}], v{vNodeA}")
        xloads(2)
        paywait(DE)
        a("s_waitcnt lgkmcnt(0)\ns_barrier")
        stamp("Bf")
        a(f"s_cmp_eq_u32 {sG}, 0\ns_cbranch_scc1 K2_LOOPDONE")
        a(f"ds_read_b64 v[{TA}:{TA+1}], v10\nds_read_b64 v[{EF}:{EF+1}], v{vEfA} offset:8\ns_lshl_b32 s56, {sG}, 2")
    else:
        paywait(0)
        addrs()
        a("s_waitcnt lgkmcnt(0)\ns_barrier")
        stamp("Bf")
        a(f"s_cmp_eq_u32 {sG}, 0\ns_cbranch_scc1 K2_LOOPDONE")
        for gg in range(ngr): a(f"ds_read_b128 v[{TP+4*gg}:{TP+4*gg+3}], v{vOffA} offset:{16*gg}")
        a(f"ds_read_b64 v[{TA}:{TA+1}], v10\nds_read2_b64 v[{OFFS}:{OFFS+3}], v{vOffA} offset0:{DE//2} offset1:{DE//2+1}")
        a(f"ds_read_b64 v[{EF}:{EF+1}], v{vEfA} offset:8\nds_read_b128 v[{NODE}:{NODE+3}], v{vNodeA}\ns_lshl_b32 s56, {sG}, 2")
        if XO: a(f"s_cmp_ge_u32 {sW}, 4\ns_cbranch_scc1 K_XL1")
        xloads(4)
        if XO: a("K_XL1:")
    stamp("xiss")
    if P.get("afold"): a(f"s_mov_b32 s58, {f32(-LN2)}\ns_mov_b32 s59, s58")
    a("K_APREP:")
    a(f"v_cmp_gt_u32 vcc, s56, v1")
    a("s_waitcnt lgkmcnt(0)")
    a(f"v_cndmask_b32 v{TB}, 0, v{TA}, vcc\nv_cndmask_b32 v{TB+1}, 0, v{TA+1}, vcc")
    a(f"ds_read_b64 v[{TA}:{TA+1}], v10 offset:1024\nv_add_u32 v10, 1024, v10")
    for gg in range(4):
        a(f"v_mfma_f32_16x16x16_bf16 v[{TP+16+4*gg}:{TP+19+4*gg}], v[{CGF+2*gg}:{CGF+2*gg+1}], v[{TB}:{TB+1}], 0")
    for gg in range(4):
        if P.get("afold"):
            for k in range(2): a(f"v_pk_mul_f32 v[{TP+16+4*gg+2*k}:{TP+17+4*gg+2*k}], v[{TP+16+4*gg+2*k}:{TP+17+4*gg+2*k}], s[58:59]")
        a(f"v_cvt_pk_bf16_f32 v{EE+2*gg}, v{TP+16+4*gg}, v{TP+17+4*gg}\nv_cvt_pk_bf16_f32 v{EE+2*gg+1}, v{TP+18+4*gg}, v{TP+19+4*gg}")
        a(f"ds_write_b64 v11, v[{EE+2*gg}:{EE+2*gg+1}] offset:{512*gg}")
        a(f"s_sub_u32 s56, s56, 16\ns_cmp_le_i32 s56, 0\ns_cbranch_scc1 K_APDONE")
    a("v_add_u32 v11, 2048, v11\ns_branch K_APREP")
    a("K_APDONE:")
    if XO:
        a(f"s_cmp_lt_u32 {sW}, 4\ns_cbranch_scc1 K_XL2")
        xloads(None)
        a("K_XL2:")
    a(f"s_waitcnt lgkmcnt(0)\nds_read_b64 v[{AOP}:{AOP+1}], v{vAA}")
    for x in pre_mfmas(dict(EF=EF, WF=WF), TA, 0, P): a(x)
    stamp("loop0")
    if P.get("ts"): a("s_memtime s[66:67]")
    if P.get("drain"): a(f"s_sub_u32 {sG}, {sG}, 3\ns_nop 2\ns_cbranch_scc1 K2_D0")
    else: a(f"s_sub_u32 {sG}, {sG}, 1\ns_nop 3")
    R = dict(ACC=ACC, XR=XR, TP=TP, TA=TA, TB=TB, EE=EE, WF=WF, AOP=AOP, EF=EF, OFFS=OFFS, NODE=NODE, vOffA=vOffA, vNodeA=vNodeA,
             vAA=vAA, vEfA=vEfA, sG=sG, sN=sN, vPm=vPm, vPo=vPo, vPv=vPv, XS=XS, sRot=sRot, vPt=255, RING=P.get("ring", 16))
    gen_loop(a, R, P, dict(PROG=L_PROG))
    if P.get("ts"): a("s_memtime s[68:69]")
    stamp("loop1")
    if PR.startswith("pair"):
        a(f"v_mov_b32 v{vPv}, -1\nds_write_b32 v{vPm}, v{vPv} offset:{L_PROG}\ns_setprio 0")
    a(f"s_add_u32 {sRB}, {sRB}, {CAP}\ns_cmp_ge_u32 {sRB}, {sT}\ns_cbranch_scc1 K_EPI")
    a("s_waitcnt vmcnt(0) lgkmcnt(0)\ns_barrier")
    a(f"ds_write_b128 v8, v[4:7]\nds_write_b32 v3, v4 offset:{L_PROG}")
    a(f"v_cmp_gt_u32 vcc, 128, v0\ns_and_saveexec_b64 s[56:57], vcc\nds_write_b32 v3, v4 offset:{L_CNT}\ns_mov_b64 exec, s[56:57]")
    a("s_waitcnt lgkmcnt(0)\ns_barrier")
    a(f"s_cmp_eq_u32 {sFB}, 0\ns_cbranch_scc1 K_ROUND\ns_branch K_FB")
    a("K_LATER:")
    payloads()
    a("K_LATER2:")
    for u in range(3): a(f"v_lshrrev_b32 v{ad+u}, 2, v{KEY+2*u}\nv_and_b32 v{ad+u}, 0xfc, v{ad+u}")
    a("s_branch K_BAL")
    a(f"K_FB0:\ns_mov_b32 {sT}, {E}")
    wmextract()
    a("K_FB:")
    a(f"s_mul_i32 s56, {sW}, {CAPW}\ns_add_u32 s56, s56, {sRB}")
    a(f"v_add_u32 v{f}, s56, v1\nv_add_u32 v{f+1}, 64, v{f}\nv_add_u32 v{f+2}, 128, v{f}")
    for u in range(3):
        a(f"v_cmp_gt_u32 {M(u)}, {sT}, v{f+u}\nv_min_u32 v{f+u}, {E-1}, v{f+u}\nv_lshlrev_b32 v{ad+u}, 2, v{f+u}\nv_lshlrev_b32 v{PA+u}, 3, v{f+u}")
        a(f"global_load_dword v{m+u}, v{ad+u}, s[8:9]\nglobal_load_dword v{m+4+u}, v{ad+u}, s[6:7]")
        a(f"global_load_dwordx2 v[{PAYR+4*u}:{PAYR+4*u+1}], v{PA+u}, s[10:11]\nglobal_load_dwordx2 v[{PAYR+4*u+2}:{PAYR+4*u+3}], v{PA+u}, s[12:13]")
    a(f"v_mov_b32 v14, 64\ns_waitcnt vmcnt(0)")
    for u in range(3):
        a(f"v_mul_u32_u24 v{f+u}, 214749, v{m+u}\nv_lshrrev_b32 v{f+u}, 23, v{f+u}\nv_cmp_eq_u32 vcc, {sBin}, v{f+u}\ns_and_b64 {M(u)}, {M(u)}, vcc")
        a(f"v_subrev_u32 v{KEY+2*u}, {sNs}, v{m+u}")
        keycalc2(m+4+u, KEY+2*u, f+u)
    a(f"s_cmp_lg_u32 {sRB}, 0\ns_cbranch_scc1 K_LATER2\ns_branch K_GOT")
    a("K_EPI:")
    SPLIT = P.get("split", 0)
    if SPLIT:
        L_GC = 1800
        NO = TA
        a(f"v_and_b32 v10, 7, v2\nv_bfe_u32 v11, v2, 3, 3\nv_mad_u32_u24 v10, v10, 5, v11\nv_lshlrev_b32 v10, 2, v10")
        a(f"s_lshr_b32 s59, {sW}, 2\ns_mul_i32 s60, s59, 80\nv_lshrrev_b32 v13, 4, v1\nv_lshl_add_u32 v11, v13, 2, s60")
        a("ds_permute_b32 v10, v10, v1")
        a(f"s_mov_b32 s56, {f32(-LN2)}\ns_mov_b32 s57, s56\ns_mul_i32 s58, {sW}, {20*RS}\ns_add_u32 s58, s58, {L_AGG}\nv_add_u32 v14, s58, v15")
        for k in range(0 if P.get("afold") else 4): a(f"v_pk_mul_f32 v[{ACC+2*k}:{ACC+2*k+1}], v[{ACC+2*k}:{ACC+2*k+1}], s[56:57]")
        a("s_waitcnt lgkmcnt(0)")
        for i_ in range(5): a(f"ds_bpermute_b32 v{NO+i_}, v11, v10 offset:{16*i_}")
        for sl in range(5):
            if sl:
                for k in range(0 if P.get("afold") else 4): a(f"v_pk_mul_f32 v[{ACC+8*sl+2*k}:{ACC+8*sl+2*k+1}], v[{ACC+8*sl+2*k}:{ACC+8*sl+2*k+1}], s[56:57]")
            for mm in range(4):
                a(f"v_cvt_pk_bf16_f32 v{ACC+8*sl+mm}, v{ACC+8*sl+mm}, v{ACC+8*sl+4+mm}")
                a(f"ds_write_b32 v14, v{ACC+8*sl+mm} offset:{RS*(4*sl+mm)}")
        a(f"s_lshl_b32 s61, s59, 2\nv_mov_b32 v10, s61\nv_mov_b32 v11, 1\nv_and_b32 v12, 15, v1")
        a(f"s_mul_i32 s59, s59, {80*RS}\ns_add_u32 s59, s59, {L_AGG}")
        a(f"v_mul_u32_u24 v14, {RS}, v12\nv_lshl_add_u32 v14, v13, 4, v14\nv_add_u32 v14, s59, v14")
        a(f"s_lshl_b32 s58, {sNs}, 10\ns_and_b32 s59, {sW}, 3\ns_lshl_b32 s59, s59, 8\ns_add_u32 s58, s58, s59\nv_lshlrev_b32 v12, 4, v12")
        a(f"s_waitcnt lgkmcnt(0)\ns_mov_b64 exec, 1\nds_add_u32 v10, v11 offset:{L_GC}\ns_mov_b64 exec, -1")
        for i_ in range(5): a(f"v_lshl_add_u32 v{NO+i_}, v{NO+i_}, 10, v12")
        a(f"K_GW:\nds_read_b32 v11, v10 offset:{L_GC}\ns_waitcnt lgkmcnt(0)\nv_readfirstlane_b32 s59, v11\ns_cmp_ge_u32 s59, 4\ns_cbranch_scc1 K_GW1\ns_sleep 1\ns_branch K_GW\nK_GW1:")
        a("s_waitcnt vmcnt(0)")
        stamp("Bg")
    else:
        a(f"s_mov_b32 s56, {f32(-LN2)}\ns_mov_b32 s57, s56")
        for sl in range(5):
            if not EP: a(f"s_add_u32 s58, {sW}, {8*sl}\nv_cmp_eq_u32 vcc, s58, v2")
            for k in range(0 if P.get("afold") else 4): a(f"v_pk_mul_f32 v[{ACC+8*sl+2*k}:{ACC+8*sl+2*k+1}], v[{ACC+8*sl+2*k}:{ACC+8*sl+2*k+1}], s[56:57]")
            if not EP: a(f"s_ff1_i32_b64 s58, vcc\ns_mul_i32 s58, s58, {4*RS}\ns_add_u32 s58, s58, {L_AGG}\nv_add_u32 v{10 + sl%2}, s58, v15")
            for mm in range(4):
                a(f"v_cvt_pk_bf16_f32 v{ACC+8*sl+mm}, v{ACC+8*sl+mm}, v{ACC+8*sl+4+mm}")
                a(f"ds_write_b32 v{PA5[sl] if EP else 10 + sl%2}, v{ACC+8*sl+mm} offset:{RS*mm}")
        a(f"v_and_b32 v12, 15, v1\nv_lshrrev_b32 v13, 4, v1")
        a(f"s_lshr_b32 s58, {sW}, 2\ns_mul_i32 s59, s58, {16*RS}\ns_add_u32 s59, s59, {L_AGG}")
        a(f"v_mul_u32_u24 v14, {RS}, v12\nv_lshl_add_u32 v14, v13, 4, v14\nv_add_u32 v14, s59, v14")
        a(f"s_lshl_b32 s58, s58, 2\ns_add_u32 s58, s58, {sNs}\ns_lshl_b32 s58, s58, 10\ns_and_b32 s59, {sW}, 3\ns_lshl_b32 s59, s59, 8\ns_add_u32 s58, s58, s59")
        a(f"v_lshlrev_b32 v13, 10, v13\nv_lshl_add_u32 v13, v12, 4, v13")
        a("s_waitcnt vmcnt(0) lgkmcnt(0)\ns_barrier")
        stamp("Bg")
    TS_ = 16 * RS if SPLIT else 32 * RS
    FA = XR
    for i in range(4):
        for ks in range(4): a(f"ds_read_b128 v[{FA+16*i+4*ks}:{FA+16*i+4*ks+3}], v14 offset:{TS_*i + 64*ks}")
    ost = P["out_aux"]
    def outtile(i):
        Dp = TP + 8 * (i % 2); Op = TP + 16 + 4 * (i % 2)
        for k in range(4): a(f"v_cvt_pk_bf16_f32 v{Op+k}, v{Dp+2*k}, v{Dp+2*k+1}")
        a(f"buffer_store_dwordx4 v[{Op}:{Op+3}], v{TA+i if SPLIT else 13}, {OS}, s58 offen {ost}")
        if i < 4 and not SPLIT: a("s_add_u32 s58, s58, 8192")
    for i in range(5):
        Dd = TP + 8 * (i % 2); fi = FA + 16 * (i % 4)
        for ks in range(4):
            if i < 4: a(f"s_waitcnt lgkmcnt({min(15, 15 - 4*i - ks + (4 if i >= 1 else 0))})")
            else: a(f"s_waitcnt lgkmcnt({3 - ks})")
            for tt in range(2):
                b = BF + 16*tt + 4*ks
                a(f"v_mfma_f32_16x16x32_bf16 v[{Dd+4*tt}:{Dd+4*tt+3}], v[{fi+4*ks}:{fi+4*ks+3}], v[{b}:{b+3}], " + ("0" if ks == 0 else f"v[{Dd+4*tt}:{Dd+4*tt+3}]"))
        if i == 0:
            for ks in range(4): a(f"ds_read_b128 v[{FA+4*ks}:{FA+4*ks+3}], v14 offset:{TS_*4 + 64*ks}")
        if i >= 1: outtile(i - 1)
    outtile(4)
    a(f"s_or_b32 s56, {sFB}, {sW}")
    if P.get("epo") == "none": a("s_mov_b32 s56, 1")
    if P.get("epo") == "wg0": a("s_or_b32 s56, s56, s2")
    a("s_cmp_lg_u32 s56, 0\ns_cbranch_scc1 K_NOEPO")
    a(f"v_mov_b32 v10, {sTag}\ns_mov_b64 exec, 1\nbuffer_store_dword v10, v4, {WSR}, 0 offen offset:{WS_EPO} {P.get('epo_aux', '')}\nK_NOEPO:")
    if P.get("ts"):
        a("s_waitcnt vmcnt(0)"); stamp("end")
        a("s_waitcnt lgkmcnt(0)")
        a(f"s_lshl_b32 s98, s2, 3\ns_add_u32 s98, s98, s3\ns_lshl_b32 s98, s98, 6\ns_add_u32 s98, s98, {WS_TS}")
        a("s_mov_b64 exec, 1\nv_mov_b32 v2, s98")
        for i in range(tsn[0]): a(f"v_mov_b32 v3, s{70 + 2*i}\nglobal_store_dword v2, v3, s[24:25] offset:{4*i}")
        a(f"s_sub_u32 s68, s68, s66\nv_mov_b32 v3, s68\nglobal_store_dword v2, v3, s[24:25] offset:56\nv_mov_b32 v3, {sLen}\nglobal_store_dword v2, v3, s[24:25] offset:60")
        assert tsn[0] <= 14
    a("K_END:\ns_endpgm")
    a(".p2align 6\n.type K_TAB,@object\nK_TAB:")
    for A in (A39, A40):
        used = [0]*8; codes = []
        for ww in A: codes.append(ww | used[ww] << 3); used[ww] += 1
        assert used == [5]*8
        a(".byte " + ", ".join(str(cc) for cc in codes + [255]*24))
    body = a.text(verbose=verbose)
    ns = 100 if P.get("ts") else 72
    gen.nts = tsn[0]
    return (HEADER + f"; @launch grid=({NB},1,1) block=(512,1,1) lds={L_END}\n" + '.amdgcn_target "amdgcn-amd-amdhsa--gfx950"\n.text\n' + body
            + '.section .rodata,"a"\n' + desc(NAME, 256, ns))

if __name__ == "__main__":
    P = eval(sys.argv[2]) if len(sys.argv) > 2 else {}
    open(sys.argv[1], "w").write(gen(P, verbose=True))
```

```python
def pre_mfmas(R, T, ab, P):
    EF, WF = R["EF"], R["WF"]
    l = [f"v_mfma_f32_4x4x4_16b_bf16 v[{T}:{T+3}], v[{EF}:{EF+1}], v[{WF}:{WF+1}], 0 cbsz:4 abid:{ab}",
         f"v_mfma_f32_4x4x4_16b_bf16 v[{T+4}:{T+7}], v[{EF}:{EF+1}], v[{WF+4}:{WF+5}], 0 cbsz:4 abid:{ab}",
         f"v_mfma_f32_4x4x4_16b_bf16 v[{T}:{T+3}], v[{EF}:{EF+1}], v[{WF+2}:{WF+3}], v[{T}:{T+3}] cbsz:4 abid:{ab}",
         f"v_mfma_f32_4x4x4_16b_bf16 v[{T+4}:{T+7}], v[{EF}:{EF+1}], v[{WF+6}:{WF+7}], v[{T+4}:{T+7}] cbsz:4 abid:{ab}"]
    return l[:2] if P.get("nolo") else l

def gen_loop(a_real, R, P, L):
    g = R.get
    ACC, XR, TP, TA, TB, EE, AOP, EF, OFFS, NODE = (R[k] for k in "ACC XR TP TA TB EE AOP EF OFFS NODE".split())
    vOffA, vNodeA, vAA, vEfA, sG, sN = (R[k] for k in "vOffA vNodeA vAA vEfA sG sN".split())
    vPm, vPo, vPv = R["vPm"], R["vPo"], R["vPv"]
    DE = P.get("DE", 8); ng = DE // 4; RING = R.get("RING", 16)
    PR = P.get("prio", ""); SAFE = P.get("safe"); xaux = P.get("xaux", "")
    sched = P.get("sched", "a"); XS = R.get("XS", "s[8:11]")
    inc = (0, 0, 0, 0) if P.get("bench") else (64, 16, 512, 256)
    drop = tuple(P.get("nocomp", ()))
    def a(t):
        for l in t.split("\n"):
            if l.strip() and not (drop and l.strip().startswith(drop)): a_real(l)
    a(".p2align 4\nK2_LOOP:")
    if P.get("trace"):
        a("s_memtime s[90:91]\ns_memrealtime s[92:93]\ns_waitcnt lgkmcnt(0)\ns_mov_b32 m0, s94\nv_writelane_b32 v250, s90, m0\nv_writelane_b32 v251, s92, m0\ns_add_u32 s94, s94, 1")
    DR = P.get("drain", 0)
    UN = P.get("unroll", 1); NQ = 4 * UN
    for copy, QQ in [(c_, q_) for c_ in range(2 if DR else 1) for q_ in range(NQ)]:
        qq = QQ % 4; bi = QQ // 4; last = QQ == NQ - 1
        if copy: a(f"K2_D{QQ}:")
        T = TA if qq % 2 == 0 else TB
        Tn = TB if qq % 2 == 0 else TA
        def tp(e, h):
            s = XR + 4 * ((4*qq + e) % RING) + 2*h
            d = TP + 8*e + 4*h
            return f"v_mfma_f32_4x4x4_16b_bf16 v[{d}:{d+3}], v[{AOP}:{AOP+1}], v[{s}:{s+1}], 0 cbsz:4 abid:{4*qq+e}"
        def ld(e):
            s = XR + 4 * ((4*qq + e + DE) % RING)
            if P.get("noload") or copy: return ""
            return (f"v_add_u32 v{OFFS+e}, v9, v{OFFS+e}\n" if SAFE else "") + f"buffer_load_dwordx4 v[{s}:{s+3}], v{OFFS+e}, {XS}, 0 offen {xaux}"
        ex = [f"v_exp_f32 v{EE+i}, v{T+i}" for i in range(8)]
        rc = [f"v_rcp_f32 v{EE+i}, v{EE+i}" for i in range(8)]
        ad = [f"v_pk_add_f32 v[{EE+2*i}:{EE+2*i+1}], v[{EE+2*i}:{EE+2*i+1}], 1.0 op_sel_hi:[1,0]" for i in range(4)]
        mu = [f"v_pk_mul_f32 v[{EE+2*i}:{EE+2*i+1}], v[{EE+2*i}:{EE+2*i+1}], v[{T+2*i}:{T+2*i+1}]" for i in range(4)]
        pm = pre_mfmas(R, Tn, (qq + 1) % 4, P) + ["", ""]
        def fma(e):
            o = [f"s_set_gpr_idx_on {sN}, gpr_idx(SRC2,DST)" if e == 0 else f"s_lshr_b32 {sN}, {sN}, 8\ns_set_gpr_idx_idx {sN}"]
            for h in range(2):
                r = EE + 4*h + (e & ~1); sel = e & 1
                for i in range(2):
                    d = ACC + 4*h + 2*i; t = TP + 8*e + 4*h + 2*i
                    o.append(f"v_pk_fma_f32 v[{d}:{d+1}], v[{r}:{r+1}], v[{t}:{t+1}], v[{d}:{d+1}] op_sel:[{sel},0,0] op_sel_hi:[{sel},1,1]")
            return "\n".join(o)
        ob = 16*(QQ + 1) + 4*DE
        dsoff = "" if copy else (f"ds_read_b128 v[{OFFS}:{OFFS+3}], v{vOffA} offset:{ob}" if ob % 16 == 0 else
                                 f"ds_read2_b64 v[{OFFS}:{OFFS+3}], v{vOffA} offset0:{ob//8} offset1:{ob//8+1}")
        def vw(n, extra, tag):
            if not copy: return f"s_waitcnt vmcnt({n}){extra}"
            first, second = (6, 2) if tag == "A" else (4, 0)
            return f"s_cmp_eq_u32 {sG}, -1\ns_cbranch_scc1 K2_W{tag}{QQ}\ns_waitcnt vmcnt({second})\nK2_W{tag}{QQ}:\ns_waitcnt vmcnt({first}){extra}"
        dsA = f"ds_read_b64 v[{AOP}:{AOP+1}], v{vAA} offset:{512*(bi+1)}" if qq == 3 else ""
        dsP = f"ds_read_b32 v{vPv}, v{vPo} offset:{L['PROG']}" if not copy and (PR == "pair1" or (PR == "pair2" and qq % 2 == 1) or (PR == "pair4" and qq == 3)) else ""
        if dsP and P.get("tri"): dsP += f"\nds_read_b32 v{R['vPv2']}, v{R['vPo2']} offset:{L['PROG']}"
        dsE = f"ds_read_b64 v[{EF}:{EF+1}], v{vEfA} offset:{256*(bi+1)+8}" if qq == 2 else ""
        rfl = f"v_readfirstlane_b32 {sN}, v{NODE+qq}"
        dsN = f"ds_read_b128 v[{NODE}:{NODE+3}], v{vNodeA} offset:{16*(bi+1)}" if qq == 3 else ""
        if last:
            pr = vEfA if not P.get("bench") else 3
            dsN += (f"\nv_add_u32 v{vOffA}, {inc[0]*UN}, v{vOffA}\nv_add_u32 v{vNodeA}, {inc[1]*UN}, v{vNodeA}\nv_add_u32 v{vAA}, {inc[2]*UN}, v{vAA}"
                    f"\nv_add_u32 v{pr}, {inc[3]*UN if not P.get('bench') else 1}, v{pr}")
        PV = 3 if P.get("bench") else OFFS
        def prio():
            dop = PR == "pair1" or (PR == "pair2" and qq % 2 == 0) or (PR == "pair4" and qq == 0)
            if dop and not copy:
                pv = PV
                if R.get("sRot"): a(f"v_subrev_u32 v{R['vPt']}, {R['sRot']}, v{PV}"); pv = R["vPt"]
                a(f"v_cmp_gt_u32 vcc, v{pv}, v{vPv}")
                a(f"ds_write_b32 v{vPm}, v{pv} offset:{L['PROG']}")
                if P.get("tri"):
                    a(f"v_cmp_gt_u32 s[60:61], v{pv}, v{R['vPv2']}\ns_cbranch_vccnz K2_Q{QQ}\ns_setprio 2\ns_cmp_lg_u32 s60, 0\ns_cbranch_scc1 K2_P{QQ}\ns_setprio 3\ns_branch K2_P{QQ}")
                    a(f"K2_Q{QQ}:\ns_setprio 0\ns_cmp_lg_u32 s60, 0\ns_cbranch_scc1 K2_P{QQ}\ns_setprio 1\nK2_P{QQ}:")
                else: a(f"s_setprio 0\ns_cbranch_vccnz K2_P{QQ}\ns_setprio 1\nK2_P{QQ}:")
            if PR == "quart" and qq == 0:
                a(f"s_cmp_le_i32 {sG}, s41\ns_cbranch_scc1 K2_PRIO\nK2_PRIOBACK:")
        if sched == "a":
            a("s_waitcnt lgkmcnt(0)")
            prio()
            for e in range(3):
                a(f"s_waitcnt vmcnt({DE-1})")
                a(tp(e, 0)); a(ex[2*e]); a(tp(e, 1)); a(ld(e)); a(ex[2*e+1])
            a(ex[6]); a(ex[7])
            for x in ad: a(x)
            a(f"s_waitcnt vmcnt({DE-1})")
            a(tp(3, 0)); a(rc[0]); a(tp(3, 1)); a(ld(3)); a(rc[1])
            a(dsoff); a(dsA); a(dsP)
            a(pm[0]); a(rc[2]); a(pm[1]); a(rc[3]); a(pm[2]); a(rc[4]); a(pm[3]); a(dsE)
            a(rc[5]); a(rc[6]); a(rc[7]); a(rfl); a(dsN)
            for x in mu: a(x)
            for e in range(4): a(fma(e))
            a("s_set_gpr_idx_off")
        elif sched == "b":
            ph = P.get("phase")
            a(vw(DE-2, " lgkmcnt(0)", "A"))
            prio()
            if ph: a(f"s_setprio {ph[0]}")
            if P.get("bar") == 1 or (P.get("bar") == 2 and qq % 2 == 0) or (P.get("bar") == 4 and qq == 0): a("s_barrier")
            a(tp(0, 0)); a(ex[0]); a(tp(0, 1)); a(ex[1]); a(tp(1, 0)); a(ex[2]); a(tp(1, 1)); a(ld(0)); a(ld(1)); a(ex[3])
            a(vw(DE-2, "", "B"))
            a(tp(2, 0)); a(ex[4]); a(tp(2, 1)); a(ex[5]); a(ex[6]); a(ex[7])
            for x in ad: a(x)
            a(tp(3, 0)); a(rc[0]); a(tp(3, 1)); a(ld(2)); a(ld(3)); a(rc[1])
            a(dsoff); a(dsA); a(dsP)
            a(pm[0]); a(rc[2]); a(pm[1]); a(rc[3]); a(pm[2]); a(rc[4]); a(pm[3]); a(dsE)
            a(rc[5]); a(rc[6]); a(rc[7]); a(rfl); a(dsN)
            if ph: a(f"s_setprio {ph[1]}")
            if P.get("bar2"): a("s_barrier")
            for x in mu: a(x)
            for e in range(4): a(fma(e))
            a("s_set_gpr_idx_off")
        elif sched == "d":
            adp = [f"v_add_f32 v{EE+i}, 1.0, v{EE+i}" for i in range(8)]
            a(vw(DE-2, " lgkmcnt(0)", "A"))
            prio()
            a(tp(0, 0)); a(ex[0]); a(tp(0, 1)); a(ex[1]); a(tp(1, 0)); a(ex[2]); a(tp(1, 1)); a(ld(0)); a(ld(1)); a(ex[3])
            a(vw(DE-2, "", "B"))
            a(tp(2, 0)); a(ex[4]); a(tp(2, 1)); a(ex[5]); a(tp(3, 0)); a(ex[6]); a(tp(3, 1)); a(ld(2)); a(ld(3)); a(ex[7])
            a(dsoff); a(dsA); a(dsP)
            a(rfl)
            for x in ad: a(x)
            a(pm[0]); a(rc[0]); a(pm[1]); a(rc[1]); a(pm[2]); a(rc[2]); a(pm[3]); a(dsE); a(rc[3])
            a(rc[4]); a(rc[5]); a(rc[6]); a(rc[7]); a(dsN)
            for x in mu: a(x)
            for e in range(4): a(fma(e))
            a("s_set_gpr_idx_off")
        elif sched == "e":
            a(vw(DE-2, " lgkmcnt(0)", "A"))
            prio()
            a(rfl)
            a(tp(0, 0)); a(ex[0]); a(tp(0, 1)); a(ex[1]); a(tp(1, 0)); a(ex[2]); a(tp(1, 1)); a(ld(0)); a(ld(1)); a(ex[3])
            a(vw(DE-2, "", "B"))
            a(tp(2, 0)); a(ex[4]); a(tp(2, 1)); a(ex[5]); a(f"s_lshr_b32 s64, {sN}, 8"); a(ex[6]); a(f"s_lshr_b32 s65, {sN}, 16"); a(ex[7])
            for x in ad: a(x)
            a(tp(3, 0)); a(rc[0]); a(tp(3, 1)); a(ld(2)); a(ld(3)); a(rc[1])
            a(dsoff); a(dsA); a(dsP)
            a(pm[0]); a(rc[2]); a(pm[1]); a(rc[3]); a(pm[2]); a(rc[4]); a(pm[3]); a(dsE)
            a(rc[5]); a(f"s_lshr_b32 s62, {sN}, 24"); a(rc[6]); a(dsN); a(rc[7]); a("s_nop 0" if qq != 3 else "")
            for x in mu: a(x)
            for e in range(4):
                t_ = fma(e).split("\n")
                body = t_[1:] if e == 0 else t_[2:]
                a(t_[0] if e == 0 else f"s_set_gpr_idx_idx {('s64','s65','s62')[e-1]}")
                for x in body: a(x)
            a("s_set_gpr_idx_off")
        elif sched == "c":
            a(f"s_waitcnt vmcnt({DE-4}) lgkmcnt(0)")
            prio()
            a(tp(0, 0)); a(ld(0)); a(ex[0]); a(tp(0, 1)); a(ld(1)); a(ex[1]); a(tp(1, 0)); a(ld(2)); a(ex[2]); a(tp(1, 1)); a(ld(3)); a(ex[3])
            a(tp(2, 0)); a(dsoff); a(ex[4]); a(tp(2, 1)); a(ex[5]); a(ex[6]); a(ex[7])
            for x in ad: a(x)
            a(tp(3, 0)); a(rc[0]); a(tp(3, 1)); a(rc[1])
            a(dsA); a(dsP)
            a(pm[0]); a(rc[2]); a(pm[1]); a(rc[3]); a(pm[2]); a(rc[4]); a(pm[3]); a(dsE)
            a(rc[5]); a(rc[6]); a(rc[7]); a(rfl); a(dsN)
            for x in mu: a(x)
            for e in range(4): a(fma(e))
            a("s_set_gpr_idx_off")
        else:
            from loopx import extra
            extra(sched, a, locals())
        if DR:
            assert sched == "b" and DE == 8
            if not copy:
                a(f"s_sub_u32 {sG}, {sG}, 1")
                a(f"s_cbranch_scc1 K2_D{QQ+1}" if not last else "s_cbranch_scc0 K2_LOOP")
            else:
                a(f"s_sub_u32 {sG}, {sG}, 1\ns_cmp_eq_u32 {sG}, -3")
                a("s_cbranch_scc1 K2_LOOPDONE" if not last else "s_cbranch_scc0 K2_D0")
        else:
            a(f"s_sub_u32 {sG}, {sG}, 1\ns_cmp_eq_u32 {sG}, 0" if not P.get("subcc") else f"s_sub_u32 {sG}, {sG}, 1")
            a("s_cbranch_scc1 K2_LOOPDONE" if not last else "s_cbranch_scc0 K2_LOOP")
    a = a_real
    if PR == "quart":
        a("s_branch K2_LOOPDONE\nK2_PRIO:\ns_sub_i32 s41, s41, s40\ns_add_u32 s42, s42, 1")
        a("s_setprio 2\ns_cmp_eq_u32 s42, 1\ns_cbranch_scc1 K2_PRIOBACK\ns_setprio 1\ns_cmp_eq_u32 s42, 2\ns_cbranch_scc1 K2_PRIOBACK\ns_setprio 0\ns_branch K2_PRIOBACK")
    a("K2_LOOPDONE:")
```

```python
import sys
from asmlib import Asm
from loopgen import gen_loop, pre_mfmas
from gen import HEADER as _H, scan_incl, f32, LOG2E, LN2, desc

N, E = 10000, 320000
NB, NP, CH = 256, 250, 1280
WS_EPO, WS_TAB, WS_KEY, WS_PAY, WS_FLG, WS_END = 0, 0x2000, 0x82000, 0x300000, 0x7F0000, 0x800000
WS_TS = 0x8000000
FS = 128
NAME = "gather_scatter__tensor_product_equiv_tfn__graph_kernel"
HEADER = _H[:_H.index("; Launch 1")] + """; One launch, 256 workgroups (one per CU).
; Phase 1: 250 workgroups each bin a chunk of 1280 edges by destination block (256 bins) and publish it in d_ws with
;          write-through stores: table row and keys as 8-byte pieces carrying this launch's tag, Y/edge_feat behind a flag.
;          (tag = epoch word of d_ws + 1; workgroups that saw all 256 rows store the tag back as the next epoch.)
; Phase 2: every workgroup collects its own bin, sorts it by (owner wave, source bucket), gathers x rows, does the
;          tensor product + radial gate in registers, mixes the channels and stores.
; If the hand-off never arrives (workgroups not co-resident) a workgroup scans the raw edge list on its own.
"""
A39 = [6, 5, 6, 7, 4, 2, 0, 1, 3, 4, 6, 3, 2, 0, 6, 1, 3, 5, 7, 1, 0, 5, 7, 4, 2, 1, 5, 4, 7, 3, 2, 0, 2, 0, 7, 1, 3, 4, 5, 6]
A40 = [3, 2, 4, 7, 0, 1, 6, 0, 5, 1, 7, 5, 6, 3, 4, 6, 5, 0, 2, 7, 1, 4, 6, 3, 2, 1, 3, 0, 5, 4, 2, 7, 2, 5, 4, 7, 1, 6, 0, 3]
DPP = ["row_shr:1 row_mask:0xf bank_mask:0xf", "row_shr:2 row_mask:0xf bank_mask:0xf", "row_shr:4 row_mask:0xf bank_mask:0xf",
       "row_shr:8 row_mask:0xf bank_mask:0xf", "row_bcast:15 row_mask:0xa bank_mask:0xf", "row_bcast:31 row_mask:0xc bank_mask:0xf"]

def gen(P=None, verbose=False):
    P = dict(dict(prio="pair1", sched="b", subcc=1, out_aux="sc1", pf=3, pfx=2, drain=1, nolo=1, epre=1, aswz=1, earlyA=1), **(P or {}))
    a = Asm()
    FS = P.get("FS", 128)
    DE = P.setdefault("DE", 8); ngr = (DE + 3) // 4; SAFE = P.get("safe"); PR = P["prio"]
    CAPW = 192; CAP = 8 * CAPW; NE = CAP + 8 * 48 + 16
    L_CNT, L_DEG, L_HCNT, L_FB, L_PROG, L_OFF = 0, 512, 768, 1792, 2048, 4096
    L_NODE = L_OFF + NE * 4
    L_PAY = (L_NODE + NE + 63) // 64 * 64
    L_A = L_PAY + NE * 16
    L_AGG = (L_A + NE * 32 + 255) // 256 * 256
    RS = 288
    L_END = L_AGG + 160 * RS
    L_MARK = L_AGG; L_WM = L_AGG + 8192; L_WR = L_WM + 32768; L_CG = L_WR + 1024; L_MAP = L_CG + 128
    L_PRE = L_OFF; L_TABL = L_OFF + 1024; L_SKEY = L_PAY; L_SPAY = L_A
    assert L_SPAY + 16384 < 65536 and L_MAP + 128 <= L_END
    ACC, XR, TP, TA, TB, EE, WF, AOP, EF, OFFS, NODE = 16, 56, 120, 152, 160, 168, 176, 184, 186, 188, 192
    vOffA, vNodeA, vAA, vEfA = 196, 197, 198, 199
    BF, CGF, PP, PL, PD = 200, 232, 240, 244, 248
    vPm, vPo, vPv = 252, 253, 254
    sW, sT, sRB, sG, sN, sBase, sLen, sTag, sBin, sNs, sFB = "s3", "s46", "s47", "s48", "s49", "s50", "s51", "s52", "s53", "s54", "s55"
    sRole, sT8, sRot = "s40", "s26", "s27"
    XS, OS, WSR = "s[28:31]", "s[32:35]", "s[36:39]"
    M = lambda u: f"s[{40+2*u}:{41+2*u}]"
    tsn = [0]; gen.names = []
    DEFST = ["start", "Bb", "Bc1", "Bc", "Bx", "keys", "pollP", "Bd", "Be", "Bf", "loop0", "loop1", "Bg", "end"]
    def stamp(name):
        if P.get("hold_at") == name:
            a(f"s_waitcnt lgkmcnt(0)\ns_add_u32 s70, s70, {P['hold_x']}\nK_HOLDP:\ns_memrealtime s[68:69]\ns_waitcnt lgkmcnt(0)\ns_sub_u32 s68, s68, s70\ns_cmp_lt_i32 s68, 0\ns_cbranch_scc1 K_HOLDP")
        if P.get("ts") and name in P.get("stamps", DEFST):
            gen.names.append(name)
            r = 70 + 2 * tsn[0]; a(f"s_memrealtime s[{r}:{r+1}]"); tsn[0] += 1

    a(f".globl {NAME}\n.p2align 8\n.type {NAME},@function\n{NAME}:")
    a(f"s_cmp_ge_u32 s2, {NB}\ns_cbranch_scc1 K_END")
    a("s_load_dwordx16 s[4:19], s[0:1], 0\ns_load_dwordx2 s[20:21], s[0:1], 64\ns_load_dwordx2 s[24:25], s[0:1], 80")
    stamp("start")
    if P.get("hold_at"): a("s_memrealtime s[70:71]")
    D, S, Y, F, B4, RK1 = TP, TP + 4, TP + 8, TP + 16, TP + 24, TP + 28
    KY, t, tmp, KG = XR, XR + 4, XR + 8, XR + 10
    la = P.get("load_aux", "")
    a("v_lshrrev_b32 v2, 6, v0\nv_and_b32 v1, 63, v0\nv_readfirstlane_b32 s3, v2")
    a(f"v_lshlrev_b32 v10, 4, v0\ns_mul_i32 s57, s2, {CH*4}\nv_lshlrev_b32 v3, 2, v0")
    if P.get("pfcode0", 1):
        a(f"s_cmp_lg_u32 s3, 5\ns_cbranch_scc1 K_PF0\ns_getpc_b64 s[26:27]\nK_PC3:\nv_lshlrev_b32 v13, 7, v1\nglobal_load_dword v255, v13, s[26:27]")
        a(f"v_add_u32 v13, 8192, v13\nv_min_u32 v13, K_TAB-K_PC3, v13\nglobal_load_dword v255, v13, s[26:27]\nK_PF0:")
    a("v_or_b32 v13, 0x4b000000, v1\ns_cmp_eq_u32 s3, 2\ns_cselect_b32 s56, -1, 0")
    a("v_add_u32 v11, s57, v10\nv_and_b32 v13, s56, v13\nv_lshlrev_b32 v12, 1, v11")
    a("ds_write_b32 v3, v13")
    a(f"s_cmp_lt_u32 s2, {NP}\ns_cselect_b32 s56, 5, 0\ns_cmp_lt_u32 {sW}, s56")
    stamp("prek")
    TL = P.get("tlb", 0)
    if TL:
        a(f"s_cselect_b32 {sRole}, 1, 0\ns_lshr_b32 s58, s2, 3\ns_cmp_lt_u32 s58, 11\ns_cbranch_scc0 K_NOTLB")
        a(f"s_cmp_lg_u32 {sW}, 6\ns_cbranch_scc1 K_TLB1\ns_lshl_b32 s59, s58, 3\ns_load_dwordx2 s[64:65], s[0:1], s59")
        a("s_mov_b32 s66, 128\ns_mov_b32 s67, 0x20000")
        for idx, size in ((0, 10240000), (1, 1280000), (2, 1280000), (3, 2560000), (4, 2560000), (7, 32768), (8, 10240000), (10, WS_END)):
            a(f"s_cmp_eq_u32 s58, {idx}\ns_cselect_b32 s66, {size}, s66")
        a("s_lshr_b32 s59, s66, 6\ns_and_b32 s59, s59, -4\nv_mul_lo_u32 v14, s59, v1\ns_waitcnt lgkmcnt(0)\nbuffer_load_dword v255, v14, s[64:67], 0 offen")
        a("K_TLB1:")
        if TL == 2: a("s_barrier")
        a(f"K_NOTLB:\ns_cmp_lg_u32 {sRole}, 0")
    a("s_waitcnt lgkmcnt(0)")
    stamp("karg")
    def setup0():
        a(f"s_load_dword {sTag}, s[24:25], {WS_EPO}")
        for k in range(4, 8): a(f"v_mov_b32 v{k}, 0")
        a(f"v_add_u32 v8, {L_MARK}, v10\nv_lshlrev_b32 v9, 4, v1\nv_lshlrev_b32 v15, 2, v1")
        a(f"ds_write_b128 v8, v[4:7]\nds_write_b32 v3, v4 offset:{L_PROG}")
        a(f"s_and_b32 {sBin}, s2, 7\ns_lshr_b32 s56, s2, 3\ns_lshl_b32 {sBin}, {sBin}, 5\ns_or_b32 {sBin}, {sBin}, s56")
    def setup():
        a(f"s_mul_i32 {sNs}, {sBin}, 625\ns_add_u32 s57, {sNs}, 640\ns_add_u32 {sNs}, {sNs}, 15\ns_lshr_b32 {sNs}, {sNs}, 4\ns_lshr_b32 s57, s57, 4")
        if SAFE: a("s_mov_b32 s28, s4\ns_mov_b32 s29, s5\ns_mov_b32 s30, 10240000\ns_mov_b32 s31, 0x20000")
        else: a("s_mov_b32 s28, s4\ns_and_b32 s29, s5, 0xffff\ns_or_b32 s29, s29, 0x100000\ns_mov_b32 s30, 10240000\ns_mov_b32 s31, 0x800000")
        a("s_mov_b32 s32, s20\ns_mov_b32 s33, s21\ns_lshl_b32 s34, s57, 10\ns_mov_b32 s35, 0x20000")
        a(f"s_mov_b32 s36, s24\ns_mov_b32 s37, s25\ns_mov_b32 s38, {WS_END}\ns_mov_b32 s39, 0x20000")
        a(f"s_mov_b32 {sRB}, 0\ns_mov_b32 s63, 0\nv_mov_b32 v14, 1")
        a(f"s_lshr_b32 {sRot}, {sBin}, 5\ns_mul_i32 {sRot}, {sRot}, 20009\ns_add_u32 {sRot}, {sRot}, 14\ns_lshr_b32 {sRot}, {sRot}, 4\ns_lshl_b32 {sRot}, {sRot}, 10")
        for k in range(40): a(f"v_mov_b32 v{ACC+k}, 0")
    def keycalc(Dr, Br, Kr, tm):
        a(f"v_mul_u32_u24 v{tm}, 625, v{Br}\nv_add_u32 v{tm}, 15, v{tm}\nv_lshrrev_b32 v{tm}, 4, v{tm}\nv_sub_u32 v{Kr}, v{Dr}, v{tm}")
    def keycalc2(Sr, Kr, tm):
        a(f"v_mul_u32_u24 v{tm}, 1677, v{Sr}\nv_lshrrev_b32 v{tm}, 20, v{tm}\nv_lshl_or_b32 v{Kr}, v{Kr}, 4, v{tm}\nv_lshl_or_b32 v{Kr}, v{Sr}, 10, v{Kr}")
    a("s_cbranch_scc0 K_BA")
    a(f"global_load_dwordx4 v[{D}:{D+3}], v11, s[8:9] {la}")
    if P.get("sfirst", 1): a(f"global_load_dwordx4 v[{S}:{S+3}], v11, s[6:7] {la}")
    a("K_BA:\ns_barrier\ns_cbranch_scc0 K_HELP")
    if not P.get("sfirst", 1): a(f"global_load_dwordx4 v[{S}:{S+3}], v11, s[6:7] {la}")
    for i in range(P.get("ydelay", 0)): a("s_nop 15")
    for h in range(2): a(f"global_load_dwordx4 v[{Y+4*h}:{Y+4*h+3}], v12, s[10:11] offset:{16*h} {la}")
    for h in range(2): a(f"global_load_dwordx4 v[{F+4*h}:{F+4*h+3}], v12, s[12:13] offset:{16*h} {la}")
    stamp("ldiss")
    a(f"s_mov_b32 {sRole}, 1")
    setup0(); setup()
    stamp("setup")
    a("s_waitcnt vmcnt(5)")
    stamp("dst")
    for u in range(4):
        a(f"v_mul_u32_u24 v{t+u}, 214749, v{D+u}\nv_lshrrev_b32 v{t+u}, 23, v{t+u}\nv_lshlrev_b32 v{B4+u}, 2, v{t+u}")
        a(f"ds_add_rtn_u32 v{RK1+u}, v{B4+u}, v14 offset:{L_HCNT}")
    for u in range(4): keycalc(D+u, t+u, KY+u, tmp)
    a("s_branch K_BB")
    a(f"K_HELP:\ns_mov_b32 {sRole}, 0")
    setup0()
    if P.get("pfcode"):
        a(f"s_cmp_lg_u32 {sW}, 5\ns_cbranch_scc1 K_HELP1\ns_getpc_b64 s[26:27]\nK_PC2:\nv_lshlrev_b32 v13, 7, v1\nglobal_load_dword v255, v13, s[26:27]")
        a(f"v_add_u32 v13, 8192, v13\nv_min_u32 v13, K_TAB-K_PC2, v13\nglobal_load_dword v255, v13, s[26:27]\nK_HELP1:")
    a(f"s_cmp_eq_u32 {sW}, 7\ns_cbranch_scc1 K_HELP7\ns_cmp_lg_u32 {sW}, 6\ns_cbranch_scc1 K_HELP2")
    a(f"s_and_b32 s56, {sBin}, 31\ns_lshl_b32 s56, s56, 10\nv_lshl_add_u32 v13, v1, 7, s56\ns_mov_b64 exec, 0xff")
    a("global_load_dword v255, v13, s[18:19]\ns_mov_b64 exec, -1\ns_branch K_HELP2\nK_HELP7:")
    a(f"s_mov_b32 m0, {L_WR}\ns_getpc_b64 s[26:27]\nK_PC:\nglobal_load_lds_dwordx4 v9, s[14:15]")
    a(f"s_add_u32 s26, s26, K_TAB-K_PC\ns_addc_u32 s27, s27, 0\ns_mov_b32 m0, {L_CG}\ns_mov_b64 exec, 0xff\nglobal_load_lds_dwordx4 v9, s[16:17]")
    a(f"s_mov_b32 m0, {L_MAP}\ns_nop 0\nglobal_load_lds_dwordx4 v9, s[26:27]\ns_mov_b64 exec, -1")
    a("K_HELP2:")
    setup()
    a("K_BB:\ns_waitcnt lgkmcnt(0)\ns_barrier")
    stamp("Bb")
    c = TA; q = TB
    a(f"s_add_u32 {sTag}, {sTag}, 1\ns_and_b32 s56, {sTag}, 0x3ff\ns_lshl_b32 s58, s56, 22\ns_lshl_b32 {sT8}, {sTag}, 24")
    a(f"s_cmp_eq_u32 {sW}, 7\ns_cselect_b32 s56, 1, {sRole}\ns_cmp_eq_u32 s56, 0\ns_cbranch_scc1 K_BC1")
    a(f"ds_read_b128 v[{c}:{c+3}], v9 offset:{L_HCNT}")
    a(f"s_cmp_eq_u32 {sW}, 7\ns_cbranch_scc1 K_SC\ns_waitcnt vmcnt(4)")
    for u in range(4): keycalc2(S+u, KY+u, t+u)
    a("K_SC:\ns_waitcnt lgkmcnt(0)")
    a(f"v_add_u32 v{c+4}, v{c}, v{c+1}\nv_add_u32 v{c+5}, v{c+4}, v{c+2}\nv_add_u32 v{c+6}, v{c+5}, v{c+3}\nv_mov_b32 v{q}, v{c+6}")
    fill = [x for u in range(4) for x in (f"v_or_b32 v{KG+2*u}, {sT8}, v{KY+u}", f"v_mov_b32 v{KG+2*u+1}, {sTag}")]
    for k in range(6):
        for x in fill[2*k:2*k+2]: a(x)
        a(f"v_add_u32_dpp v{q}, v{q}, v{q} {DPP[k]}")
    a(f"v_sub_u32 v{q}, v{q}, v{c+6}\nv_add_u32 v{q+1}, v{q}, v{c}\nv_add_u32 v{q+2}, v{q}, v{c+4}\nv_add_u32 v{q+3}, v{q}, v{c+5}")
    a(f"s_cmp_lg_u32 {sW}, 7\ns_cbranch_scc1 K_NOROW")
    g = EE
    for i in range(4):
        a(f"v_lshl_or_b32 v{g+2*i}, v{c+i}, 11, v{q+i}\nv_or_b32 v{g+2*i}, s58, v{g+2*i}\nv_mov_b32 v{g+2*i+1}, {sTag}")
    a(f"s_lshl_b32 s57, s2, 11\ns_add_u32 s57, s57, {WS_TAB}\nv_lshlrev_b32 v12, 5, v1")
    a(f"buffer_store_dwordx4 v[{g}:{g+3}], v12, {WSR}, s57 offen sc1\nbuffer_store_dwordx4 v[{g+4}:{g+7}], v12, {WSR}, s57 offen offset:16 sc1")
    a("s_branch K_BC1\nK_NOROW:")
    a(f"ds_write_b128 v9, v[{q}:{q+3}] offset:{L_PRE}")
    for u in range(4): a(f"ds_read_b32 v{t+u}, v{B4+u} offset:{L_PRE}")
    for u in range(4):
        a(f"s_waitcnt lgkmcnt(3)\nv_add_lshl_u32 v{B4+u}, v{t+u}, v{RK1+u}, 3")
        a(f"ds_write_b64 v{B4+u}, v[{KG+2*u}:{KG+2*u+1}] offset:{L_SKEY}")
    a(f"s_mov_b32 s56, {L_SPAY}")
    for u in range(4): a(f"v_lshl_add_u32 v{B4+u}, v{B4+u}, 1, s56")
    a("K_BC1:")
    a(f"s_mul_i32 s60, s2, {CH*8}\ns_add_u32 s60, s60, {WS_KEY}")
    a(f"s_sub_u32 s56, {sW}, 5\ns_lshl_b32 s57, s56, 14\nv_add_u32 v13, s57, v9\ns_add_u32 s57, s57, {L_WM}")
    a("s_waitcnt lgkmcnt(0)\ns_barrier")
    stamp("Bc1")
    o = XR + 20
    a(f"s_cmp_ge_u32 s2, {NP}\ns_cbranch_scc1 K_KS2")
    a(f"ds_read_b128 v[{o}:{o+3}], v10 offset:{L_SKEY}")
    a(f"s_cmp_lt_u32 s56, 2\ns_cbranch_scc0 K_KS1")
    a(f"ds_read_b128 v[{o+4}:{o+7}], v10 offset:{L_SKEY + 8192 - 5120}\ns_add_u32 s59, s60, {8192 - 5120}")
    a(f"s_waitcnt lgkmcnt(0)\nbuffer_store_dwordx4 v[{o+4}:{o+7}], v10, {WSR}, s59 offen sc1")
    a(f"K_KS1:\ns_waitcnt lgkmcnt(0)\nbuffer_store_dwordx4 v[{o}:{o+3}], v10, {WSR}, s60 offen sc1")
    a(f"K_KS2:\ns_cmp_lt_u32 s56, 2\ns_cbranch_scc1 K_DMA\ns_cmp_eq_u32 {sRole}, 0\ns_cbranch_scc1 K_BC7")
    if P.get("ts") and "y0" in P.get("stamps", []):
        a("s_waitcnt vmcnt(4)"); stamp("y0"); a("s_waitcnt vmcnt(3)"); stamp("y1"); a("s_waitcnt vmcnt(2)"); stamp("f0"); a("s_waitcnt vmcnt(1)"); stamp("f1")
    for h in range(2):
        a(f"s_waitcnt vmcnt({2 - h})")
        for u in (2*h, 2*h+1): a(f"ds_write2_b64 v{B4+u}, v[{Y+2*u}:{Y+2*u+1}], v[{F+2*u}:{F+2*u+1}] offset0:0 offset1:1")
    a("s_branch K_BC\nK_DMA:")
    for gidx in range(4):
        a("s_mov_b32 m0, s57\ns_add_u32 s57, s57, 4096")
        for i in range(4): a(f"global_load_lds_dwordx4 v13, s[18:19] offset:{i*1024}")
        if gidx < 3: a("v_add_u32 v13, 4096, v13")
    a(f"s_branch K_BC\nK_BC7:\ns_cmp_ge_u32 s2, {NP}\ns_cbranch_scc0 K_BC8\ns_waitcnt vmcnt(2)\nK_BC8:\ns_waitcnt vmcnt(3)")
    def pfetch(lab, n=None, first=None):
        n = n or P["pf"]
        first = P.get("pfc", 0) + P.get("pfd", 0) + P.get("pfx", 0) + P.get("pfk", 0) if first is None else first
        a(f"s_cmp_lt_u32 {sW}, {8-n}\ns_cbranch_scc1 {lab}")
        a("s_mov_b32 s64, s4\ns_mov_b32 s65, s5\ns_mov_b32 s66, 10240000\ns_mov_b32 s67, 0x20000")
        a(f"s_sub_u32 s68, {7 + first}, {sW}\ns_lshl_b32 s68, s68, 5\ns_and_b32 s69, {sBin}, 31\ns_add_u32 s68, s68, s69\ns_lshl_b32 s68, s68, 13\ns_add_u32 s68, s68, {sRot}")
        a(f"v_lshlrev_b32 v12, 7, v1\nbuffer_load_dword v255, v12, s[64:67], s68 offen")
    a("K_BC:")
    if P.get("pfc"):
        pfetch("K_NOPFC", P["pfc"], 0); a("K_NOPFC:")
    a(f"s_mul_i32 s56, s2, {CH*16}\ns_add_u32 s56, s56, {WS_PAY}\ns_add_u32 s57, s56, 8192\ns_add_u32 s59, s56, 16384")
    a(f"v_lshlrev_b32 v11, 11, v0\ns_lshl_b32 s61, {sBin}, 3\ns_add_u32 s61, s61, {WS_TAB}")
    a("s_waitcnt lgkmcnt(0)\ns_barrier")
    stamp("Bc")
    o = XR
    a(f"s_cmp_ge_u32 s2, {NP}\ns_cbranch_scc1 K_NOST")
    for u in range(2): a(f"ds_read_b128 v[{o+4*u}:{o+4*u+3}], v10 offset:{L_SPAY + 8192*u}")
    a(f"s_cmp_ge_u32 {sW}, 4\ns_cbranch_scc1 K_ST1")
    a(f"ds_read_b128 v[{o+8}:{o+11}], v10 offset:{L_SPAY + 16384}")
    a(f"s_waitcnt lgkmcnt(0)\nbuffer_store_dwordx4 v[{o+8}:{o+11}], v10, {WSR}, s59 offen sc1")
    a(f"K_ST1:\ns_waitcnt lgkmcnt(1)\nbuffer_store_dwordx4 v[{o}:{o+3}], v10, {WSR}, s56 offen sc1")
    a(f"s_waitcnt lgkmcnt(0)\nbuffer_store_dwordx4 v[{o+4}:{o+7}], v10, {WSR}, s57 offen sc1")
    a("K_NOST:")
    if P.get("earlyA"): a(f"s_cmp_ge_u32 {sW}, 4\ns_cbranch_scc1 K_NOA0\nbuffer_load_dwordx2 v[{TA}:{TA+1}], v11, {WSR}, s61 offen sc1\nK_NOA0:")
    if P.get("pfd"):
        pfetch("K_NOPFD", P["pfd"], P.get("pfc", 0)); a("K_NOPFD:")
    RW, RC, RM = OFFS, NODE, TP
    a(f"s_lshr_b32 s56, s34, 10\ns_sub_u32 s56, s56, {sNs}\ns_sub_u32 s56, s56, 39\ns_lshl_b32 s56, s56, 6\ns_add_u32 s56, s56, {L_MAP}")
    a(f"v_add_u32 v2, s56, v1\nv_add_u32 v13, {L_WR}, v15\nds_read_u8 v2, v2")
    a(f"ds_read2st64_b32 v[{RW}:{RW+1}], v13 offset0:0 offset1:1\nds_read2st64_b32 v[{RW+2}:{RW+3}], v13 offset0:2 offset1:3")
    a(f"v_and_b32 v12, 3, v1\nv_lshlrev_b32 v12, 5, v12\nv_bfe_u32 v13, v1, 2, 2\nv_lshl_or_b32 v12, v13, 1, v12\nv_add_u32 v12, {L_CG}, v12")
    for f_ in range(4): a(f"ds_read_u16 v{RC+f_}, v12 offset:{f_*8}")
    a(f"v_mov_b32 v{vPm}, v3\nv_xor_b32 v{vPo}, 1024, v3\nv_mul_u32_u24 v{AOP+1}, {FS}, v0")
    a(f"s_mov_b32 s56, {f32(-LOG2E)}\ns_waitcnt lgkmcnt(0)")
    w = TP + 16
    for h in range(2):
        for k in range(4):
            a(f"v_lshlrev_b32 v{w+k}, 16, v{RW+k}" if h == 0 else f"v_and_b32 v{w+k}, 0xffff0000, v{RW+k}")
            a(f"v_mul_f32 v{w+4+k}, s56, v{w+k}")
        oo = WF + 4*h
        a(f"v_cvt_pk_bf16_f32 v{oo}, v{w+4}, v{w+5}\nv_cvt_pk_bf16_f32 v{oo+1}, v{w+6}, v{w+7}")
        if not P.get("nolo"):
            for k in range(4):
                a(f"v_lshlrev_b32 v{w+4+k}, 16, v{oo + k//2}" if k % 2 == 0 else f"v_and_b32 v{w+4+k}, 0xffff0000, v{oo + k//2}")
                a(f"v_fma_f32 v{w+4+k}, s56, v{w+k}, -v{w+4+k}")
            a(f"v_cvt_pk_bf16_f32 v{oo+2}, v{w+4}, v{w+5}\nv_cvt_pk_bf16_f32 v{oo+3}, v{w+6}, v{w+7}")
    a(f"v_lshl_or_b32 v{w}, v{RC+1}, 16, v{RC}\nv_lshl_or_b32 v{w+1}, v{RC+3}, 16, v{RC+2}\nv_lshrrev_b32 v13, 4, v1")
    for gg in range(4):
        a(f"v_cmp_eq_u32 vcc, {gg}, v13")
        a(f"v_cndmask_b32 v{CGF+2*gg}, 0, v{w}, vcc\nv_cndmask_b32 v{CGF+2*gg+1}, 0, v{w+1}, vcc")
    a(f"v_mul_u32_u24 v13, {4*CH}, v1")
    def wmextract():
        a(f"s_and_b32 s56, {sW}, 3\ns_lshl_b32 s56, s56, 6\ns_add_u32 s56, s56, {L_WM}")
        a("v_lshrrev_b32 v10, 4, v1\nv_lshlrev_b32 v10, 11, v10\nv_and_b32 v12, 15, v1\nv_lshl_or_b32 v10, v12, 2, v10\nv_add_u32 v10, s56, v10")
        a("s_mov_b32 s56, 0x05040100\ns_mov_b32 s57, 0x07060302")
        for ks in range(4):
            for i in range(4): a(f"ds_read2st64_b32 v[{RM+8*ks+2*i}:{RM+8*ks+2*i+1}], v10 offset0:{32*ks+2*i} offset1:{32*ks+2*i+1}")
        for ks in range(4):
            for i in range(4):
                a(f"s_waitcnt lgkmcnt({15 - 4*ks - i})")
                a(f"v_perm_b32 v{BF+4*ks+i}, v{RM+8*ks+2*i+1}, v{RM+8*ks+2*i}, s56")
                a(f"v_perm_b32 v{BF+16+4*ks+i}, v{RM+8*ks+2*i+1}, v{RM+8*ks+2*i}, s57")
    a(f"s_cmp_ge_u32 {sW}, 4\ns_cbranch_scc1 K_TABOK")
    a(f"s_mov_b32 s59, {P.get('timeout', 40000)}\ns_lshr_b32 s58, s58, 22")
    if P.get("earlyA"): a("s_branch K_POLLA1")
    a(f"K_POLLA:\nbuffer_load_dwordx2 v[{TA}:{TA+1}], v11, {WSR}, s61 offen sc1\nK_POLLA1:\ns_waitcnt vmcnt(0)")
    a(f"v_lshrrev_b32 v{TA+2}, 22, v{TA}\nv_cmp_ne_u32 vcc, {sTag}, v{TA+1}\nv_cmp_ne_u32 s[56:57], s58, v{TA+2}\ns_or_b64 vcc, vcc, s[56:57]")
    if P.get("force_fb"): a("s_mov_b64 vcc, -1")
    a("s_cbranch_vccz K_POLLAOK")
    a(f"s_sub_u32 s59, s59, 1\ns_cbranch_scc0 K_POLLA")
    a(f"ds_write_b32 v4, v14 offset:{L_FB}")
    a(f"K_POLLAOK:\nds_write_b32 v3, v{TA} offset:{L_TABL}")
    a("K_TABOK:\ns_waitcnt vmcnt(0) lgkmcnt(0)\ns_barrier")
    stamp("Bx")
    a(f"s_cmp_lg_u32 {sW}, 4\ns_cbranch_scc1 K_NOFLAG")
    a(f"s_mul_i32 s56, s2, {FS}\ns_add_u32 s56, s56, {WS_FLG}\nv_mov_b32 v10, {sTag}\ns_mov_b64 exec, 1")
    a(f"buffer_store_dword v10, v4, {WSR}, s56 offen sc1\ns_mov_b64 exec, -1\nK_NOFLAG:")
    a(f"ds_read_b128 v[{TP}:{TP+3}], v9 offset:{L_TABL}\nds_read_b32 v10, v4 offset:{L_FB}")
    if P.get("pfx"):
        pfetch("K_NOPFX", P["pfx"], P.get("pfc", 0) + P.get("pfd", 0)); a("K_NOPFX:")
    a("s_waitcnt lgkmcnt(0)")
    a(f"v_readfirstlane_b32 {sFB}, v10")
    c = TP + 4; p = TP + 8
    for i in range(4): a(f"v_bfe_u32 v{c+i}, v{TP+i}, 11, 11")
    a(f"v_add_u32 v{p+1}, v{c}, v{c+1}\nv_add_u32 v{p+2}, v{p+1}, v{c+2}\nv_add_u32 v{p+3}, v{p+2}, v{c+3}\nv_mov_b32 v{p+4}, v{p+3}")
    fill = []
    for i in range(4):
        fill.append(f"v_and_b32 v{TP+i}, 0x7ff, v{TP+i}")
        fill.append(f"v_add_u32 v{PD+i}, v13, v{TP+i}")
        if i: fill.append(f"v_add_u32 v{PD+i}, {i*CH}, v{PD+i}")
    for k in range(6):
        for x in fill[2*k:2*k+2]: a(x)
        a(f"v_add_u32_dpp v{p+4}, v{p+4}, v{p+4} {DPP[k]}")
    a(f"s_cmp_lg_u32 {sFB}, 0\ns_cbranch_scc1 K_FB0")
    a(f"v_readlane_b32 {sT}, v{p+4}, 63")
    a(f"v_sub_u32 v{PP}, v{p+4}, v{p+3}")
    a(f"v_add_u32 v{PP+1}, v{PP}, v{c}\nv_add_u32 v{PP+2}, v{PP}, v{p+1}\nv_add_u32 v{PP+3}, v{PP}, v{p+2}")
    for i in range(4):
        a(f"v_sub_u32 v{PD+i}, v{PD+i}, v{PP+i}\nv_add_u32 v{PL+i}, v{PP+i}, v{c+i}")
    m = XR; f = m + 12; KEY = m + 16; RK = m + 22; ad = m + 25; CD = m + 28; PAYR = m + 32; PA = m + 44; CI = m + 47; q = m + 52
    FL = AOP
    a("K_ROUND:")
    a(f"s_mul_i32 s56, {sW}, {CAPW}\ns_add_u32 s56, s56, {sRB}\ns_add_u32 s57, s56, {CAPW}")
    a(f"s_lshl_b32 s58, {sW}, 10\ns_add_u32 s58, s58, {L_MARK}")
    for i in range(4):
        a(f"v_cmp_lt_u32 vcc, s56, v{PL+i}\nv_cmp_gt_u32 s[60:61], s57, v{PP+i}")
        a(f"v_subrev_u32 v{m+i}, s56, v{PP+i}\nv_max_i32 v{m+i}, 0, v{m+i}\nv_lshl_add_u32 v{m+i}, v{m+i}, 2, s58")
        a(f"s_and_b64 exec, vcc, s[60:61]\nds_max_u32 v{m+i}, v{PD+i}\ns_mov_b64 exec, -1")
    a(f"v_add_u32 v{m+4}, s58, v15")
    for u in range(3): a(f"ds_read_b32 v{m+8+u}, v{m+4} offset:{u*256}")
    a(f"v_add_u32 v{f}, s56, v1\nv_add_u32 v{f+1}, 64, v{f}\nv_add_u32 v{f+2}, 128, v{f}")
    for u in range(3): a(f"v_cmp_gt_u32 {M(u)}, {sT}, v{f+u}")
    a(f"s_mov_b32 s60, {WS_KEY}\ns_mov_b32 s61, {WS_PAY}\ns_lshr_b32 s62, {sT8}, 24")
    a("s_waitcnt lgkmcnt(0)")
    scan_incl(a, "v_max_u32", [m+8, m+9, m+10])
    a(f"v_readlane_b32 s56, v{m+8}, 63\nv_readlane_b32 s57, v{m+9}, 63\nv_add_u32 v{f}, v{f}, v{m+8}")
    a(f"s_max_u32 s57, s56, s57")
    a(f"v_max_u32 v{m+9}, s56, v{m+9}\nv_max_u32 v{m+10}, s57, v{m+10}")
    a(f"v_add_u32 v{f+1}, v{f+1}, v{m+9}\nv_add_u32 v{f+2}, v{f+2}, v{m+10}")
    for u in range(3): a(f"v_lshlrev_b32 v{ad+u}, 3, v{f+u}")
    stamp("marks")
    def keyloads():
        for u in range(3):
            a(f"s_mov_b64 exec, {M(u)}\nbuffer_load_dwordx2 v[{KEY+2*u}:{KEY+2*u+1}], v{ad+u}, {WSR}, s60 offen sc1")
        a("s_mov_b64 exec, -1")
    keyloads()
    for u in range(3): a(f"v_lshlrev_b32 v{PA+u}, 4, v{f+u}")
    a(f"s_cmp_lg_u32 {sRB}, 0\ns_cbranch_scc1 K_KEYS1")
    TWO = P.get("two", 0); M2 = lambda u: ("s[0:1]", "s[20:21]", "s[22:23]")[u]
    if TWO:
        for u in range(3): a(f"v_lshrrev_b32 v{f+u}, 8, v{f+u}\nv_mul_u32_u24 v{f+u}, 52429, v{f+u}\nv_lshrrev_b32 v{f+u}, 18, v{f+u}\nv_lshlrev_b32 v{f+u}, 2, v{f+u}")
    wmextract()
    stamp("wmx")
    a("s_branch K_KEYS1\nK_KEYS:")
    keyloads()
    a(f"K_KEYS1:\nv_mov_b32 v14, 64\ns_mov_b64 s[58:59], 0")
    for u in range(3):
        a(f"s_waitcnt vmcnt({2-u})")
        a(f"v_lshrrev_b32 v{RK+u}, 24, v{KEY+2*u}\nv_cmp_ne_u32 vcc, {sTag}, v{KEY+2*u+1}\nv_cmp_ne_u32 s[56:57], s62, v{RK+u}")
        a(f"s_or_b64 vcc, vcc, s[56:57]\ns_and_b64 vcc, vcc, {M(u)}\ns_or_b64 s[58:59], s[58:59], vcc")
    a("s_cbranch_scc1 K_KEYS")
    stamp("keys")
    def payloads():
        for u in range(3):
            a(f"s_mov_b64 exec, {M(u)}\nbuffer_load_dwordx4 v[{PAYR+4*u}:{PAYR+4*u+3}], v{PA+u}, {WSR}, s61 offen sc1")
        a("s_mov_b64 exec, -1")
    a(f"s_cmp_lg_u32 {sRB}, 0\ns_cbranch_scc1 K_LATER")
    a(f"s_mov_b32 s62, {WS_FLG}\ns_cmp_lt_u32 {sW}, 4\ns_cbranch_scc0 K_GOT\nbuffer_load_dword v{FL}, v{FL+1}, {WSR}, s62 offen sc1")
    a("K_GOT:")
    for u in range(3):
        a(f"v_lshrrev_b32 v{ad+u}, 2, v{KEY+2*u}\nv_and_b32 v{ad+u}, 0xfc, v{ad+u}")
    for u in range(3): a(f"s_mov_b64 exec, {M(u)}\nds_add_u32 v{ad+u}, v14 offset:{L_DEG}")
    a("s_mov_b64 exec, -1")
    if P.get("pfk"):
        pfetch("K_NOPFK", P["pfk"], P.get("pfc", 0) + P.get("pfd", 0) + P.get("pfx", 0)); a("K_NOPFK:")
    a(f"s_lshr_b32 s56, {sW}, 2\ns_or_b32 s56, s56, {sFB}\ns_cbranch_scc1 K_POLLBOK")
    if not TWO:
        a(f"K_POLLB:\ns_waitcnt vmcnt(0)\nv_cmp_ne_u32 vcc, {sTag}, v{FL}\ns_cbranch_vccz K_POLLBOK")
        a(f"buffer_load_dword v{FL}, v{FL+1}, {WSR}, s62 offen sc1\ns_branch K_POLLB")
        a("K_POLLBOK:\ns_waitcnt lgkmcnt(0)")
        stamp("pollP")
        a("s_barrier")
        stamp("Bd")
        a(f"s_cmp_lg_u32 {sFB}, 0\ns_cbranch_scc1 K_NOPF")
        payloads()
        if P["pf"]: pfetch("K_NOPF")
        a("K_NOPF:")
    else:
        a(f"s_waitcnt vmcnt(0)\nds_write_b32 v3, v{FL} offset:{L_PRE}")
        a("K_POLLBOK:\ns_waitcnt lgkmcnt(0)")
        stamp("pollP")
        a("s_barrier")
        stamp("Bd")
        a(f"s_cmp_lg_u32 {sFB}, 0\ns_cbranch_scc1 K_NOPF")
        for u in range(3): a(f"ds_read_b32 v{f+u}, v{f+u} offset:{L_PRE}")
        for u in range(3):
            a(f"s_waitcnt lgkmcnt({2-u})\nv_cmp_eq_u32 vcc, {sTag}, v{f+u}\ns_andn2_b64 {M2(u)}, {M(u)}, vcc\ns_and_b64 exec, {M(u)}, vcc")
            a(f"buffer_load_dwordx4 v[{PAYR+4*u}:{PAYR+4*u+3}], v{PA+u}, {WSR}, s61 offen sc1\ns_mov_b64 exec, -1")
        a(f"s_cmp_lt_u32 {sW}, 4\ns_cbranch_scc0 K_NOPF\nv_cmp_ne_u32 vcc, {sTag}, v{FL}\ns_cbranch_vccz K_NOPF\nbuffer_load_dword v{FL}, v{FL+1}, {WSR}, s62 offen sc1\ns_mov_b32 s63, 1")
        a("K_NOPF:")
    KK = TP; MI = EE
    a(f"ds_read_b32 v{MI}, v15 offset:{L_DEG}")
    for jj in range(10): a(f"ds_read_b128 v[{KK+4*jj}:{KK+4*jj+3}], v4 offset:{L_DEG+16*jj}")
    a("v_cmp_gt_u32 vcc, 40, v1")
    for jj in range(20):
        if jj % 2 == 0: a(f"s_waitcnt lgkmcnt({9 - jj//2})")
        tt = KK + 2*jj
        a(f"v_pk_add_f32 v[{tt}:{tt+1}], v[{tt}:{tt+1}], v[{MI}:{MI+1}] op_sel_hi:[1,0] neg_lo:[0,1] neg_hi:[0,1] clamp")
        if jj >= 2: a(f"v_pk_add_f32 v[{tt}:{tt+1}], v[{tt}:{tt+1}], v[{tt-4}:{tt-3}]")
    tt = KK + 38
    a(f"v_pk_add_f32 v[{tt}:{tt+1}], v[{tt}:{tt+1}], v[{tt-2}:{tt-1}]")
    a(f"v_add_f32 v{tt}, v{tt}, v{tt+1}\nv_cvt_u32_f32 v{tt}, v{tt}\nv_lshlrev_b32 v{tt}, 2, v{tt}")
    a(f"ds_bpermute_b32 v2, v{tt}, v2\ns_waitcnt lgkmcnt(0)\nv_cndmask_b32 v2, -1, v2, vcc")
    a("K_BAL:")
    for u in range(3): a(f"ds_bpermute_b32 v{CD+u}, v{ad+u}, v2")
    a("v_mov_b32 v14, 1\nv_lshlrev_b32 v10, 3, v1")
    a(f"s_lshr_b32 s56, {sBin}, 4\ns_and_b32 s56, s56, 14")
    for u in range(3): a(f"v_subrev_u32 v{CI+u}, s56, v{KEY+2*u}\nv_and_b32 v{CI+u}, {P.get('bmask', 15)}, v{CI+u}")
    for u in range(3):
        a(f"s_waitcnt lgkmcnt(2)\ns_mov_b64 exec, {M(u)}")
        a(f"v_and_b32 v{ad+u}, 7, v{CD+u}\nv_lshl_or_b32 v{CI+u}, v{ad+u}, 4, v{CI+u}\nv_lshlrev_b32 v{ad+u}, 2, v{CI+u}")
        a(f"ds_add_rtn_u32 v{RK+u}, v{ad+u}, v14 offset:{L_CNT}")
    a("s_mov_b64 exec, -1")
    for u in range(3):
        a(f"v_lshlrev_b32 v{ad+u}, 1, v{CI+u}\nv_lshlrev_b32 v{CI+u}, 4, v{CI+u}")
        a(f"v_and_b32 v{CD+u}, 0x38, v{CD+u}\nv_and_b32 v{KEY+2*u}, {P.get('xmask', 0xfffc00)}, v{KEY+2*u}")
    a(f"s_lshl_b32 s56, {sW}, 3\ns_add_u32 s57, s56, 7")
    a(f"v_lshrrev_b32 v{q+6}, 3, v1\nv_mul_u32_u24 v{q+6}, 48, v{q+6}")
    if TWO:
        a("s_cmp_eq_u32 s63, 0\ns_mov_b32 s63, 0\ns_cbranch_scc1 K_POLLCOK")
        a(f"K_POLLC:\ns_waitcnt vmcnt(0)\nv_cmp_ne_u32 vcc, {sTag}, v{FL}\ns_cbranch_vccz K_POLLCOK")
        a(f"buffer_load_dword v{FL}, v{FL+1}, {WSR}, s62 offen sc1\ns_branch K_POLLC\nK_POLLCOK:")
    a("s_waitcnt lgkmcnt(0)\ns_barrier")
    stamp("Be")
    a(f"ds_read_b64 v[{q}:{q+1}], v10 offset:{L_CNT}")
    if TWO:
        a(f"s_or_b32 s58, {sFB}, {sRB}\ns_cbranch_scc1 K_NOREST")
        a(f"s_or_b64 s[58:59], {M2(0)}, {M2(1)}\ns_or_b64 s[58:59], s[58:59], {M2(2)}\ns_cbranch_scc0 K_NOREST1")
        for u in range(3):
            a(f"s_mov_b64 exec, {M2(u)}\nbuffer_load_dwordx4 v[{PAYR+4*u}:{PAYR+4*u+3}], v{PA+u}, {WSR}, s61 offen sc1")
        a("s_mov_b64 exec, -1\nK_NOREST1:")
        if P["pf"]: pfetch("K_NOREST")
        a("K_NOREST:")
    a(f"s_sub_u32 s58, {sRot}, 1024\ns_cselect_b32 s58, {(N-1)*1024}, s58")
    a("s_waitcnt lgkmcnt(0)")
    a(f"v_add_u32 v{q+2}, v{q}, v{q+1}\nv_mov_b32 v{q+3}, v{q+2}")
    fill = ["v_and_b32 v12, 15, v1", "v_lshrrev_b32 v11, 4, v1", "v_lshlrev_b32 v11, 3, v11", "v_lshl_add_u32 v11, v12, 5, v11",
            f"v_mov_b32 v{q+7}, s58", f"v_mov_b32 v{vPv}, 0"]
    if P.get("aswz", 0):
        fill = ["v_and_b32 v12, 15, v1", "v_lshrrev_b32 v11, 2, v1", "v_and_b32 v11, 8, v11", "v_xor_b32 v11, v11, v1",
                f"v_mov_b32 v{q+7}, s58", f"v_mov_b32 v{vPv}, 0", "v_lshlrev_b32 v11, 3, v11", "v_lshrrev_b32 v13, 2, v1",
                "v_and_b32 v10, 3, v1", "v_lshl_or_b32 v13, v10, 4, v13", "v_lshlrev_b32 v10, 2, v10", "v_and_b32 v10, 8, v10"]
    for k in range(6):
        for x in fill[2*k:2*k+2]: a(x)
        a(f"v_add_u32_dpp v{q+3}, v{q+3}, v{q+3} {DPP[k]}")
    a(f"v_sub_u32 v{q+2}, v{q+3}, v{q+2}")
    a(f"v_readlane_b32 {sLen}, v{q+3}, s57")
    if P.get("aswz", 0): a("v_xor_b32 v10, v10, v13\nv_lshlrev_b32 v10, 3, v10")
    a(f"v_mov_b32_dpp v{q+4}, v{q+2} row_newbcast:0 row_mask:0xf bank_mask:0x3")
    a(f"v_readlane_b32 s58, v{q+2}, s56")
    a(f"v_mov_b32_dpp v{q+4}, v{q+2} row_newbcast:8 row_mask:0xf bank_mask:0xc")
    a(f"v_add_u32 v{q+5}, 15, v{q+4}\nv_and_b32 v{q+5}, -16, v{q+5}\nv_add_u32 v{q+5}, v{q+5}, v{q+6}")
    a(f"v_sub_u32 v{q+4}, v{q+5}, v{q+4}\nv_add_u32 v{q+4}, v{q+4}, v{q+2}")
    a(f"v_add_u32 v{q}, v{q+4}, v{q}\nv_lshl_or_b32 v{q}, v{q}, 16, v{q+4}")
    a(f"v_readlane_b32 {sBase}, v{q+5}, s56")
    for u in range(3): a(f"ds_bpermute_b32 v{ad+u}, v{ad+u}, v{q}")
    a(f"s_sub_u32 {sLen}, {sLen}, s58\ns_add_u32 s56, {sBase}, {sLen}")
    a(f"v_add_u32 v{q+1}, s56, v1\nv_lshlrev_b32 v{q+2}, 2, v{q+1}\nv_lshlrev_b32 v{q+3}, 4, v{q+1}")
    a("s_mov_b64 exec, 0xfffff")
    a(f"ds_write_b32 v{q+2}, v{q+7} offset:{L_OFF}\nds_write_b8 v{q+1}, v4 offset:{L_NODE}\nds_write_b128 v{q+3}, v[4:7] offset:{L_PAY}")
    for u in range(3):
        a(f"s_mov_b64 exec, {M(u)}\ns_waitcnt lgkmcnt({5 + u})")
        a(f"v_bfe_u32 v{ad+u}, v{ad+u}, v{CI+u}, 16\nv_add_u32 v{ad+u}, v{ad+u}, v{RK+u}")
        a(f"v_lshlrev_b32 v{RK+u}, 2, v{ad+u}\nv_lshlrev_b32 v{CI+u}, 4, v{ad+u}")
        a(f"ds_write_b32 v{RK+u}, v{KEY+2*u} offset:{L_OFF}\nds_write_b8 v{ad+u}, v{CD+u} offset:{L_NODE}")
    EP = P.get("epre", 0); PA5 = [XR + 50, XR + 51, XR + 60, XR + 61, XR + 62]
    if EP:
        P["ring"] = 8
        a("s_mov_b64 exec, -1")
        for sl in range(5):
            a(f"s_add_u32 s58, {sW}, {8*sl}\nv_cmp_eq_u32 vcc, s58, v2\ns_ff1_i32_b64 s58, vcc\ns_mul_i32 s58, s58, {4*RS}\ns_add_u32 s58, s58, {L_AGG}\nv_add_u32 v{PA5[sl]}, s58, v15")
    XE = P.get("xearly", 0); XO = P.get("xorder", 0); xaux = P.get("xaux", "")
    def xloads(wait):
        for n in range(DE):
            if wait is not None and n % 4 == 0: a(f"s_waitcnt lgkmcnt({ngr - 1 - n//4 + wait})")
            if SAFE: a(f"v_add_u32 v{TP+n}, v9, v{TP+n}")
            a(f"buffer_load_dwordx4 v[{XR+4*n}:{XR+4*n+3}], v{TP+n}, {XS}, 0 offen {xaux}")
    def addrs():
        a(f"s_lshl_b32 s56, {sBase}, 2\ns_add_u32 s56, s56, {L_OFF}\nv_mov_b32 v{vOffA}, s56")
        a(f"s_add_u32 s56, {sBase}, {L_NODE}\nv_mov_b32 v{vNodeA}, s56")
        a(f"s_lshl_b32 s56, {sBase}, 5\ns_add_u32 s56, s56, {L_A}\nv_add_u32 v{vAA}, s56, v10\nv_add_u32 v11, s56, v11")
        a(f"s_lshl_b32 s57, {sBase}, 4\ns_add_u32 s57, s57, {L_PAY}")
        a(f"v_lshl_add_u32 v{vEfA}, v12, 4, s57\nv_add_u32 v10, s57, v9")
        a(f"s_add_u32 {sG}, {sLen}, 3\ns_lshr_b32 {sG}, {sG}, 2")
    def paywait(nx):
        if P["pf"]:
            a(f"s_cmp_lt_u32 {sW}, {8-P['pf']}\ns_cselect_b32 s56, 1, {sRB}\ns_or_b32 s56, s56, {sFB}\ns_cbranch_scc0 K_PW1\ns_waitcnt vmcnt({nx})\nK_PW1:\ns_waitcnt vmcnt({nx+1})")
        else: a(f"s_waitcnt vmcnt({nx})")
        for u in range(3): a(f"s_mov_b64 exec, {M(u)}\nds_write_b128 v{CI+u}, v[{PAYR+4*u}:{PAYR+4*u+3}] offset:{L_PAY}")
        a("s_mov_b64 exec, -1")
    if XE:
        assert DE == 8
        a("s_mov_b64 exec, -1")
        addrs()
        a("s_waitcnt lgkmcnt(0)\ns_barrier")
        stamp("Bf1")
        for gg in range(ngr): a(f"ds_read_b128 v[{TP+4*gg}:{TP+4*gg+3}], v{vOffA} offset:{16*gg}")
        a(f"ds_read2_b64 v[{OFFS}:{OFFS+3}], v{vOffA} offset0:{DE//2} offset1:{DE//2+1}\nds_read_b128 v[{NODE}:{NODE+3}], v{vNodeA}")
        xloads(2)
        paywait(DE)
        a("s_waitcnt lgkmcnt(0)\ns_barrier")
        stamp("Bf")
        a(f"s_cmp_eq_u32 {sG}, 0\ns_cbranch_scc1 K2_LOOPDONE")
        a(f"ds_read_b64 v[{TA}:{TA+1}], v10\nds_read_b64 v[{EF}:{EF+1}], v{vEfA} offset:8\ns_lshl_b32 s56, {sG}, 2")
    else:
        paywait(0)
        addrs()
        a("s_waitcnt lgkmcnt(0)\ns_barrier")
        stamp("Bf")
        a(f"s_cmp_eq_u32 {sG}, 0\ns_cbranch_scc1 K2_LOOPDONE")
        for gg in range(ngr): a(f"ds_read_b128 v[{TP+4*gg}:{TP+4*gg+3}], v{vOffA} offset:{16*gg}")
        a(f"ds_read_b64 v[{TA}:{TA+1}], v10\nds_read2_b64 v[{OFFS}:{OFFS+3}], v{vOffA} offset0:{DE//2} offset1:{DE//2+1}")
        a(f"ds_read_b64 v[{EF}:{EF+1}], v{vEfA} offset:8\nds_read_b128 v[{NODE}:{NODE+3}], v{vNodeA}\ns_lshl_b32 s56, {sG}, 2")
        if XO: a(f"s_cmp_ge_u32 {sW}, 4\ns_cbranch_scc1 K_XL1")
        xloads(4)
        if XO: a("K_XL1:")
    stamp("xiss")
    if P.get("afold"): a(f"s_mov_b32 s58, {f32(-LN2)}\ns_mov_b32 s59, s58")
    a("K_APREP:")
    a(f"v_cmp_gt_u32 vcc, s56, v1")
    a("s_waitcnt lgkmcnt(0)")
    a(f"v_cndmask_b32 v{TB}, 0, v{TA}, vcc\nv_cndmask_b32 v{TB+1}, 0, v{TA+1}, vcc")
    a(f"ds_read_b64 v[{TA}:{TA+1}], v10 offset:1024\nv_add_u32 v10, 1024, v10")
    for gg in range(4):
        a(f"v_mfma_f32_16x16x16_bf16 v[{TP+16+4*gg}:{TP+19+4*gg}], v[{CGF+2*gg}:{CGF+2*gg+1}], v[{TB}:{TB+1}], 0")
    for gg in range(4):
        if P.get("afold"):
            for k in range(2): a(f"v_pk_mul_f32 v[{TP+16+4*gg+2*k}:{TP+17+4*gg+2*k}], v[{TP+16+4*gg+2*k}:{TP+17+4*gg+2*k}], s[58:59]")
        a(f"v_cvt_pk_bf16_f32 v{EE+2*gg}, v{TP+16+4*gg}, v{TP+17+4*gg}\nv_cvt_pk_bf16_f32 v{EE+2*gg+1}, v{TP+18+4*gg}, v{TP+19+4*gg}")
        a(f"ds_write_b64 v11, v[{EE+2*gg}:{EE+2*gg+1}] offset:{512*gg}")
        a(f"s_sub_u32 s56, s56, 16\ns_cmp_le_i32 s56, 0\ns_cbranch_scc1 K_APDONE")
    a("v_add_u32 v11, 2048, v11\ns_branch K_APREP")
    a("K_APDONE:")
    if XO:
        a(f"s_cmp_lt_u32 {sW}, 4\ns_cbranch_scc1 K_XL2")
        xloads(None)
        a("K_XL2:")
    a(f"s_waitcnt lgkmcnt(0)\nds_read_b64 v[{AOP}:{AOP+1}], v{vAA}")
    for x in pre_mfmas(dict(EF=EF, WF=WF), TA, 0, P): a(x)
    stamp("loop0")
    if P.get("ts"): a("s_memtime s[66:67]")
    if P.get("drain"): a(f"s_sub_u32 {sG}, {sG}, 3\ns_nop 2\ns_cbranch_scc1 K2_D0")
    else: a(f"s_sub_u32 {sG}, {sG}, 1\ns_nop 3")
    R = dict(ACC=ACC, XR=XR, TP=TP, TA=TA, TB=TB, EE=EE, WF=WF, AOP=AOP, EF=EF, OFFS=OFFS, NODE=NODE, vOffA=vOffA, vNodeA=vNodeA,
             vAA=vAA, vEfA=vEfA, sG=sG, sN=sN, vPm=vPm, vPo=vPo, vPv=vPv, XS=XS, sRot=sRot, vPt=255, RING=P.get("ring", 16))
    gen_loop(a, R, P, dict(PROG=L_PROG))
    if P.get("ts"): a("s_memtime s[68:69]")
    stamp("loop1")
    if PR.startswith("pair"):
        a(f"v_mov_b32 v{vPv}, -1\nds_write_b32 v{vPm}, v{vPv} offset:{L_PROG}\ns_setprio 0")
    a(f"s_add_u32 {sRB}, {sRB}, {CAP}\ns_cmp_ge_u32 {sRB}, {sT}\ns_cbranch_scc1 K_EPI")
    a("s_waitcnt vmcnt(0) lgkmcnt(0)\ns_barrier")
    a(f"ds_write_b128 v8, v[4:7]\nds_write_b32 v3, v4 offset:{L_PROG}")
    a(f"v_cmp_gt_u32 vcc, 128, v0\ns_and_saveexec_b64 s[56:57], vcc\nds_write_b32 v3, v4 offset:{L_CNT}\ns_mov_b64 exec, s[56:57]")
    a("s_waitcnt lgkmcnt(0)\ns_barrier")
    a(f"s_cmp_eq_u32 {sFB}, 0\ns_cbranch_scc1 K_ROUND\ns_branch K_FB")
    a("K_LATER:")
    payloads()
    a("K_LATER2:")
    for u in range(3): a(f"v_lshrrev_b32 v{ad+u}, 2, v{KEY+2*u}\nv_and_b32 v{ad+u}, 0xfc, v{ad+u}")
    a("s_branch K_BAL")
    a(f"K_FB0:\ns_mov_b32 {sT}, {E}")
    wmextract()
    a("K_FB:")
    a(f"s_mul_i32 s56, {sW}, {CAPW}\ns_add_u32 s56, s56, {sRB}")
    a(f"v_add_u32 v{f}, s56, v1\nv_add_u32 v{f+1}, 64, v{f}\nv_add_u32 v{f+2}, 128, v{f}")
    for u in range(3):
        a(f"v_cmp_gt_u32 {M(u)}, {sT}, v{f+u}\nv_min_u32 v{f+u}, {E-1}, v{f+u}\nv_lshlrev_b32 v{ad+u}, 2, v{f+u}\nv_lshlrev_b32 v{PA+u}, 3, v{f+u}")
        a(f"global_load_dword v{m+u}, v{ad+u}, s[8:9]\nglobal_load_dword v{m+4+u}, v{ad+u}, s[6:7]")
        a(f"global_load_dwordx2 v[{PAYR+4*u}:{PAYR+4*u+1}], v{PA+u}, s[10:11]\nglobal_load_dwordx2 v[{PAYR+4*u+2}:{PAYR+4*u+3}], v{PA+u}, s[12:13]")
    a(f"v_mov_b32 v14, 64\ns_waitcnt vmcnt(0)")
    for u in range(3):
        a(f"v_mul_u32_u24 v{f+u}, 214749, v{m+u}\nv_lshrrev_b32 v{f+u}, 23, v{f+u}\nv_cmp_eq_u32 vcc, {sBin}, v{f+u}\ns_and_b64 {M(u)}, {M(u)}, vcc")
        a(f"v_subrev_u32 v{KEY+2*u}, {sNs}, v{m+u}")
        keycalc2(m+4+u, KEY+2*u, f+u)
    a(f"s_cmp_lg_u32 {sRB}, 0\ns_cbranch_scc1 K_LATER2\ns_branch K_GOT")
    a("K_EPI:")
    SPLIT = P.get("split", 0)
    if SPLIT:
        L_GC = 1800
        NO = TA
        a(f"v_and_b32 v10, 7, v2\nv_bfe_u32 v11, v2, 3, 3\nv_mad_u32_u24 v10, v10, 5, v11\nv_lshlrev_b32 v10, 2, v10")
        a(f"s_lshr_b32 s59, {sW}, 2\ns_mul_i32 s60, s59, 80\nv_lshrrev_b32 v13, 4, v1\nv_lshl_add_u32 v11, v13, 2, s60")
        a("ds_permute_b32 v10, v10, v1")
        a(f"s_mov_b32 s56, {f32(-LN2)}\ns_mov_b32 s57, s56\ns_mul_i32 s58, {sW}, {20*RS}\ns_add_u32 s58, s58, {L_AGG}\nv_add_u32 v14, s58, v15")
        for k in range(0 if P.get("afold") else 4): a(f"v_pk_mul_f32 v[{ACC+2*k}:{ACC+2*k+1}], v[{ACC+2*k}:{ACC+2*k+1}], s[56:57]")
        a("s_waitcnt lgkmcnt(0)")
        for i_ in range(5): a(f"ds_bpermute_b32 v{NO+i_}, v11, v10 offset:{16*i_}")
        for sl in range(5):
            if sl:
                for k in range(0 if P.get("afold") else 4): a(f"v_pk_mul_f32 v[{ACC+8*sl+2*k}:{ACC+8*sl+2*k+1}], v[{ACC+8*sl+2*k}:{ACC+8*sl+2*k+1}], s[56:57]")
            for mm in range(4):
                a(f"v_cvt_pk_bf16_f32 v{ACC+8*sl+mm}, v{ACC+8*sl+mm}, v{ACC+8*sl+4+mm}")
                a(f"ds_write_b32 v14, v{ACC+8*sl+mm} offset:{RS*(4*sl+mm)}")
        a(f"s_lshl_b32 s61, s59, 2\nv_mov_b32 v10, s61\nv_mov_b32 v11, 1\nv_and_b32 v12, 15, v1")
        a(f"s_mul_i32 s59, s59, {80*RS}\ns_add_u32 s59, s59, {L_AGG}")
        a(f"v_mul_u32_u24 v14, {RS}, v12\nv_lshl_add_u32 v14, v13, 4, v14\nv_add_u32 v14, s59, v14")
        a(f"s_lshl_b32 s58, {sNs}, 10\ns_and_b32 s59, {sW}, 3\ns_lshl_b32 s59, s59, 8\ns_add_u32 s58, s58, s59\nv_lshlrev_b32 v12, 4, v12")
        a(f"s_waitcnt lgkmcnt(0)\ns_mov_b64 exec, 1\nds_add_u32 v10, v11 offset:{L_GC}\ns_mov_b64 exec, -1")
        for i_ in range(5): a(f"v_lshl_add_u32 v{NO+i_}, v{NO+i_}, 10, v12")
        a(f"K_GW:\nds_read_b32 v11, v10 offset:{L_GC}\ns_waitcnt lgkmcnt(0)\nv_readfirstlane_b32 s59, v11\ns_cmp_ge_u32 s59, 4\ns_cbranch_scc1 K_GW1\ns_sleep 1\ns_branch K_GW\nK_GW1:")
        a("s_waitcnt vmcnt(0)")
        stamp("Bg")
    else:
        a(f"s_mov_b32 s56, {f32(-LN2)}\ns_mov_b32 s57, s56")
        for sl in range(5):
            if not EP: a(f"s_add_u32 s58, {sW}, {8*sl}\nv_cmp_eq_u32 vcc, s58, v2")
            for k in range(0 if P.get("afold") else 4): a(f"v_pk_mul_f32 v[{ACC+8*sl+2*k}:{ACC+8*sl+2*k+1}], v[{ACC+8*sl+2*k}:{ACC+8*sl+2*k+1}], s[56:57]")
            if not EP: a(f"s_ff1_i32_b64 s58, vcc\ns_mul_i32 s58, s58, {4*RS}\ns_add_u32 s58, s58, {L_AGG}\nv_add_u32 v{10 + sl%2}, s58, v15")
            for mm in range(4):
                a(f"v_cvt_pk_bf16_f32 v{ACC+8*sl+mm}, v{ACC+8*sl+mm}, v{ACC+8*sl+4+mm}")
                a(f"ds_write_b32 v{PA5[sl] if EP else 10 + sl%2}, v{ACC+8*sl+mm} offset:{RS*mm}")
        a(f"v_and_b32 v12, 15, v1\nv_lshrrev_b32 v13, 4, v1")
        a(f"s_lshr_b32 s58, {sW}, 2\ns_mul_i32 s59, s58, {16*RS}\ns_add_u32 s59, s59, {L_AGG}")
        a(f"v_mul_u32_u24 v14, {RS}, v12\nv_lshl_add_u32 v14, v13, 4, v14\nv_add_u32 v14, s59, v14")
        a(f"s_lshl_b32 s58, s58, 2\ns_add_u32 s58, s58, {sNs}\ns_lshl_b32 s58, s58, 10\ns_and_b32 s59, {sW}, 3\ns_lshl_b32 s59, s59, 8\ns_add_u32 s58, s58, s59")
        a(f"v_lshlrev_b32 v13, 10, v13\nv_lshl_add_u32 v13, v12, 4, v13")
        a("s_waitcnt vmcnt(0) lgkmcnt(0)\ns_barrier")
        stamp("Bg")
    TS_ = 16 * RS if SPLIT else 32 * RS
    FA = XR
    for i in range(4):
        for ks in range(4): a(f"ds_read_b128 v[{FA+16*i+4*ks}:{FA+16*i+4*ks+3}], v14 offset:{TS_*i + 64*ks}")
    ost = P["out_aux"]
    def outtile(i):
        Dp = TP + 8 * (i % 2); Op = TP + 16 + 4 * (i % 2)
        for k in range(4): a(f"v_cvt_pk_bf16_f32 v{Op+k}, v{Dp+2*k}, v{Dp+2*k+1}")
        a(f"buffer_store_dwordx4 v[{Op}:{Op+3}], v{TA+i if SPLIT else 13}, {OS}, s58 offen {ost}")
        if i < 4 and not SPLIT: a("s_add_u32 s58, s58, 8192")
    for i in range(5):
        Dd = TP + 8 * (i % 2); fi = FA + 16 * (i % 4)
        for ks in range(4):
            if i < 4: a(f"s_waitcnt lgkmcnt({min(15, 15 - 4*i - ks + (4 if i >= 1 else 0))})")
            else: a(f"s_waitcnt lgkmcnt({3 - ks})")
            for tt in range(2):
                b = BF + 16*tt + 4*ks
                a(f"v_mfma_f32_16x16x32_bf16 v[{Dd+4*tt}:{Dd+4*tt+3}], v[{fi+4*ks}:{fi+4*ks+3}], v[{b}:{b+3}], " + ("0" if ks == 0 else f"v[{Dd+4*tt}:{Dd+4*tt+3}]"))
        if i == 0:
            for ks in range(4): a(f"ds_read_b128 v[{FA+4*ks}:{FA+4*ks+3}], v14 offset:{TS_*4 + 64*ks}")
        if i >= 1: outtile(i - 1)
    outtile(4)
    a(f"s_or_b32 s56, {sFB}, {sW}")
    if P.get("epo") == "none": a("s_mov_b32 s56, 1")
    if P.get("epo") == "wg0": a("s_or_b32 s56, s56, s2")
    a("s_cmp_lg_u32 s56, 0\ns_cbranch_scc1 K_NOEPO")
    a(f"v_mov_b32 v10, {sTag}\ns_mov_b64 exec, 1\nbuffer_store_dword v10, v4, {WSR}, 0 offen offset:{WS_EPO} {P.get('epo_aux', '')}\nK_NOEPO:")
    if P.get("ts"):
        a("s_waitcnt vmcnt(0)"); stamp("end")
        a("s_waitcnt lgkmcnt(0)")
        a(f"s_lshl_b32 s98, s2, 3\ns_add_u32 s98, s98, s3\ns_lshl_b32 s98, s98, 6\ns_add_u32 s98, s98, {WS_TS}")
        a("s_mov_b64 exec, 1\nv_mov_b32 v2, s98")
        for i in range(tsn[0]): a(f"v_mov_b32 v3, s{70 + 2*i}\nglobal_store_dword v2, v3, s[24:25] offset:{4*i}")
        a(f"s_sub_u32 s68, s68, s66\nv_mov_b32 v3, s68\nglobal_store_dword v2, v3, s[24:25] offset:56\nv_mov_b32 v3, {sLen}\nglobal_store_dword v2, v3, s[24:25] offset:60")
        assert tsn[0] <= 14
    a("K_END:\ns_endpgm")
    a(".p2align 6\n.type K_TAB,@object\nK_TAB:")
    for A in (A39, A40):
        used = [0]*8; codes = []
        for ww in A: codes.append(ww | used[ww] << 3); used[ww] += 1
        assert used == [5]*8
        a(".byte " + ", ".join(str(cc) for cc in codes + [255]*24))
    body = a.text(verbose=verbose)
    ns = 100 if P.get("ts") else 72
    gen.nts = tsn[0]
    return (HEADER + f"; @launch grid=({NB},1,1) block=(512,1,1) lds={L_END}\n" + '.amdgcn_target "amdgcn-amd-amdhsa--gfx950"\n.text\n' + body
            + '.section .rodata,"a"\n' + desc(NAME, 256, ns))

if __name__ == "__main__":
    P = eval(sys.argv[2]) if len(sys.argv) > 2 else {}
    open(sys.argv[1], "w").write(gen(P, verbose=True))
```

```python
def pre_mfmas(R, T, ab, P):
    EF, WF = R["EF"], R["WF"]
    l = [f"v_mfma_f32_4x4x4_16b_bf16 v[{T}:{T+3}], v[{EF}:{EF+1}], v[{WF}:{WF+1}], 0 cbsz:4 abid:{ab}",
         f"v_mfma_f32_4x4x4_16b_bf16 v[{T+4}:{T+7}], v[{EF}:{EF+1}], v[{WF+4}:{WF+5}], 0 cbsz:4 abid:{ab}",
         f"v_mfma_f32_4x4x4_16b_bf16 v[{T}:{T+3}], v[{EF}:{EF+1}], v[{WF+2}:{WF+3}], v[{T}:{T+3}] cbsz:4 abid:{ab}",
         f"v_mfma_f32_4x4x4_16b_bf16 v[{T+4}:{T+7}], v[{EF}:{EF+1}], v[{WF+6}:{WF+7}], v[{T+4}:{T+7}] cbsz:4 abid:{ab}"]
    return l[:2] if P.get("nolo") else l

def gen_loop(a_real, R, P, L):
    g = R.get
    ACC, XR, TP, TA, TB, EE, AOP, EF, OFFS, NODE = (R[k] for k in "ACC XR TP TA TB EE AOP EF OFFS NODE".split())
    vOffA, vNodeA, vAA, vEfA, sG, sN = (R[k] for k in "vOffA vNodeA vAA vEfA sG sN".split())
    vPm, vPo, vPv = R["vPm"], R["vPo"], R["vPv"]
    DE = P.get("DE", 8); ng = DE // 4; RING = R.get("RING", 16)
    PR = P.get("prio", ""); SAFE = P.get("safe"); xaux = P.get("xaux", "")
    sched = P.get("sched", "a"); XS = R.get("XS", "s[8:11]")
    inc = (0, 0, 0, 0) if P.get("bench") else (64, 16, 512, 256)
    drop = tuple(P.get("nocomp", ()))
    def a(t):
        for l in t.split("\n"):
            if l.strip() and not (drop and l.strip().startswith(drop)): a_real(l)
    a(f".p2align {P.get('lp2', 4)}")
    for i in range(P.get("lpad", 0)): a("s_nop 0")
    a("K2_LOOP:")
    if P.get("trace"):
        a("s_memtime s[90:91]\ns_memrealtime s[92:93]\ns_waitcnt lgkmcnt(0)\ns_mov_b32 m0, s94\nv_writelane_b32 v250, s90, m0\nv_writelane_b32 v251, s92, m0\ns_add_u32 s94, s94, 1")
    DR = P.get("drain", 0)
    UN = P.get("unroll", 1); NQ = 4 * UN
    for copy, QQ in [(c_, q_) for c_ in range(2 if DR else 1) for q_ in range(NQ)]:
        qq = QQ % 4; bi = QQ // 4; last = QQ == NQ - 1
        if copy: a(f"K2_D{QQ}:")
        T = TA if qq % 2 == 0 else TB
        Tn = TB if qq % 2 == 0 else TA
        def tp(e, h):
            s = XR + 4 * ((4*qq + e) % RING) + 2*h
            d = TP + 8*e + 4*h
            return f"v_mfma_f32_4x4x4_16b_bf16 v[{d}:{d+3}], v[{AOP}:{AOP+1}], v[{s}:{s+1}], 0 cbsz:4 abid:{4*qq+e}"
        def ld(e):
            s = XR + 4 * ((4*qq + e + DE) % RING)
            if P.get("noload") or copy: return ""
            return (f"v_add_u32 v{OFFS+e}, v9, v{OFFS+e}\n" if SAFE else "") + f"buffer_load_dwordx4 v[{s}:{s+3}], v{OFFS+e}, {XS}, 0 offen {xaux}"
        ex = [f"v_exp_f32 v{EE+i}, v{T+i}" for i in range(8)]
        rc = [f"v_rcp_f32 v{EE+i}, v{EE+i}" for i in range(8)]
        ad = [f"v_pk_add_f32 v[{EE+2*i}:{EE+2*i+1}], v[{EE+2*i}:{EE+2*i+1}], 1.0 op_sel_hi:[1,0]" for i in range(4)]
        mu = [f"v_pk_mul_f32 v[{EE+2*i}:{EE+2*i+1}], v[{EE+2*i}:{EE+2*i+1}], v[{T+2*i}:{T+2*i+1}]" for i in range(4)]
        pm = pre_mfmas(R, Tn, (qq + 1) % 4, P) + ["", ""]
        def fma(e):
            o = [f"s_set_gpr_idx_on {sN}, gpr_idx(SRC2,DST)" if e == 0 else f"s_lshr_b32 {sN}, {sN}, 8\ns_set_gpr_idx_idx {sN}"]
            for h in range(2):
                r = EE + 4*h + (e & ~1); sel = e & 1
                for i in range(2):
                    d = ACC + 4*h + 2*i; t = TP + 8*e + 4*h + 2*i
                    o.append(f"v_pk_fma_f32 v[{d}:{d+1}], v[{r}:{r+1}], v[{t}:{t+1}], v[{d}:{d+1}] op_sel:[{sel},0,0] op_sel_hi:[{sel},1,1]")
            return "\n".join(o)
        ob = 16*(QQ + 1) + 4*DE
        dsoff = "" if copy else (f"ds_read_b128 v[{OFFS}:{OFFS+3}], v{vOffA} offset:{ob}" if ob % 16 == 0 else
                                 f"ds_read2_b64 v[{OFFS}:{OFFS+3}], v{vOffA} offset0:{ob//8} offset1:{ob//8+1}")
        def vw(n, extra, tag):
            if not copy: return f"s_waitcnt vmcnt({n}){extra}"
            first, second = (6, 2) if tag == "A" else (4, 0)
            return f"s_cmp_eq_u32 {sG}, -1\ns_cbranch_scc1 K2_W{tag}{QQ}\ns_waitcnt vmcnt({second})\nK2_W{tag}{QQ}:\ns_waitcnt vmcnt({first}){extra}"
        dsA = f"ds_read_b64 v[{AOP}:{AOP+1}], v{vAA} offset:{512*(bi+1)}" if qq == 3 else ""
        dsP = f"ds_read_b32 v{vPv}, v{vPo} offset:{L['PROG']}" if not copy and (PR == "pair1" or (PR == "pair2" and qq % 2 == 1) or (PR == "pair4" and qq == 3)) else ""
        if dsP and P.get("tri"): dsP += f"\nds_read_b32 v{R['vPv2']}, v{R['vPo2']} offset:{L['PROG']}"
        dsE = f"ds_read_b64 v[{EF}:{EF+1}], v{vEfA} offset:{256*(bi+1)+8}" if qq == 2 else ""
        rfl = f"v_readfirstlane_b32 {sN}, v{NODE+qq}"
        dsN = f"ds_read_b128 v[{NODE}:{NODE+3}], v{vNodeA} offset:{16*(bi+1)}" if qq == 3 else ""
        if last:
            pr = vEfA if not P.get("bench") else 3
            dsN += (f"\nv_add_u32 v{vOffA}, {inc[0]*UN}, v{vOffA}\nv_add_u32 v{vNodeA}, {inc[1]*UN}, v{vNodeA}\nv_add_u32 v{vAA}, {inc[2]*UN}, v{vAA}"
                    f"\nv_add_u32 v{pr}, {inc[3]*UN if not P.get('bench') else 1}, v{pr}")
        PV = 3 if P.get("bench") else OFFS
        def prio():
            dop = PR == "pair1" or (PR == "pair2" and qq % 2 == 0) or (PR == "pair4" and qq == 0)
            if dop and not copy:
                pv = PV
                if R.get("sRot"): a(f"v_subrev_u32 v{R['vPt']}, {R['sRot']}, v{PV}"); pv = R["vPt"]
                a(f"v_cmp_gt_u32 vcc, v{pv}, v{vPv}")
                a(f"ds_write_b32 v{vPm}, v{pv} offset:{L['PROG']}")
                if P.get("tri"):
                    a(f"v_cmp_gt_u32 s[60:61], v{pv}, v{R['vPv2']}\ns_cbranch_vccnz K2_Q{QQ}\ns_setprio 2\ns_cmp_lg_u32 s60, 0\ns_cbranch_scc1 K2_P{QQ}\ns_setprio 3\ns_branch K2_P{QQ}")
                    a(f"K2_Q{QQ}:\ns_setprio 0\ns_cmp_lg_u32 s60, 0\ns_cbranch_scc1 K2_P{QQ}\ns_setprio 1\nK2_P{QQ}:")
                else: a(f"s_setprio 0\ns_cbranch_vccnz K2_P{QQ}\ns_setprio 1\nK2_P{QQ}:")
            if PR == "quart" and qq == 0:
                a(f"s_cmp_le_i32 {sG}, s41\ns_cbranch_scc1 K2_PRIO\nK2_PRIOBACK:")
        if sched == "a":
            a("s_waitcnt lgkmcnt(0)")
            prio()
            for e in range(3):
                a(f"s_waitcnt vmcnt({DE-1})")
                a(tp(e, 0)); a(ex[2*e]); a(tp(e, 1)); a(ld(e)); a(ex[2*e+1])
            a(ex[6]); a(ex[7])
            for x in ad: a(x)
            a(f"s_waitcnt vmcnt({DE-1})")
            a(tp(3, 0)); a(rc[0]); a(tp(3, 1)); a(ld(3)); a(rc[1])
            a(dsoff); a(dsA); a(dsP)
            a(pm[0]); a(rc[2]); a(pm[1]); a(rc[3]); a(pm[2]); a(rc[4]); a(pm[3]); a(dsE)
            a(rc[5]); a(rc[6]); a(rc[7]); a(rfl); a(dsN)
            for x in mu: a(x)
            for e in range(4): a(fma(e))
            a("s_set_gpr_idx_off")
        elif sched == "b":
            ph = P.get("phase")
            a(vw(DE-2, " lgkmcnt(0)", "A"))
            prio()
            if ph: a(f"s_setprio {ph[0]}")
            if P.get("bar") == 1 or (P.get("bar") == 2 and qq % 2 == 0) or (P.get("bar") == 4 and qq == 0): a("s_barrier")
            a(tp(0, 0)); a(ex[0]); a(tp(0, 1)); a(ex[1]); a(tp(1, 0)); a(ex[2]); a(tp(1, 1)); a(ld(0)); a(ld(1)); a(ex[3])
            a(vw(DE-2, "", "B"))
            a(tp(2, 0)); a(ex[4]); a(tp(2, 1)); a(ex[5]); a(ex[6]); a(ex[7])
            for x in ad: a(x)
            a(tp(3, 0)); a(rc[0]); a(tp(3, 1)); a(ld(2)); a(ld(3)); a(rc[1])
            a(dsoff); a(dsA); a(dsP)
            a(pm[0]); a(rc[2]); a(pm[1]); a(rc[3]); a(pm[2]); a(rc[4]); a(pm[3]); a(dsE)
            a(rc[5]); a(rc[6]); a(rc[7]); a(rfl); a(dsN)
            if ph: a(f"s_setprio {ph[1]}")
            if P.get("bar2"): a("s_barrier")
            for x in mu: a(x)
            for e in range(4): a(fma(e))
            a("s_set_gpr_idx_off")
        elif sched == "s":
            assert DE == 8 and UN == 1
            O = R["O16"]; sm = P.get("smem", (0, 0, 0)); sP, sO = R["sPf"], R["sPo"]
            def ld2(e):
                if P.get("noload") or copy: return ""
                s_ = XR + 4 * ((4*qq + e + DE) % RING)
                return (f"v_add_u32 v{O+4*qq+e}, v9, v{O+4*qq+e}\n" if SAFE else "") + f"buffer_load_dwordx4 v[{s_}:{s_+3}], v{O+4*qq+e}, {XS}, 0 offen {xaux}"
            a(vw(DE-2, " lgkmcnt(0)" if qq == 0 else "", "A"))
            if qq == 0 and not copy and PR:
                a(f"v_subrev_u32 v{R['vPt']}, {R['sRot']}, v{O}\nv_cmp_gt_u32 vcc, v{R['vPt']}, v{vPv}\nds_write_b32 v{vPm}, v{R['vPt']} offset:{L['PROG']}")
                a(f"s_setprio 0\ns_cbranch_vccnz K2_P{QQ}\ns_setprio 1\nK2_P{QQ}:")
            pfl = []
            if not copy and qq < 3:
                b0 = sum(sm[:qq])
                pfl = [f"s_load_dwordx2 {R['sPd']}, s[{sP}:{sP+1}], {(b0+i)*256 + 124}" for i in range(sm[qq])]
            pfl += [""] * 8
            pm2 = pre_mfmas(R, Tn, qq, P) + ["", ""]
            a(tp(0, 0)); a(pfl[0]); a(ex[0]); a(tp(0, 1)); a(pfl[1]); a(ex[1]); a(tp(1, 0)); a(pfl[2]); a(ex[2]); a(tp(1, 1)); a(ld2(0)); a(ld2(1)); a(ex[3])
            a(vw(DE-2, "", "B"))
            a(tp(2, 0)); a(pfl[3]); a(ex[4]); a(tp(2, 1)); a(pfl[4]); a(ex[5]); a(pfl[5]); a(ex[6]); a(pfl[6]); a(ex[7])
            for x in ad: a(x)
            a(tp(3, 0)); a(rc[0]); a(tp(3, 1)); a(ld2(2)); a(ld2(3)); a(rc[1])
            if not copy: a(f"ds_read_b128 v[{O+4*qq}:{O+4*qq+3}], v{vOffA} offset:{16*qq + 64 + 4*DE}")
            a(dsA)
            if qq == 3 and not copy and PR: a(f"ds_read_b32 v{vPv}, v{vPo} offset:{L['PROG']}")
            a(pm2[0]); a(rc[2]); a(pm2[1]); a(rc[3]); a(pm2[2]); a(rc[4]); a(pm2[3])
            if qq == 3: a(f"ds_read_b64 v[{EF}:{EF+1}], v{vEfA} offset:{256+64+8}")
            a(rc[5]); a(rc[6]); a(rc[7]); a(rfl); a(dsN)
            if qq == 3 and not copy and sum(sm):
                step = sum(sm) * 256 * 256; lim = 10240000 - sum(sm) * 256 - 128
                a(f"s_add_u32 {sO}, {sO}, {step}\ns_cmp_ge_u32 {sO}, {lim}\ns_cselect_b32 s{sP}, {lim}, 0\ns_sub_u32 {sO}, {sO}, s{sP}\ns_add_u32 s{sP}, s4, {sO}\ns_addc_u32 s{sP+1}, s5, 0")
            for x in mu: a(x)
            for e in range(4): a(fma(e))
            a("s_set_gpr_idx_off")
        elif sched == "d":
            adp = [f"v_add_f32 v{EE+i}, 1.0, v{EE+i}" for i in range(8)]
            a(vw(DE-2, " lgkmcnt(0)", "A"))
            prio()
            a(tp(0, 0)); a(ex[0]); a(tp(0, 1)); a(ex[1]); a(tp(1, 0)); a(ex[2]); a(tp(1, 1)); a(ld(0)); a(ld(1)); a(ex[3])
            a(vw(DE-2, "", "B"))
            a(tp(2, 0)); a(ex[4]); a(tp(2, 1)); a(ex[5]); a(tp(3, 0)); a(ex[6]); a(tp(3, 1)); a(ld(2)); a(ld(3)); a(ex[7])
            a(dsoff); a(dsA); a(dsP)
            a(rfl)
            for x in ad: a(x)
            a(pm[0]); a(rc[0]); a(pm[1]); a(rc[1]); a(pm[2]); a(rc[2]); a(pm[3]); a(dsE); a(rc[3])
            a(rc[4]); a(rc[5]); a(rc[6]); a(rc[7]); a(dsN)
            for x in mu: a(x)
            for e in range(4): a(fma(e))
            a("s_set_gpr_idx_off")
        elif sched == "e":
            a(vw(DE-2, " lgkmcnt(0)", "A"))
            prio()
            a(rfl)
            a(tp(0, 0)); a(ex[0]); a(tp(0, 1)); a(ex[1]); a(tp(1, 0)); a(ex[2]); a(tp(1, 1)); a(ld(0)); a(ld(1)); a(ex[3])
            a(vw(DE-2, "", "B"))
            a(tp(2, 0)); a(ex[4]); a(tp(2, 1)); a(ex[5]); a(f"s_lshr_b32 s64, {sN}, 8"); a(ex[6]); a(f"s_lshr_b32 s65, {sN}, 16"); a(ex[7])
            for x in ad: a(x)
            a(tp(3, 0)); a(rc[0]); a(tp(3, 1)); a(ld(2)); a(ld(3)); a(rc[1])
            a(dsoff); a(dsA); a(dsP)
            a(pm[0]); a(rc[2]); a(pm[1]); a(rc[3]); a(pm[2]); a(rc[4]); a(pm[3]); a(dsE)
            a(rc[5]); a(f"s_lshr_b32 s62, {sN}, 24"); a(rc[6]); a(dsN); a(rc[7]); a("s_nop 0" if qq != 3 else "")
            for x in mu: a(x)
            for e in range(4):
                t_ = fma(e).split("\n")
                body = t_[1:] if e == 0 else t_[2:]
                a(t_[0] if e == 0 else f"s_set_gpr_idx_idx {('s64','s65','s62')[e-1]}")
                for x in body: a(x)
            a("s_set_gpr_idx_off")
        elif sched == "c":
            a(f"s_waitcnt vmcnt({DE-4}) lgkmcnt(0)")
            prio()
            a(tp(0, 0)); a(ld(0)); a(ex[0]); a(tp(0, 1)); a(ld(1)); a(ex[1]); a(tp(1, 0)); a(ld(2)); a(ex[2]); a(tp(1, 1)); a(ld(3)); a(ex[3])
            a(tp(2, 0)); a(dsoff); a(ex[4]); a(tp(2, 1)); a(ex[5]); a(ex[6]); a(ex[7])
            for x in ad: a(x)
            a(tp(3, 0)); a(rc[0]); a(tp(3, 1)); a(rc[1])
            a(dsA); a(dsP)
            a(pm[0]); a(rc[2]); a(pm[1]); a(rc[3]); a(pm[2]); a(rc[4]); a(pm[3]); a(dsE)
            a(rc[5]); a(rc[6]); a(rc[7]); a(rfl); a(dsN)
            for x in mu: a(x)
            for e in range(4): a(fma(e))
            a("s_set_gpr_idx_off")
        else:
            from loopx import extra
            extra(sched, a, locals())
        if DR:
            assert sched in "bs" and DE == 8
            if not copy:
                a(f"s_sub_u32 {sG}, {sG}, 1")
                a(f"s_cbranch_scc1 K2_D{QQ+1}" if not last else "s_cbranch_scc0 K2_LOOP")
            else:
                a(f"s_sub_u32 {sG}, {sG}, 1\ns_cmp_eq_u32 {sG}, -3")
                a("s_cbranch_scc1 K2_LOOPDONE" if not last else "s_cbranch_scc0 K2_D0")
        else:
            a(f"s_sub_u32 {sG}, {sG}, 1\ns_cmp_eq_u32 {sG}, 0" if not P.get("subcc") else f"s_sub_u32 {sG}, {sG}, 1")
            a("s_cbranch_scc1 K2_LOOPDONE" if not last else "s_cbranch_scc0 K2_LOOP")
    a = a_real
    if PR == "quart":
        a("s_branch K2_LOOPDONE\nK2_PRIO:\ns_sub_i32 s41, s41, s40\ns_add_u32 s42, s42, 1")
        a("s_setprio 2\ns_cmp_eq_u32 s42, 1\ns_cbranch_scc1 K2_PRIOBACK\ns_setprio 1\ns_cmp_eq_u32 s42, 2\ns_cbranch_scc1 K2_PRIOBACK\ns_setprio 0\ns_branch K2_PRIOBACK")
    a("K2_LOOPDONE:")
```

```python
import sys
from asmlib import Asm
from loopgen import gen_loop, pre_mfmas
from gen import HEADER as _H, scan_incl, f32, LOG2E, LN2, desc

N, E = 10000, 320000
NB, NP, CH = 256, 250, 1280
WS_EPO, WS_TAB, WS_KEY, WS_PAY, WS_FLG, WS_END = 0, 0x2000, 0x82000, 0x300000, 0x7F0000, 0x800000
WS_TS = 0x8000000
FS = 128
NAME = "gather_scatter__tensor_product_equiv_tfn__graph_kernel"
HEADER = _H[:_H.index("; Launch 1")] + """; One launch, 256 workgroups (one per CU).
; Phase 1: 250 workgroups each bin a chunk of 1280 edges by destination block (256 bins) and publish it in d_ws with
;          write-through stores: table row and keys as 8-byte pieces carrying this launch's tag, Y/edge_feat behind a flag.
;          (tag = epoch word of d_ws + 1; workgroups that saw all 256 rows store the tag back as the next epoch.)
; Phase 2: every workgroup collects its own bin, sorts it by (owner wave, source bucket), gathers x rows, does the
;          tensor product + radial gate in registers, mixes the channels and stores.
; If the hand-off never arrives (workgroups not co-resident) a workgroup scans the raw edge list on its own.
"""
A39 = [6, 5, 6, 7, 4, 2, 0, 1, 3, 4, 6, 3, 2, 0, 6, 1, 3, 5, 7, 1, 0, 5, 7, 4, 2, 1, 5, 4, 7, 3, 2, 0, 2, 0, 7, 1, 3, 4, 5, 6]
A40 = [3, 2, 4, 7, 0, 1, 6, 0, 5, 1, 7, 5, 6, 3, 4, 6, 5, 0, 2, 7, 1, 4, 6, 3, 2, 1, 3, 0, 5, 4, 2, 7, 2, 5, 4, 7, 1, 6, 0, 3]
DPP = ["row_shr:1 row_mask:0xf bank_mask:0xf", "row_shr:2 row_mask:0xf bank_mask:0xf", "row_shr:4 row_mask:0xf bank_mask:0xf",
       "row_shr:8 row_mask:0xf bank_mask:0xf", "row_bcast:15 row_mask:0xa bank_mask:0xf", "row_bcast:31 row_mask:0xc bank_mask:0xf"]

def gen(P=None, verbose=False):
    P = dict(dict(prio="pair2", sched="b", subcc=1, out_aux="sc1", pf=3, pfx=2, drain=1, nolo=1, epre=1, aswz=1, earlyA=1), **(P or {}))
    a = Asm()
    FS = P.get("FS", 128)
    DE = P.setdefault("DE", 8); ngr = (DE + 3) // 4; SAFE = P.get("safe"); PR = P["prio"]
    CAPW = 192; CAP = 8 * CAPW; NE = CAP + 8 * 48 + 16
    L_CNT, L_DEG, L_HCNT, L_FB, L_PROG, L_OFF = 0, 512, 768, 1792, 2048, 4096
    L_NODE = L_OFF + NE * 4
    L_PAY = (L_NODE + NE + 63) // 64 * 64
    L_A = L_PAY + NE * 16
    L_AGG = (L_A + NE * 32 + 255) // 256 * 256
    RS = 288
    L_END = L_AGG + 160 * RS
    L_MARK = L_AGG; L_WM = L_AGG + 8192; L_WR = L_WM + 32768; L_CG = L_WR + 1024; L_MAP = L_CG + 128
    L_PRE = L_OFF; L_TABL = L_OFF + 1024; L_SKEY = L_PAY; L_SPAY = L_A
    assert L_SPAY + 16384 < 65536 and L_MAP + 128 <= L_END
    ACC, XR, TP, TA, TB, EE, WF, AOP, EF, OFFS, NODE = 16, 56, 120, 152, 160, 168, 176, 184, 186, 188, 192
    vOffA, vNodeA, vAA, vEfA = 196, 197, 198, 199
    BF, CGF, PP, PL, PD = 200, 232, 240, 244, 248
    vPm, vPo, vPv = 252, 253, 254
    sW, sT, sRB, sG, sN, sBase, sLen, sTag, sBin, sNs, sFB = "s3", "s46", "s47", "s48", "s49", "s50", "s51", "s52", "s53", "s54", "s55"
    sRole, sT8, sRot = "s40", "s26", "s27"
    XS, OS, WSR = "s[28:31]", "s[32:35]", "s[36:39]"
    M = lambda u: f"s[{40+2*u}:{41+2*u}]"
    tsn = [0]; gen.names = []
    DEFST = ["start", "Bb", "Bc1", "Bc", "Bx", "keys", "pollP", "Bd", "Be", "Bf", "loop0", "loop1", "Bg", "end"]
    def stamp(name):
        if P.get("hold_at") == name:
            a(f"s_waitcnt lgkmcnt(0)\ns_add_u32 s70, s70, {P['hold_x']}\nK_HOLDP:\ns_memrealtime s[68:69]\ns_waitcnt lgkmcnt(0)\ns_sub_u32 s68, s68, s70\ns_cmp_lt_i32 s68, 0\ns_cbranch_scc1 K_HOLDP")
        if P.get("ts") and name in P.get("stamps", DEFST):
            gen.names.append(name)
            r = 70 + 2 * tsn[0]; a(f"s_memrealtime s[{r}:{r+1}]"); tsn[0] += 1

    a(f".globl {NAME}\n.p2align 8\n.type {NAME},@function\n{NAME}:")
    a(f"s_cmp_ge_u32 s2, {NB}\ns_cbranch_scc1 K_END")
    a("s_load_dwordx16 s[4:19], s[0:1], 0\ns_load_dwordx2 s[20:21], s[0:1], 64\ns_load_dwordx2 s[24:25], s[0:1], 80")
    stamp("start")
    if P.get("hold_at"): a("s_memrealtime s[70:71]")
    D, S, Y, F, B4, RK1 = TP, TP + 4, TP + 8, TP + 16, TP + 24, TP + 28
    KY, t, tmp, KG = XR, XR + 4, XR + 8, XR + 10
    la = P.get("load_aux", "")
    a("v_lshrrev_b32 v2, 6, v0\nv_and_b32 v1, 63, v0\nv_readfirstlane_b32 s3, v2")
    a(f"v_lshlrev_b32 v10, 4, v0\ns_mul_i32 s57, s2, {CH*4}\nv_lshlrev_b32 v3, 2, v0")
    if P.get("pfcode0", 1):
        a(f"s_cmp_lg_u32 s3, 5\ns_cbranch_scc1 K_PF0\ns_getpc_b64 s[26:27]\nK_PC3:\nv_lshlrev_b32 v13, 7, v1\nglobal_load_dword v255, v13, s[26:27]")
        a(f"v_add_u32 v13, 8192, v13\nv_min_u32 v13, K_TAB-K_PC3, v13\nglobal_load_dword v255, v13, s[26:27]\nK_PF0:")
    a("v_or_b32 v13, 0x4b000000, v1\ns_cmp_eq_u32 s3, 2\ns_cselect_b32 s56, -1, 0")
    a("v_add_u32 v11, s57, v10\nv_and_b32 v13, s56, v13\nv_lshlrev_b32 v12, 1, v11")
    a("ds_write_b32 v3, v13")
    a(f"s_cmp_lt_u32 s2, {NP}\ns_cselect_b32 s56, 5, 0\ns_cmp_lt_u32 {sW}, s56")
    stamp("prek")
    TL = P.get("tlb", 0)
    if TL:
        a(f"s_cselect_b32 {sRole}, 1, 0\ns_lshr_b32 s58, s2, 3\ns_cmp_lt_u32 s58, 11\ns_cbranch_scc0 K_NOTLB")
        a(f"s_cmp_lg_u32 {sW}, 6\ns_cbranch_scc1 K_TLB1\ns_lshl_b32 s59, s58, 3\ns_load_dwordx2 s[64:65], s[0:1], s59")
        a("s_mov_b32 s66, 128\ns_mov_b32 s67, 0x20000")
        for idx, size in ((0, 10240000), (1, 1280000), (2, 1280000), (3, 2560000), (4, 2560000), (7, 32768), (8, 10240000), (10, WS_END)):
            a(f"s_cmp_eq_u32 s58, {idx}\ns_cselect_b32 s66, {size}, s66")
        a("s_lshr_b32 s59, s66, 6\ns_and_b32 s59, s59, -4\nv_mul_lo_u32 v14, s59, v1\ns_waitcnt lgkmcnt(0)\nbuffer_load_dword v255, v14, s[64:67], 0 offen")
        a("K_TLB1:")
        if TL == 2: a("s_barrier")
        a(f"K_NOTLB:\ns_cmp_lg_u32 {sRole}, 0")
    a("s_waitcnt lgkmcnt(0)")
    stamp("karg")
    def setup0():
        if P.get("wsoff"): a(f"s_add_u32 s24, s24, {P['wsoff']}\ns_addc_u32 s25, s25, 0")
        a(f"s_load_dword {sTag}, s[24:25], {WS_EPO}")
        for k in range(4, 8): a(f"v_mov_b32 v{k}, 0")
        a(f"v_add_u32 v8, {L_MARK}, v10\nv_lshlrev_b32 v9, 4, v1\nv_lshlrev_b32 v15, 2, v1")
        a(f"ds_write_b128 v8, v[4:7]\nds_write_b32 v3, v4 offset:{L_PROG}")
        a(f"s_and_b32 {sBin}, s2, 7\ns_lshr_b32 s56, s2, 3\ns_lshl_b32 {sBin}, {sBin}, 5\ns_or_b32 {sBin}, {sBin}, s56")
    def setup():
        a(f"s_mul_i32 {sNs}, {sBin}, 625\ns_add_u32 s57, {sNs}, 640\ns_add_u32 {sNs}, {sNs}, 15\ns_lshr_b32 {sNs}, {sNs}, 4\ns_lshr_b32 s57, s57, 4")
        if SAFE: a("s_mov_b32 s28, s4\ns_mov_b32 s29, s5\ns_mov_b32 s30, 10240000\ns_mov_b32 s31, 0x20000")
        else: a("s_mov_b32 s28, s4\ns_and_b32 s29, s5, 0xffff\ns_or_b32 s29, s29, 0x100000\ns_mov_b32 s30, 10240000\ns_mov_b32 s31, 0x800000")
        a("s_mov_b32 s32, s20\ns_mov_b32 s33, s21\ns_lshl_b32 s34, s57, 10\ns_mov_b32 s35, 0x20000")
        a(f"s_mov_b32 s36, s24\ns_mov_b32 s37, s25\ns_mov_b32 s38, {WS_END}\ns_mov_b32 s39, 0x20000")
        a(f"s_mov_b32 {sRB}, 0\ns_mov_b32 s63, 0\nv_mov_b32 v14, 1")
        a(f"s_lshr_b32 {sRot}, {sBin}, 5\ns_mul_i32 {sRot}, {sRot}, 20009\ns_add_u32 {sRot}, {sRot}, 14\ns_lshr_b32 {sRot}, {sRot}, 4\ns_lshl_b32 {sRot}, {sRot}, 10")
        for k in range(40): a(f"v_mov_b32 v{ACC+k}, 0")
    def keycalc(Dr, Br, Kr, tm):
        a(f"v_mul_u32_u24 v{tm}, 625, v{Br}\nv_add_u32 v{tm}, 15, v{tm}\nv_lshrrev_b32 v{tm}, 4, v{tm}\nv_sub_u32 v{Kr}, v{Dr}, v{tm}")
    def keycalc2(Sr, Kr, tm):
        a(f"v_mul_u32_u24 v{tm}, 1677, v{Sr}\nv_lshrrev_b32 v{tm}, 20, v{tm}\nv_lshl_or_b32 v{Kr}, v{Kr}, 4, v{tm}\nv_lshl_or_b32 v{Kr}, v{Sr}, 10, v{Kr}")
    a("s_cbranch_scc0 K_BA")
    a(f"global_load_dwordx4 v[{D}:{D+3}], v11, s[8:9] {la}")
    if P.get("sfirst", 1): a(f"global_load_dwordx4 v[{S}:{S+3}], v11, s[6:7] {la}")
    a("K_BA:\ns_barrier\ns_cbranch_scc0 K_HELP")
    if not P.get("sfirst", 1): a(f"global_load_dwordx4 v[{S}:{S+3}], v11, s[6:7] {la}")
    for i in range(P.get("ydelay", 0)): a("s_nop 15")
    for h in range(2): a(f"global_load_dwordx4 v[{Y+4*h}:{Y+4*h+3}], v12, s[10:11] offset:{16*h} {la}")
    for h in range(2): a(f"global_load_dwordx4 v[{F+4*h}:{F+4*h+3}], v12, s[12:13] offset:{16*h} {la}")
    stamp("ldiss")
    a(f"s_mov_b32 {sRole}, 1")
    setup0(); setup()
    stamp("setup")
    a("s_waitcnt vmcnt(5)")
    stamp("dst")
    for u in range(4):
        a(f"v_mul_u32_u24 v{t+u}, 214749, v{D+u}\nv_lshrrev_b32 v{t+u}, 23, v{t+u}\nv_lshlrev_b32 v{B4+u}, 2, v{t+u}")
        a(f"ds_add_rtn_u32 v{RK1+u}, v{B4+u}, v14 offset:{L_HCNT}")
    for u in range(4): keycalc(D+u, t+u, KY+u, tmp)
    a("s_branch K_BB")
    a(f"K_HELP:\ns_mov_b32 {sRole}, 0")
    setup0()
    if P.get("pfcode"):
        a(f"s_cmp_lg_u32 {sW}, 5\ns_cbranch_scc1 K_HELP1\ns_getpc_b64 s[26:27]\nK_PC2:\nv_lshlrev_b32 v13, 7, v1\nglobal_load_dword v255, v13, s[26:27]")
        a(f"v_add_u32 v13, 8192, v13\nv_min_u32 v13, K_TAB-K_PC2, v13\nglobal_load_dword v255, v13, s[26:27]\nK_HELP1:")
    a(f"s_cmp_eq_u32 {sW}, 7\ns_cbranch_scc1 K_HELP7\ns_cmp_lg_u32 {sW}, 6\ns_cbranch_scc1 K_HELP2")
    a(f"s_and_b32 s56, {sBin}, 31\ns_lshl_b32 s56, s56, 10\nv_lshl_add_u32 v13, v1, 7, s56\ns_mov_b64 exec, 0xff")
    a("global_load_dword v255, v13, s[18:19]\ns_mov_b64 exec, -1\ns_branch K_HELP2\nK_HELP7:")
    a(f"s_mov_b32 m0, {L_WR}\ns_getpc_b64 s[26:27]\nK_PC:\nglobal_load_lds_dwordx4 v9, s[14:15]")
    a(f"s_add_u32 s26, s26, K_TAB-K_PC\ns_addc_u32 s27, s27, 0\ns_mov_b32 m0, {L_CG}\ns_mov_b64 exec, 0xff\nglobal_load_lds_dwordx4 v9, s[16:17]")
    a(f"s_mov_b32 m0, {L_MAP}\ns_nop 0\nglobal_load_lds_dwordx4 v9, s[26:27]\ns_mov_b64 exec, -1")
    a("K_HELP2:")
    setup()
    a("K_BB:\ns_waitcnt lgkmcnt(0)\ns_barrier")
    stamp("Bb")
    c = TA; q = TB
    a(f"s_add_u32 {sTag}, {sTag}, 1\ns_and_b32 s56, {sTag}, 0x3ff\ns_lshl_b32 s58, s56, 22\ns_lshl_b32 {sT8}, {sTag}, 24")
    a(f"s_cmp_eq_u32 {sW}, 7\ns_cselect_b32 s56, 1, {sRole}\ns_cmp_eq_u32 s56, 0\ns_cbranch_scc1 K_BC1")
    a(f"ds_read_b128 v[{c}:{c+3}], v9 offset:{L_HCNT}")
    a(f"s_cmp_eq_u32 {sW}, 7\ns_cbranch_scc1 K_SC\ns_waitcnt vmcnt(4)")
    for u in range(4): keycalc2(S+u, KY+u, t+u)
    a("K_SC:\ns_waitcnt lgkmcnt(0)")
    a(f"v_add_u32 v{c+4}, v{c}, v{c+1}\nv_add_u32 v{c+5}, v{c+4}, v{c+2}\nv_add_u32 v{c+6}, v{c+5}, v{c+3}\nv_mov_b32 v{q}, v{c+6}")
    fill = [x for u in range(4) for x in (f"v_or_b32 v{KG+2*u}, {sT8}, v{KY+u}", f"v_mov_b32 v{KG+2*u+1}, {sTag}")]
    for k in range(6):
        for x in fill[2*k:2*k+2]: a(x)
        a(f"v_add_u32_dpp v{q}, v{q}, v{q} {DPP[k]}")
    a(f"v_sub_u32 v{q}, v{q}, v{c+6}\nv_add_u32 v{q+1}, v{q}, v{c}\nv_add_u32 v{q+2}, v{q}, v{c+4}\nv_add_u32 v{q+3}, v{q}, v{c+5}")
    a(f"s_cmp_lg_u32 {sW}, 7\ns_cbranch_scc1 K_NOROW")
    g = EE
    for i in range(4):
        a(f"v_lshl_or_b32 v{g+2*i}, v{c+i}, 11, v{q+i}\nv_or_b32 v{g+2*i}, s58, v{g+2*i}\nv_mov_b32 v{g+2*i+1}, {sTag}")
    a(f"s_lshl_b32 s57, s2, 11\ns_add_u32 s57, s57, {WS_TAB}\nv_lshlrev_b32 v12, 5, v1")
    a(f"buffer_store_dwordx4 v[{g}:{g+3}], v12, {WSR}, s57 offen sc1\nbuffer_store_dwordx4 v[{g+4}:{g+7}], v12, {WSR}, s57 offen offset:16 sc1")
    a("s_branch K_BC1\nK_NOROW:")
    a(f"ds_write_b128 v9, v[{q}:{q+3}] offset:{L_PRE}")
    for u in range(4): a(f"ds_read_b32 v{t+u}, v{B4+u} offset:{L_PRE}")
    for u in range(4):
        a(f"s_waitcnt lgkmcnt(3)\nv_add_lshl_u32 v{B4+u}, v{t+u}, v{RK1+u}, 3")
        a(f"ds_write_b64 v{B4+u}, v[{KG+2*u}:{KG+2*u+1}] offset:{L_SKEY}")
    a(f"s_mov_b32 s56, {L_SPAY}")
    for u in range(4): a(f"v_lshl_add_u32 v{B4+u}, v{B4+u}, 1, s56")
    a("K_BC1:")
    a(f"s_mul_i32 s60, s2, {CH*8}\ns_add_u32 s60, s60, {WS_KEY}")
    a(f"s_sub_u32 s56, {sW}, 5\ns_lshl_b32 s57, s56, 14\nv_add_u32 v13, s57, v9\ns_add_u32 s57, s57, {L_WM}")
    a("s_waitcnt lgkmcnt(0)\ns_barrier")
    stamp("Bc1")
    o = XR + 20
    a(f"s_cmp_ge_u32 s2, {NP}\ns_cbranch_scc1 K_KS2")
    a(f"ds_read_b128 v[{o}:{o+3}], v10 offset:{L_SKEY}")
    a(f"s_cmp_lt_u32 s56, 2\ns_cbranch_scc0 K_KS1")
    a(f"ds_read_b128 v[{o+4}:{o+7}], v10 offset:{L_SKEY + 8192 - 5120}\ns_add_u32 s59, s60, {8192 - 5120}")
    a(f"s_waitcnt lgkmcnt(0)\nbuffer_store_dwordx4 v[{o+4}:{o+7}], v10, {WSR}, s59 offen sc1")
    a(f"K_KS1:\ns_waitcnt lgkmcnt(0)\nbuffer_store_dwordx4 v[{o}:{o+3}], v10, {WSR}, s60 offen sc1")
    a(f"K_KS2:\ns_cmp_lt_u32 s56, 2\ns_cbranch_scc1 K_DMA\ns_cmp_eq_u32 {sRole}, 0\ns_cbranch_scc1 K_BC7")
    if P.get("ts") and "y0" in P.get("stamps", []):
        a("s_waitcnt vmcnt(4)"); stamp("y0"); a("s_waitcnt vmcnt(3)"); stamp("y1"); a("s_waitcnt vmcnt(2)"); stamp("f0"); a("s_waitcnt vmcnt(1)"); stamp("f1")
    for h in range(2):
        a(f"s_waitcnt vmcnt({2 - h})")
        for u in (2*h, 2*h+1): a(f"ds_write2_b64 v{B4+u}, v[{Y+2*u}:{Y+2*u+1}], v[{F+2*u}:{F+2*u+1}] offset0:0 offset1:1")
    a("s_branch K_BC\nK_DMA:")
    for gidx in range(4):
        a("s_mov_b32 m0, s57\ns_add_u32 s57, s57, 4096")
        for i in range(4): a(f"global_load_lds_dwordx4 v13, s[18:19] offset:{i*1024}")
        if gidx < 3: a("v_add_u32 v13, 4096, v13")
    a(f"s_branch K_BC\nK_BC7:\ns_cmp_ge_u32 s2, {NP}\ns_cbranch_scc0 K_BC8\ns_waitcnt vmcnt(2)\nK_BC8:\ns_waitcnt vmcnt(3)")
    SM = [P.get("sm2", 0), P.get("sm0", 0), P.get("sm3", 0)]
    smw = [8, 8, 4]
    smb = [n_ * 256 * 32 * w_ for n_, w_ in zip(SM, smw)]
    def sfetch(k, first):
        n = SM[k]
        if not n: return
        lim = 10240000 - n * 256 - 128
        if smw[k] == 4: a(f"s_cmp_lt_u32 {sW}, 4\ns_cbranch_scc1 K_NOSM{k}")
        a(f"s_and_b32 s68, {sBin}, 31\ns_mul_i32 s68, s68, {smw[k]}\ns_and_b32 s69, {sW}, {smw[k]-1}\ns_add_u32 s68, s68, s69\ns_mul_i32 s68, s68, {n*256}\ns_add_u32 s68, s68, {sRot}\ns_add_u32 s68, s68, {first}")
        a(f"s_cmp_ge_u32 s68, {lim}\ns_cselect_b32 s69, {lim}, 0\ns_sub_u32 s68, s68, s69\ns_add_u32 s22, s4, s68\ns_addc_u32 s23, s5, 0")
        for i in range(n): a(f"s_load_dwordx2 s[0:1], s[22:23], {i*256 + 124}")
        a(f"K_NOSM{k}:")
    def pfetch(lab, n=None, first=None, extra=0):
        n = n or P["pf"]
        first = P.get("pfc", 0) + P.get("pfd", 0) + P.get("pfx", 0) + P.get("pfk", 0) if first is None else first
        a(f"s_cmp_lt_u32 {sW}, {8-n}\ns_cbranch_scc1 {lab}")
        a("s_mov_b32 s64, s4\ns_mov_b32 s65, s5\ns_mov_b32 s66, 10240000\ns_mov_b32 s67, 0x20000")
        a(f"s_sub_u32 s68, {7 + first}, {sW}\ns_lshl_b32 s68, s68, 5\ns_and_b32 s69, {sBin}, 31\ns_add_u32 s68, s68, s69\ns_lshl_b32 s68, s68, 13\ns_add_u32 s68, s68, {sRot}")
        if extra: a(f"s_add_u32 s68, s68, {extra}")
        a(f"v_lshlrev_b32 v12, 7, v1\nbuffer_load_dword v255, v12, s[64:67], s68 offen")
    a("K_BC:")
    if P.get("pfc"):
        pfetch("K_NOPFC", P["pfc"], 0); a("K_NOPFC:")
    a(f"s_mul_i32 s56, s2, {CH*16}\ns_add_u32 s56, s56, {WS_PAY}\ns_add_u32 s57, s56, 8192\ns_add_u32 s59, s56, 16384")
    a(f"v_lshlrev_b32 v11, 11, v0\ns_lshl_b32 s61, {sBin}, 3\ns_add_u32 s61, s61, {WS_TAB}")
    a("s_waitcnt lgkmcnt(0)\ns_barrier")
    stamp("Bc")
    o = XR
    a(f"s_cmp_ge_u32 s2, {NP}\ns_cbranch_scc1 K_NOST")
    for u in range(2): a(f"ds_read_b128 v[{o+4*u}:{o+4*u+3}], v10 offset:{L_SPAY + 8192*u}")
    a(f"s_cmp_ge_u32 {sW}, 4\ns_cbranch_scc1 K_ST1")
    a(f"ds_read_b128 v[{o+8}:{o+11}], v10 offset:{L_SPAY + 16384}")
    a(f"s_waitcnt lgkmcnt(0)\nbuffer_store_dwordx4 v[{o+8}:{o+11}], v10, {WSR}, s59 offen sc1")
    a(f"K_ST1:\ns_waitcnt lgkmcnt(1)\nbuffer_store_dwordx4 v[{o}:{o+3}], v10, {WSR}, s56 offen sc1")
    a(f"s_waitcnt lgkmcnt(0)\nbuffer_store_dwordx4 v[{o+4}:{o+7}], v10, {WSR}, s57 offen sc1")
    a("K_NOST:")
    if P.get("earlyA"): a(f"s_cmp_ge_u32 {sW}, 4\ns_cbranch_scc1 K_NOA0\nbuffer_load_dwordx2 v[{TA}:{TA+1}], v11, {WSR}, s61 offen sc1\nK_NOA0:")
    if P.get("pfd"):
        pfetch("K_NOPFD", P["pfd"], P.get("pfc", 0)); a("K_NOPFD:")
    RW, RC, RM = OFFS, NODE, TP
    a(f"s_lshr_b32 s56, s34, 10\ns_sub_u32 s56, s56, {sNs}\ns_sub_u32 s56, s56, 39\ns_lshl_b32 s56, s56, 6\ns_add_u32 s56, s56, {L_MAP}")
    a(f"v_add_u32 v2, s56, v1\nv_add_u32 v13, {L_WR}, v15\nds_read_u8 v2, v2")
    a(f"ds_read2st64_b32 v[{RW}:{RW+1}], v13 offset0:0 offset1:1\nds_read2st64_b32 v[{RW+2}:{RW+3}], v13 offset0:2 offset1:3")
    a(f"v_and_b32 v12, 3, v1\nv_lshlrev_b32 v12, 5, v12\nv_bfe_u32 v13, v1, 2, 2\nv_lshl_or_b32 v12, v13, 1, v12\nv_add_u32 v12, {L_CG}, v12")
    for f_ in range(4): a(f"ds_read_u16 v{RC+f_}, v12 offset:{f_*8}")
    a(f"v_mov_b32 v{vPm}, v3\nv_xor_b32 v{vPo}, 1024, v3\nv_mul_u32_u24 v{AOP+1}, {FS}, v0")
    a(f"s_mov_b32 s56, {f32(-LOG2E)}\ns_waitcnt lgkmcnt(0)")
    sfetch(0, 0)
    w = TP + 16
    for h in range(2):
        for k in range(4):
            a(f"v_lshlrev_b32 v{w+k}, 16, v{RW+k}" if h == 0 else f"v_and_b32 v{w+k}, 0xffff0000, v{RW+k}")
            a(f"v_mul_f32 v{w+4+k}, s56, v{w+k}")
        oo = WF + 4*h
        a(f"v_cvt_pk_bf16_f32 v{oo}, v{w+4}, v{w+5}\nv_cvt_pk_bf16_f32 v{oo+1}, v{w+6}, v{w+7}")
        if not P.get("nolo"):
            for k in range(4):
                a(f"v_lshlrev_b32 v{w+4+k}, 16, v{oo + k//2}" if k % 2 == 0 else f"v_and_b32 v{w+4+k}, 0xffff0000, v{oo + k//2}")
                a(f"v_fma_f32 v{w+4+k}, s56, v{w+k}, -v{w+4+k}")
            a(f"v_cvt_pk_bf16_f32 v{oo+2}, v{w+4}, v{w+5}\nv_cvt_pk_bf16_f32 v{oo+3}, v{w+6}, v{w+7}")
    a(f"v_lshl_or_b32 v{w}, v{RC+1}, 16, v{RC}\nv_lshl_or_b32 v{w+1}, v{RC+3}, 16, v{RC+2}\nv_lshrrev_b32 v13, 4, v1")
    for gg in range(4):
        a(f"v_cmp_eq_u32 vcc, {gg}, v13")
        a(f"v_cndmask_b32 v{CGF+2*gg}, 0, v{w}, vcc\nv_cndmask_b32 v{CGF+2*gg+1}, 0, v{w+1}, vcc")
    a(f"v_mul_u32_u24 v13, {4*CH}, v1")
    def wmextract():
        a(f"s_and_b32 s56, {sW}, 3\ns_lshl_b32 s56, s56, 6\ns_add_u32 s56, s56, {L_WM}")
        a("v_lshrrev_b32 v10, 4, v1\nv_lshlrev_b32 v10, 11, v10\nv_and_b32 v12, 15, v1\nv_lshl_or_b32 v10, v12, 2, v10\nv_add_u32 v10, s56, v10")
        a("s_mov_b32 s56, 0x05040100\ns_mov_b32 s57, 0x07060302")
        for ks in range(4):
            for i in range(4): a(f"ds_read2st64_b32 v[{RM+8*ks+2*i}:{RM+8*ks+2*i+1}], v10 offset0:{32*ks+2*i} offset1:{32*ks+2*i+1}")
        for ks in range(4):
            for i in range(4):
                a(f"s_waitcnt lgkmcnt({15 - 4*ks - i})")
                a(f"v_perm_b32 v{BF+4*ks+i}, v{RM+8*ks+2*i+1}, v{RM+8*ks+2*i}, s56")
                a(f"v_perm_b32 v{BF+16+4*ks+i}, v{RM+8*ks+2*i+1}, v{RM+8*ks+2*i}, s57")
    a(f"s_cmp_ge_u32 {sW}, 4\ns_cbranch_scc1 K_TABOK")
    a(f"s_mov_b32 s59, {P.get('timeout', 40000)}\ns_lshr_b32 s58, s58, 22")
    if P.get("earlyA"): a("s_branch K_POLLA1")
    a(f"K_POLLA:\nbuffer_load_dwordx2 v[{TA}:{TA+1}], v11, {WSR}, s61 offen sc1\nK_POLLA1:\ns_waitcnt vmcnt(0)")
    a(f"v_lshrrev_b32 v{TA+2}, 22, v{TA}\nv_cmp_ne_u32 vcc, {sTag}, v{TA+1}\nv_cmp_ne_u32 s[56:57], s58, v{TA+2}\ns_or_b64 vcc, vcc, s[56:57]")
    if P.get("force_fb"): a("s_mov_b64 vcc, -1")
    a("s_cbranch_vccz K_POLLAOK")
    a(f"s_sub_u32 s59, s59, 1\ns_cbranch_scc0 K_POLLA")
    a(f"ds_write_b32 v4, v14 offset:{L_FB}")
    a(f"K_POLLAOK:\nds_write_b32 v3, v{TA} offset:{L_TABL}")
    a("K_TABOK:\ns_waitcnt vmcnt(0) lgkmcnt(0)\ns_barrier")
    stamp("Bx")
    a(f"s_cmp_lg_u32 {sW}, 4\ns_cbranch_scc1 K_NOFLAG")
    a(f"s_mul_i32 s56, s2, {FS}\ns_add_u32 s56, s56, {WS_FLG}\nv_mov_b32 v10, {sTag}\ns_mov_b64 exec, 1")
    a(f"buffer_store_dword v10, v4, {WSR}, s56 offen sc1\ns_mov_b64 exec, -1\nK_NOFLAG:")
    a(f"ds_read_b128 v[{TP}:{TP+3}], v9 offset:{L_TABL}\nds_read_b32 v10, v4 offset:{L_FB}")
    if P.get("pfx"):
        pfetch("K_NOPFX", P["pfx"], P.get("pfc", 0) + P.get("pfd", 0), smb[0]); a("K_NOPFX:")
    a("s_waitcnt lgkmcnt(0)")
    a(f"v_readfirstlane_b32 {sFB}, v10")
    c = TP + 4; p = TP + 8
    for i in range(4): a(f"v_bfe_u32 v{c+i}, v{TP+i}, 11, 11")
    a(f"v_add_u32 v{p+1}, v{c}, v{c+1}\nv_add_u32 v{p+2}, v{p+1}, v{c+2}\nv_add_u32 v{p+3}, v{p+2}, v{c+3}\nv_mov_b32 v{p+4}, v{p+3}")
    fill = []
    for i in range(4):
        fill.append(f"v_and_b32 v{TP+i}, 0x7ff, v{TP+i}")
        fill.append(f"v_add_u32 v{PD+i}, v13, v{TP+i}")
        if i: fill.append(f"v_add_u32 v{PD+i}, {i*CH}, v{PD+i}")
    for k in range(6):
        for x in fill[2*k:2*k+2]: a(x)
        a(f"v_add_u32_dpp v{p+4}, v{p+4}, v{p+4} {DPP[k]}")
    a(f"s_cmp_lg_u32 {sFB}, 0\ns_cbranch_scc1 K_FB0")
    a(f"v_readlane_b32 {sT}, v{p+4}, 63")
    a(f"v_sub_u32 v{PP}, v{p+4}, v{p+3}")
    a(f"v_add_u32 v{PP+1}, v{PP}, v{c}\nv_add_u32 v{PP+2}, v{PP}, v{p+1}\nv_add_u32 v{PP+3}, v{PP}, v{p+2}")
    for i in range(4):
        a(f"v_sub_u32 v{PD+i}, v{PD+i}, v{PP+i}\nv_add_u32 v{PL+i}, v{PP+i}, v{c+i}")
    m = XR; f = m + 12; KEY = m + 16; RK = m + 22; ad = m + 25; CD = m + 28; PAYR = m + 32; PA = m + 44; CI = m + 47; q = m + 52
    FL = AOP
    a("K_ROUND:")
    a(f"s_mul_i32 s56, {sW}, {CAPW}\ns_add_u32 s56, s56, {sRB}\ns_add_u32 s57, s56, {CAPW}")
    a(f"s_lshl_b32 s58, {sW}, 10\ns_add_u32 s58, s58, {L_MARK}")
    for i in range(4):
        a(f"v_cmp_lt_u32 vcc, s56, v{PL+i}\nv_cmp_gt_u32 s[60:61], s57, v{PP+i}")
        a(f"v_subrev_u32 v{m+i}, s56, v{PP+i}\nv_max_i32 v{m+i}, 0, v{m+i}\nv_lshl_add_u32 v{m+i}, v{m+i}, 2, s58")
        a(f"s_and_b64 exec, vcc, s[60:61]\nds_max_u32 v{m+i}, v{PD+i}\ns_mov_b64 exec, -1")
    a(f"v_add_u32 v{m+4}, s58, v15")
    for u in range(3): a(f"ds_read_b32 v{m+8+u}, v{m+4} offset:{u*256}")
    a(f"v_add_u32 v{f}, s56, v1\nv_add_u32 v{f+1}, 64, v{f}\nv_add_u32 v{f+2}, 128, v{f}")
    for u in range(3): a(f"v_cmp_gt_u32 {M(u)}, {sT}, v{f+u}")
    a(f"s_mov_b32 s60, {WS_KEY}\ns_mov_b32 s61, {WS_PAY}\ns_lshr_b32 s62, {sT8}, 24")
    a("s_waitcnt lgkmcnt(0)")
    scan_incl(a, "v_max_u32", [m+8, m+9, m+10])
    a(f"v_readlane_b32 s56, v{m+8}, 63\nv_readlane_b32 s57, v{m+9}, 63\nv_add_u32 v{f}, v{f}, v{m+8}")
    a(f"s_max_u32 s57, s56, s57")
    a(f"v_max_u32 v{m+9}, s56, v{m+9}\nv_max_u32 v{m+10}, s57, v{m+10}")
    a(f"v_add_u32 v{f+1}, v{f+1}, v{m+9}\nv_add_u32 v{f+2}, v{f+2}, v{m+10}")
    for u in range(3): a(f"v_lshlrev_b32 v{ad+u}, 3, v{f+u}")
    stamp("marks")
    def keyloads():
        for u in range(3):
            a(f"s_mov_b64 exec, {M(u)}\nbuffer_load_dwordx2 v[{KEY+2*u}:{KEY+2*u+1}], v{ad+u}, {WSR}, s60 offen sc1")
        a("s_mov_b64 exec, -1")
    keyloads()
    for u in range(3): a(f"v_lshlrev_b32 v{PA+u}, 4, v{f+u}")
    a(f"s_cmp_lg_u32 {sRB}, 0\ns_cbranch_scc1 K_KEYS1")
    TWO = P.get("two", 0); M2 = lambda u: ("s[0:1]", "s[20:21]", "s[22:23]")[u]
    if TWO:
        for u in range(3): a(f"v_lshrrev_b32 v{f+u}, 8, v{f+u}\nv_mul_u32_u24 v{f+u}, 52429, v{f+u}\nv_lshrrev_b32 v{f+u}, 18, v{f+u}\nv_lshlrev_b32 v{f+u}, 2, v{f+u}")
    wmextract()
    sfetch(1, smb[0] + P.get("pfx", 0) * 262144)
    stamp("wmx")
    a("s_branch K_KEYS1\nK_KEYS:")
    keyloads()
    a(f"K_KEYS1:\nv_mov_b32 v14, 64\ns_mov_b64 s[58:59], 0")
    for u in range(3):
        a(f"s_waitcnt vmcnt({2-u})")
        a(f"v_lshrrev_b32 v{RK+u}, 24, v{KEY+2*u}\nv_cmp_ne_u32 vcc, {sTag}, v{KEY+2*u+1}\nv_cmp_ne_u32 s[56:57], s62, v{RK+u}")
        a(f"s_or_b64 vcc, vcc, s[56:57]\ns_and_b64 vcc, vcc, {M(u)}\ns_or_b64 s[58:59], s[58:59], vcc")
    a("s_cbranch_scc1 K_KEYS")
    stamp("keys")
    def payloads():
        for u in range(3):
            a(f"s_mov_b64 exec, {M(u)}\nbuffer_load_dwordx4 v[{PAYR+4*u}:{PAYR+4*u+3}], v{PA+u}, {WSR}, s61 offen sc1")
        a("s_mov_b64 exec, -1")
    a(f"s_cmp_lg_u32 {sRB}, 0\ns_cbranch_scc1 K_LATER")
    a(f"s_mov_b32 s62, {WS_FLG}\ns_cmp_lt_u32 {sW}, 4\ns_cbranch_scc0 K_GOT\nbuffer_load_dword v{FL}, v{FL+1}, {WSR}, s62 offen sc1")
    a("K_GOT:")
    for u in range(3):
        a(f"v_lshrrev_b32 v{ad+u}, 2, v{KEY+2*u}\nv_and_b32 v{ad+u}, 0xfc, v{ad+u}")
    for u in range(3): a(f"s_mov_b64 exec, {M(u)}\nds_add_u32 v{ad+u}, v14 offset:{L_DEG}")
    a("s_mov_b64 exec, -1")
    if P.get("pfk"):
        pfetch("K_NOPFK", P["pfk"], P.get("pfc", 0) + P.get("pfd", 0) + P.get("pfx", 0)); a("K_NOPFK:")
    a(f"s_lshr_b32 s56, {sW}, 2\ns_or_b32 s56, s56, {sFB}\ns_cbranch_scc1 K_POLLBOK")
    if not TWO:
        a(f"K_POLLB:\ns_waitcnt vmcnt(0)\nv_cmp_ne_u32 vcc, {sTag}, v{FL}\ns_cbranch_vccz K_POLLBOK")
        a(f"buffer_load_dword v{FL}, v{FL+1}, {WSR}, s62 offen sc1\ns_branch K_POLLB")
        a("K_POLLBOK:\ns_waitcnt lgkmcnt(0)")
        sfetch(2, smb[0] + smb[1] + P.get("pfx", 0) * 262144)
        stamp("pollP")
        a("s_barrier")
        stamp("Bd")
        a(f"s_cmp_lg_u32 {sFB}, 0\ns_cbranch_scc1 K_NOPF")
        payloads()
        if P["pf"]: pfetch("K_NOPF", extra=sum(smb))
        a("K_NOPF:")
    else:
        a(f"s_waitcnt vmcnt(0)\nds_write_b32 v3, v{FL} offset:{L_PRE}")
        a("K_POLLBOK:\ns_waitcnt lgkmcnt(0)")
        stamp("pollP")
        a("s_barrier")
        stamp("Bd")
        a(f"s_cmp_lg_u32 {sFB}, 0\ns_cbranch_scc1 K_NOPF")
        for u in range(3): a(f"ds_read_b32 v{f+u}, v{f+u} offset:{L_PRE}")
        for u in range(3):
            a(f"s_waitcnt lgkmcnt({2-u})\nv_cmp_eq_u32 vcc, {sTag}, v{f+u}\ns_andn2_b64 {M2(u)}, {M(u)}, vcc\ns_and_b64 exec, {M(u)}, vcc")
            a(f"buffer_load_dwordx4 v[{PAYR+4*u}:{PAYR+4*u+3}], v{PA+u}, {WSR}, s61 offen sc1\ns_mov_b64 exec, -1")
        a(f"s_cmp_lt_u32 {sW}, 4\ns_cbranch_scc0 K_NOPF\nv_cmp_ne_u32 vcc, {sTag}, v{FL}\ns_cbranch_vccz K_NOPF\nbuffer_load_dword v{FL}, v{FL+1}, {WSR}, s62 offen sc1\ns_mov_b32 s63, 1")
        a("K_NOPF:")
    KK = TP; MI = EE
    a(f"ds_read_b32 v{MI}, v15 offset:{L_DEG}")
    for jj in range(10): a(f"ds_read_b128 v[{KK+4*jj}:{KK+4*jj+3}], v4 offset:{L_DEG+16*jj}")
    a("v_cmp_gt_u32 vcc, 40, v1")
    for jj in range(20):
        if jj % 2 == 0: a(f"s_waitcnt lgkmcnt({9 - jj//2})")
        tt = KK + 2*jj
        a(f"v_pk_add_f32 v[{tt}:{tt+1}], v[{tt}:{tt+1}], v[{MI}:{MI+1}] op_sel_hi:[1,0] neg_lo:[0,1] neg_hi:[0,1] clamp")
        if jj >= 2: a(f"v_pk_add_f32 v[{tt}:{tt+1}], v[{tt}:{tt+1}], v[{tt-4}:{tt-3}]")
    tt = KK + 38
    a(f"v_pk_add_f32 v[{tt}:{tt+1}], v[{tt}:{tt+1}], v[{tt-2}:{tt-1}]")
    a(f"v_add_f32 v{tt}, v{tt}, v{tt+1}\nv_cvt_u32_f32 v{tt}, v{tt}\nv_lshlrev_b32 v{tt}, 2, v{tt}")
    a(f"ds_bpermute_b32 v2, v{tt}, v2\ns_waitcnt lgkmcnt(0)\nv_cndmask_b32 v2, -1, v2, vcc")
    a("K_BAL:")
    for u in range(3): a(f"ds_bpermute_b32 v{CD+u}, v{ad+u}, v2")
    a("v_mov_b32 v14, 1\nv_lshlrev_b32 v10, 3, v1")
    a(f"s_lshr_b32 s56, {sBin}, 4\ns_and_b32 s56, s56, 14")
    for u in range(3): a(f"v_subrev_u32 v{CI+u}, s56, v{KEY+2*u}\nv_and_b32 v{CI+u}, {P.get('bmask', 15)}, v{CI+u}")
    for u in range(3):
        a(f"s_waitcnt lgkmcnt(2)\ns_mov_b64 exec, {M(u)}")
        a(f"v_and_b32 v{ad+u}, 7, v{CD+u}\nv_lshl_or_b32 v{CI+u}, v{ad+u}, 4, v{CI+u}\nv_lshlrev_b32 v{ad+u}, 2, v{CI+u}")
        a(f"ds_add_rtn_u32 v{RK+u}, v{ad+u}, v14 offset:{L_CNT}")
    a("s_mov_b64 exec, -1")
    for u in range(3):
        a(f"v_lshlrev_b32 v{ad+u}, 1, v{CI+u}\nv_lshlrev_b32 v{CI+u}, 4, v{CI+u}")
        a(f"v_and_b32 v{CD+u}, 0x38, v{CD+u}\nv_and_b32 v{KEY+2*u}, {P.get('xmask', 0xfffc00)}, v{KEY+2*u}")
    a(f"s_lshl_b32 s56, {sW}, 3\ns_add_u32 s57, s56, 7")
    a(f"v_lshrrev_b32 v{q+6}, 3, v1\nv_mul_u32_u24 v{q+6}, 48, v{q+6}")
    if TWO:
        a("s_cmp_eq_u32 s63, 0\ns_mov_b32 s63, 0\ns_cbranch_scc1 K_POLLCOK")
        a(f"K_POLLC:\ns_waitcnt vmcnt(0)\nv_cmp_ne_u32 vcc, {sTag}, v{FL}\ns_cbranch_vccz K_POLLCOK")
        a(f"buffer_load_dword v{FL}, v{FL+1}, {WSR}, s62 offen sc1\ns_branch K_POLLC\nK_POLLCOK:")
    a("s_waitcnt lgkmcnt(0)\ns_barrier")
    stamp("Be")
    a(f"ds_read_b64 v[{q}:{q+1}], v10 offset:{L_CNT}")
    if TWO:
        a(f"s_or_b32 s58, {sFB}, {sRB}\ns_cbranch_scc1 K_NOREST")
        a(f"s_or_b64 s[58:59], {M2(0)}, {M2(1)}\ns_or_b64 s[58:59], s[58:59], {M2(2)}\ns_cbranch_scc0 K_NOREST1")
        for u in range(3):
            a(f"s_mov_b64 exec, {M2(u)}\nbuffer_load_dwordx4 v[{PAYR+4*u}:{PAYR+4*u+3}], v{PA+u}, {WSR}, s61 offen sc1")
        a("s_mov_b64 exec, -1\nK_NOREST1:")
        if P["pf"]: pfetch("K_NOREST")
        a("K_NOREST:")
    a(f"s_sub_u32 s58, {sRot}, 1024\ns_cselect_b32 s58, {(N-1)*1024}, s58")
    a("s_waitcnt lgkmcnt(0)")
    a(f"v_add_u32 v{q+2}, v{q}, v{q+1}\nv_mov_b32 v{q+3}, v{q+2}")
    fill = ["v_and_b32 v12, 15, v1", "v_lshrrev_b32 v11, 4, v1", "v_lshlrev_b32 v11, 3, v11", "v_lshl_add_u32 v11, v12, 5, v11",
            f"v_mov_b32 v{q+7}, s58", f"v_mov_b32 v{vPv}, 0"]
    if P.get("aswz", 0):
        fill = ["v_and_b32 v12, 15, v1", "v_lshrrev_b32 v11, 2, v1", "v_and_b32 v11, 8, v11", "v_xor_b32 v11, v11, v1",
                f"v_mov_b32 v{q+7}, s58", f"v_mov_b32 v{vPv}, 0", "v_lshlrev_b32 v11, 3, v11", "v_lshrrev_b32 v13, 2, v1",
                "v_and_b32 v10, 3, v1", "v_lshl_or_b32 v13, v10, 4, v13", "v_lshlrev_b32 v10, 2, v10", "v_and_b32 v10, 8, v10"]
    for k in range(6):
        for x in fill[2*k:2*k+2]: a(x)
        a(f"v_add_u32_dpp v{q+3}, v{q+3}, v{q+3} {DPP[k]}")
    a(f"v_sub_u32 v{q+2}, v{q+3}, v{q+2}")
    a(f"v_readlane_b32 {sLen}, v{q+3}, s57")
    if P.get("aswz", 0): a("v_xor_b32 v10, v10, v13\nv_lshlrev_b32 v10, 3, v10")
    a(f"v_mov_b32_dpp v{q+4}, v{q+2} row_newbcast:0 row_mask:0xf bank_mask:0x3")
    a(f"v_readlane_b32 s58, v{q+2}, s56")
    a(f"v_mov_b32_dpp v{q+4}, v{q+2} row_newbcast:8 row_mask:0xf bank_mask:0xc")
    a(f"v_add_u32 v{q+5}, 15, v{q+4}\nv_and_b32 v{q+5}, -16, v{q+5}\nv_add_u32 v{q+5}, v{q+5}, v{q+6}")
    a(f"v_sub_u32 v{q+4}, v{q+5}, v{q+4}\nv_add_u32 v{q+4}, v{q+4}, v{q+2}")
    a(f"v_add_u32 v{q}, v{q+4}, v{q}\nv_lshl_or_b32 v{q}, v{q}, 16, v{q+4}")
    a(f"v_readlane_b32 {sBase}, v{q+5}, s56")
    for u in range(3): a(f"ds_bpermute_b32 v{ad+u}, v{ad+u}, v{q}")
    a(f"s_sub_u32 {sLen}, {sLen}, s58\ns_add_u32 s56, {sBase}, {sLen}")
    a(f"v_add_u32 v{q+1}, s56, v1\nv_lshlrev_b32 v{q+2}, 2, v{q+1}\nv_lshlrev_b32 v{q+3}, 4, v{q+1}")
    a("s_mov_b64 exec, 0xfffff")
    a(f"ds_write_b32 v{q+2}, v{q+7} offset:{L_OFF}\nds_write_b8 v{q+1}, v4 offset:{L_NODE}\nds_write_b128 v{q+3}, v[4:7] offset:{L_PAY}")
    for u in range(3):
        a(f"s_mov_b64 exec, {M(u)}\ns_waitcnt lgkmcnt({5 + u})")
        a(f"v_bfe_u32 v{ad+u}, v{ad+u}, v{CI+u}, 16\nv_add_u32 v{ad+u}, v{ad+u}, v{RK+u}")
        a(f"v_lshlrev_b32 v{RK+u}, 2, v{ad+u}\nv_lshlrev_b32 v{CI+u}, 4, v{ad+u}")
        a(f"ds_write_b32 v{RK+u}, v{KEY+2*u} offset:{L_OFF}\nds_write_b8 v{ad+u}, v{CD+u} offset:{L_NODE}")
    EP = P.get("epre", 0); PA5 = [XR + 50, XR + 51, XR + 60, XR + 61, XR + 62]
    if EP:
        P["ring"] = 8
        a("s_mov_b64 exec, -1")
        for sl in range(5):
            a(f"s_add_u32 s58, {sW}, {8*sl}\nv_cmp_eq_u32 vcc, s58, v2\ns_ff1_i32_b64 s58, vcc\ns_mul_i32 s58, s58, {4*RS}\ns_add_u32 s58, s58, {L_AGG}\nv_add_u32 v{PA5[sl]}, s58, v15")
    XE = P.get("xearly", 0); XO = P.get("xorder", 0); xaux = P.get("xaux", "")
    def xloads(wait):
        for n in range(DE):
            if wait is not None and n % 4 == 0: a(f"s_waitcnt lgkmcnt({ngr - 1 - n//4 + wait})")
            if SAFE: a(f"v_add_u32 v{TP+n}, v9, v{TP+n}")
            a(f"buffer_load_dwordx4 v[{XR+4*n}:{XR+4*n+3}], v{TP+n}, {XS}, 0 offen {xaux}")
    def addrs():
        a(f"s_lshl_b32 s56, {sBase}, 2\ns_add_u32 s56, s56, {L_OFF}\nv_mov_b32 v{vOffA}, s56")
        a(f"s_add_u32 s56, {sBase}, {L_NODE}\nv_mov_b32 v{vNodeA}, s56")
        a(f"s_lshl_b32 s56, {sBase}, 5\ns_add_u32 s56, s56, {L_A}\nv_add_u32 v{vAA}, s56, v10\nv_add_u32 v11, s56, v11")
        a(f"s_lshl_b32 s57, {sBase}, 4\ns_add_u32 s57, s57, {L_PAY}")
        a(f"v_lshl_add_u32 v{vEfA}, v12, 4, s57\nv_add_u32 v10, s57, v9")
        a(f"s_add_u32 {sG}, {sLen}, 3\ns_lshr_b32 {sG}, {sG}, 2")
    def paywait(nx):
        if P["pf"]:
            a(f"s_cmp_lt_u32 {sW}, {8-P['pf']}\ns_cselect_b32 s56, 1, {sRB}\ns_or_b32 s56, s56, {sFB}\ns_cbranch_scc0 K_PW1\ns_waitcnt vmcnt({nx})\nK_PW1:\ns_waitcnt vmcnt({nx+1})")
        else: a(f"s_waitcnt vmcnt({nx})")
        for u in range(3): a(f"s_mov_b64 exec, {M(u)}\nds_write_b128 v{CI+u}, v[{PAYR+4*u}:{PAYR+4*u+3}] offset:{L_PAY}")
        a("s_mov_b64 exec, -1")
    if XE:
        assert DE == 8
        a("s_mov_b64 exec, -1")
        addrs()
        a("s_waitcnt lgkmcnt(0)\ns_barrier")
        stamp("Bf1")
        for gg in range(ngr): a(f"ds_read_b128 v[{TP+4*gg}:{TP+4*gg+3}], v{vOffA} offset:{16*gg}")
        a(f"ds_read2_b64 v[{OFFS}:{OFFS+3}], v{vOffA} offset0:{DE//2} offset1:{DE//2+1}\nds_read_b128 v[{NODE}:{NODE+3}], v{vNodeA}")
        xloads(2)
        paywait(DE)
        a("s_waitcnt lgkmcnt(0)\ns_barrier")
        stamp("Bf")
        a(f"s_cmp_eq_u32 {sG}, 0\ns_cbranch_scc1 K2_LOOPDONE")
        a(f"ds_read_b64 v[{TA}:{TA+1}], v10\nds_read_b64 v[{EF}:{EF+1}], v{vEfA} offset:8\ns_lshl_b32 s56, {sG}, 2")
    else:
        paywait(0)
        addrs()
        a("s_waitcnt lgkmcnt(0)\ns_barrier")
        stamp("Bf")
        a(f"s_cmp_eq_u32 {sG}, 0\ns_cbranch_scc1 K2_LOOPDONE")
        for gg in range(ngr): a(f"ds_read_b128 v[{TP+4*gg}:{TP+4*gg+3}], v{vOffA} offset:{16*gg}")
        a(f"ds_read_b64 v[{TA}:{TA+1}], v10\nds_read2_b64 v[{OFFS}:{OFFS+3}], v{vOffA} offset0:{DE//2} offset1:{DE//2+1}")
        a(f"ds_read_b64 v[{EF}:{EF+1}], v{vEfA} offset:8\nds_read_b128 v[{NODE}:{NODE+3}], v{vNodeA}\ns_lshl_b32 s56, {sG}, 2")
        if XO: a(f"s_cmp_ge_u32 {sW}, 4\ns_cbranch_scc1 K_XL1")
        xloads(4)
        if XO: a("K_XL1:")
    stamp("xiss")
    if P.get("afold"): a(f"s_mov_b32 s58, {f32(-LN2)}\ns_mov_b32 s59, s58")
    a("K_APREP:")
    a(f"v_cmp_gt_u32 vcc, s56, v1")
    a("s_waitcnt lgkmcnt(0)")
    a(f"v_cndmask_b32 v{TB}, 0, v{TA}, vcc\nv_cndmask_b32 v{TB+1}, 0, v{TA+1}, vcc")
    a(f"ds_read_b64 v[{TA}:{TA+1}], v10 offset:1024\nv_add_u32 v10, 1024, v10")
    for gg in range(4):
        a(f"v_mfma_f32_16x16x16_bf16 v[{TP+16+4*gg}:{TP+19+4*gg}], v[{CGF+2*gg}:{CGF+2*gg+1}], v[{TB}:{TB+1}], 0")
    for gg in range(4):
        if P.get("afold"):
            for k in range(2): a(f"v_pk_mul_f32 v[{TP+16+4*gg+2*k}:{TP+17+4*gg+2*k}], v[{TP+16+4*gg+2*k}:{TP+17+4*gg+2*k}], s[58:59]")
        a(f"v_cvt_pk_bf16_f32 v{EE+2*gg}, v{TP+16+4*gg}, v{TP+17+4*gg}\nv_cvt_pk_bf16_f32 v{EE+2*gg+1}, v{TP+18+4*gg}, v{TP+19+4*gg}")
        a(f"ds_write_b64 v11, v[{EE+2*gg}:{EE+2*gg+1}] offset:{512*gg}")
        a(f"s_sub_u32 s56, s56, 16\ns_cmp_le_i32 s56, 0\ns_cbranch_scc1 K_APDONE")
    a("v_add_u32 v11, 2048, v11\ns_branch K_APREP")
    a("K_APDONE:")
    if XO:
        a(f"s_cmp_lt_u32 {sW}, 4\ns_cbranch_scc1 K_XL2")
        xloads(None)
        a("K_XL2:")
    a(f"s_waitcnt lgkmcnt(0)\nds_read_b64 v[{AOP}:{AOP+1}], v{vAA}")
    for x in pre_mfmas(dict(EF=EF, WF=WF), TA, 0, P): a(x)
    stamp("loop0")
    if P.get("ts"): a("s_memtime s[66:67]")
    if P.get("drain"): a(f"s_sub_u32 {sG}, {sG}, 3\ns_nop 2\ns_cbranch_scc1 K2_D0")
    else: a(f"s_sub_u32 {sG}, {sG}, 1\ns_nop 3")
    R = dict(ACC=ACC, XR=XR, TP=TP, TA=TA, TB=TB, EE=EE, WF=WF, AOP=AOP, EF=EF, OFFS=OFFS, NODE=NODE, vOffA=vOffA, vNodeA=vNodeA,
             vAA=vAA, vEfA=vEfA, sG=sG, sN=sN, vPm=vPm, vPo=vPo, vPv=vPv, XS=XS, sRot=sRot, vPt=255, RING=P.get("ring", 16))
    gen_loop(a, R, P, dict(PROG=L_PROG))
    if P.get("ts"): a("s_memtime s[68:69]")
    stamp("loop1")
    if PR.startswith("pair"):
        a(f"v_mov_b32 v{vPv}, -1\nds_write_b32 v{vPm}, v{vPv} offset:{L_PROG}\ns_setprio 0")
    a(f"s_add_u32 {sRB}, {sRB}, {CAP}\ns_cmp_ge_u32 {sRB}, {sT}\ns_cbranch_scc1 K_EPI")
    a("s_waitcnt vmcnt(0) lgkmcnt(0)\ns_barrier")
    a(f"ds_write_b128 v8, v[4:7]\nds_write_b32 v3, v4 offset:{L_PROG}")
    a(f"v_cmp_gt_u32 vcc, 128, v0\ns_and_saveexec_b64 s[56:57], vcc\nds_write_b32 v3, v4 offset:{L_CNT}\ns_mov_b64 exec, s[56:57]")
    a("s_waitcnt lgkmcnt(0)\ns_barrier")
    a(f"s_cmp_eq_u32 {sFB}, 0\ns_cbranch_scc1 K_ROUND\ns_branch K_FB")
    a("K_LATER:")
    payloads()
    a("K_LATER2:")
    for u in range(3): a(f"v_lshrrev_b32 v{ad+u}, 2, v{KEY+2*u}\nv_and_b32 v{ad+u}, 0xfc, v{ad+u}")
    a("s_branch K_BAL")
    a(f"K_FB0:\ns_mov_b32 {sT}, {E}")
    wmextract()
    a("K_FB:")
    a(f"s_mul_i32 s56, {sW}, {CAPW}\ns_add_u32 s56, s56, {sRB}")
    a(f"v_add_u32 v{f}, s56, v1\nv_add_u32 v{f+1}, 64, v{f}\nv_add_u32 v{f+2}, 128, v{f}")
    for u in range(3):
        a(f"v_cmp_gt_u32 {M(u)}, {sT}, v{f+u}\nv_min_u32 v{f+u}, {E-1}, v{f+u}\nv_lshlrev_b32 v{ad+u}, 2, v{f+u}\nv_lshlrev_b32 v{PA+u}, 3, v{f+u}")
        a(f"global_load_dword v{m+u}, v{ad+u}, s[8:9]\nglobal_load_dword v{m+4+u}, v{ad+u}, s[6:7]")
        a(f"global_load_dwordx2 v[{PAYR+4*u}:{PAYR+4*u+1}], v{PA+u}, s[10:11]\nglobal_load_dwordx2 v[{PAYR+4*u+2}:{PAYR+4*u+3}], v{PA+u}, s[12:13]")
    a(f"v_mov_b32 v14, 64\ns_waitcnt vmcnt(0)")
    for u in range(3):
        a(f"v_mul_u32_u24 v{f+u}, 214749, v{m+u}\nv_lshrrev_b32 v{f+u}, 23, v{f+u}\nv_cmp_eq_u32 vcc, {sBin}, v{f+u}\ns_and_b64 {M(u)}, {M(u)}, vcc")
        a(f"v_subrev_u32 v{KEY+2*u}, {sNs}, v{m+u}")
        keycalc2(m+4+u, KEY+2*u, f+u)
    a(f"s_cmp_lg_u32 {sRB}, 0\ns_cbranch_scc1 K_LATER2\ns_branch K_GOT")
    a("K_EPI:")
    SPLIT = P.get("split", 0)
    if SPLIT:
        L_GC = 1800
        NO = TA
        a(f"v_and_b32 v10, 7, v2\nv_bfe_u32 v11, v2, 3, 3\nv_mad_u32_u24 v10, v10, 5, v11\nv_lshlrev_b32 v10, 2, v10")
        a(f"s_lshr_b32 s59, {sW}, 2\ns_mul_i32 s60, s59, 80\nv_lshrrev_b32 v13, 4, v1\nv_lshl_add_u32 v11, v13, 2, s60")
        a("ds_permute_b32 v10, v10, v1")
        a(f"s_mov_b32 s56, {f32(-LN2)}\ns_mov_b32 s57, s56\ns_mul_i32 s58, {sW}, {20*RS}\ns_add_u32 s58, s58, {L_AGG}\nv_add_u32 v14, s58, v15")
        for k in range(0 if P.get("afold") else 4): a(f"v_pk_mul_f32 v[{ACC+2*k}:{ACC+2*k+1}], v[{ACC+2*k}:{ACC+2*k+1}], s[56:57]")
        a("s_waitcnt lgkmcnt(0)")
        for i_ in range(5): a(f"ds_bpermute_b32 v{NO+i_}, v11, v10 offset:{16*i_}")
        for sl in range(5):
            if sl:
                for k in range(0 if P.get("afold") else 4): a(f"v_pk_mul_f32 v[{ACC+8*sl+2*k}:{ACC+8*sl+2*k+1}], v[{ACC+8*sl+2*k}:{ACC+8*sl+2*k+1}], s[56:57]")
            for mm in range(4):
                a(f"v_cvt_pk_bf16_f32 v{ACC+8*sl+mm}, v{ACC+8*sl+mm}, v{ACC+8*sl+4+mm}")
                a(f"ds_write_b32 v14, v{ACC+8*sl+mm} offset:{RS*(4*sl+mm)}")
        a(f"s_lshl_b32 s61, s59, 2\nv_mov_b32 v10, s61\nv_mov_b32 v11, 1\nv_and_b32 v12, 15, v1")
        a(f"s_mul_i32 s59, s59, {80*RS}\ns_add_u32 s59, s59, {L_AGG}")
        a(f"v_mul_u32_u24 v14, {RS}, v12\nv_lshl_add_u32 v14, v13, 4, v14\nv_add_u32 v14, s59, v14")
        a(f"s_lshl_b32 s58, {sNs}, 10\ns_and_b32 s59, {sW}, 3\ns_lshl_b32 s59, s59, 8\ns_add_u32 s58, s58, s59\nv_lshlrev_b32 v12, 4, v12")
        a(f"s_waitcnt lgkmcnt(0)\ns_mov_b64 exec, 1\nds_add_u32 v10, v11 offset:{L_GC}\ns_mov_b64 exec, -1")
        for i_ in range(5): a(f"v_lshl_add_u32 v{NO+i_}, v{NO+i_}, 10, v12")
        a(f"K_GW:\nds_read_b32 v11, v10 offset:{L_GC}\ns_waitcnt lgkmcnt(0)\nv_readfirstlane_b32 s59, v11\ns_cmp_ge_u32 s59, 4\ns_cbranch_scc1 K_GW1\ns_sleep 1\ns_branch K_GW\nK_GW1:")
        a("s_waitcnt vmcnt(0)")
        stamp("Bg")
    else:
        a(f"s_mov_b32 s56, {f32(-LN2)}\ns_mov_b32 s57, s56")
        for sl in range(5):
            if not EP: a(f"s_add_u32 s58, {sW}, {8*sl}\nv_cmp_eq_u32 vcc, s58, v2")
            for k in range(0 if P.get("afold") else 4): a(f"v_pk_mul_f32 v[{ACC+8*sl+2*k}:{ACC+8*sl+2*k+1}], v[{ACC+8*sl+2*k}:{ACC+8*sl+2*k+1}], s[56:57]")
            if not EP: a(f"s_ff1_i32_b64 s58, vcc\ns_mul_i32 s58, s58, {4*RS}\ns_add_u32 s58, s58, {L_AGG}\nv_add_u32 v{10 + sl%2}, s58, v15")
            for mm in range(4):
                a(f"v_cvt_pk_bf16_f32 v{ACC+8*sl+mm}, v{ACC+8*sl+mm}, v{ACC+8*sl+4+mm}")
                a(f"ds_write_b32 v{PA5[sl] if EP else 10 + sl%2}, v{ACC+8*sl+mm} offset:{RS*mm}")
        a(f"v_and_b32 v12, 15, v1\nv_lshrrev_b32 v13, 4, v1")
        a(f"s_lshr_b32 s58, {sW}, 2\ns_mul_i32 s59, s58, {16*RS}\ns_add_u32 s59, s59, {L_AGG}")
        a(f"v_mul_u32_u24 v14, {RS}, v12\nv_lshl_add_u32 v14, v13, 4, v14\nv_add_u32 v14, s59, v14")
        a(f"s_lshl_b32 s58, s58, 2\ns_add_u32 s58, s58, {sNs}\ns_lshl_b32 s58, s58, 10\ns_and_b32 s59, {sW}, 3\ns_lshl_b32 s59, s59, 8\ns_add_u32 s58, s58, s59")
        a(f"v_lshlrev_b32 v13, 10, v13\nv_lshl_add_u32 v13, v12, 4, v13")
        a("s_waitcnt vmcnt(0) lgkmcnt(0)\ns_barrier")
        stamp("Bg")
    TS_ = 16 * RS if SPLIT else 32 * RS
    FA = XR
    for i in range(4):
        for ks in range(4): a(f"ds_read_b128 v[{FA+16*i+4*ks}:{FA+16*i+4*ks+3}], v14 offset:{TS_*i + 64*ks}")
    ost = P["out_aux"]
    def outtile(i):
        Dp = TP + 8 * (i % 2); Op = TP + 16 + 4 * (i % 2)
        for k in range(4): a(f"v_cvt_pk_bf16_f32 v{Op+k}, v{Dp+2*k}, v{Dp+2*k+1}")
        a(f"buffer_store_dwordx4 v[{Op}:{Op+3}], v{TA+i if SPLIT else 13}, {OS}, s58 offen {ost}")
        if i < 4 and not SPLIT: a("s_add_u32 s58, s58, 8192")
    for i in range(5):
        Dd = TP + 8 * (i % 2); fi = FA + 16 * (i % 4)
        for ks in range(4):
            if i < 4: a(f"s_waitcnt lgkmcnt({min(15, 15 - 4*i - ks + (4 if i >= 1 else 0))})")
            else: a(f"s_waitcnt lgkmcnt({3 - ks})")
            for tt in range(2):
                b = BF + 16*tt + 4*ks
                a(f"v_mfma_f32_16x16x32_bf16 v[{Dd+4*tt}:{Dd+4*tt+3}], v[{fi+4*ks}:{fi+4*ks+3}], v[{b}:{b+3}], " + ("0" if ks == 0 else f"v[{Dd+4*tt}:{Dd+4*tt+3}]"))
        if i == 0:
            for ks in range(4): a(f"ds_read_b128 v[{FA+4*ks}:{FA+4*ks+3}], v14 offset:{TS_*4 + 64*ks}")
        if i >= 1: outtile(i - 1)
    outtile(4)
    a(f"s_or_b32 s56, {sFB}, {sW}")
    if P.get("epo") == "none": a("s_mov_b32 s56, 1")
    if P.get("epo") == "wg0": a("s_or_b32 s56, s56, s2")
    a("s_cmp_lg_u32 s56, 0\ns_cbranch_scc1 K_NOEPO")
    a(f"v_mov_b32 v10, {sTag}\ns_mov_b64 exec, 1\nbuffer_store_dword v10, v4, {WSR}, 0 offen offset:{WS_EPO} {P.get('epo_aux', '')}\nK_NOEPO:")
    if P.get("ts"):
        a("s_waitcnt vmcnt(0)"); stamp("end")
        a("s_waitcnt lgkmcnt(0)")
        a(f"s_lshl_b32 s98, s2, 3\ns_add_u32 s98, s98, s3\ns_lshl_b32 s98, s98, 6\ns_add_u32 s98, s98, {WS_TS}")
        a("s_mov_b64 exec, 1\nv_mov_b32 v2, s98")
        for i in range(tsn[0]): a(f"v_mov_b32 v3, s{70 + 2*i}\nglobal_store_dword v2, v3, s[24:25] offset:{4*i}")
        a(f"s_sub_u32 s68, s68, s66\nv_mov_b32 v3, s68\nglobal_store_dword v2, v3, s[24:25] offset:56\nv_mov_b32 v3, {sLen}\nglobal_store_dword v2, v3, s[24:25] offset:60")
        assert tsn[0] <= 14
    a("K_END:\ns_endpgm")
    a(".p2align 6\n.type K_TAB,@object\nK_TAB:")
    for A in (A39, A40):
        used = [0]*8; codes = []
        for ww in A: codes.append(ww | used[ww] << 3); used[ww] += 1
        assert used == [5]*8
        a(".byte " + ", ".join(str(cc) for cc in codes + [255]*24))
    body = a.text(verbose=verbose)
    ns = 100 if P.get("ts") else 72
    gen.nts = tsn[0]
    return (HEADER + f"; @launch grid=({NB},1,1) block=(512,1,1) lds={L_END}\n" + '.amdgcn_target "amdgcn-amd-amdhsa--gfx950"\n.text\n' + body
            + '.section .rodata,"a"\n' + desc(NAME, 256, ns))

if __name__ == "__main__":
    P = eval(sys.argv[2]) if len(sys.argv) > 2 else {}
    open(sys.argv[1], "w").write(gen(P, verbose=True))
```

```python
import sys
from asmlib import Asm
from loopgen import gen_loop, pre_mfmas
from gen import HEADER as _H, scan_incl, f32, LOG2E, LN2, desc

N, E = 10000, 320000
NB, NP, CH = 256, 250, 1280
WS_EPO, WS_TAB, WS_KEY, WS_PAY, WS_FLG, WS_END = 0, 0x2000, 0x82000, 0x300000, 0x7F0000, 0x800000
WS_TS = 0x8000000
FS = 128
NAME = "gather_scatter__tensor_product_equiv_tfn__graph_kernel"
HEADER = _H[:_H.index("; Launch 1")] + """; One launch, 256 workgroups (one per CU).
; Phase 1: 250 workgroups each bin a chunk of 1280 edges by destination block (256 bins) and publish it in d_ws with
;          write-through stores: table row and keys as 8-byte pieces carrying this launch's tag, Y/edge_feat behind a flag.
;          (tag = epoch word of d_ws + 1; workgroups that saw all 256 rows store the tag back as the next epoch.)
; Phase 2: every workgroup collects its own bin, sorts it by (owner wave, source bucket), gathers x rows, does the
;          tensor product + radial gate in registers, mixes the channels and stores.
; If the hand-off never arrives (workgroups not co-resident) a workgroup scans the raw edge list on its own.
"""
A39 = [6, 5, 6, 7, 4, 2, 0, 1, 3, 4, 6, 3, 2, 0, 6, 1, 3, 5, 7, 1, 0, 5, 7, 4, 2, 1, 5, 4, 7, 3, 2, 0, 2, 0, 7, 1, 3, 4, 5, 6]
A40 = [3, 2, 4, 7, 0, 1, 6, 0, 5, 1, 7, 5, 6, 3, 4, 6, 5, 0, 2, 7, 1, 4, 6, 3, 2, 1, 3, 0, 5, 4, 2, 7, 2, 5, 4, 7, 1, 6, 0, 3]
DPP = ["row_shr:1 row_mask:0xf bank_mask:0xf", "row_shr:2 row_mask:0xf bank_mask:0xf", "row_shr:4 row_mask:0xf bank_mask:0xf",
       "row_shr:8 row_mask:0xf bank_mask:0xf", "row_bcast:15 row_mask:0xa bank_mask:0xf", "row_bcast:31 row_mask:0xc bank_mask:0xf"]

def gen(P=None, verbose=False):
    P = dict(dict(prio="pair2", sched="b", subcc=1, out_aux="sc1", pf=3, pfx=2, drain=1, nolo=1, epre=1, aswz=1, earlyA=1), **(P or {}))
    a = Asm()
    FS = P.get("FS", 128)
    DE = P.setdefault("DE", 8); ngr = (DE + 3) // 4; SAFE = P.get("safe"); PR = P["prio"]
    CAPW = 192; CAP = 8 * CAPW; NE = CAP + 8 * 48 + 16
    L_CNT, L_DEG, L_HCNT, L_FB, L_PROG, L_OFF = 0, 512, 768, 1792, 2048, 4096
    L_NODE = L_OFF + NE * 4
    L_PAY = (L_NODE + NE + 63) // 64 * 64
    L_A = L_PAY + NE * 16
    L_AGG = (L_A + NE * 32 + 255) // 256 * 256
    RS = 288
    L_END = L_AGG + 160 * RS
    L_MARK = L_AGG; L_WM = L_AGG + 8192; L_WR = L_WM + 32768; L_CG = L_WR + 1024; L_MAP = L_CG + 128
    L_PRE = L_OFF; L_TABL = L_OFF + 1024; L_SKEY = L_PAY; L_SPAY = L_A
    assert L_SPAY + 16384 < 65536 and L_MAP + 128 <= L_END
    ACC, XR, TP, TA, TB, EE, WF, AOP, EF, OFFS, NODE = 16, 56, 120, 152, 160, 168, 176, 184, 186, 188, 192
    vOffA, vNodeA, vAA, vEfA = 196, 197, 198, 199
    BF, CGF, PP, PL, PD = 200, 232, 240, 244, 248
    vPm, vPo, vPv = 252, 253, 254
    sW, sT, sRB, sG, sN, sBase, sLen, sTag, sBin, sNs, sFB = "s3", "s46", "s47", "s48", "s49", "s50", "s51", "s52", "s53", "s54", "s55"
    sRole, sT8, sRot = "s40", "s26", "s27"
    XS, OS, WSR = "s[28:31]", "s[32:35]", "s[36:39]"
    M = lambda u: f"s[{40+2*u}:{41+2*u}]"
    tsn = [0]; gen.names = []
    DEFST = ["start", "Bb", "Bc1", "Bc", "Bx", "keys", "pollP", "Bd", "Be", "Bf", "loop0", "loop1", "Bg", "end"]
    def stamp(name):
        if P.get("hold_at") == name:
            a(f"s_waitcnt lgkmcnt(0)\ns_add_u32 s70, s70, {P['hold_x']}\nK_HOLDP:\ns_memrealtime s[68:69]\ns_waitcnt lgkmcnt(0)\ns_sub_u32 s68, s68, s70\ns_cmp_lt_i32 s68, 0\ns_cbranch_scc1 K_HOLDP")
        if P.get("ts") and name in P.get("stamps", DEFST):
            gen.names.append(name)
            r = 70 + 2 * tsn[0]; a(f"s_memrealtime s[{r}:{r+1}]"); tsn[0] += 1

    a(f".globl {NAME}\n.p2align 8\n.type {NAME},@function\n{NAME}:")
    a(f"s_cmp_ge_u32 s2, {NB}\ns_cbranch_scc1 K_END")
    a("s_load_dwordx16 s[4:19], s[0:1], 0\ns_load_dwordx2 s[20:21], s[0:1], 64\ns_load_dwordx2 s[24:25], s[0:1], 80")
    stamp("start")
    if P.get("hold_at"): a("s_memrealtime s[70:71]")
    D, S, Y, F, B4, RK1 = TP, TP + 4, TP + 8, TP + 16, TP + 24, TP + 28
    KY, t, tmp, KG = XR, XR + 4, XR + 8, XR + 10
    la = P.get("load_aux", "")
    a("v_lshrrev_b32 v2, 6, v0\nv_and_b32 v1, 63, v0\nv_readfirstlane_b32 s3, v2")
    a(f"v_lshlrev_b32 v10, 4, v0\ns_mul_i32 s57, s2, {CH*4}\nv_lshlrev_b32 v3, 2, v0")
    if P.get("pfcode0", 1):
        a(f"s_cmp_lg_u32 s3, 5\ns_cbranch_scc1 K_PF0\ns_getpc_b64 s[26:27]\nK_PC3:\nv_lshlrev_b32 v13, 7, v1\nglobal_load_dword v255, v13, s[26:27]")
        a(f"v_add_u32 v13, 8192, v13\nv_min_u32 v13, K_TAB-K_PC3, v13\nglobal_load_dword v255, v13, s[26:27]\nK_PF0:")
    a("v_or_b32 v13, 0x4b000000, v1\ns_cmp_eq_u32 s3, 2\ns_cselect_b32 s56, -1, 0")
    a("v_add_u32 v11, s57, v10\nv_and_b32 v13, s56, v13\nv_lshlrev_b32 v12, 1, v11")
    a("ds_write_b32 v3, v13")
    a(f"s_cmp_lt_u32 s2, {NP}\ns_cselect_b32 s56, 5, 0\ns_cmp_lt_u32 {sW}, s56")
    stamp("prek")
    TL = P.get("tlb", 0)
    if TL:
        a(f"s_cselect_b32 {sRole}, 1, 0\ns_lshr_b32 s58, s2, 3\ns_cmp_lt_u32 s58, 11\ns_cbranch_scc0 K_NOTLB")
        a(f"s_cmp_lg_u32 {sW}, 6\ns_cbranch_scc1 K_TLB1\ns_lshl_b32 s59, s58, 3\ns_load_dwordx2 s[64:65], s[0:1], s59")
        a("s_mov_b32 s66, 128\ns_mov_b32 s67, 0x20000")
        for idx, size in ((0, 10240000), (1, 1280000), (2, 1280000), (3, 2560000), (4, 2560000), (7, 32768), (8, 10240000), (10, WS_END)):
            a(f"s_cmp_eq_u32 s58, {idx}\ns_cselect_b32 s66, {size}, s66")
        a("s_lshr_b32 s59, s66, 6\ns_and_b32 s59, s59, -4\nv_mul_lo_u32 v14, s59, v1\ns_waitcnt lgkmcnt(0)\nbuffer_load_dword v255, v14, s[64:67], 0 offen")
        a("K_TLB1:")
        if TL == 2: a("s_barrier")
        a(f"K_NOTLB:\ns_cmp_lg_u32 {sRole}, 0")
    a("s_waitcnt lgkmcnt(0)")
    stamp("karg")
    def setup0():
        if P.get("wsoff"): a(f"s_add_u32 s24, s24, {P['wsoff']}\ns_addc_u32 s25, s25, 0")
        a(f"s_load_dword {sTag}, s[24:25], {WS_EPO}")
        for k in range(4, 8): a(f"v_mov_b32 v{k}, 0")
        a(f"v_add_u32 v8, {L_MARK}, v10\nv_lshlrev_b32 v9, 4, v1\nv_lshlrev_b32 v15, 2, v1")
        a(f"ds_write_b128 v8, v[4:7]\nds_write_b32 v3, v4 offset:{L_PROG}")
        a(f"s_and_b32 {sBin}, s2, 7\ns_lshr_b32 s56, s2, 3\ns_lshl_b32 {sBin}, {sBin}, 5\ns_or_b32 {sBin}, {sBin}, s56")
    def setup():
        a(f"s_mul_i32 {sNs}, {sBin}, 625\ns_add_u32 s57, {sNs}, 640\ns_add_u32 {sNs}, {sNs}, 15\ns_lshr_b32 {sNs}, {sNs}, 4\ns_lshr_b32 s57, s57, 4")
        if SAFE: a("s_mov_b32 s28, s4\ns_mov_b32 s29, s5\ns_mov_b32 s30, 10240000\ns_mov_b32 s31, 0x20000")
        else: a("s_mov_b32 s28, s4\ns_and_b32 s29, s5, 0xffff\ns_or_b32 s29, s29, 0x100000\ns_mov_b32 s30, 10240000\ns_mov_b32 s31, 0x800000")
        a("s_mov_b32 s32, s20\ns_mov_b32 s33, s21\ns_lshl_b32 s34, s57, 10\ns_mov_b32 s35, 0x20000")
        a(f"s_mov_b32 s36, s24\ns_mov_b32 s37, s25\ns_mov_b32 s38, {WS_END}\ns_mov_b32 s39, 0x20000")
        a(f"s_mov_b32 {sRB}, 0\ns_mov_b32 s63, 0\nv_mov_b32 v14, 1")
        a(f"s_lshr_b32 {sRot}, {sBin}, 5\ns_mul_i32 {sRot}, {sRot}, 20009\ns_add_u32 {sRot}, {sRot}, 14\ns_lshr_b32 {sRot}, {sRot}, 4\ns_lshl_b32 {sRot}, {sRot}, 10")
        for k in range(40): a(f"v_mov_b32 v{ACC+k}, 0")
    def keycalc(Dr, Br, Kr, tm):
        a(f"v_mul_u32_u24 v{tm}, 625, v{Br}\nv_add_u32 v{tm}, 15, v{tm}\nv_lshrrev_b32 v{tm}, 4, v{tm}\nv_sub_u32 v{Kr}, v{Dr}, v{tm}")
    def keycalc2(Sr, Kr, tm):
        a(f"v_mul_u32_u24 v{tm}, 1677, v{Sr}\nv_lshrrev_b32 v{tm}, 20, v{tm}\nv_lshl_or_b32 v{Kr}, v{Kr}, 4, v{tm}\nv_lshl_or_b32 v{Kr}, v{Sr}, 10, v{Kr}")
    a("s_cbranch_scc0 K_BA")
    a(f"global_load_dwordx4 v[{D}:{D+3}], v11, s[8:9] {la}")
    if P.get("sfirst", 1): a(f"global_load_dwordx4 v[{S}:{S+3}], v11, s[6:7] {la}")
    a("K_BA:\ns_barrier\ns_cbranch_scc0 K_HELP")
    if not P.get("sfirst", 1): a(f"global_load_dwordx4 v[{S}:{S+3}], v11, s[6:7] {la}")
    for i in range(P.get("ydelay", 0)): a("s_nop 15")
    for h in range(2): a(f"global_load_dwordx4 v[{Y+4*h}:{Y+4*h+3}], v12, s[10:11] offset:{16*h} {la}")
    for h in range(2): a(f"global_load_dwordx4 v[{F+4*h}:{F+4*h+3}], v12, s[12:13] offset:{16*h} {la}")
    stamp("ldiss")
    a(f"s_mov_b32 {sRole}, 1")
    setup0(); setup()
    stamp("setup")
    a("s_waitcnt vmcnt(5)")
    stamp("dst")
    for u in range(4):
        a(f"v_mul_u32_u24 v{t+u}, 214749, v{D+u}\nv_lshrrev_b32 v{t+u}, 23, v{t+u}\nv_lshlrev_b32 v{B4+u}, 2, v{t+u}")
        a(f"ds_add_rtn_u32 v{RK1+u}, v{B4+u}, v14 offset:{L_HCNT}")
    for u in range(4): keycalc(D+u, t+u, KY+u, tmp)
    a("s_branch K_BB")
    a(f"K_HELP:\ns_mov_b32 {sRole}, 0")
    setup0()
    if P.get("pfcode"):
        a(f"s_cmp_lg_u32 {sW}, 5\ns_cbranch_scc1 K_HELP1\ns_getpc_b64 s[26:27]\nK_PC2:\nv_lshlrev_b32 v13, 7, v1\nglobal_load_dword v255, v13, s[26:27]")
        a(f"v_add_u32 v13, 8192, v13\nv_min_u32 v13, K_TAB-K_PC2, v13\nglobal_load_dword v255, v13, s[26:27]\nK_HELP1:")
    a(f"s_cmp_eq_u32 {sW}, 7\ns_cbranch_scc1 K_HELP7\ns_cmp_lg_u32 {sW}, 6\ns_cbranch_scc1 K_HELP2")
    a(f"s_and_b32 s56, {sBin}, 31\ns_lshl_b32 s56, s56, 10\nv_lshl_add_u32 v13, v1, 7, s56\ns_mov_b64 exec, 0xff")
    a("global_load_dword v255, v13, s[18:19]\ns_mov_b64 exec, -1\ns_branch K_HELP2\nK_HELP7:")
    a(f"s_mov_b32 m0, {L_WR}\ns_getpc_b64 s[26:27]\nK_PC:\nglobal_load_lds_dwordx4 v9, s[14:15]")
    a(f"s_add_u32 s26, s26, K_TAB-K_PC\ns_addc_u32 s27, s27, 0\ns_mov_b32 m0, {L_CG}\ns_mov_b64 exec, 0xff\nglobal_load_lds_dwordx4 v9, s[16:17]")
    a(f"s_mov_b32 m0, {L_MAP}\ns_nop 0\nglobal_load_lds_dwordx4 v9, s[26:27]\ns_mov_b64 exec, -1")
    a("K_HELP2:")
    setup()
    a("K_BB:\ns_waitcnt lgkmcnt(0)\ns_barrier")
    stamp("Bb")
    c = TA; q = TB
    a(f"s_add_u32 {sTag}, {sTag}, 1\ns_and_b32 s56, {sTag}, 0x3ff\ns_lshl_b32 s58, s56, 22\ns_lshl_b32 {sT8}, {sTag}, 24")
    a(f"s_cmp_eq_u32 {sW}, 7\ns_cselect_b32 s56, 1, {sRole}\ns_cmp_eq_u32 s56, 0\ns_cbranch_scc1 K_BC1")
    a(f"ds_read_b128 v[{c}:{c+3}], v9 offset:{L_HCNT}")
    a(f"s_cmp_eq_u32 {sW}, 7\ns_cbranch_scc1 K_SC\ns_waitcnt vmcnt(4)")
    for u in range(4): keycalc2(S+u, KY+u, t+u)
    a("K_SC:\ns_waitcnt lgkmcnt(0)")
    a(f"v_add_u32 v{c+4}, v{c}, v{c+1}\nv_add_u32 v{c+5}, v{c+4}, v{c+2}\nv_add_u32 v{c+6}, v{c+5}, v{c+3}\nv_mov_b32 v{q}, v{c+6}")
    fill = [x for u in range(4) for x in (f"v_or_b32 v{KG+2*u}, {sT8}, v{KY+u}", f"v_mov_b32 v{KG+2*u+1}, {sTag}")]
    for k in range(6):
        for x in fill[2*k:2*k+2]: a(x)
        a(f"v_add_u32_dpp v{q}, v{q}, v{q} {DPP[k]}")
    a(f"v_sub_u32 v{q}, v{q}, v{c+6}\nv_add_u32 v{q+1}, v{q}, v{c}\nv_add_u32 v{q+2}, v{q}, v{c+4}\nv_add_u32 v{q+3}, v{q}, v{c+5}")
    a(f"s_cmp_lg_u32 {sW}, 7\ns_cbranch_scc1 K_NOROW")
    g = EE
    for i in range(4):
        a(f"v_lshl_or_b32 v{g+2*i}, v{c+i}, 11, v{q+i}\nv_or_b32 v{g+2*i}, s58, v{g+2*i}\nv_mov_b32 v{g+2*i+1}, {sTag}")
    a(f"s_lshl_b32 s57, s2, 11\ns_add_u32 s57, s57, {WS_TAB}\nv_lshlrev_b32 v12, 5, v1")
    a(f"buffer_store_dwordx4 v[{g}:{g+3}], v12, {WSR}, s57 offen sc1\nbuffer_store_dwordx4 v[{g+4}:{g+7}], v12, {WSR}, s57 offen offset:16 sc1")
    a("s_branch K_BC1\nK_NOROW:")
    a(f"ds_write_b128 v9, v[{q}:{q+3}] offset:{L_PRE}")
    for u in range(4): a(f"ds_read_b32 v{t+u}, v{B4+u} offset:{L_PRE}")
    for u in range(4):
        a(f"s_waitcnt lgkmcnt(3)\nv_add_lshl_u32 v{B4+u}, v{t+u}, v{RK1+u}, 3")
        a(f"ds_write_b64 v{B4+u}, v[{KG+2*u}:{KG+2*u+1}] offset:{L_SKEY}")
    a(f"s_mov_b32 s56, {L_SPAY}")
    for u in range(4): a(f"v_lshl_add_u32 v{B4+u}, v{B4+u}, 1, s56")
    a("K_BC1:")
    a(f"s_mul_i32 s60, s2, {CH*8}\ns_add_u32 s60, s60, {WS_KEY}")
    a(f"s_sub_u32 s56, {sW}, 5\ns_lshl_b32 s57, s56, 14\nv_add_u32 v13, s57, v9\ns_add_u32 s57, s57, {L_WM}")
    a("s_waitcnt lgkmcnt(0)\ns_barrier")
    stamp("Bc1")
    o = XR + 20
    a(f"s_cmp_ge_u32 s2, {NP}\ns_cbranch_scc1 K_KS2")
    a(f"ds_read_b128 v[{o}:{o+3}], v10 offset:{L_SKEY}")
    a(f"s_cmp_lt_u32 s56, 2\ns_cbranch_scc0 K_KS1")
    a(f"ds_read_b128 v[{o+4}:{o+7}], v10 offset:{L_SKEY + 8192 - 5120}\ns_add_u32 s59, s60, {8192 - 5120}")
    a(f"s_waitcnt lgkmcnt(0)\nbuffer_store_dwordx4 v[{o+4}:{o+7}], v10, {WSR}, s59 offen sc1")
    a(f"K_KS1:\ns_waitcnt lgkmcnt(0)\nbuffer_store_dwordx4 v[{o}:{o+3}], v10, {WSR}, s60 offen sc1")
    a(f"K_KS2:\ns_cmp_lt_u32 s56, 2\ns_cbranch_scc1 K_DMA\ns_cmp_eq_u32 {sRole}, 0\ns_cbranch_scc1 K_BC7")
    if P.get("ts") and "y0" in P.get("stamps", []):
        a("s_waitcnt vmcnt(4)"); stamp("y0"); a("s_waitcnt vmcnt(3)"); stamp("y1"); a("s_waitcnt vmcnt(2)"); stamp("f0"); a("s_waitcnt vmcnt(1)"); stamp("f1")
    for h in range(2):
        a(f"s_waitcnt vmcnt({2 - h})")
        for u in (2*h, 2*h+1): a(f"ds_write2_b64 v{B4+u}, v[{Y+2*u}:{Y+2*u+1}], v[{F+2*u}:{F+2*u+1}] offset0:0 offset1:1")
    a("s_branch K_BC\nK_DMA:")
    for gidx in range(4):
        a("s_mov_b32 m0, s57\ns_add_u32 s57, s57, 4096")
        for i in range(4): a(f"global_load_lds_dwordx4 v13, s[18:19] offset:{i*1024}")
        if gidx < 3: a("v_add_u32 v13, 4096, v13")
    a(f"s_branch K_BC\nK_BC7:\ns_cmp_ge_u32 s2, {NP}\ns_cbranch_scc0 K_BC8\ns_waitcnt vmcnt(2)\nK_BC8:\ns_waitcnt vmcnt(3)")
    SM = [P.get("sm2", 0), P.get("sm0", 0), P.get("sm3", 0)]
    smw = [8, 8, 4]
    smb = [n_ * 256 * 32 * w_ for n_, w_ in zip(SM, smw)]
    def sfetch(k, first):
        n = SM[k]
        if not n: return
        lim = 10240000 - n * 256 - 128
        if smw[k] == 4: a(f"s_cmp_lt_u32 {sW}, 4\ns_cbranch_scc1 K_NOSM{k}")
        a(f"s_and_b32 s68, {sBin}, 31\ns_mul_i32 s68, s68, {smw[k]}\ns_and_b32 s69, {sW}, {smw[k]-1}\ns_add_u32 s68, s68, s69\ns_mul_i32 s68, s68, {n*256}\ns_add_u32 s68, s68, {sRot}\ns_add_u32 s68, s68, {first}")
        a(f"s_cmp_ge_u32 s68, {lim}\ns_cselect_b32 s69, {lim}, 0\ns_sub_u32 s68, s68, s69\ns_add_u32 s22, s4, s68\ns_addc_u32 s23, s5, 0")
        for i in range(n): a(f"s_load_dwordx2 s[0:1], s[22:23], {i*256 + 124}")
        a(f"K_NOSM{k}:")
    def pfetch(lab, n=None, first=None, extra=0):
        n = n or P["pf"]
        first = P.get("pfc", 0) + P.get("pfd", 0) + P.get("pfx", 0) + P.get("pfk", 0) if first is None else first
        a(f"s_cmp_lt_u32 {sW}, {8-n}\ns_cbranch_scc1 {lab}")
        a("s_mov_b32 s64, s4\ns_mov_b32 s65, s5\ns_mov_b32 s66, 10240000\ns_mov_b32 s67, 0x20000")
        a(f"s_sub_u32 s68, {7 + first}, {sW}\ns_lshl_b32 s68, s68, 5\ns_and_b32 s69, {sBin}, 31\ns_add_u32 s68, s68, s69\ns_lshl_b32 s68, s68, 13\ns_add_u32 s68, s68, {sRot}")
        if extra: a(f"s_add_u32 s68, s68, {extra}")
        a(f"v_lshlrev_b32 v12, 7, v1\nbuffer_load_dword v255, v12, s[64:67], s68 offen")
    a("K_BC:")
    if P.get("pfc"):
        pfetch("K_NOPFC", P["pfc"], 0); a("K_NOPFC:")
    a(f"s_mul_i32 s56, s2, {CH*16}\ns_add_u32 s56, s56, {WS_PAY}\ns_add_u32 s57, s56, 8192\ns_add_u32 s59, s56, 16384")
    a(f"v_lshlrev_b32 v11, 11, v0\ns_lshl_b32 s61, {sBin}, 3\ns_add_u32 s61, s61, {WS_TAB}")
    a("s_waitcnt lgkmcnt(0)\ns_barrier")
    stamp("Bc")
    o = XR
    a(f"s_cmp_ge_u32 s2, {NP}\ns_cbranch_scc1 K_NOST")
    for u in range(3): a(f"ds_read_b128 v[{o+4*u}:{o+4*u+3}], v10 offset:{L_SPAY + 8192*u}")
    a(f"s_waitcnt lgkmcnt(2)\nbuffer_store_dwordx4 v[{o}:{o+3}], v10, {WSR}, s56 offen sc1")
    a(f"s_waitcnt lgkmcnt(1)\nbuffer_store_dwordx4 v[{o+4}:{o+7}], v10, {WSR}, s57 offen sc1")
    a(f"s_cmp_ge_u32 {sW}, 4\ns_cbranch_scc1 K_NOST")
    a(f"s_waitcnt lgkmcnt(0)\nbuffer_store_dwordx4 v[{o+8}:{o+11}], v10, {WSR}, s59 offen sc1")
    a("K_NOST:")
    if P.get("earlyA"): a(f"s_cmp_ge_u32 {sW}, 4\ns_cbranch_scc1 K_NOA0\nbuffer_load_dwordx2 v[{TA}:{TA+1}], v11, {WSR}, s61 offen sc1\nK_NOA0:")
    if P.get("pfd"):
        pfetch("K_NOPFD", P["pfd"], P.get("pfc", 0)); a("K_NOPFD:")
    RW, RC, RM = OFFS, NODE, TP
    a(f"s_lshr_b32 s56, s34, 10\ns_sub_u32 s56, s56, {sNs}\ns_sub_u32 s56, s56, 39\ns_lshl_b32 s56, s56, 6\ns_add_u32 s56, s56, {L_MAP}")
    a(f"v_add_u32 v2, s56, v1\nv_add_u32 v13, {L_WR}, v15\nds_read_u8 v2, v2")
    a(f"ds_read2st64_b32 v[{RW}:{RW+1}], v13 offset0:0 offset1:1\nds_read2st64_b32 v[{RW+2}:{RW+3}], v13 offset0:2 offset1:3")
    a(f"v_and_b32 v12, 3, v1\nv_lshlrev_b32 v12, 5, v12\nv_bfe_u32 v13, v1, 2, 2\nv_lshl_or_b32 v12, v13, 1, v12\nv_add_u32 v12, {L_CG}, v12")
    for f_ in range(4): a(f"ds_read_u16 v{RC+f_}, v12 offset:{f_*8}")
    a(f"v_mov_b32 v{vPm}, v3\nv_xor_b32 v{vPo}, 1024, v3\nv_mul_u32_u24 v{AOP+1}, {FS}, v0")
    a(f"s_mov_b32 s56, {f32(-LOG2E)}\ns_waitcnt lgkmcnt(0)")
    sfetch(0, 0)
    w = TP + 16
    for h in range(2):
        for k in range(4):
            a(f"v_lshlrev_b32 v{w+k}, 16, v{RW+k}" if h == 0 else f"v_and_b32 v{w+k}, 0xffff0000, v{RW+k}")
            a(f"v_mul_f32 v{w+4+k}, s56, v{w+k}")
        oo = WF + 4*h
        a(f"v_cvt_pk_bf16_f32 v{oo}, v{w+4}, v{w+5}\nv_cvt_pk_bf16_f32 v{oo+1}, v{w+6}, v{w+7}")
        if not P.get("nolo"):
            for k in range(4):
                a(f"v_lshlrev_b32 v{w+4+k}, 16, v{oo + k//2}" if k % 2 == 0 else f"v_and_b32 v{w+4+k}, 0xffff0000, v{oo + k//2}")
                a(f"v_fma_f32 v{w+4+k}, s56, v{w+k}, -v{w+4+k}")
            a(f"v_cvt_pk_bf16_f32 v{oo+2}, v{w+4}, v{w+5}\nv_cvt_pk_bf16_f32 v{oo+3}, v{w+6}, v{w+7}")
    a(f"v_lshl_or_b32 v{w}, v{RC+1}, 16, v{RC}\nv_lshl_or_b32 v{w+1}, v{RC+3}, 16, v{RC+2}\nv_lshrrev_b32 v13, 4, v1")
    for gg in range(4):
        a(f"v_cmp_eq_u32 vcc, {gg}, v13")
        a(f"v_cndmask_b32 v{CGF+2*gg}, 0, v{w}, vcc\nv_cndmask_b32 v{CGF+2*gg+1}, 0, v{w+1}, vcc")
    a(f"v_mul_u32_u24 v13, {4*CH}, v1")
    def wmextract():
        a(f"s_and_b32 s56, {sW}, 3\ns_lshl_b32 s56, s56, 6\ns_add_u32 s56, s56, {L_WM}")
        a("v_lshrrev_b32 v10, 4, v1\nv_lshlrev_b32 v10, 11, v10\nv_and_b32 v12, 15, v1\nv_lshl_or_b32 v10, v12, 2, v10\nv_add_u32 v10, s56, v10")
        a("s_mov_b32 s56, 0x05040100\ns_mov_b32 s57, 0x07060302")
        for ks in range(4):
            for i in range(4): a(f"ds_read2st64_b32 v[{RM+8*ks+2*i}:{RM+8*ks+2*i+1}], v10 offset0:{32*ks+2*i} offset1:{32*ks+2*i+1}")
        for ks in range(4):
            for i in range(4):
                a(f"s_waitcnt lgkmcnt({15 - 4*ks - i})")
                a(f"v_perm_b32 v{BF+4*ks+i}, v{RM+8*ks+2*i+1}, v{RM+8*ks+2*i}, s56")
                a(f"v_perm_b32 v{BF+16+4*ks+i}, v{RM+8*ks+2*i+1}, v{RM+8*ks+2*i}, s57")
    a(f"s_cmp_ge_u32 {sW}, 4\ns_cbranch_scc1 K_TABOK")
    a(f"s_mov_b32 s59, {P.get('timeout', 40000)}\ns_lshr_b32 s58, s58, 22")
    if P.get("earlyA"): a("s_branch K_POLLA1")
    a(f"K_POLLA:\nbuffer_load_dwordx2 v[{TA}:{TA+1}], v11, {WSR}, s61 offen sc1\nK_POLLA1:\ns_waitcnt vmcnt(0)")
    a(f"v_lshrrev_b32 v{TA+2}, 22, v{TA}\nv_cmp_ne_u32 vcc, {sTag}, v{TA+1}\nv_cmp_ne_u32 s[56:57], s58, v{TA+2}\ns_or_b64 vcc, vcc, s[56:57]")
    if P.get("force_fb"): a("s_mov_b64 vcc, -1")
    a("s_cbranch_vccz K_POLLAOK")
    a(f"s_sub_u32 s59, s59, 1\ns_cbranch_scc0 K_POLLA")
    a(f"ds_write_b32 v4, v14 offset:{L_FB}")
    a(f"K_POLLAOK:\nds_write_b32 v3, v{TA} offset:{L_TABL}")
    a("K_TABOK:\ns_waitcnt vmcnt(0) lgkmcnt(0)\ns_barrier")
    stamp("Bx")
    a(f"s_cmp_lg_u32 {sW}, 0\ns_cbranch_scc1 K_NOFLAG")
    a(f"s_mul_i32 s56, s2, {FS}\ns_add_u32 s56, s56, {WS_FLG}\nv_mov_b32 v10, {sTag}\ns_mov_b64 exec, 1")
    a(f"buffer_store_dword v10, v4, {WSR}, s56 offen sc1\ns_mov_b64 exec, -1\nK_NOFLAG:")
    a(f"ds_read_b128 v[{TP}:{TP+3}], v9 offset:{L_TABL}\nds_read_b32 v10, v4 offset:{L_FB}")
    if P.get("pfx"):
        pfetch("K_NOPFX", P["pfx"], P.get("pfc", 0) + P.get("pfd", 0), smb[0]); a("K_NOPFX:")
    a("s_waitcnt lgkmcnt(0)")
    a(f"v_readfirstlane_b32 {sFB}, v10")
    c = TP + 4; p = TP + 8
    for i in range(4): a(f"v_bfe_u32 v{c+i}, v{TP+i}, 11, 11")
    a(f"v_add_u32 v{p+1}, v{c}, v{c+1}\nv_add_u32 v{p+2}, v{p+1}, v{c+2}\nv_add_u32 v{p+3}, v{p+2}, v{c+3}\nv_mov_b32 v{p+4}, v{p+3}")
    fill = []
    for i in range(4):
        fill.append(f"v_and_b32 v{TP+i}, 0x7ff, v{TP+i}")
        fill.append(f"v_add_u32 v{PD+i}, v13, v{TP+i}")
        if i: fill.append(f"v_add_u32 v{PD+i}, {i*CH}, v{PD+i}")
    for k in range(6):
        for x in fill[2*k:2*k+2]: a(x)
        a(f"v_add_u32_dpp v{p+4}, v{p+4}, v{p+4} {DPP[k]}")
    a(f"s_cmp_lg_u32 {sFB}, 0\ns_cbranch_scc1 K_FB0")
    a(f"v_readlane_b32 {sT}, v{p+4}, 63")
    a(f"v_sub_u32 v{PP}, v{p+4}, v{p+3}")
    a(f"v_add_u32 v{PP+1}, v{PP}, v{c}\nv_add_u32 v{PP+2}, v{PP}, v{p+1}\nv_add_u32 v{PP+3}, v{PP}, v{p+2}")
    for i in range(4):
        a(f"v_sub_u32 v{PD+i}, v{PD+i}, v{PP+i}\nv_add_u32 v{PL+i}, v{PP+i}, v{c+i}")
    m = XR; f = m + 12; KEY = m + 16; RK = m + 22; ad = m + 25; CD = m + 28; PAYR = m + 32; PA = m + 44; CI = m + 47; q = m + 52
    FL = AOP
    a("K_ROUND:")
    a(f"s_mul_i32 s56, {sW}, {CAPW}\ns_add_u32 s56, s56, {sRB}\ns_add_u32 s57, s56, {CAPW}")
    a(f"s_lshl_b32 s58, {sW}, 10\ns_add_u32 s58, s58, {L_MARK}")
    for i in range(4):
        a(f"v_cmp_lt_u32 vcc, s56, v{PL+i}\nv_cmp_gt_u32 s[60:61], s57, v{PP+i}")
        a(f"v_subrev_u32 v{m+i}, s56, v{PP+i}\nv_max_i32 v{m+i}, 0, v{m+i}\nv_lshl_add_u32 v{m+i}, v{m+i}, 2, s58")
        a(f"s_and_b64 exec, vcc, s[60:61]\nds_max_u32 v{m+i}, v{PD+i}\ns_mov_b64 exec, -1")
    a(f"v_add_u32 v{m+4}, s58, v15")
    for u in range(3): a(f"ds_read_b32 v{m+8+u}, v{m+4} offset:{u*256}")
    a(f"v_add_u32 v{f}, s56, v1\nv_add_u32 v{f+1}, 64, v{f}\nv_add_u32 v{f+2}, 128, v{f}")
    for u in range(3): a(f"v_cmp_gt_u32 {M(u)}, {sT}, v{f+u}")
    a(f"s_mov_b32 s60, {WS_KEY}\ns_mov_b32 s61, {WS_PAY}\ns_lshr_b32 s62, {sT8}, 24")
    a("s_waitcnt lgkmcnt(0)")
    scan_incl(a, "v_max_u32", [m+8, m+9, m+10])
    a(f"v_readlane_b32 s56, v{m+8}, 63\nv_readlane_b32 s57, v{m+9}, 63\nv_add_u32 v{f}, v{f}, v{m+8}")
    a(f"s_max_u32 s57, s56, s57")
    a(f"v_max_u32 v{m+9}, s56, v{m+9}\nv_max_u32 v{m+10}, s57, v{m+10}")
    a(f"v_add_u32 v{f+1}, v{f+1}, v{m+9}\nv_add_u32 v{f+2}, v{f+2}, v{m+10}")
    for u in range(3): a(f"v_lshlrev_b32 v{ad+u}, 3, v{f+u}")
    stamp("marks")
    def keyloads():
        for u in range(3):
            a(f"s_mov_b64 exec, {M(u)}\nbuffer_load_dwordx2 v[{KEY+2*u}:{KEY+2*u+1}], v{ad+u}, {WSR}, s60 offen sc1")
        a("s_mov_b64 exec, -1")
    keyloads()
    for u in range(3): a(f"v_lshlrev_b32 v{PA+u}, 4, v{f+u}")
    a(f"s_cmp_lg_u32 {sRB}, 0\ns_cbranch_scc1 K_KEYS1")
    TWO = P.get("two", 0); M2 = lambda u: ("s[0:1]", "s[20:21]", "s[22:23]")[u]
    if TWO:
        for u in range(3): a(f"v_lshrrev_b32 v{f+u}, 8, v{f+u}\nv_mul_u32_u24 v{f+u}, 52429, v{f+u}\nv_lshrrev_b32 v{f+u}, 18, v{f+u}\nv_lshlrev_b32 v{f+u}, 2, v{f+u}")
    wmextract()
    sfetch(1, smb[0] + P.get("pfx", 0) * 262144)
    stamp("wmx")
    a("s_branch K_KEYS1\nK_KEYS:")
    keyloads()
    a(f"K_KEYS1:\nv_mov_b32 v14, 64\ns_mov_b64 s[58:59], 0")
    for u in range(3):
        a(f"s_waitcnt vmcnt({2-u})")
        a(f"v_lshrrev_b32 v{RK+u}, 24, v{KEY+2*u}\nv_cmp_ne_u32 vcc, {sTag}, v{KEY+2*u+1}\nv_cmp_ne_u32 s[56:57], s62, v{RK+u}")
        a(f"s_or_b64 vcc, vcc, s[56:57]\ns_and_b64 vcc, vcc, {M(u)}\ns_or_b64 s[58:59], s[58:59], vcc")
    a("s_cbranch_scc1 K_KEYS")
    stamp("keys")
    def payloads():
        for u in range(3):
            a(f"s_mov_b64 exec, {M(u)}\nbuffer_load_dwordx4 v[{PAYR+4*u}:{PAYR+4*u+3}], v{PA+u}, {WSR}, s61 offen sc1")
        a("s_mov_b64 exec, -1")
    a(f"s_cmp_lg_u32 {sRB}, 0\ns_cbranch_scc1 K_LATER")
    a(f"s_mov_b32 s62, {WS_FLG}\ns_cmp_lt_u32 {sW}, 4\ns_cbranch_scc0 K_GOT\nbuffer_load_dword v{FL}, v{FL+1}, {WSR}, s62 offen sc1")
    a("K_GOT:")
    for u in range(3):
        a(f"v_lshrrev_b32 v{ad+u}, 2, v{KEY+2*u}\nv_and_b32 v{ad+u}, 0xfc, v{ad+u}")
    for u in range(3): a(f"s_mov_b64 exec, {M(u)}\nds_add_u32 v{ad+u}, v14 offset:{L_DEG}")
    a("s_mov_b64 exec, -1")
    if P.get("pfk"):
        pfetch("K_NOPFK", P["pfk"], P.get("pfc", 0) + P.get("pfd", 0) + P.get("pfx", 0)); a("K_NOPFK:")
    a(f"s_lshr_b32 s56, {sW}, 2\ns_or_b32 s56, s56, {sFB}\ns_cbranch_scc1 K_POLLBOK")
    if not TWO:
        a(f"K_POLLB:\ns_waitcnt vmcnt(0)\nv_cmp_ne_u32 vcc, {sTag}, v{FL}\ns_cbranch_vccz K_POLLBOK")
        a(f"buffer_load_dword v{FL}, v{FL+1}, {WSR}, s62 offen sc1\ns_branch K_POLLB")
        a("K_POLLBOK:\ns_waitcnt lgkmcnt(0)")
        sfetch(2, smb[0] + smb[1] + P.get("pfx", 0) * 262144)
        stamp("pollP")
        a("s_barrier")
        stamp("Bd")
        a(f"s_cmp_lg_u32 {sFB}, 0\ns_cbranch_scc1 K_NOPF")
        payloads()
        if P["pf"]: pfetch("K_NOPF", extra=sum(smb))
        a("K_NOPF:")
    else:
        a(f"s_waitcnt vmcnt(0)\nds_write_b32 v3, v{FL} offset:{L_PRE}")
        a("K_POLLBOK:\ns_waitcnt lgkmcnt(0)")
        stamp("pollP")
        a("s_barrier")
        stamp("Bd")
        a(f"s_cmp_lg_u32 {sFB}, 0\ns_cbranch_scc1 K_NOPF")
        for u in range(3): a(f"ds_read_b32 v{f+u}, v{f+u} offset:{L_PRE}")
        for u in range(3):
            a(f"s_waitcnt lgkmcnt({2-u})\nv_cmp_eq_u32 vcc, {sTag}, v{f+u}\ns_andn2_b64 {M2(u)}, {M(u)}, vcc\ns_and_b64 exec, {M(u)}, vcc")
            a(f"buffer_load_dwordx4 v[{PAYR+4*u}:{PAYR+4*u+3}], v{PA+u}, {WSR}, s61 offen sc1\ns_mov_b64 exec, -1")
        a(f"s_cmp_lt_u32 {sW}, 4\ns_cbranch_scc0 K_NOPF\nv_cmp_ne_u32 vcc, {sTag}, v{FL}\ns_cbranch_vccz K_NOPF\nbuffer_load_dword v{FL}, v{FL+1}, {WSR}, s62 offen sc1\ns_mov_b32 s63, 1")
        a("K_NOPF:")
    KK = TP; MI = EE
    a(f"ds_read_b32 v{MI}, v15 offset:{L_DEG}")
    for jj in range(10): a(f"ds_read_b128 v[{KK+4*jj}:{KK+4*jj+3}], v4 offset:{L_DEG+16*jj}")
    a("v_cmp_gt_u32 vcc, 40, v1")
    for jj in range(20):
        if jj % 2 == 0: a(f"s_waitcnt lgkmcnt({9 - jj//2})")
        tt = KK + 2*jj
        a(f"v_pk_add_f32 v[{tt}:{tt+1}], v[{tt}:{tt+1}], v[{MI}:{MI+1}] op_sel_hi:[1,0] neg_lo:[0,1] neg_hi:[0,1] clamp")
        if jj >= 2: a(f"v_pk_add_f32 v[{tt}:{tt+1}], v[{tt}:{tt+1}], v[{tt-4}:{tt-3}]")
    tt = KK + 38
    a(f"v_pk_add_f32 v[{tt}:{tt+1}], v[{tt}:{tt+1}], v[{tt-2}:{tt-1}]")
    a(f"v_add_f32 v{tt}, v{tt}, v{tt+1}\nv_cvt_u32_f32 v{tt}, v{tt}\nv_lshlrev_b32 v{tt}, 2, v{tt}")
    a(f"ds_bpermute_b32 v2, v{tt}, v2\ns_waitcnt lgkmcnt(0)\nv_cndmask_b32 v2, -1, v2, vcc")
    a("K_BAL:")
    for u in range(3): a(f"ds_bpermute_b32 v{CD+u}, v{ad+u}, v2")
    a("v_mov_b32 v14, 1\nv_lshlrev_b32 v10, 3, v1")
    a(f"s_lshr_b32 s56, {sBin}, 4\ns_and_b32 s56, s56, 14")
    for u in range(3): a(f"v_subrev_u32 v{CI+u}, s56, v{KEY+2*u}\nv_and_b32 v{CI+u}, {P.get('bmask', 15)}, v{CI+u}")
    for u in range(3):
        a(f"s_waitcnt lgkmcnt(2)\ns_mov_b64 exec, {M(u)}")
        a(f"v_and_b32 v{ad+u}, 7, v{CD+u}\nv_lshl_or_b32 v{CI+u}, v{ad+u}, 4, v{CI+u}\nv_lshlrev_b32 v{ad+u}, 2, v{CI+u}")
        a(f"ds_add_rtn_u32 v{RK+u}, v{ad+u}, v14 offset:{L_CNT}")
    a("s_mov_b64 exec, -1")
    for u in range(3):
        a(f"v_lshlrev_b32 v{ad+u}, 1, v{CI+u}\nv_lshlrev_b32 v{CI+u}, 4, v{CI+u}")
        a(f"v_and_b32 v{CD+u}, 0x38, v{CD+u}\nv_and_b32 v{KEY+2*u}, {P.get('xmask', 0xfffc00)}, v{KEY+2*u}")
    a(f"s_lshl_b32 s56, {sW}, 3\ns_add_u32 s57, s56, 7")
    a(f"v_lshrrev_b32 v{q+6}, 3, v1\nv_mul_u32_u24 v{q+6}, 48, v{q+6}")
    if TWO:
        a("s_cmp_eq_u32 s63, 0\ns_mov_b32 s63, 0\ns_cbranch_scc1 K_POLLCOK")
        a(f"K_POLLC:\ns_waitcnt vmcnt(0)\nv_cmp_ne_u32 vcc, {sTag}, v{FL}\ns_cbranch_vccz K_POLLCOK")
        a(f"buffer_load_dword v{FL}, v{FL+1}, {WSR}, s62 offen sc1\ns_branch K_POLLC\nK_POLLCOK:")
    a("s_waitcnt lgkmcnt(0)\ns_barrier")
    stamp("Be")
    a(f"ds_read_b64 v[{q}:{q+1}], v10 offset:{L_CNT}")
    if TWO:
        a(f"s_or_b32 s58, {sFB}, {sRB}\ns_cbranch_scc1 K_NOREST")
        a(f"s_or_b64 s[58:59], {M2(0)}, {M2(1)}\ns_or_b64 s[58:59], s[58:59], {M2(2)}\ns_cbranch_scc0 K_NOREST1")
        for u in range(3):
            a(f"s_mov_b64 exec, {M2(u)}\nbuffer_load_dwordx4 v[{PAYR+4*u}:{PAYR+4*u+3}], v{PA+u}, {WSR}, s61 offen sc1")
        a("s_mov_b64 exec, -1\nK_NOREST1:")
        if P["pf"]: pfetch("K_NOREST")
        a("K_NOREST:")
    a(f"s_sub_u32 s58, {sRot}, 1024\ns_cselect_b32 s58, {(N-1)*1024}, s58")
    a("s_waitcnt lgkmcnt(0)")
    a(f"v_add_u32 v{q+2}, v{q}, v{q+1}\nv_mov_b32 v{q+3}, v{q+2}")
    fill = ["v_and_b32 v12, 15, v1", "v_lshrrev_b32 v11, 4, v1", "v_lshlrev_b32 v11, 3, v11", "v_lshl_add_u32 v11, v12, 5, v11",
            f"v_mov_b32 v{q+7}, s58", f"v_mov_b32 v{vPv}, 0"]
    if P.get("aswz", 0):
        fill = ["v_and_b32 v12, 15, v1", "v_lshrrev_b32 v11, 2, v1", "v_and_b32 v11, 8, v11", "v_xor_b32 v11, v11, v1",
                f"v_mov_b32 v{q+7}, s58", f"v_mov_b32 v{vPv}, 0", "v_lshlrev_b32 v11, 3, v11", "v_lshrrev_b32 v13, 2, v1",
                "v_and_b32 v10, 3, v1", "v_lshl_or_b32 v13, v10, 4, v13", "v_lshlrev_b32 v10, 2, v10", "v_and_b32 v10, 8, v10"]
    for k in range(6):
        for x in fill[2*k:2*k+2]: a(x)
        a(f"v_add_u32_dpp v{q+3}, v{q+3}, v{q+3} {DPP[k]}")
    a(f"v_sub_u32 v{q+2}, v{q+3}, v{q+2}")
    a(f"v_readlane_b32 {sLen}, v{q+3}, s57")
    if P.get("aswz", 0): a("v_xor_b32 v10, v10, v13\nv_lshlrev_b32 v10, 3, v10")
    a(f"v_mov_b32_dpp v{q+4}, v{q+2} row_newbcast:0 row_mask:0xf bank_mask:0x3")
    a(f"v_readlane_b32 s58, v{q+2}, s56")
    a(f"v_mov_b32_dpp v{q+4}, v{q+2} row_newbcast:8 row_mask:0xf bank_mask:0xc")
    a(f"v_add_u32 v{q+5}, 15, v{q+4}\nv_and_b32 v{q+5}, -16, v{q+5}\nv_add_u32 v{q+5}, v{q+5}, v{q+6}")
    a(f"v_sub_u32 v{q+4}, v{q+5}, v{q+4}\nv_add_u32 v{q+4}, v{q+4}, v{q+2}")
    a(f"v_add_u32 v{q}, v{q+4}, v{q}\nv_lshl_or_b32 v{q}, v{q}, 16, v{q+4}")
    a(f"v_readlane_b32 {sBase}, v{q+5}, s56")
    for u in range(3): a(f"ds_bpermute_b32 v{ad+u}, v{ad+u}, v{q}")
    a(f"s_sub_u32 {sLen}, {sLen}, s58\ns_add_u32 s56, {sBase}, {sLen}")
    a(f"v_add_u32 v{q+1}, s56, v1\nv_lshlrev_b32 v{q+2}, 2, v{q+1}\nv_lshlrev_b32 v{q+3}, 4, v{q+1}")
    a("s_mov_b64 exec, 0xfffff")
    a(f"ds_write_b32 v{q+2}, v{q+7} offset:{L_OFF}\nds_write_b8 v{q+1}, v4 offset:{L_NODE}\nds_write_b128 v{q+3}, v[4:7] offset:{L_PAY}")
    for u in range(3):
        a(f"s_mov_b64 exec, {M(u)}\ns_waitcnt lgkmcnt({5 + u})")
        a(f"v_bfe_u32 v{ad+u}, v{ad+u}, v{CI+u}, 16\nv_add_u32 v{ad+u}, v{ad+u}, v{RK+u}")
        a(f"v_lshlrev_b32 v{RK+u}, 2, v{ad+u}\nv_lshlrev_b32 v{CI+u}, 4, v{ad+u}")
        a(f"ds_write_b32 v{RK+u}, v{KEY+2*u} offset:{L_OFF}\nds_write_b8 v{ad+u}, v{CD+u} offset:{L_NODE}")
    EP = P.get("epre", 0); PA5 = [XR + 50, XR + 51, XR + 60, XR + 61, XR + 62]
    if EP:
        P["ring"] = 8
        a("s_mov_b64 exec, -1")
        for sl in range(5):
            a(f"s_add_u32 s58, {sW}, {8*sl}\nv_cmp_eq_u32 vcc, s58, v2\ns_ff1_i32_b64 s58, vcc\ns_mul_i32 s58, s58, {4*RS}\ns_add_u32 s58, s58, {L_AGG}\nv_add_u32 v{PA5[sl]}, s58, v15")
    XE = P.get("xearly", 0); XO = P.get("xorder", 0); xaux = P.get("xaux", "")
    def xloads(wait):
        for n in range(DE):
            if wait is not None and n % 4 == 0: a(f"s_waitcnt lgkmcnt({ngr - 1 - n//4 + wait})")
            if SAFE: a(f"v_add_u32 v{TP+n}, v9, v{TP+n}")
            a(f"buffer_load_dwordx4 v[{XR+4*n}:{XR+4*n+3}], v{TP+n}, {XS}, 0 offen {xaux}")
    def addrs():
        a(f"s_lshl_b32 s56, {sBase}, 2\ns_add_u32 s56, s56, {L_OFF}\nv_mov_b32 v{vOffA}, s56")
        a(f"s_add_u32 s56, {sBase}, {L_NODE}\nv_mov_b32 v{vNodeA}, s56")
        a(f"s_lshl_b32 s56, {sBase}, 5\ns_add_u32 s56, s56, {L_A}\nv_add_u32 v{vAA}, s56, v10\nv_add_u32 v11, s56, v11")
        a(f"s_lshl_b32 s57, {sBase}, 4\ns_add_u32 s57, s57, {L_PAY}")
        a(f"v_lshl_add_u32 v{vEfA}, v12, 4, s57\nv_add_u32 v10, s57, v9")
        a(f"s_add_u32 {sG}, {sLen}, 3\ns_lshr_b32 {sG}, {sG}, 2")
    def paywait(nx):
        if P["pf"]:
            a(f"s_cmp_lt_u32 {sW}, {8-P['pf']}\ns_cselect_b32 s56, 1, {sRB}\ns_or_b32 s56, s56, {sFB}\ns_cbranch_scc0 K_PW1\ns_waitcnt vmcnt({nx})\nK_PW1:\ns_waitcnt vmcnt({nx+1})")
        else: a(f"s_waitcnt vmcnt({nx})")
        for u in range(3): a(f"s_mov_b64 exec, {M(u)}\nds_write_b128 v{CI+u}, v[{PAYR+4*u}:{PAYR+4*u+3}] offset:{L_PAY}")
        a("s_mov_b64 exec, -1")
    if XE:
        assert DE == 8
        a("s_mov_b64 exec, -1")
        addrs()
        a("s_waitcnt lgkmcnt(0)\ns_barrier")
        stamp("Bf1")
        for gg in range(ngr): a(f"ds_read_b128 v[{TP+4*gg}:{TP+4*gg+3}], v{vOffA} offset:{16*gg}")
        a(f"ds_read2_b64 v[{OFFS}:{OFFS+3}], v{vOffA} offset0:{DE//2} offset1:{DE//2+1}\nds_read_b128 v[{NODE}:{NODE+3}], v{vNodeA}")
        xloads(2)
        paywait(DE)
        a("s_waitcnt lgkmcnt(0)\ns_barrier")
        stamp("Bf")
        a(f"s_cmp_eq_u32 {sG}, 0\ns_cbranch_scc1 K2_LOOPDONE")
        a(f"ds_read_b64 v[{TA}:{TA+1}], v10\nds_read_b64 v[{EF}:{EF+1}], v{vEfA} offset:8\ns_lshl_b32 s56, {sG}, 2")
    else:
        paywait(0)
        addrs()
        a("s_waitcnt lgkmcnt(0)\ns_barrier")
        stamp("Bf")
        a(f"s_cmp_eq_u32 {sG}, 0\ns_cbranch_scc1 K2_LOOPDONE")
        for gg in range(ngr): a(f"ds_read_b128 v[{TP+4*gg}:{TP+4*gg+3}], v{vOffA} offset:{16*gg}")
        a(f"ds_read_b64 v[{TA}:{TA+1}], v10\nds_read2_b64 v[{OFFS}:{OFFS+3}], v{vOffA} offset0:{DE//2} offset1:{DE//2+1}")
        a(f"ds_read_b64 v[{EF}:{EF+1}], v{vEfA} offset:8\nds_read_b128 v[{NODE}:{NODE+3}], v{vNodeA}\ns_lshl_b32 s56, {sG}, 2")
        if XO: a(f"s_cmp_ge_u32 {sW}, 4\ns_cbranch_scc1 K_XL1")
        xloads(4)
        if XO: a("K_XL1:")
    stamp("xiss")
    if P.get("afold"): a(f"s_mov_b32 s58, {f32(-LN2)}\ns_mov_b32 s59, s58")
    a("K_APREP:")
    a(f"v_cmp_gt_u32 vcc, s56, v1")
    a("s_waitcnt lgkmcnt(0)")
    a(f"v_cndmask_b32 v{TB}, 0, v{TA}, vcc\nv_cndmask_b32 v{TB+1}, 0, v{TA+1}, vcc")
    a(f"ds_read_b64 v[{TA}:{TA+1}], v10 offset:1024\nv_add_u32 v10, 1024, v10")
    for gg in range(4):
        a(f"v_mfma_f32_16x16x16_bf16 v[{TP+16+4*gg}:{TP+19+4*gg}], v[{CGF+2*gg}:{CGF+2*gg+1}], v[{TB}:{TB+1}], 0")
    for gg in range(4):
        if P.get("afold"):
            for k in range(2): a(f"v_pk_mul_f32 v[{TP+16+4*gg+2*k}:{TP+17+4*gg+2*k}], v[{TP+16+4*gg+2*k}:{TP+17+4*gg+2*k}], s[58:59]")
        a(f"v_cvt_pk_bf16_f32 v{EE+2*gg}, v{TP+16+4*gg}, v{TP+17+4*gg}\nv_cvt_pk_bf16_f32 v{EE+2*gg+1}, v{TP+18+4*gg}, v{TP+19+4*gg}")
        a(f"ds_write_b64 v11, v[{EE+2*gg}:{EE+2*gg+1}] offset:{512*gg}")
        a(f"s_sub_u32 s56, s56, 16\ns_cmp_le_i32 s56, 0\ns_cbranch_scc1 K_APDONE")
    a("v_add_u32 v11, 2048, v11\ns_branch K_APREP")
    a("K_APDONE:")
    if XO:
        a(f"s_cmp_lt_u32 {sW}, 4\ns_cbranch_scc1 K_XL2")
        xloads(None)
        a("K_XL2:")
    a(f"s_waitcnt lgkmcnt(0)\nds_read_b64 v[{AOP}:{AOP+1}], v{vAA}")
    for x in pre_mfmas(dict(EF=EF, WF=WF), TA, 0, P): a(x)
    stamp("loop0")
    if P.get("ts"): a("s_memtime s[66:67]")
    if P.get("drain"): a(f"s_sub_u32 {sG}, {sG}, 3\ns_nop 2\ns_cbranch_scc1 K2_D0")
    else: a(f"s_sub_u32 {sG}, {sG}, 1\ns_nop 3")
    R = dict(ACC=ACC, XR=XR, TP=TP, TA=TA, TB=TB, EE=EE, WF=WF, AOP=AOP, EF=EF, OFFS=OFFS, NODE=NODE, vOffA=vOffA, vNodeA=vNodeA,
             vAA=vAA, vEfA=vEfA, sG=sG, sN=sN, vPm=vPm, vPo=vPo, vPv=vPv, XS=XS, sRot=sRot, vPt=255, RING=P.get("ring", 16))
    gen_loop(a, R, P, dict(PROG=L_PROG))
    if P.get("ts"): a("s_memtime s[68:69]")
    stamp("loop1")
    if PR.startswith("pair"):
        a(f"v_mov_b32 v{vPv}, -1\nds_write_b32 v{vPm}, v{vPv} offset:{L_PROG}\ns_setprio 0")
    a(f"s_add_u32 {sRB}, {sRB}, {CAP}\ns_cmp_ge_u32 {sRB}, {sT}\ns_cbranch_scc1 K_EPI")
    a("s_waitcnt vmcnt(0) lgkmcnt(0)\ns_barrier")
    a(f"ds_write_b128 v8, v[4:7]\nds_write_b32 v3, v4 offset:{L_PROG}")
    a(f"v_cmp_gt_u32 vcc, 128, v0\ns_and_saveexec_b64 s[56:57], vcc\nds_write_b32 v3, v4 offset:{L_CNT}\ns_mov_b64 exec, s[56:57]")
    a("s_waitcnt lgkmcnt(0)\ns_barrier")
    a(f"s_cmp_eq_u32 {sFB}, 0\ns_cbranch_scc1 K_ROUND\ns_branch K_FB")
    a("K_LATER:")
    payloads()
    a("K_LATER2:")
    for u in range(3): a(f"v_lshrrev_b32 v{ad+u}, 2, v{KEY+2*u}\nv_and_b32 v{ad+u}, 0xfc, v{ad+u}")
    a("s_branch K_BAL")
    a(f"K_FB0:\ns_mov_b32 {sT}, {E}")
    wmextract()
    a("K_FB:")
    a(f"s_mul_i32 s56, {sW}, {CAPW}\ns_add_u32 s56, s56, {sRB}")
    a(f"v_add_u32 v{f}, s56, v1\nv_add_u32 v{f+1}, 64, v{f}\nv_add_u32 v{f+2}, 128, v{f}")
    for u in range(3):
        a(f"v_cmp_gt_u32 {M(u)}, {sT}, v{f+u}\nv_min_u32 v{f+u}, {E-1}, v{f+u}\nv_lshlrev_b32 v{ad+u}, 2, v{f+u}\nv_lshlrev_b32 v{PA+u}, 3, v{f+u}")
        a(f"global_load_dword v{m+u}, v{ad+u}, s[8:9]\nglobal_load_dword v{m+4+u}, v{ad+u}, s[6:7]")
        a(f"global_load_dwordx2 v[{PAYR+4*u}:{PAYR+4*u+1}], v{PA+u}, s[10:11]\nglobal_load_dwordx2 v[{PAYR+4*u+2}:{PAYR+4*u+3}], v{PA+u}, s[12:13]")
    a(f"v_mov_b32 v14, 64\ns_waitcnt vmcnt(0)")
    for u in range(3):
        a(f"v_mul_u32_u24 v{f+u}, 214749, v{m+u}\nv_lshrrev_b32 v{f+u}, 23, v{f+u}\nv_cmp_eq_u32 vcc, {sBin}, v{f+u}\ns_and_b64 {M(u)}, {M(u)}, vcc")
        a(f"v_subrev_u32 v{KEY+2*u}, {sNs}, v{m+u}")
        keycalc2(m+4+u, KEY+2*u, f+u)
    a(f"s_cmp_lg_u32 {sRB}, 0\ns_cbranch_scc1 K_LATER2\ns_branch K_GOT")
    a("K_EPI:")
    SPLIT = P.get("split", 0)
    if SPLIT:
        L_GC = 1800
        NO = TA
        a(f"v_and_b32 v10, 7, v2\nv_bfe_u32 v11, v2, 3, 3\nv_mad_u32_u24 v10, v10, 5, v11\nv_lshlrev_b32 v10, 2, v10")
        a(f"s_lshr_b32 s59, {sW}, 2\ns_mul_i32 s60, s59, 80\nv_lshrrev_b32 v13, 4, v1\nv_lshl_add_u32 v11, v13, 2, s60")
        a("ds_permute_b32 v10, v10, v1")
        a(f"s_mov_b32 s56, {f32(-LN2)}\ns_mov_b32 s57, s56\ns_mul_i32 s58, {sW}, {20*RS}\ns_add_u32 s58, s58, {L_AGG}\nv_add_u32 v14, s58, v15")
        for k in range(0 if P.get("afold") else 4): a(f"v_pk_mul_f32 v[{ACC+2*k}:{ACC+2*k+1}], v[{ACC+2*k}:{ACC+2*k+1}], s[56:57]")
        a("s_waitcnt lgkmcnt(0)")
        for i_ in range(5): a(f"ds_bpermute_b32 v{NO+i_}, v11, v10 offset:{16*i_}")
        for sl in range(5):
            if sl:
                for k in range(0 if P.get("afold") else 4): a(f"v_pk_mul_f32 v[{ACC+8*sl+2*k}:{ACC+8*sl+2*k+1}], v[{ACC+8*sl+2*k}:{ACC+8*sl+2*k+1}], s[56:57]")
            for mm in range(4):
                a(f"v_cvt_pk_bf16_f32 v{ACC+8*sl+mm}, v{ACC+8*sl+mm}, v{ACC+8*sl+4+mm}")
                a(f"ds_write_b32 v14, v{ACC+8*sl+mm} offset:{RS*(4*sl+mm)}")
        a(f"s_lshl_b32 s61, s59, 2\nv_mov_b32 v10, s61\nv_mov_b32 v11, 1\nv_and_b32 v12, 15, v1")
        a(f"s_mul_i32 s59, s59, {80*RS}\ns_add_u32 s59, s59, {L_AGG}")
        a(f"v_mul_u32_u24 v14, {RS}, v12\nv_lshl_add_u32 v14, v13, 4, v14\nv_add_u32 v14, s59, v14")
        a(f"s_lshl_b32 s58, {sNs}, 10\ns_and_b32 s59, {sW}, 3\ns_lshl_b32 s59, s59, 8\ns_add_u32 s58, s58, s59\nv_lshlrev_b32 v12, 4, v12")
        a(f"s_waitcnt lgkmcnt(0)\ns_mov_b64 exec, 1\nds_add_u32 v10, v11 offset:{L_GC}\ns_mov_b64 exec, -1")
        for i_ in range(5): a(f"v_lshl_add_u32 v{NO+i_}, v{NO+i_}, 10, v12")
        a(f"K_GW:\nds_read_b32 v11, v10 offset:{L_GC}\ns_waitcnt lgkmcnt(0)\nv_readfirstlane_b32 s59, v11\ns_cmp_ge_u32 s59, 4\ns_cbranch_scc1 K_GW1\ns_sleep 1\ns_branch K_GW\nK_GW1:")
        a("s_waitcnt vmcnt(0)")
        stamp("Bg")
    else:
        a(f"s_mov_b32 s56, {f32(-LN2)}\ns_mov_b32 s57, s56")
        for sl in range(5):
            if not EP: a(f"s_add_u32 s58, {sW}, {8*sl}\nv_cmp_eq_u32 vcc, s58, v2")
            for k in range(0 if P.get("afold") else 4): a(f"v_pk_mul_f32 v[{ACC+8*sl+2*k}:{ACC+8*sl+2*k+1}], v[{ACC+8*sl+2*k}:{ACC+8*sl+2*k+1}], s[56:57]")
            if not EP: a(f"s_ff1_i32_b64 s58, vcc\ns_mul_i32 s58, s58, {4*RS}\ns_add_u32 s58, s58, {L_AGG}\nv_add_u32 v{10 + sl%2}, s58, v15")
            for mm in range(4):
                a(f"v_cvt_pk_bf16_f32 v{ACC+8*sl+mm}, v{ACC+8*sl+mm}, v{ACC+8*sl+4+mm}")
                a(f"ds_write_b32 v{PA5[sl] if EP else 10 + sl%2}, v{ACC+8*sl+mm} offset:{RS*mm}")
        a(f"v_and_b32 v12, 15, v1\nv_lshrrev_b32 v13, 4, v1")
        a(f"s_lshr_b32 s58, {sW}, 2\ns_mul_i32 s59, s58, {16*RS}\ns_add_u32 s59, s59, {L_AGG}")
        a(f"v_mul_u32_u24 v14, {RS}, v12\nv_lshl_add_u32 v14, v13, 4, v14\nv_add_u32 v14, s59, v14")
        a(f"s_lshl_b32 s58, s58, 2\ns_add_u32 s58, s58, {sNs}\ns_lshl_b32 s58, s58, 10\ns_and_b32 s59, {sW}, 3\ns_lshl_b32 s59, s59, 8\ns_add_u32 s58, s58, s59")
        a(f"v_lshlrev_b32 v13, 10, v13\nv_lshl_add_u32 v13, v12, 4, v13")
        a("s_waitcnt vmcnt(0) lgkmcnt(0)\ns_barrier")
        stamp("Bg")
    TS_ = 16 * RS if SPLIT else 32 * RS
    FA = XR
    for i in range(4):
        for ks in range(4): a(f"ds_read_b128 v[{FA+16*i+4*ks}:{FA+16*i+4*ks+3}], v14 offset:{TS_*i + 64*ks}")
    ost = P["out_aux"]
    def outtile(i):
        Dp = TP + 8 * (i % 2); Op = TP + 16 + 4 * (i % 2)
        for k in range(4): a(f"v_cvt_pk_bf16_f32 v{Op+k}, v{Dp+2*k}, v{Dp+2*k+1}")
        a(f"buffer_store_dwordx4 v[{Op}:{Op+3}], v{TA+i if SPLIT else 13}, {OS}, s58 offen {ost}")
        if i < 4 and not SPLIT: a("s_add_u32 s58, s58, 8192")
    for i in range(5):
        Dd = TP + 8 * (i % 2); fi = FA + 16 * (i % 4)
        for ks in range(4):
            if i < 4: a(f"s_waitcnt lgkmcnt({min(15, 15 - 4*i - ks + (4 if i >= 1 else 0))})")
            else: a(f"s_waitcnt lgkmcnt({3 - ks})")
            for tt in range(2):
                b = BF + 16*tt + 4*ks
                a(f"v_mfma_f32_16x16x32_bf16 v[{Dd+4*tt}:{Dd+4*tt+3}], v[{fi+4*ks}:{fi+4*ks+3}], v[{b}:{b+3}], " + ("0" if ks == 0 else f"v[{Dd+4*tt}:{Dd+4*tt+3}]"))
        if i == 0:
            for ks in range(4): a(f"ds_read_b128 v[{FA+4*ks}:{FA+4*ks+3}], v14 offset:{TS_*4 + 64*ks}")
        if i >= 1: outtile(i - 1)
    outtile(4)
    a(f"s_or_b32 s56, {sFB}, {sW}")
    if P.get("epo") == "none": a("s_mov_b32 s56, 1")
    if P.get("epo") == "wg0": a("s_or_b32 s56, s56, s2")
    a("s_cmp_lg_u32 s56, 0\ns_cbranch_scc1 K_NOEPO")
    a(f"v_mov_b32 v10, {sTag}\ns_mov_b64 exec, 1\nbuffer_store_dword v10, v4, {WSR}, 0 offen offset:{WS_EPO} {P.get('epo_aux', '')}\nK_NOEPO:")
    if P.get("ts"):
        a("s_waitcnt vmcnt(0)"); stamp("end")
        a("s_waitcnt lgkmcnt(0)")
        a(f"s_lshl_b32 s98, s2, 3\ns_add_u32 s98, s98, s3\ns_lshl_b32 s98, s98, 6\ns_add_u32 s98, s98, {WS_TS}")
        a("s_mov_b64 exec, 1\nv_mov_b32 v2, s98")
        for i in range(tsn[0]): a(f"v_mov_b32 v3, s{70 + 2*i}\nglobal_store_dword v2, v3, s[24:25] offset:{4*i}")
        a(f"s_sub_u32 s68, s68, s66\nv_mov_b32 v3, s68\nglobal_store_dword v2, v3, s[24:25] offset:56\nv_mov_b32 v3, {sLen}\nglobal_store_dword v2, v3, s[24:25] offset:60")
        assert tsn[0] <= 14
    a("K_END:\ns_endpgm")
    a(".p2align 6\n.type K_TAB,@object\nK_TAB:")
    for A in (A39, A40):
        used = [0]*8; codes = []
        for ww in A: codes.append(ww | used[ww] << 3); used[ww] += 1
        assert used == [5]*8
        a(".byte " + ", ".join(str(cc) for cc in codes + [255]*24))
    body = a.text(verbose=verbose)
    ns = 100 if P.get("ts") else 72
    gen.nts = tsn[0]
    return (HEADER + f"; @launch grid=({NB},1,1) block=(512,1,1) lds={L_END}\n" + '.amdgcn_target "amdgcn-amd-amdhsa--gfx950"\n.text\n' + body
            + '.section .rodata,"a"\n' + desc(NAME, 256, ns))

if __name__ == "__main__":
    P = eval(sys.argv[2]) if len(sys.argv) > 2 else {}
    open(sys.argv[1], "w").write(gen(P, verbose=True))
```

```python
import sys
from asmlib import Asm
from loopgen import gen_loop, pre_mfmas
from gen import HEADER as _H, scan_incl, f32, LOG2E, LN2, desc

N, E = 10000, 320000
NB, NP, CH = 256, 250, 1280
WS_EPO, WS_TAB, WS_KEY, WS_PAY, WS_FLG, WS_END = 0, 0x2000, 0x82000, 0x300000, 0x7F0000, 0x800000
WS_TS = 0x8000000
FS = 128
NAME = "gather_scatter__tensor_product_equiv_tfn__graph_kernel"
HEADER = _H[:_H.index("; Launch 1")] + """; One launch, 256 workgroups (one per CU).
; Phase 1: 250 workgroups each bin a chunk of 1280 edges by destination block (256 bins) and publish it in d_ws with
;          write-through stores: table row and keys as 8-byte pieces carrying this launch's tag, Y/edge_feat behind a flag.
;          (tag = epoch word of d_ws + 1; workgroups that saw all 256 rows store the tag back as the next epoch.)
; Phase 2: every workgroup collects its own bin, sorts it by (owner wave, source bucket), gathers x rows, does the
;          tensor product + radial gate in registers, mixes the channels and stores.
; If the hand-off never arrives (workgroups not co-resident) a workgroup scans the raw edge list on its own.
"""
A39 = [6, 5, 6, 7, 4, 2, 0, 1, 3, 4, 6, 3, 2, 0, 6, 1, 3, 5, 7, 1, 0, 5, 7, 4, 2, 1, 5, 4, 7, 3, 2, 0, 2, 0, 7, 1, 3, 4, 5, 6]
A40 = [3, 2, 4, 7, 0, 1, 6, 0, 5, 1, 7, 5, 6, 3, 4, 6, 5, 0, 2, 7, 1, 4, 6, 3, 2, 1, 3, 0, 5, 4, 2, 7, 2, 5, 4, 7, 1, 6, 0, 3]
DPP = ["row_shr:1 row_mask:0xf bank_mask:0xf", "row_shr:2 row_mask:0xf bank_mask:0xf", "row_shr:4 row_mask:0xf bank_mask:0xf",
       "row_shr:8 row_mask:0xf bank_mask:0xf", "row_bcast:15 row_mask:0xa bank_mask:0xf", "row_bcast:31 row_mask:0xc bank_mask:0xf"]

def gen(P=None, verbose=False):
    P = dict(dict(prio="pair2", sched="b", subcc=1, out_aux="sc1", pf=3, pfx=2, drain=1, nolo=1, epre=1, aswz=1, earlyA=1), **(P or {}))
    a = Asm()
    FS = P.get("FS", 128)
    DE = P.setdefault("DE", 8); ngr = (DE + 3) // 4; SAFE = P.get("safe"); PR = P["prio"]
    CAPW = 192; CAP = 8 * CAPW; NE = CAP + 8 * 48 + 16
    L_CNT, L_DEG, L_HCNT, L_FB, L_PROG, L_OFF = 0, 512, 768, 1792, 2048, 4096
    L_NODE = L_OFF + NE * 4
    L_PAY = (L_NODE + NE + 63) // 64 * 64
    L_A = L_PAY + NE * 16
    L_AGG = (L_A + NE * 32 + 255) // 256 * 256
    RS = 288
    L_END = L_AGG + 160 * RS
    L_MARK = L_AGG; L_WM = L_AGG + 8192; L_WR = L_WM + 32768; L_CG = L_WR + 1024; L_MAP = L_CG + 128
    L_PRE = L_OFF; L_TABL = L_OFF + 1024; L_SKEY = L_PAY; L_SPAY = L_A
    assert L_SPAY + 16384 < 65536 and L_MAP + 128 <= L_END
    ACC, XR, TP, TA, TB, EE, WF, AOP, EF, OFFS, NODE = 16, 56, 120, 152, 160, 168, 176, 184, 186, 188, 192
    vOffA, vNodeA, vAA, vEfA = 196, 197, 198, 199
    BF, CGF, PP, PL, PD = 200, 232, 240, 244, 248
    vPm, vPo, vPv = 252, 253, 254
    sW, sT, sRB, sG, sN, sBase, sLen, sTag, sBin, sNs, sFB = "s3", "s46", "s47", "s48", "s49", "s50", "s51", "s52", "s53", "s54", "s55"
    sRole, sT8, sRot = "s40", "s26", "s27"
    XS, OS, WSR = "s[28:31]", "s[32:35]", "s[36:39]"
    M = lambda u: f"s[{40+2*u}:{41+2*u}]"
    tsn = [0]; gen.names = []
    DEFST = ["start", "Bb", "Bc1", "Bc", "Bx", "keys", "pollP", "Bd", "Be", "Bf", "loop0", "loop1", "Bg", "end"]
    def stamp(name):
        if P.get("hold_at") == name:
            a(f"s_waitcnt lgkmcnt(0)\ns_add_u32 s70, s70, {P['hold_x']}\nK_HOLDP:\ns_memrealtime s[68:69]\ns_waitcnt lgkmcnt(0)\ns_sub_u32 s68, s68, s70\ns_cmp_lt_i32 s68, 0\ns_cbranch_scc1 K_HOLDP")
        if P.get("ts") and name in P.get("stamps", DEFST):
            gen.names.append(name)
            r = 70 + 2 * tsn[0]; a(f"s_memrealtime s[{r}:{r+1}]"); tsn[0] += 1

    a(f".globl {NAME}\n.p2align 8\n.type {NAME},@function\n{NAME}:")
    a(f"s_cmp_ge_u32 s2, {NB}\ns_cbranch_scc1 K_END")
    a("s_load_dwordx16 s[4:19], s[0:1], 0\ns_load_dwordx2 s[20:21], s[0:1], 64\ns_load_dwordx2 s[24:25], s[0:1], 80")
    stamp("start")
    if P.get("hold_at"): a("s_memrealtime s[70:71]")
    D, S, Y, F, B4, RK1 = TP, TP + 4, TP + 8, TP + 16, TP + 24, TP + 28
    KY, t, tmp, KG = XR, XR + 4, XR + 8, XR + 10
    la = P.get("load_aux", "")
    a("v_lshrrev_b32 v2, 6, v0\nv_and_b32 v1, 63, v0\nv_readfirstlane_b32 s3, v2")
    a(f"v_lshlrev_b32 v10, 4, v0\ns_mul_i32 s57, s2, {CH*4}\nv_lshlrev_b32 v3, 2, v0")
    if P.get("pfcode0", 1):
        a(f"s_cmp_lg_u32 s3, 5\ns_cbranch_scc1 K_PF0\ns_getpc_b64 s[26:27]\nK_PC3:\nv_lshlrev_b32 v13, 7, v1\nglobal_load_dword v255, v13, s[26:27]")
        a(f"v_add_u32 v13, 8192, v13\nv_min_u32 v13, K_TAB-K_PC3, v13\nglobal_load_dword v255, v13, s[26:27]\nK_PF0:")
    a("v_or_b32 v13, 0x4b000000, v1\ns_cmp_eq_u32 s3, 2\ns_cselect_b32 s56, -1, 0")
    a("v_add_u32 v11, s57, v10\nv_and_b32 v13, s56, v13\nv_lshlrev_b32 v12, 1, v11")
    a("ds_write_b32 v3, v13")
    a(f"s_cmp_lt_u32 s2, {NP}\ns_cselect_b32 s56, 5, 0\ns_cmp_lt_u32 {sW}, s56")
    stamp("prek")
    TL = P.get("tlb", 0)
    if TL:
        a(f"s_cselect_b32 {sRole}, 1, 0\ns_lshr_b32 s58, s2, 3\ns_cmp_lt_u32 s58, 11\ns_cbranch_scc0 K_NOTLB")
        a(f"s_cmp_lg_u32 {sW}, 6\ns_cbranch_scc1 K_TLB1\ns_lshl_b32 s59, s58, 3\ns_load_dwordx2 s[64:65], s[0:1], s59")
        a("s_mov_b32 s66, 128\ns_mov_b32 s67, 0x20000")
        for idx, size in ((0, 10240000), (1, 1280000), (2, 1280000), (3, 2560000), (4, 2560000), (7, 32768), (8, 10240000), (10, WS_END)):
            a(f"s_cmp_eq_u32 s58, {idx}\ns_cselect_b32 s66, {size}, s66")
        a("s_lshr_b32 s59, s66, 6\ns_and_b32 s59, s59, -4\nv_mul_lo_u32 v14, s59, v1\ns_waitcnt lgkmcnt(0)\nbuffer_load_dword v255, v14, s[64:67], 0 offen")
        a("K_TLB1:")
        if TL == 2: a("s_barrier")
        a(f"K_NOTLB:\ns_cmp_lg_u32 {sRole}, 0")
    a("s_waitcnt lgkmcnt(0)")
    stamp("karg")
    def setup0():
        if P.get("wsoff"): a(f"s_add_u32 s24, s24, {P['wsoff']}\ns_addc_u32 s25, s25, 0")
        a(f"s_load_dword {sTag}, s[24:25], {WS_EPO}")
        for k in range(4, 8): a(f"v_mov_b32 v{k}, 0")
        a(f"v_add_u32 v8, {L_MARK}, v10\nv_lshlrev_b32 v9, 4, v1\nv_lshlrev_b32 v15, 2, v1")
        a(f"ds_write_b128 v8, v[4:7]\nds_write_b32 v3, v4 offset:{L_PROG}")
        a(f"s_and_b32 {sBin}, s2, 7\ns_lshr_b32 s56, s2, 3\ns_lshl_b32 {sBin}, {sBin}, 5\ns_or_b32 {sBin}, {sBin}, s56")
    def setup():
        a(f"s_mul_i32 {sNs}, {sBin}, 625\ns_add_u32 s57, {sNs}, 640\ns_add_u32 {sNs}, {sNs}, 15\ns_lshr_b32 {sNs}, {sNs}, 4\ns_lshr_b32 s57, s57, 4")
        if SAFE: a("s_mov_b32 s28, s4\ns_mov_b32 s29, s5\ns_mov_b32 s30, 10240000\ns_mov_b32 s31, 0x20000")
        else: a("s_mov_b32 s28, s4\ns_and_b32 s29, s5, 0xffff\ns_or_b32 s29, s29, 0x100000\ns_mov_b32 s30, 10240000\ns_mov_b32 s31, 0x800000")
        a("s_mov_b32 s32, s20\ns_mov_b32 s33, s21\ns_lshl_b32 s34, s57, 10\ns_mov_b32 s35, 0x20000")
        a(f"s_mov_b32 s36, s24\ns_mov_b32 s37, s25\ns_mov_b32 s38, {WS_END}\ns_mov_b32 s39, 0x20000")
        a(f"s_mov_b32 {sRB}, 0\ns_mov_b32 s63, 0\nv_mov_b32 v14, 1")
        a(f"s_lshr_b32 {sRot}, {sBin}, 5\ns_mul_i32 {sRot}, {sRot}, 20009\ns_add_u32 {sRot}, {sRot}, 14\ns_lshr_b32 {sRot}, {sRot}, 4\ns_lshl_b32 {sRot}, {sRot}, 10")
        for k in range(40): a(f"v_mov_b32 v{ACC+k}, 0")
    def keycalc(Dr, Br, Kr, tm):
        a(f"v_mul_u32_u24 v{tm}, 625, v{Br}\nv_add_u32 v{tm}, 15, v{tm}\nv_lshrrev_b32 v{tm}, 4, v{tm}\nv_sub_u32 v{Kr}, v{Dr}, v{tm}")
    def keycalc2(Sr, Kr, tm):
        a(f"v_mul_u32_u24 v{tm}, 1677, v{Sr}\nv_lshrrev_b32 v{tm}, 20, v{tm}\nv_lshl_or_b32 v{Kr}, v{Kr}, 4, v{tm}\nv_lshl_or_b32 v{Kr}, v{Sr}, 10, v{Kr}")
    a("s_cbranch_scc0 K_BA")
    a(f"global_load_dwordx4 v[{D}:{D+3}], v11, s[8:9] {la}")
    if P.get("sfirst", 1): a(f"global_load_dwordx4 v[{S}:{S+3}], v11, s[6:7] {la}")
    a("K_BA:\ns_barrier\ns_cbranch_scc0 K_HELP")
    if not P.get("sfirst", 1): a(f"global_load_dwordx4 v[{S}:{S+3}], v11, s[6:7] {la}")
    for i in range(P.get("ydelay", 0)): a("s_nop 15")
    for h in range(2): a(f"global_load_dwordx4 v[{Y+4*h}:{Y+4*h+3}], v12, s[10:11] offset:{16*h} {la}")
    for h in range(2): a(f"global_load_dwordx4 v[{F+4*h}:{F+4*h+3}], v12, s[12:13] offset:{16*h} {la}")
    stamp("ldiss")
    a(f"s_mov_b32 {sRole}, 1")
    setup0(); setup()
    stamp("setup")
    a("s_waitcnt vmcnt(5)")
    stamp("dst")
    for u in range(4):
        a(f"v_mul_u32_u24 v{t+u}, 214749, v{D+u}\nv_lshrrev_b32 v{t+u}, 23, v{t+u}\nv_lshlrev_b32 v{B4+u}, 2, v{t+u}")
        a(f"ds_add_rtn_u32 v{RK1+u}, v{B4+u}, v14 offset:{L_HCNT}")
    for u in range(4): keycalc(D+u, t+u, KY+u, tmp)
    a("s_branch K_BB")
    a(f"K_HELP:\ns_mov_b32 {sRole}, 0")
    setup0()
    if P.get("pfcode"):
        a(f"s_cmp_lg_u32 {sW}, 5\ns_cbranch_scc1 K_HELP1\ns_getpc_b64 s[26:27]\nK_PC2:\nv_lshlrev_b32 v13, 7, v1\nglobal_load_dword v255, v13, s[26:27]")
        a(f"v_add_u32 v13, 8192, v13\nv_min_u32 v13, K_TAB-K_PC2, v13\nglobal_load_dword v255, v13, s[26:27]\nK_HELP1:")
    a(f"s_cmp_eq_u32 {sW}, 7\ns_cbranch_scc1 K_HELP7\ns_cmp_lg_u32 {sW}, 6\ns_cbranch_scc1 K_HELP2")
    a(f"s_and_b32 s56, {sBin}, 31\ns_lshl_b32 s56, s56, 10\nv_lshl_add_u32 v13, v1, 7, s56\ns_mov_b64 exec, 0xff")
    a("global_load_dword v255, v13, s[18:19]\ns_mov_b64 exec, -1\ns_branch K_HELP2\nK_HELP7:")
    a(f"s_mov_b32 m0, {L_WR}\ns_getpc_b64 s[26:27]\nK_PC:\nglobal_load_lds_dwordx4 v9, s[14:15]")
    a(f"s_add_u32 s26, s26, K_TAB-K_PC\ns_addc_u32 s27, s27, 0\ns_mov_b32 m0, {L_CG}\ns_mov_b64 exec, 0xff\nglobal_load_lds_dwordx4 v9, s[16:17]")
    a(f"s_mov_b32 m0, {L_MAP}\ns_nop 0\nglobal_load_lds_dwordx4 v9, s[26:27]\ns_mov_b64 exec, -1")
    a("K_HELP2:")
    setup()
    a("K_BB:\ns_waitcnt lgkmcnt(0)\ns_barrier")
    stamp("Bb")
    c = TA; q = TB
    a(f"s_add_u32 {sTag}, {sTag}, 1\ns_and_b32 s56, {sTag}, 0x3ff\ns_lshl_b32 s58, s56, 22\ns_lshl_b32 {sT8}, {sTag}, 24")
    a(f"s_cmp_eq_u32 {sW}, 7\ns_cselect_b32 s56, 1, {sRole}\ns_cmp_eq_u32 s56, 0\ns_cbranch_scc1 K_BC1")
    a(f"ds_read_b128 v[{c}:{c+3}], v9 offset:{L_HCNT}")
    a(f"s_cmp_eq_u32 {sW}, 7\ns_cbranch_scc1 K_SC\ns_waitcnt vmcnt(4)")
    for u in range(4): keycalc2(S+u, KY+u, t+u)
    a("K_SC:\ns_waitcnt lgkmcnt(0)")
    a(f"v_add_u32 v{c+4}, v{c}, v{c+1}\nv_add_u32 v{c+5}, v{c+4}, v{c+2}\nv_add_u32 v{c+6}, v{c+5}, v{c+3}\nv_mov_b32 v{q}, v{c+6}")
    fill = [x for u in range(4) for x in (f"v_or_b32 v{KG+2*u}, {sT8}, v{KY+u}", f"v_mov_b32 v{KG+2*u+1}, {sTag}")]
    for k in range(6):
        for x in fill[2*k:2*k+2]: a(x)
        a(f"v_add_u32_dpp v{q}, v{q}, v{q} {DPP[k]}")
    a(f"v_sub_u32 v{q}, v{q}, v{c+6}\nv_add_u32 v{q+1}, v{q}, v{c}\nv_add_u32 v{q+2}, v{q}, v{c+4}\nv_add_u32 v{q+3}, v{q}, v{c+5}")
    a(f"s_cmp_lg_u32 {sW}, 7\ns_cbranch_scc1 K_NOROW")
    g = EE
    for i in range(4):
        a(f"v_lshl_or_b32 v{g+2*i}, v{c+i}, 11, v{q+i}\nv_or_b32 v{g+2*i}, s58, v{g+2*i}\nv_mov_b32 v{g+2*i+1}, {sTag}")
    a(f"s_lshl_b32 s57, s2, 11\ns_add_u32 s57, s57, {WS_TAB}\nv_lshlrev_b32 v12, 5, v1")
    a(f"buffer_store_dwordx4 v[{g}:{g+3}], v12, {WSR}, s57 offen sc1\nbuffer_store_dwordx4 v[{g+4}:{g+7}], v12, {WSR}, s57 offen offset:16 sc1")
    a("s_branch K_BC1\nK_NOROW:")
    a(f"ds_write_b128 v9, v[{q}:{q+3}] offset:{L_PRE}")
    for u in range(4): a(f"ds_read_b32 v{t+u}, v{B4+u} offset:{L_PRE}")
    for u in range(4):
        a(f"s_waitcnt lgkmcnt(3)\nv_add_lshl_u32 v{B4+u}, v{t+u}, v{RK1+u}, 3")
        a(f"ds_write_b64 v{B4+u}, v[{KG+2*u}:{KG+2*u+1}] offset:{L_SKEY}")
    a(f"s_mov_b32 s56, {L_SPAY}")
    for u in range(4): a(f"v_lshl_add_u32 v{B4+u}, v{B4+u}, 1, s56")
    a("K_BC1:")
    a(f"s_mul_i32 s60, s2, {CH*8}\ns_add_u32 s60, s60, {WS_KEY}")
    a(f"s_sub_u32 s56, {sW}, 5\ns_lshl_b32 s57, s56, 14\nv_add_u32 v13, s57, v9\ns_add_u32 s57, s57, {L_WM}")
    a("s_waitcnt lgkmcnt(0)\ns_barrier")
    stamp("Bc1")
    o = XR + 20
    a(f"s_cmp_ge_u32 s2, {NP}\ns_cbranch_scc1 K_KS2")
    a(f"ds_read_b128 v[{o}:{o+3}], v10 offset:{L_SKEY}")
    a(f"s_cmp_lt_u32 s56, 2\ns_cbranch_scc0 K_KS1")
    a(f"ds_read_b128 v[{o+4}:{o+7}], v10 offset:{L_SKEY + 8192 - 5120}\ns_add_u32 s59, s60, {8192 - 5120}")
    a(f"s_waitcnt lgkmcnt(0)\nbuffer_store_dwordx4 v[{o+4}:{o+7}], v10, {WSR}, s59 offen sc1")
    a(f"K_KS1:\ns_waitcnt lgkmcnt(0)\nbuffer_store_dwordx4 v[{o}:{o+3}], v10, {WSR}, s60 offen sc1")
    a(f"K_KS2:\ns_cmp_lt_u32 s56, 2\ns_cbranch_scc1 K_DMA\ns_cmp_eq_u32 {sRole}, 0\ns_cbranch_scc1 K_BC7")
    if P.get("ts") and "y0" in P.get("stamps", []):
        a("s_waitcnt vmcnt(4)"); stamp("y0"); a("s_waitcnt vmcnt(3)"); stamp("y1"); a("s_waitcnt vmcnt(2)"); stamp("f0"); a("s_waitcnt vmcnt(1)"); stamp("f1")
    for h in range(2):
        a(f"s_waitcnt vmcnt({2 - h})")
        for u in (2*h, 2*h+1): a(f"ds_write2_b64 v{B4+u}, v[{Y+2*u}:{Y+2*u+1}], v[{F+2*u}:{F+2*u+1}] offset0:0 offset1:1")
    a("s_branch K_BC\nK_DMA:")
    for gidx in range(4):
        a("s_mov_b32 m0, s57\ns_add_u32 s57, s57, 4096")
        for i in range(4): a(f"global_load_lds_dwordx4 v13, s[18:19] offset:{i*1024}")
        if gidx < 3: a("v_add_u32 v13, 4096, v13")
    a(f"s_branch K_BC\nK_BC7:\ns_cmp_ge_u32 s2, {NP}\ns_cbranch_scc0 K_BC8\ns_waitcnt vmcnt(2)\nK_BC8:\ns_waitcnt vmcnt(3)")
    SM = [P.get("sm2", 0), P.get("sm0", 0), P.get("sm3", 0)]
    smw = [8, 8, 4]
    smb = [n_ * 256 * 32 * w_ for n_, w_ in zip(SM, smw)]
    def sfetch(k, first):
        n = SM[k]
        if not n: return
        lim = 10240000 - n * 256 - 128
        if smw[k] == 4: a(f"s_cmp_lt_u32 {sW}, 4\ns_cbranch_scc1 K_NOSM{k}")
        a(f"s_and_b32 s68, {sBin}, 31\ns_mul_i32 s68, s68, {smw[k]}\ns_and_b32 s69, {sW}, {smw[k]-1}\ns_add_u32 s68, s68, s69\ns_mul_i32 s68, s68, {n*256}\ns_add_u32 s68, s68, {sRot}\ns_add_u32 s68, s68, {first}")
        a(f"s_cmp_ge_u32 s68, {lim}\ns_cselect_b32 s69, {lim}, 0\ns_sub_u32 s68, s68, s69\ns_add_u32 s22, s4, s68\ns_addc_u32 s23, s5, 0")
        for i in range(n): a(f"s_load_dwordx2 s[0:1], s[22:23], {i*256 + 124}")
        a(f"K_NOSM{k}:")
    def pfetch(lab, n=None, first=None, extra=0):
        n = n or P["pf"]
        first = P.get("pfc", 0) + P.get("pfd", 0) + P.get("pfx", 0) + P.get("pfk", 0) if first is None else first
        a(f"s_cmp_lt_u32 {sW}, {8-n}\ns_cbranch_scc1 {lab}")
        a("s_mov_b32 s64, s4\ns_mov_b32 s65, s5\ns_mov_b32 s66, 10240000\ns_mov_b32 s67, 0x20000")
        a(f"s_sub_u32 s68, {7 + first}, {sW}\ns_lshl_b32 s68, s68, 5\ns_and_b32 s69, {sBin}, 31\ns_add_u32 s68, s68, s69\ns_lshl_b32 s68, s68, 13\ns_add_u32 s68, s68, {sRot}")
        if extra: a(f"s_add_u32 s68, s68, {extra}")
        a(f"v_lshlrev_b32 v12, 7, v1\nbuffer_load_dword v255, v12, s[64:67], s68 offen")
    a("K_BC:")
    if P.get("pfc"):
        pfetch("K_NOPFC", P["pfc"], 0); a("K_NOPFC:")
    a(f"s_mul_i32 s56, s2, {CH*16}\ns_add_u32 s56, s56, {WS_PAY}\ns_add_u32 s57, s56, 8192\ns_add_u32 s59, s56, 16384")
    a(f"v_lshlrev_b32 v11, 11, v0\ns_lshl_b32 s61, {sBin}, 3\ns_add_u32 s61, s61, {WS_TAB}")
    a("s_waitcnt lgkmcnt(0)\ns_barrier")
    stamp("Bc")
    o = XR
    a(f"s_cmp_ge_u32 s2, {NP}\ns_cbranch_scc1 K_NOST")
    for u in range(3): a(f"ds_read_b128 v[{o+4*u}:{o+4*u+3}], v10 offset:{L_SPAY + 8192*u}")
    a(f"s_waitcnt lgkmcnt(2)\nbuffer_store_dwordx4 v[{o}:{o+3}], v10, {WSR}, s56 offen sc1")
    a(f"s_waitcnt lgkmcnt(1)\nbuffer_store_dwordx4 v[{o+4}:{o+7}], v10, {WSR}, s57 offen sc1")
    a(f"s_cmp_ge_u32 {sW}, 4\ns_cbranch_scc1 K_NOST")
    a(f"s_waitcnt lgkmcnt(0)\nbuffer_store_dwordx4 v[{o+8}:{o+11}], v10, {WSR}, s59 offen sc1")
    a("K_NOST:")
    if P.get("earlyA"): a(f"s_cmp_ge_u32 {sW}, 4\ns_cbranch_scc1 K_NOA0\nbuffer_load_dwordx2 v[{TA}:{TA+1}], v11, {WSR}, s61 offen sc1\nK_NOA0:")
    if P.get("pfd"):
        pfetch("K_NOPFD", P["pfd"], P.get("pfc", 0)); a("K_NOPFD:")
    RW, RC, RM = OFFS, NODE, TP
    a(f"s_lshr_b32 s56, s34, 10\ns_sub_u32 s56, s56, {sNs}\ns_sub_u32 s56, s56, 39\ns_lshl_b32 s56, s56, 6\ns_add_u32 s56, s56, {L_MAP}")
    a(f"v_add_u32 v2, s56, v1\nv_add_u32 v13, {L_WR}, v15\nds_read_u8 v2, v2")
    a(f"ds_read2st64_b32 v[{RW}:{RW+1}], v13 offset0:0 offset1:1\nds_read2st64_b32 v[{RW+2}:{RW+3}], v13 offset0:2 offset1:3")
    a(f"v_and_b32 v12, 3, v1\nv_lshlrev_b32 v12, 5, v12\nv_bfe_u32 v13, v1, 2, 2\nv_lshl_or_b32 v12, v13, 1, v12\nv_add_u32 v12, {L_CG}, v12")
    for f_ in range(4): a(f"ds_read_u16 v{RC+f_}, v12 offset:{f_*8}")
    a(f"v_mov_b32 v{vPm}, v3\nv_xor_b32 v{vPo}, 1024, v3\nv_mul_u32_u24 v{AOP+1}, {FS}, v0")
    a(f"s_mov_b32 s56, {f32(-LOG2E)}\ns_waitcnt lgkmcnt(0)")
    sfetch(0, 0)
    w = TP + 16
    for h in range(2):
        for k in range(4):
            a(f"v_lshlrev_b32 v{w+k}, 16, v{RW+k}" if h == 0 else f"v_and_b32 v{w+k}, 0xffff0000, v{RW+k}")
            a(f"v_mul_f32 v{w+4+k}, s56, v{w+k}")
        oo = WF + 4*h
        a(f"v_cvt_pk_bf16_f32 v{oo}, v{w+4}, v{w+5}\nv_cvt_pk_bf16_f32 v{oo+1}, v{w+6}, v{w+7}")
        if not P.get("nolo"):
            for k in range(4):
                a(f"v_lshlrev_b32 v{w+4+k}, 16, v{oo + k//2}" if k % 2 == 0 else f"v_and_b32 v{w+4+k}, 0xffff0000, v{oo + k//2}")
                a(f"v_fma_f32 v{w+4+k}, s56, v{w+k}, -v{w+4+k}")
            a(f"v_cvt_pk_bf16_f32 v{oo+2}, v{w+4}, v{w+5}\nv_cvt_pk_bf16_f32 v{oo+3}, v{w+6}, v{w+7}")
    a(f"v_lshl_or_b32 v{w}, v{RC+1}, 16, v{RC}\nv_lshl_or_b32 v{w+1}, v{RC+3}, 16, v{RC+2}\nv_lshrrev_b32 v13, 4, v1")
    for gg in range(4):
        a(f"v_cmp_eq_u32 vcc, {gg}, v13")
        a(f"v_cndmask_b32 v{CGF+2*gg}, 0, v{w}, vcc\nv_cndmask_b32 v{CGF+2*gg+1}, 0, v{w+1}, vcc")
    a(f"v_mul_u32_u24 v13, {4*CH}, v1")
    def wmextract():
        a(f"s_and_b32 s56, {sW}, 3\ns_lshl_b32 s56, s56, 6\ns_add_u32 s56, s56, {L_WM}")
        a("v_lshrrev_b32 v10, 4, v1\nv_lshlrev_b32 v10, 11, v10\nv_and_b32 v12, 15, v1\nv_lshl_or_b32 v10, v12, 2, v10\nv_add_u32 v10, s56, v10")
        a("s_mov_b32 s56, 0x05040100\ns_mov_b32 s57, 0x07060302")
        for ks in range(4):
            for i in range(4): a(f"ds_read2st64_b32 v[{RM+8*ks+2*i}:{RM+8*ks+2*i+1}], v10 offset0:{32*ks+2*i} offset1:{32*ks+2*i+1}")
        for ks in range(4):
            for i in range(4):
                a(f"s_waitcnt lgkmcnt({15 - 4*ks - i})")
                a(f"v_perm_b32 v{BF+4*ks+i}, v{RM+8*ks+2*i+1}, v{RM+8*ks+2*i}, s56")
                a(f"v_perm_b32 v{BF+16+4*ks+i}, v{RM+8*ks+2*i+1}, v{RM+8*ks+2*i}, s57")
    a(f"s_cmp_ge_u32 {sW}, 4\ns_cbranch_scc1 K_TABOK")
    a(f"s_mov_b32 s59, {P.get('timeout', 40000)}\ns_lshr_b32 s58, s58, 22")
    if P.get("earlyA"): a("s_branch K_POLLA1")
    a(f"K_POLLA:\nbuffer_load_dwordx2 v[{TA}:{TA+1}], v11, {WSR}, s61 offen sc1\nK_POLLA1:\ns_waitcnt vmcnt(0)")
    a(f"v_lshrrev_b32 v{TA+2}, 22, v{TA}\nv_cmp_ne_u32 vcc, {sTag}, v{TA+1}\nv_cmp_ne_u32 s[56:57], s58, v{TA+2}\ns_or_b64 vcc, vcc, s[56:57]")
    if P.get("force_fb"): a("s_mov_b64 vcc, -1")
    a("s_cbranch_vccz K_POLLAOK")
    a(f"s_sub_u32 s59, s59, 1\ns_cbranch_scc0 K_POLLA")
    a(f"ds_write_b32 v4, v14 offset:{L_FB}")
    a(f"K_POLLAOK:\nds_write_b32 v3, v{TA} offset:{L_TABL}")
    a("K_TABOK:\ns_waitcnt vmcnt(0) lgkmcnt(0)\ns_barrier")
    stamp("Bx")
    a(f"s_cmp_lg_u32 {sW}, 0\ns_cbranch_scc1 K_NOFLAG")
    a(f"s_mul_i32 s56, s2, {FS}\ns_add_u32 s56, s56, {WS_FLG}\nv_mov_b32 v10, {sTag}\ns_mov_b64 exec, 1")
    a(f"buffer_store_dword v10, v4, {WSR}, s56 offen sc1\ns_mov_b64 exec, -1\nK_NOFLAG:")
    a(f"ds_read_b128 v[{TP}:{TP+3}], v9 offset:{L_TABL}\nds_read_b32 v10, v4 offset:{L_FB}")
    if P.get("pfx"):
        pfetch("K_NOPFX", P["pfx"], P.get("pfc", 0) + P.get("pfd", 0), smb[0]); a("K_NOPFX:")
    a("s_waitcnt lgkmcnt(0)")
    a(f"v_readfirstlane_b32 {sFB}, v10")
    c = TP + 4; p = TP + 8
    for i in range(4): a(f"v_bfe_u32 v{c+i}, v{TP+i}, 11, 11")
    a(f"v_add_u32 v{p+1}, v{c}, v{c+1}\nv_add_u32 v{p+2}, v{p+1}, v{c+2}\nv_add_u32 v{p+3}, v{p+2}, v{c+3}\nv_mov_b32 v{p+4}, v{p+3}")
    fill = []
    for i in range(4):
        fill.append(f"v_and_b32 v{TP+i}, 0x7ff, v{TP+i}")
        fill.append(f"v_add_u32 v{PD+i}, v13, v{TP+i}")
        if i: fill.append(f"v_add_u32 v{PD+i}, {i*CH}, v{PD+i}")
    for k in range(6):
        for x in fill[2*k:2*k+2]: a(x)
        a(f"v_add_u32_dpp v{p+4}, v{p+4}, v{p+4} {DPP[k]}")
    a(f"s_cmp_lg_u32 {sFB}, 0\ns_cbranch_scc1 K_FB0")
    a(f"v_readlane_b32 {sT}, v{p+4}, 63")
    a(f"v_sub_u32 v{PP}, v{p+4}, v{p+3}")
    a(f"v_add_u32 v{PP+1}, v{PP}, v{c}\nv_add_u32 v{PP+2}, v{PP}, v{p+1}\nv_add_u32 v{PP+3}, v{PP}, v{p+2}")
    for i in range(4):
        a(f"v_sub_u32 v{PD+i}, v{PD+i}, v{PP+i}\nv_add_u32 v{PL+i}, v{PP+i}, v{c+i}")
    m = XR; f = m + 12; KEY = m + 16; RK = m + 22; ad = m + 25; CD = m + 28; PAYR = m + 32; PA = m + 44; CI = m + 47; q = m + 52
    FL = AOP
    a("K_ROUND:")
    a(f"s_mul_i32 s56, {sW}, {CAPW}\ns_add_u32 s56, s56, {sRB}\ns_add_u32 s57, s56, {CAPW}")
    a(f"s_lshl_b32 s58, {sW}, 10\ns_add_u32 s58, s58, {L_MARK}")
    for i in range(4):
        a(f"v_cmp_lt_u32 vcc, s56, v{PL+i}\nv_cmp_gt_u32 s[60:61], s57, v{PP+i}")
        a(f"v_subrev_u32 v{m+i}, s56, v{PP+i}\nv_max_i32 v{m+i}, 0, v{m+i}\nv_lshl_add_u32 v{m+i}, v{m+i}, 2, s58")
        a(f"s_and_b64 exec, vcc, s[60:61]\nds_max_u32 v{m+i}, v{PD+i}\ns_mov_b64 exec, -1")
    a(f"v_add_u32 v{m+4}, s58, v15")
    for u in range(3): a(f"ds_read_b32 v{m+8+u}, v{m+4} offset:{u*256}")
    a(f"v_add_u32 v{f}, s56, v1\nv_add_u32 v{f+1}, 64, v{f}\nv_add_u32 v{f+2}, 128, v{f}")
    for u in range(3): a(f"v_cmp_gt_u32 {M(u)}, {sT}, v{f+u}")
    a(f"s_mov_b32 s60, {WS_KEY}\ns_mov_b32 s61, {WS_PAY}\ns_lshr_b32 s62, {sT8}, 24")
    a("s_waitcnt lgkmcnt(0)")
    scan_incl(a, "v_max_u32", [m+8, m+9, m+10])
    a(f"v_readlane_b32 s56, v{m+8}, 63\nv_readlane_b32 s57, v{m+9}, 63\nv_add_u32 v{f}, v{f}, v{m+8}")
    a(f"s_max_u32 s57, s56, s57")
    a(f"v_max_u32 v{m+9}, s56, v{m+9}\nv_max_u32 v{m+10}, s57, v{m+10}")
    a(f"v_add_u32 v{f+1}, v{f+1}, v{m+9}\nv_add_u32 v{f+2}, v{f+2}, v{m+10}")
    for u in range(3): a(f"v_lshlrev_b32 v{ad+u}, 3, v{f+u}")
    stamp("marks")
    def keyloads():
        for u in range(3):
            a(f"s_mov_b64 exec, {M(u)}\nbuffer_load_dwordx2 v[{KEY+2*u}:{KEY+2*u+1}], v{ad+u}, {WSR}, s60 offen sc1")
        a("s_mov_b64 exec, -1")
    keyloads()
    for u in range(3): a(f"v_lshlrev_b32 v{PA+u}, 4, v{f+u}")
    a(f"s_cmp_lg_u32 {sRB}, 0\ns_cbranch_scc1 K_KEYS1")
    TWO = P.get("two", 0); M2 = lambda u: ("s[0:1]", "s[20:21]", "s[22:23]")[u]
    if TWO:
        for u in range(3): a(f"v_lshrrev_b32 v{f+u}, 8, v{f+u}\nv_mul_u32_u24 v{f+u}, 52429, v{f+u}\nv_lshrrev_b32 v{f+u}, 18, v{f+u}\nv_lshlrev_b32 v{f+u}, 2, v{f+u}")
    wmextract()
    sfetch(1, smb[0] + P.get("pfx", 0) * 262144)
    stamp("wmx")
    a("s_branch K_KEYS1\nK_KEYS:")
    keyloads()
    a(f"K_KEYS1:\nv_mov_b32 v14, 64\ns_mov_b64 s[58:59], 0")
    for u in range(3):
        a(f"s_waitcnt vmcnt({2-u})")
        a(f"v_lshrrev_b32 v{RK+u}, 24, v{KEY+2*u}\nv_cmp_ne_u32 vcc, {sTag}, v{KEY+2*u+1}\nv_cmp_ne_u32 s[56:57], s62, v{RK+u}")
        a(f"s_or_b64 vcc, vcc, s[56:57]\ns_and_b64 vcc, vcc, {M(u)}\ns_or_b64 s[58:59], s[58:59], vcc")
    a("s_cbranch_scc1 K_KEYS")
    stamp("keys")
    def payloads():
        for u in range(3):
            a(f"s_mov_b64 exec, {M(u)}\nbuffer_load_dwordx4 v[{PAYR+4*u}:{PAYR+4*u+3}], v{PA+u}, {WSR}, s61 offen sc1")
        a("s_mov_b64 exec, -1")
    a(f"s_cmp_lg_u32 {sRB}, 0\ns_cbranch_scc1 K_LATER")
    a(f"s_mov_b32 s62, {WS_FLG}\ns_cmp_lt_u32 {sW}, 4\ns_cbranch_scc0 K_GOT\nbuffer_load_dword v{FL}, v{FL+1}, {WSR}, s62 offen sc1")
    a("K_GOT:")
    for u in range(3):
        a(f"v_lshrrev_b32 v{ad+u}, 2, v{KEY+2*u}\nv_and_b32 v{ad+u}, 0xfc, v{ad+u}")
    for u in range(3): a(f"s_mov_b64 exec, {M(u)}\nds_add_u32 v{ad+u}, v14 offset:{L_DEG}")
    a("s_mov_b64 exec, -1")
    if P.get("pfk"):
        pfetch("K_NOPFK", P["pfk"], P.get("pfc", 0) + P.get("pfd", 0) + P.get("pfx", 0)); a("K_NOPFK:")
    a(f"s_lshr_b32 s56, {sW}, 2\ns_or_b32 s56, s56, {sFB}\ns_cbranch_scc1 K_POLLBOK")
    if not TWO:
        a(f"K_POLLB:\ns_waitcnt vmcnt(0)\nv_cmp_ne_u32 vcc, {sTag}, v{FL}\ns_cbranch_vccz K_POLLBOK")
        a(f"buffer_load_dword v{FL}, v{FL+1}, {WSR}, s62 offen sc1\ns_branch K_POLLB")
        a("K_POLLBOK:\ns_waitcnt lgkmcnt(0)")
        sfetch(2, smb[0] + smb[1] + P.get("pfx", 0) * 262144)
        stamp("pollP")
        a("s_barrier")
        stamp("Bd")
        a(f"s_cmp_lg_u32 {sFB}, 0\ns_cbranch_scc1 K_NOPF")
        payloads()
        if P["pf"]: pfetch("K_NOPF", extra=sum(smb))
        a("K_NOPF:")
    else:
        a(f"s_waitcnt vmcnt(0)\nds_write_b32 v3, v{FL} offset:{L_PRE}")
        a("K_POLLBOK:\ns_waitcnt lgkmcnt(0)")
        stamp("pollP")
        a("s_barrier")
        stamp("Bd")
        a(f"s_cmp_lg_u32 {sFB}, 0\ns_cbranch_scc1 K_NOPF")
        for u in range(3): a(f"ds_read_b32 v{f+u}, v{f+u} offset:{L_PRE}")
        for u in range(3):
            a(f"s_waitcnt lgkmcnt({2-u})\nv_cmp_eq_u32 vcc, {sTag}, v{f+u}\ns_andn2_b64 {M2(u)}, {M(u)}, vcc\ns_and_b64 exec, {M(u)}, vcc")
            a(f"buffer_load_dwordx4 v[{PAYR+4*u}:{PAYR+4*u+3}], v{PA+u}, {WSR}, s61 offen sc1\ns_mov_b64 exec, -1")
        a(f"s_cmp_lt_u32 {sW}, 4\ns_cbranch_scc0 K_NOPF\nv_cmp_ne_u32 vcc, {sTag}, v{FL}\ns_cbranch_vccz K_NOPF\nbuffer_load_dword v{FL}, v{FL+1}, {WSR}, s62 offen sc1\ns_mov_b32 s63, 1")
        a("K_NOPF:")
    KK = TP; MI = EE
    a(f"ds_read_b32 v{MI}, v15 offset:{L_DEG}")
    for jj in range(10): a(f"ds_read_b128 v[{KK+4*jj}:{KK+4*jj+3}], v4 offset:{L_DEG+16*jj}")
    a("v_cmp_gt_u32 vcc, 40, v1")
    for jj in range(20):
        if jj % 2 == 0: a(f"s_waitcnt lgkmcnt({9 - jj//2})")
        tt = KK + 2*jj
        a(f"v_pk_add_f32 v[{tt}:{tt+1}], v[{tt}:{tt+1}], v[{MI}:{MI+1}] op_sel_hi:[1,0] neg_lo:[0,1] neg_hi:[0,1] clamp")
        if jj >= 2: a(f"v_pk_add_f32 v[{tt}:{tt+1}], v[{tt}:{tt+1}], v[{tt-4}:{tt-3}]")
    tt = KK + 38
    a(f"v_pk_add_f32 v[{tt}:{tt+1}], v[{tt}:{tt+1}], v[{tt-2}:{tt-1}]")
    a(f"v_add_f32 v{tt}, v{tt}, v{tt+1}\nv_cvt_u32_f32 v{tt}, v{tt}\nv_lshlrev_b32 v{tt}, 2, v{tt}")
    a(f"ds_bpermute_b32 v2, v{tt}, v2\ns_waitcnt lgkmcnt(0)\nv_cndmask_b32 v2, -1, v2, vcc")
    a("K_BAL:")
    for u in range(3): a(f"ds_bpermute_b32 v{CD+u}, v{ad+u}, v2")
    a("v_mov_b32 v14, 1\nv_lshlrev_b32 v10, 3, v1")
    a(f"s_lshr_b32 s56, {sBin}, 4\ns_and_b32 s56, s56, 14")
    for u in range(3): a(f"v_subrev_u32 v{CI+u}, s56, v{KEY+2*u}\nv_and_b32 v{CI+u}, {P.get('bmask', 15)}, v{CI+u}")
    for u in range(3):
        a(f"s_waitcnt lgkmcnt(2)\ns_mov_b64 exec, {M(u)}")
        a(f"v_and_b32 v{ad+u}, 7, v{CD+u}\nv_lshl_or_b32 v{CI+u}, v{ad+u}, 4, v{CI+u}\nv_lshlrev_b32 v{ad+u}, 2, v{CI+u}")
        a(f"ds_add_rtn_u32 v{RK+u}, v{ad+u}, v14 offset:{L_CNT}")
    a("s_mov_b64 exec, -1")
    for u in range(3):
        a(f"v_lshlrev_b32 v{ad+u}, 1, v{CI+u}\nv_lshlrev_b32 v{CI+u}, 4, v{CI+u}")
        a(f"v_and_b32 v{CD+u}, 0x38, v{CD+u}\nv_and_b32 v{KEY+2*u}, {P.get('xmask', 0xfffc00)}, v{KEY+2*u}")
    a(f"s_lshl_b32 s56, {sW}, 3\ns_add_u32 s57, s56, 7")
    a(f"v_lshrrev_b32 v{q+6}, 3, v1\nv_mul_u32_u24 v{q+6}, 48, v{q+6}")
    if TWO:
        a("s_cmp_eq_u32 s63, 0\ns_mov_b32 s63, 0\ns_cbranch_scc1 K_POLLCOK")
        a(f"K_POLLC:\ns_waitcnt vmcnt(0)\nv_cmp_ne_u32 vcc, {sTag}, v{FL}\ns_cbranch_vccz K_POLLCOK")
        a(f"buffer_load_dword v{FL}, v{FL+1}, {WSR}, s62 offen sc1\ns_branch K_POLLC\nK_POLLCOK:")
    a("s_waitcnt lgkmcnt(0)\ns_barrier")
    stamp("Be")
    a(f"ds_read_b64 v[{q}:{q+1}], v10 offset:{L_CNT}")
    if TWO:
        a(f"s_or_b32 s58, {sFB}, {sRB}\ns_cbranch_scc1 K_NOREST")
        a(f"s_or_b64 s[58:59], {M2(0)}, {M2(1)}\ns_or_b64 s[58:59], s[58:59], {M2(2)}\ns_cbranch_scc0 K_NOREST1")
        for u in range(3):
            a(f"s_mov_b64 exec, {M2(u)}\nbuffer_load_dwordx4 v[{PAYR+4*u}:{PAYR+4*u+3}], v{PA+u}, {WSR}, s61 offen sc1")
        a("s_mov_b64 exec, -1\nK_NOREST1:")
        if P["pf"]: pfetch("K_NOREST")
        a("K_NOREST:")
    a(f"s_sub_u32 s58, {sRot}, 1024\ns_cselect_b32 s58, {(N-1)*1024}, s58")
    a("s_waitcnt lgkmcnt(0)")
    a(f"v_add_u32 v{q+2}, v{q}, v{q+1}\nv_mov_b32 v{q+3}, v{q+2}")
    fill = ["v_and_b32 v12, 15, v1", "v_lshrrev_b32 v11, 4, v1", "v_lshlrev_b32 v11, 3, v11", "v_lshl_add_u32 v11, v12, 5, v11",
            f"v_mov_b32 v{q+7}, s58", f"v_mov_b32 v{vPv}, 0"]
    if P.get("aswz", 0):
        fill = ["v_and_b32 v12, 15, v1", "v_lshrrev_b32 v11, 2, v1", "v_and_b32 v11, 8, v11", "v_xor_b32 v11, v11, v1",
                f"v_mov_b32 v{q+7}, s58", f"v_mov_b32 v{vPv}, 0", "v_lshlrev_b32 v11, 3, v11", "v_lshrrev_b32 v13, 2, v1",
                "v_and_b32 v10, 3, v1", "v_lshl_or_b32 v13, v10, 4, v13", "v_lshlrev_b32 v10, 2, v10", "v_and_b32 v10, 8, v10"]
    for k in range(6):
        for x in fill[2*k:2*k+2]: a(x)
        a(f"v_add_u32_dpp v{q+3}, v{q+3}, v{q+3} {DPP[k]}")
    a(f"v_sub_u32 v{q+2}, v{q+3}, v{q+2}")
    a(f"v_readlane_b32 {sLen}, v{q+3}, s57")
    if P.get("aswz", 0): a("v_xor_b32 v10, v10, v13\nv_lshlrev_b32 v10, 3, v10")
    a(f"v_mov_b32_dpp v{q+4}, v{q+2} row_newbcast:0 row_mask:0xf bank_mask:0x3")
    a(f"v_readlane_b32 s58, v{q+2}, s56")
    a(f"v_mov_b32_dpp v{q+4}, v{q+2} row_newbcast:8 row_mask:0xf bank_mask:0xc")
    a(f"v_add_u32 v{q+5}, 15, v{q+4}\nv_and_b32 v{q+5}, -16, v{q+5}\nv_add_u32 v{q+5}, v{q+5}, v{q+6}")
    a(f"v_sub_u32 v{q+4}, v{q+5}, v{q+4}\nv_add_u32 v{q+4}, v{q+4}, v{q+2}")
    a(f"v_add_u32 v{q}, v{q+4}, v{q}\nv_lshl_or_b32 v{q}, v{q}, 16, v{q+4}")
    a(f"v_readlane_b32 {sBase}, v{q+5}, s56")
    for u in range(3): a(f"ds_bpermute_b32 v{ad+u}, v{ad+u}, v{q}")
    a(f"s_sub_u32 {sLen}, {sLen}, s58\ns_add_u32 s56, {sBase}, {sLen}")
    a(f"v_add_u32 v{q+1}, s56, v1\nv_lshlrev_b32 v{q+2}, 2, v{q+1}\nv_lshlrev_b32 v{q+3}, 4, v{q+1}")
    a("s_mov_b64 exec, 0xfffff")
    a(f"ds_write_b32 v{q+2}, v{q+7} offset:{L_OFF}\nds_write_b8 v{q+1}, v4 offset:{L_NODE}\nds_write_b128 v{q+3}, v[4:7] offset:{L_PAY}")
    for u in range(3):
        a(f"s_mov_b64 exec, {M(u)}\ns_waitcnt lgkmcnt({5 + u})")
        a(f"v_bfe_u32 v{ad+u}, v{ad+u}, v{CI+u}, 16\nv_add_u32 v{ad+u}, v{ad+u}, v{RK+u}")
        a(f"v_lshlrev_b32 v{RK+u}, 2, v{ad+u}\nv_lshlrev_b32 v{CI+u}, 4, v{ad+u}")
        a(f"ds_write_b32 v{RK+u}, v{KEY+2*u} offset:{L_OFF}\nds_write_b8 v{ad+u}, v{CD+u} offset:{L_NODE}")
    EP = P.get("epre", 0); PA5 = [XR + 50, XR + 51, XR + 60, XR + 61, XR + 62]
    if EP:
        P["ring"] = 8
        a("s_mov_b64 exec, -1")
        for sl in range(5):
            a(f"s_add_u32 s58, {sW}, {8*sl}\nv_cmp_eq_u32 vcc, s58, v2\ns_ff1_i32_b64 s58, vcc\ns_mul_i32 s58, s58, {4*RS}\ns_add_u32 s58, s58, {L_AGG}\nv_add_u32 v{PA5[sl]}, s58, v15")
    XE = P.get("xearly", 0); XO = P.get("xorder", 0); xaux = P.get("xaux", "")
    def xloads(wait, lo=0, hi=None):
        for n in range(lo, DE if hi is None else hi):
            if wait is not None and n % 4 == 0: a(f"s_waitcnt lgkmcnt({ngr - 1 - n//4 + wait})")
            if SAFE: a(f"v_add_u32 v{TP+n}, v9, v{TP+n}")
            a(f"buffer_load_dwordx4 v[{XR+4*n}:{XR+4*n+3}], v{TP+n}, {XS}, 0 offen {xaux}")
    def addrs():
        a(f"s_lshl_b32 s56, {sBase}, 2\ns_add_u32 s56, s56, {L_OFF}\nv_mov_b32 v{vOffA}, s56")
        a(f"s_add_u32 s56, {sBase}, {L_NODE}\nv_mov_b32 v{vNodeA}, s56")
        a(f"s_lshl_b32 s56, {sBase}, 5\ns_add_u32 s56, s56, {L_A}\nv_add_u32 v{vAA}, s56, v10\nv_add_u32 v11, s56, v11")
        a(f"s_lshl_b32 s57, {sBase}, 4\ns_add_u32 s57, s57, {L_PAY}")
        a(f"v_lshl_add_u32 v{vEfA}, v12, 4, s57\nv_add_u32 v10, s57, v9")
        a(f"s_add_u32 {sG}, {sLen}, 3\ns_lshr_b32 {sG}, {sG}, 2")
    def paywait(nx):
        if P["pf"]:
            a(f"s_cmp_lt_u32 {sW}, {8-P['pf']}\ns_cselect_b32 s56, 1, {sRB}\ns_or_b32 s56, s56, {sFB}\ns_cbranch_scc0 K_PW1\ns_waitcnt vmcnt({nx})\nK_PW1:\ns_waitcnt vmcnt({nx+1})")
        else: a(f"s_waitcnt vmcnt({nx})")
        for u in range(3): a(f"s_mov_b64 exec, {M(u)}\nds_write_b128 v{CI+u}, v[{PAYR+4*u}:{PAYR+4*u+3}] offset:{L_PAY}")
        a("s_mov_b64 exec, -1")
    if XE:
        assert DE == 8
        a("s_mov_b64 exec, -1")
        addrs()
        a("s_waitcnt lgkmcnt(0)\ns_barrier")
        stamp("Bf1")
        for gg in range(ngr): a(f"ds_read_b128 v[{TP+4*gg}:{TP+4*gg+3}], v{vOffA} offset:{16*gg}")
        a(f"ds_read2_b64 v[{OFFS}:{OFFS+3}], v{vOffA} offset0:{DE//2} offset1:{DE//2+1}\nds_read_b128 v[{NODE}:{NODE+3}], v{vNodeA}")
        xloads(2, 0, XE)
        paywait(XE)
        a("s_waitcnt lgkmcnt(0)\ns_barrier")
        stamp("Bf")
        a(f"s_cmp_eq_u32 {sG}, 0\ns_cbranch_scc1 K2_LOOPDONE")
        a(f"ds_read_b64 v[{TA}:{TA+1}], v10\nds_read_b64 v[{EF}:{EF+1}], v{vEfA} offset:8\ns_lshl_b32 s56, {sG}, 2")
        xloads(None, XE)
    else:
        paywait(0)
        addrs()
        a("s_waitcnt lgkmcnt(0)\ns_barrier")
        stamp("Bf")
        a(f"s_cmp_eq_u32 {sG}, 0\ns_cbranch_scc1 K2_LOOPDONE")
        for gg in range(ngr): a(f"ds_read_b128 v[{TP+4*gg}:{TP+4*gg+3}], v{vOffA} offset:{16*gg}")
        a(f"ds_read_b64 v[{TA}:{TA+1}], v10\nds_read2_b64 v[{OFFS}:{OFFS+3}], v{vOffA} offset0:{DE//2} offset1:{DE//2+1}")
        a(f"ds_read_b64 v[{EF}:{EF+1}], v{vEfA} offset:8\nds_read_b128 v[{NODE}:{NODE+3}], v{vNodeA}\ns_lshl_b32 s56, {sG}, 2")
        if XO: a(f"s_cmp_ge_u32 {sW}, 4\ns_cbranch_scc1 K_XL1")
        xloads(4)
        if XO: a("K_XL1:")
    stamp("xiss")
    if P.get("afold"): a(f"s_mov_b32 s58, {f32(-LN2)}\ns_mov_b32 s59, s58")
    a("K_APREP:")
    a(f"v_cmp_gt_u32 vcc, s56, v1")
    a("s_waitcnt lgkmcnt(0)")
    a(f"v_cndmask_b32 v{TB}, 0, v{TA}, vcc\nv_cndmask_b32 v{TB+1}, 0, v{TA+1}, vcc")
    a(f"ds_read_b64 v[{TA}:{TA+1}], v10 offset:1024\nv_add_u32 v10, 1024, v10")
    for gg in range(4):
        a(f"v_mfma_f32_16x16x16_bf16 v[{TP+16+4*gg}:{TP+19+4*gg}], v[{CGF+2*gg}:{CGF+2*gg+1}], v[{TB}:{TB+1}], 0")
    for gg in range(4):
        if P.get("afold"):
            for k in range(2): a(f"v_pk_mul_f32 v[{TP+16+4*gg+2*k}:{TP+17+4*gg+2*k}], v[{TP+16+4*gg+2*k}:{TP+17+4*gg+2*k}], s[58:59]")
        a(f"v_cvt_pk_bf16_f32 v{EE+2*gg}, v{TP+16+4*gg}, v{TP+17+4*gg}\nv_cvt_pk_bf16_f32 v{EE+2*gg+1}, v{TP+18+4*gg}, v{TP+19+4*gg}")
        a(f"ds_write_b64 v11, v[{EE+2*gg}:{EE+2*gg+1}] offset:{512*gg}")
        a(f"s_sub_u32 s56, s56, 16\ns_cmp_le_i32 s56, 0\ns_cbranch_scc1 K_APDONE")
    a("v_add_u32 v11, 2048, v11\ns_branch K_APREP")
    a("K_APDONE:")
    if XO:
        a(f"s_cmp_lt_u32 {sW}, 4\ns_cbranch_scc1 K_XL2")
        xloads(None)
        a("K_XL2:")
    a(f"s_waitcnt lgkmcnt(0)\nds_read_b64 v[{AOP}:{AOP+1}], v{vAA}")
    for x in pre_mfmas(dict(EF=EF, WF=WF), TA, 0, P): a(x)
    stamp("loop0")
    if P.get("ts"): a("s_memtime s[66:67]")
    if P.get("drain"): a(f"s_sub_u32 {sG}, {sG}, 3\ns_nop 2\ns_cbranch_scc1 K2_D0")
    else: a(f"s_sub_u32 {sG}, {sG}, 1\ns_nop 3")
    R = dict(ACC=ACC, XR=XR, TP=TP, TA=TA, TB=TB, EE=EE, WF=WF, AOP=AOP, EF=EF, OFFS=OFFS, NODE=NODE, vOffA=vOffA, vNodeA=vNodeA,
             vAA=vAA, vEfA=vEfA, sG=sG, sN=sN, vPm=vPm, vPo=vPo, vPv=vPv, XS=XS, sRot=sRot, vPt=255, RING=P.get("ring", 16))
    gen_loop(a, R, P, dict(PROG=L_PROG))
    if P.get("ts"): a("s_memtime s[68:69]")
    stamp("loop1")
    if PR.startswith("pair"):
        a(f"v_mov_b32 v{vPv}, -1\nds_write_b32 v{vPm}, v{vPv} offset:{L_PROG}\ns_setprio 0")
    a(f"s_add_u32 {sRB}, {sRB}, {CAP}\ns_cmp_ge_u32 {sRB}, {sT}\ns_cbranch_scc1 K_EPI")
    a("s_waitcnt vmcnt(0) lgkmcnt(0)\ns_barrier")
    a(f"ds_write_b128 v8, v[4:7]\nds_write_b32 v3, v4 offset:{L_PROG}")
    a(f"v_cmp_gt_u32 vcc, 128, v0\ns_and_saveexec_b64 s[56:57], vcc\nds_write_b32 v3, v4 offset:{L_CNT}\ns_mov_b64 exec, s[56:57]")
    a("s_waitcnt lgkmcnt(0)\ns_barrier")
    a(f"s_cmp_eq_u32 {sFB}, 0\ns_cbranch_scc1 K_ROUND\ns_branch K_FB")
    a("K_LATER:")
    payloads()
    a("K_LATER2:")
    for u in range(3): a(f"v_lshrrev_b32 v{ad+u}, 2, v{KEY+2*u}\nv_and_b32 v{ad+u}, 0xfc, v{ad+u}")
    a("s_branch K_BAL")
    a(f"K_FB0:\ns_mov_b32 {sT}, {E}")
    wmextract()
    a("K_FB:")
    a(f"s_mul_i32 s56, {sW}, {CAPW}\ns_add_u32 s56, s56, {sRB}")
    a(f"v_add_u32 v{f}, s56, v1\nv_add_u32 v{f+1}, 64, v{f}\nv_add_u32 v{f+2}, 128, v{f}")
    for u in range(3):
        a(f"v_cmp_gt_u32 {M(u)}, {sT}, v{f+u}\nv_min_u32 v{f+u}, {E-1}, v{f+u}\nv_lshlrev_b32 v{ad+u}, 2, v{f+u}\nv_lshlrev_b32 v{PA+u}, 3, v{f+u}")
        a(f"global_load_dword v{m+u}, v{ad+u}, s[8:9]\nglobal_load_dword v{m+4+u}, v{ad+u}, s[6:7]")
        a(f"global_load_dwordx2 v[{PAYR+4*u}:{PAYR+4*u+1}], v{PA+u}, s[10:11]\nglobal_load_dwordx2 v[{PAYR+4*u+2}:{PAYR+4*u+3}], v{PA+u}, s[12:13]")
    a(f"v_mov_b32 v14, 64\ns_waitcnt vmcnt(0)")
    for u in range(3):
        a(f"v_mul_u32_u24 v{f+u}, 214749, v{m+u}\nv_lshrrev_b32 v{f+u}, 23, v{f+u}\nv_cmp_eq_u32 vcc, {sBin}, v{f+u}\ns_and_b64 {M(u)}, {M(u)}, vcc")
        a(f"v_subrev_u32 v{KEY+2*u}, {sNs}, v{m+u}")
        keycalc2(m+4+u, KEY+2*u, f+u)
    a(f"s_cmp_lg_u32 {sRB}, 0\ns_cbranch_scc1 K_LATER2\ns_branch K_GOT")
    a("K_EPI:")
    SPLIT = P.get("split", 0)
    if SPLIT:
        L_GC = 1800
        NO = TA
        a(f"v_and_b32 v10, 7, v2\nv_bfe_u32 v11, v2, 3, 3\nv_mad_u32_u24 v10, v10, 5, v11\nv_lshlrev_b32 v10, 2, v10")
        a(f"s_lshr_b32 s59, {sW}, 2\ns_mul_i32 s60, s59, 80\nv_lshrrev_b32 v13, 4, v1\nv_lshl_add_u32 v11, v13, 2, s60")
        a("ds_permute_b32 v10, v10, v1")
        a(f"s_mov_b32 s56, {f32(-LN2)}\ns_mov_b32 s57, s56\ns_mul_i32 s58, {sW}, {20*RS}\ns_add_u32 s58, s58, {L_AGG}\nv_add_u32 v14, s58, v15")
        for k in range(0 if P.get("afold") else 4): a(f"v_pk_mul_f32 v[{ACC+2*k}:{ACC+2*k+1}], v[{ACC+2*k}:{ACC+2*k+1}], s[56:57]")
        a("s_waitcnt lgkmcnt(0)")
        for i_ in range(5): a(f"ds_bpermute_b32 v{NO+i_}, v11, v10 offset:{16*i_}")
        for sl in range(5):
            if sl:
                for k in range(0 if P.get("afold") else 4): a(f"v_pk_mul_f32 v[{ACC+8*sl+2*k}:{ACC+8*sl+2*k+1}], v[{ACC+8*sl+2*k}:{ACC+8*sl+2*k+1}], s[56:57]")
            for mm in range(4):
                a(f"v_cvt_pk_bf16_f32 v{ACC+8*sl+mm}, v{ACC+8*sl+mm}, v{ACC+8*sl+4+mm}")
                a(f"ds_write_b32 v14, v{ACC+8*sl+mm} offset:{RS*(4*sl+mm)}")
        a(f"s_lshl_b32 s61, s59, 2\nv_mov_b32 v10, s61\nv_mov_b32 v11, 1\nv_and_b32 v12, 15, v1")
        a(f"s_mul_i32 s59, s59, {80*RS}\ns_add_u32 s59, s59, {L_AGG}")
        a(f"v_mul_u32_u24 v14, {RS}, v12\nv_lshl_add_u32 v14, v13, 4, v14\nv_add_u32 v14, s59, v14")
        a(f"s_lshl_b32 s58, {sNs}, 10\ns_and_b32 s59, {sW}, 3\ns_lshl_b32 s59, s59, 8\ns_add_u32 s58, s58, s59\nv_lshlrev_b32 v12, 4, v12")
        a(f"s_waitcnt lgkmcnt(0)\ns_mov_b64 exec, 1\nds_add_u32 v10, v11 offset:{L_GC}\ns_mov_b64 exec, -1")
        for i_ in range(5): a(f"v_lshl_add_u32 v{NO+i_}, v{NO+i_}, 10, v12")
        a(f"K_GW:\nds_read_b32 v11, v10 offset:{L_GC}\ns_waitcnt lgkmcnt(0)\nv_readfirstlane_b32 s59, v11\ns_cmp_ge_u32 s59, 4\ns_cbranch_scc1 K_GW1\ns_sleep 1\ns_branch K_GW\nK_GW1:")
        a("s_waitcnt vmcnt(0)")
        stamp("Bg")
    else:
        a(f"s_mov_b32 s56, {f32(-LN2)}\ns_mov_b32 s57, s56")
        for sl in range(5):
            if not EP: a(f"s_add_u32 s58, {sW}, {8*sl}\nv_cmp_eq_u32 vcc, s58, v2")
            for k in range(0 if P.get("afold") else 4): a(f"v_pk_mul_f32 v[{ACC+8*sl+2*k}:{ACC+8*sl+2*k+1}], v[{ACC+8*sl+2*k}:{ACC+8*sl+2*k+1}], s[56:57]")
            if not EP: a(f"s_ff1_i32_b64 s58, vcc\ns_mul_i32 s58, s58, {4*RS}\ns_add_u32 s58, s58, {L_AGG}\nv_add_u32 v{10 + sl%2}, s58, v15")
            for mm in range(4):
                a(f"v_cvt_pk_bf16_f32 v{ACC+8*sl+mm}, v{ACC+8*sl+mm}, v{ACC+8*sl+4+mm}")
                a(f"ds_write_b32 v{PA5[sl] if EP else 10 + sl%2}, v{ACC+8*sl+mm} offset:{RS*mm}")
        a(f"v_and_b32 v12, 15, v1\nv_lshrrev_b32 v13, 4, v1")
        a(f"s_lshr_b32 s58, {sW}, 2\ns_mul_i32 s59, s58, {16*RS}\ns_add_u32 s59, s59, {L_AGG}")
        a(f"v_mul_u32_u24 v14, {RS}, v12\nv_lshl_add_u32 v14, v13, 4, v14\nv_add_u32 v14, s59, v14")
        a(f"s_lshl_b32 s58, s58, 2\ns_add_u32 s58, s58, {sNs}\ns_lshl_b32 s58, s58, 10\ns_and_b32 s59, {sW}, 3\ns_lshl_b32 s59, s59, 8\ns_add_u32 s58, s58, s59")
        a(f"v_lshlrev_b32 v13, 10, v13\nv_lshl_add_u32 v13, v12, 4, v13")
        a("s_waitcnt vmcnt(0) lgkmcnt(0)\ns_barrier")
        stamp("Bg")
    TS_ = 16 * RS if SPLIT else 32 * RS
    FA = XR
    for i in range(4):
        for ks in range(4): a(f"ds_read_b128 v[{FA+16*i+4*ks}:{FA+16*i+4*ks+3}], v14 offset:{TS_*i + 64*ks}")
    ost = P["out_aux"]
    def outtile(i):
        Dp = TP + 8 * (i % 2); Op = TP + 16 + 4 * (i % 2)
        for k in range(4): a(f"v_cvt_pk_bf16_f32 v{Op+k}, v{Dp+2*k}, v{Dp+2*k+1}")
        a(f"buffer_store_dwordx4 v[{Op}:{Op+3}], v{TA+i if SPLIT else 13}, {OS}, s58 offen {ost}")
        if i < 4 and not SPLIT: a("s_add_u32 s58, s58, 8192")
    for i in range(5):
        Dd = TP + 8 * (i % 2); fi = FA + 16 * (i % 4)
        for ks in range(4):
            if i < 4: a(f"s_waitcnt lgkmcnt({min(15, 15 - 4*i - ks + (4 if i >= 1 else 0))})")
            else: a(f"s_waitcnt lgkmcnt({3 - ks})")
            for tt in range(2):
                b = BF + 16*tt + 4*ks
                a(f"v_mfma_f32_16x16x32_bf16 v[{Dd+4*tt}:{Dd+4*tt+3}], v[{fi+4*ks}:{fi+4*ks+3}], v[{b}:{b+3}], " + ("0" if ks == 0 else f"v[{Dd+4*tt}:{Dd+4*tt+3}]"))
        if i == 0:
            for ks in range(4): a(f"ds_read_b128 v[{FA+4*ks}:{FA+4*ks+3}], v14 offset:{TS_*4 + 64*ks}")
        if i >= 1: outtile(i - 1)
    outtile(4)
    a(f"s_or_b32 s56, {sFB}, {sW}")
    if P.get("epo") == "none": a("s_mov_b32 s56, 1")
    if P.get("epo") == "wg0": a("s_or_b32 s56, s56, s2")
    a("s_cmp_lg_u32 s56, 0\ns_cbranch_scc1 K_NOEPO")
    a(f"v_mov_b32 v10, {sTag}\ns_mov_b64 exec, 1\nbuffer_store_dword v10, v4, {WSR}, 0 offen offset:{WS_EPO} {P.get('epo_aux', '')}\nK_NOEPO:")
    if P.get("ts"):
        a("s_waitcnt vmcnt(0)"); stamp("end")
        a("s_waitcnt lgkmcnt(0)")
        a(f"s_lshl_b32 s98, s2, 3\ns_add_u32 s98, s98, s3\ns_lshl_b32 s98, s98, 6\ns_add_u32 s98, s98, {WS_TS}")
        a("s_mov_b64 exec, 1\nv_mov_b32 v2, s98")
        for i in range(tsn[0]): a(f"v_mov_b32 v3, s{70 + 2*i}\nglobal_store_dword v2, v3, s[24:25] offset:{4*i}")
        a(f"s_sub_u32 s68, s68, s66\nv_mov_b32 v3, s68\nglobal_store_dword v2, v3, s[24:25] offset:56\nv_mov_b32 v3, {sLen}\nglobal_store_dword v2, v3, s[24:25] offset:60")
        assert tsn[0] <= 14
    a("K_END:\ns_endpgm")
    a(".p2align 6\n.type K_TAB,@object\nK_TAB:")
    for A in (A39, A40):
        used = [0]*8; codes = []
        for ww in A: codes.append(ww | used[ww] << 3); used[ww] += 1
        assert used == [5]*8
        a(".byte " + ", ".join(str(cc) for cc in codes + [255]*24))
    body = a.text(verbose=verbose)
    ns = 100 if P.get("ts") else 72
    gen.nts = tsn[0]
    return (HEADER + f"; @launch grid=({NB},1,1) block=(512,1,1) lds={L_END}\n" + '.amdgcn_target "amdgcn-amd-amdhsa--gfx950"\n.text\n' + body
            + '.section .rodata,"a"\n' + desc(NAME, 256, ns))

if __name__ == "__main__":
    P = eval(sys.argv[2]) if len(sys.argv) > 2 else {}
    open(sys.argv[1], "w").write(gen(P, verbose=True))
```

```python
def pre_mfmas(R, T, ab, P):
    EF, WF = R["EF"], R["WF"]
    l = [f"v_mfma_f32_4x4x4_16b_bf16 v[{T}:{T+3}], v[{EF}:{EF+1}], v[{WF}:{WF+1}], 0 cbsz:4 abid:{ab}",
         f"v_mfma_f32_4x4x4_16b_bf16 v[{T+4}:{T+7}], v[{EF}:{EF+1}], v[{WF+4}:{WF+5}], 0 cbsz:4 abid:{ab}",
         f"v_mfma_f32_4x4x4_16b_bf16 v[{T}:{T+3}], v[{EF}:{EF+1}], v[{WF+2}:{WF+3}], v[{T}:{T+3}] cbsz:4 abid:{ab}",
         f"v_mfma_f32_4x4x4_16b_bf16 v[{T+4}:{T+7}], v[{EF}:{EF+1}], v[{WF+6}:{WF+7}], v[{T+4}:{T+7}] cbsz:4 abid:{ab}"]
    return l[:2] if P.get("nolo") else l

def gen_loop(a_real, R, P, L):
    g = R.get
    ACC, XR, TP, TA, TB, EE, AOP, EF, OFFS, NODE = (R[k] for k in "ACC XR TP TA TB EE AOP EF OFFS NODE".split())
    vOffA, vNodeA, vAA, vEfA, sG, sN = (R[k] for k in "vOffA vNodeA vAA vEfA sG sN".split())
    vPm, vPo, vPv = R["vPm"], R["vPo"], R["vPv"]
    DE = P.get("DE", 8); ng = DE // 4; RING = R.get("RING", 16)
    PR = P.get("prio", ""); SAFE = P.get("safe"); xaux = P.get("xaux", "")
    sched = P.get("sched", "a"); XS = R.get("XS", "s[8:11]")
    inc = (0, 0, 0, 0) if P.get("bench") else (64, 16, 512, 256)
    drop = tuple(P.get("nocomp", ()))
    def a(t):
        for l in t.split("\n"):
            if l.strip() and not (drop and l.strip().startswith(drop)): a_real(l)
    a(f".p2align {P.get('lp2', 4)}")
    for i in range(P.get("lpad", 0)): a("s_nop 0")
    a("K2_LOOP:")
    if P.get("trace"):
        a("s_memtime s[90:91]\ns_memrealtime s[92:93]\ns_waitcnt lgkmcnt(0)\ns_mov_b32 m0, s94\nv_writelane_b32 v250, s90, m0\nv_writelane_b32 v251, s92, m0\ns_add_u32 s94, s94, 1")
    DR = P.get("drain", 0)
    UN = P.get("unroll", 1); NQ = 4 * UN
    for copy, QQ in [(c_, q_) for c_ in range(2 if DR else 1) for q_ in range(NQ)]:
        qq = QQ % 4; bi = QQ // 4; last = QQ == NQ - 1
        if copy: a(f"K2_D{QQ}:")
        T = TA if qq % 2 == 0 else TB
        Tn = TB if qq % 2 == 0 else TA
        def tp(e, h):
            s = XR + 4 * ((4*qq + e) % RING) + 2*h
            d = TP + 8*e + 4*h
            return f"v_mfma_f32_4x4x4_16b_bf16 v[{d}:{d+3}], v[{AOP}:{AOP+1}], v[{s}:{s+1}], 0 cbsz:4 abid:{4*qq+e}"
        def ld(e):
            s = XR + 4 * ((4*qq + e + DE) % RING)
            if P.get("noload") or copy: return ""
            return (f"v_add_u32 v{OFFS+e}, v9, v{OFFS+e}\n" if SAFE else "") + f"buffer_load_dwordx4 v[{s}:{s+3}], v{OFFS+e}, {XS}, 0 offen {xaux}"
        ex = [f"v_exp_f32 v{EE+i}, v{T+i}" for i in range(8)]
        rc = [f"v_rcp_f32 v{EE+i}, v{EE+i}" for i in range(8)]
        ad = [f"v_pk_add_f32 v[{EE+2*i}:{EE+2*i+1}], v[{EE+2*i}:{EE+2*i+1}], 1.0 op_sel_hi:[1,0]" for i in range(4)]
        mu = [f"v_pk_mul_f32 v[{EE+2*i}:{EE+2*i+1}], v[{EE+2*i}:{EE+2*i+1}], v[{T+2*i}:{T+2*i+1}]" for i in range(4)]
        pm = pre_mfmas(R, Tn, (qq + 1) % 4, P) + ["", ""]
        def fma(e):
            o = [f"s_set_gpr_idx_on {sN}, gpr_idx(SRC2,DST)" if e == 0 else f"s_lshr_b32 {sN}, {sN}, 8\ns_set_gpr_idx_idx {sN}"]
            for h in range(2):
                r = EE + 4*h + (e & ~1); sel = e & 1
                for i in range(2):
                    d = ACC + 4*h + 2*i; t = TP + 8*e + 4*h + 2*i
                    o.append(f"v_pk_fma_f32 v[{d}:{d+1}], v[{r}:{r+1}], v[{t}:{t+1}], v[{d}:{d+1}] op_sel:[{sel},0,0] op_sel_hi:[{sel},1,1]")
            return "\n".join(o)
        ob = 16*(QQ + 1) + 4*DE
        dsoff = "" if copy else (f"ds_read_b128 v[{OFFS}:{OFFS+3}], v{vOffA} offset:{ob}" if ob % 16 == 0 else
                                 f"ds_read2_b64 v[{OFFS}:{OFFS+3}], v{vOffA} offset0:{ob//8} offset1:{ob//8+1}")
        def vw(n, extra, tag):
            if not copy: return f"s_waitcnt vmcnt({n}){extra}"
            first, second = (6, 2) if tag == "A" else (4, 0)
            return f"s_cmp_eq_u32 {sG}, -1\ns_cbranch_scc1 K2_W{tag}{QQ}\ns_waitcnt vmcnt({second})\nK2_W{tag}{QQ}:\ns_waitcnt vmcnt({first}){extra}"
        dsA = f"ds_read_b64 v[{AOP}:{AOP+1}], v{vAA} offset:{512*(bi+1)}" if qq == 3 else ""
        dsP = f"ds_read_b32 v{vPv}, v{vPo} offset:{L['PROG']}" if not copy and (PR == "pair1" or (PR == "pair2" and qq % 2 == 1) or (PR == "pair4" and qq == 3)) else ""
        if dsP and P.get("tri"): dsP += f"\nds_read_b32 v{R['vPv2']}, v{R['vPo2']} offset:{L['PROG']}"
        dsE = f"ds_read_b64 v[{EF}:{EF+1}], v{vEfA} offset:{256*(bi+1)+8}" if qq == 2 else ""
        rfl = f"v_readfirstlane_b32 {sN}, v{NODE+qq}"
        dsN = f"ds_read_b128 v[{NODE}:{NODE+3}], v{vNodeA} offset:{16*(bi+1)}" if qq == 3 else ""
        if last:
            pr = vEfA if not P.get("bench") else 3
            dsN += (f"\nv_add_u32 v{vOffA}, {inc[0]*UN}, v{vOffA}\nv_add_u32 v{vNodeA}, {inc[1]*UN}, v{vNodeA}\nv_add_u32 v{vAA}, {inc[2]*UN}, v{vAA}"
                    f"\nv_add_u32 v{pr}, {inc[3]*UN if not P.get('bench') else 1}, v{pr}")
        PV = 3 if P.get("bench") else OFFS
        def prio():
            dop = PR == "pair1" or (PR == "pair2" and qq % 2 == 0) or (PR == "pair4" and qq == 0)
            if dop and not copy:
                pv = PV
                if R.get("sRot"): a(f"v_subrev_u32 v{R['vPt']}, {R['sRot']}, v{PV}"); pv = R["vPt"]
                a(f"v_cmp_gt_u32 vcc, v{pv}, v{vPv}")
                a(f"ds_write_b32 v{vPm}, v{pv} offset:{L['PROG']}")
                if P.get("tri"):
                    a(f"v_cmp_gt_u32 s[60:61], v{pv}, v{R['vPv2']}\ns_cbranch_vccnz K2_Q{QQ}\ns_setprio 2\ns_cmp_lg_u32 s60, 0\ns_cbranch_scc1 K2_P{QQ}\ns_setprio 3\ns_branch K2_P{QQ}")
                    a(f"K2_Q{QQ}:\ns_setprio 0\ns_cmp_lg_u32 s60, 0\ns_cbranch_scc1 K2_P{QQ}\ns_setprio 1\nK2_P{QQ}:")
                else: a(f"s_setprio 0\ns_cbranch_vccnz K2_P{QQ}\ns_setprio 1\nK2_P{QQ}:")
            if PR == "quart" and qq == 0:
                a(f"s_cmp_le_i32 {sG}, s41\ns_cbranch_scc1 K2_PRIO\nK2_PRIOBACK:")
        if sched == "a":
            a("s_waitcnt lgkmcnt(0)")
            prio()
            for e in range(3):
                a(f"s_waitcnt vmcnt({DE-1})")
                a(tp(e, 0)); a(ex[2*e]); a(tp(e, 1)); a(ld(e)); a(ex[2*e+1])
            a(ex[6]); a(ex[7])
            for x in ad: a(x)
            a(f"s_waitcnt vmcnt({DE-1})")
            a(tp(3, 0)); a(rc[0]); a(tp(3, 1)); a(ld(3)); a(rc[1])
            a(dsoff); a(dsA); a(dsP)
            a(pm[0]); a(rc[2]); a(pm[1]); a(rc[3]); a(pm[2]); a(rc[4]); a(pm[3]); a(dsE)
            a(rc[5]); a(rc[6]); a(rc[7]); a(rfl); a(dsN)
            for x in mu: a(x)
            for e in range(4): a(fma(e))
            a("s_set_gpr_idx_off")
        elif sched == "b":
            ph = P.get("phase")
            a(vw(DE-2, " lgkmcnt(0)", "A"))
            prio()
            if ph: a(f"s_setprio {ph[0]}")
            if P.get("bar") == 1 or (P.get("bar") == 2 and qq % 2 == 0) or (P.get("bar") == 4 and qq == 0): a("s_barrier")
            a(tp(0, 0)); a(ex[0]); a(tp(0, 1)); a(ex[1]); a(tp(1, 0)); a(ex[2]); a(tp(1, 1)); a(ld(0)); a(ld(1)); a(ex[3])
            a(vw(DE-2, "", "B"))
            a(tp(2, 0)); a(ex[4]); a(tp(2, 1)); a(ex[5]); a(ex[6]); a(ex[7])
            for x in ad: a(x)
            a(tp(3, 0)); a(rc[0]); a(tp(3, 1)); a(ld(2)); a(ld(3)); a(rc[1])
            a(dsoff); a(dsA); a(dsP)
            a(pm[0]); a(rc[2]); a(pm[1]); a(rc[3]); a(pm[2]); a(rc[4]); a(pm[3]); a(dsE)
            a(rc[5]); a(rc[6]); a(rc[7]); a(rfl); a(dsN)
            if ph: a(f"s_setprio {ph[1]}")
            if P.get("bar2"): a("s_barrier")
            for x in mu: a(x)
            for e in range(4): a(fma(e))
            a("s_set_gpr_idx_off")
        elif sched in ("f", "g", "h"):
            w1 = DE - 2; w2 = DE - 4
            a(f"s_waitcnt vmcnt({w1}) lgkmcnt(0)")
            prio()
            ob2 = 16*QQ + 4*DE
            a(f"ds_read2_b64 v[{OFFS}:{OFFS+3}], v{vOffA} offset0:{ob2//8} offset1:{ob2//8+1}")
            a(tp(0, 0)); a(ex[0]); a(tp(0, 1)); a(ex[1]); a(tp(1, 0)); a(ex[2]); a(tp(1, 1)); a(ex[3])
            a(f"s_waitcnt vmcnt({w2})")
            a(tp(2, 0)); a(ex[4]); a(tp(2, 1)); a(ex[5]); a(ex[6]); a(ex[7])
            for x in ad: a(x)
            a("s_waitcnt lgkmcnt(0)")
            a(tp(3, 0)); a(rc[0]); a(tp(3, 1)); a(rc[1])
            a(dsA); a(dsP)
            a(pm[0]); a(rc[2]); a(pm[1]); a(rc[3]); a(pm[2]); a(rc[4]); a(pm[3]); a(dsE)
            a(rc[5]); a(rc[6]); a(rc[7]); a(rfl); a(dsN)
            if sched == "h": a(ld(0)); a(ld(1))
            for x in mu: a(x)
            for e in range(4):
                a(fma(e))
                if sched == "g": a(ld(e))
            a("s_set_gpr_idx_off")
            if sched == "f": a(ld(0)); a(ld(1))
            if sched != "g": a(ld(2)); a(ld(3))
        elif sched == "s":
            assert DE == 8 and UN == 1
            O = R["O16"]; sm = P.get("smem", (0, 0, 0)); sP, sO = R["sPf"], R["sPo"]
            def ld2(e):
                if P.get("noload") or copy: return ""
                s_ = XR + 4 * ((4*qq + e + DE) % RING)
                return (f"v_add_u32 v{O+4*qq+e}, v9, v{O+4*qq+e}\n" if SAFE else "") + f"buffer_load_dwordx4 v[{s_}:{s_+3}], v{O+4*qq+e}, {XS}, 0 offen {xaux}"
            a(vw(DE-2, " lgkmcnt(0)" if qq == 0 else "", "A"))
            if qq == 0 and not copy and PR:
                a(f"v_subrev_u32 v{R['vPt']}, {R['sRot']}, v{O}\nv_cmp_gt_u32 vcc, v{R['vPt']}, v{vPv}\nds_write_b32 v{vPm}, v{R['vPt']} offset:{L['PROG']}")
                a(f"s_setprio 0\ns_cbranch_vccnz K2_P{QQ}\ns_setprio 1\nK2_P{QQ}:")
            pfl = []
            if not copy and qq < 3:
                b0 = sum(sm[:qq])
                pfl = [f"s_load_dwordx2 {R['sPd']}, s[{sP}:{sP+1}], {(b0+i)*256 + 124}" for i in range(sm[qq])]
            pfl += [""] * 8
            pm2 = pre_mfmas(R, Tn, qq, P) + ["", ""]
            a(tp(0, 0)); a(pfl[0]); a(ex[0]); a(tp(0, 1)); a(pfl[1]); a(ex[1]); a(tp(1, 0)); a(pfl[2]); a(ex[2]); a(tp(1, 1)); a(ld2(0)); a(ld2(1)); a(ex[3])
            a(vw(DE-2, "", "B"))
            a(tp(2, 0)); a(pfl[3]); a(ex[4]); a(tp(2, 1)); a(pfl[4]); a(ex[5]); a(pfl[5]); a(ex[6]); a(pfl[6]); a(ex[7])
            for x in ad: a(x)
            a(tp(3, 0)); a(rc[0]); a(tp(3, 1)); a(ld2(2)); a(ld2(3)); a(rc[1])
            if not copy: a(f"ds_read_b128 v[{O+4*qq}:{O+4*qq+3}], v{vOffA} offset:{16*qq + 64 + 4*DE}")
            a(dsA)
            if qq == 3 and not copy and PR: a(f"ds_read_b32 v{vPv}, v{vPo} offset:{L['PROG']}")
            a(pm2[0]); a(rc[2]); a(pm2[1]); a(rc[3]); a(pm2[2]); a(rc[4]); a(pm2[3])
            if qq == 3: a(f"ds_read_b64 v[{EF}:{EF+1}], v{vEfA} offset:{256+64+8}")
            a(rc[5]); a(rc[6]); a(rc[7]); a(rfl); a(dsN)
            if qq == 3 and not copy and sum(sm):
                step = sum(sm) * 256 * 256; lim = 10240000 - sum(sm) * 256 - 128
                a(f"s_add_u32 {sO}, {sO}, {step}\ns_cmp_ge_u32 {sO}, {lim}\ns_cselect_b32 s{sP}, {lim}, 0\ns_sub_u32 {sO}, {sO}, s{sP}\ns_add_u32 s{sP}, s4, {sO}\ns_addc_u32 s{sP+1}, s5, 0")
            for x in mu: a(x)
            for e in range(4): a(fma(e))
            a("s_set_gpr_idx_off")
        elif sched == "d":
            adp = [f"v_add_f32 v{EE+i}, 1.0, v{EE+i}" for i in range(8)]
            a(vw(DE-2, " lgkmcnt(0)", "A"))
            prio()
            a(tp(0, 0)); a(ex[0]); a(tp(0, 1)); a(ex[1]); a(tp(1, 0)); a(ex[2]); a(tp(1, 1)); a(ld(0)); a(ld(1)); a(ex[3])
            a(vw(DE-2, "", "B"))
            a(tp(2, 0)); a(ex[4]); a(tp(2, 1)); a(ex[5]); a(tp(3, 0)); a(ex[6]); a(tp(3, 1)); a(ld(2)); a(ld(3)); a(ex[7])
            a(dsoff); a(dsA); a(dsP)
            a(rfl)
            for x in ad: a(x)
            a(pm[0]); a(rc[0]); a(pm[1]); a(rc[1]); a(pm[2]); a(rc[2]); a(pm[3]); a(dsE); a(rc[3])
            a(rc[4]); a(rc[5]); a(rc[6]); a(rc[7]); a(dsN)
            for x in mu: a(x)
            for e in range(4): a(fma(e))
            a("s_set_gpr_idx_off")
        elif sched == "e":
            a(vw(DE-2, " lgkmcnt(0)", "A"))
            prio()
            a(rfl)
            a(tp(0, 0)); a(ex[0]); a(tp(0, 1)); a(ex[1]); a(tp(1, 0)); a(ex[2]); a(tp(1, 1)); a(ld(0)); a(ld(1)); a(ex[3])
            a(vw(DE-2, "", "B"))
            a(tp(2, 0)); a(ex[4]); a(tp(2, 1)); a(ex[5]); a(f"s_lshr_b32 s64, {sN}, 8"); a(ex[6]); a(f"s_lshr_b32 s65, {sN}, 16"); a(ex[7])
            for x in ad: a(x)
            a(tp(3, 0)); a(rc[0]); a(tp(3, 1)); a(ld(2)); a(ld(3)); a(rc[1])
            a(dsoff); a(dsA); a(dsP)
            a(pm[0]); a(rc[2]); a(pm[1]); a(rc[3]); a(pm[2]); a(rc[4]); a(pm[3]); a(dsE)
            a(rc[5]); a(f"s_lshr_b32 s62, {sN}, 24"); a(rc[6]); a(dsN); a(rc[7]); a("s_nop 0" if qq != 3 else "")
            for x in mu: a(x)
            for e in range(4):
                t_ = fma(e).split("\n")
                body = t_[1:] if e == 0 else t_[2:]
                a(t_[0] if e == 0 else f"s_set_gpr_idx_idx {('s64','s65','s62')[e-1]}")
                for x in body: a(x)
            a("s_set_gpr_idx_off")
        elif sched == "c":
            a(f"s_waitcnt vmcnt({DE-4}) lgkmcnt(0)")
            prio()
            a(tp(0, 0)); a(ld(0)); a(ex[0]); a(tp(0, 1)); a(ld(1)); a(ex[1]); a(tp(1, 0)); a(ld(2)); a(ex[2]); a(tp(1, 1)); a(ld(3)); a(ex[3])
            a(tp(2, 0)); a(dsoff); a(ex[4]); a(tp(2, 1)); a(ex[5]); a(ex[6]); a(ex[7])
            for x in ad: a(x)
            a(tp(3, 0)); a(rc[0]); a(tp(3, 1)); a(rc[1])
            a(dsA); a(dsP)
            a(pm[0]); a(rc[2]); a(pm[1]); a(rc[3]); a(pm[2]); a(rc[4]); a(pm[3]); a(dsE)
            a(rc[5]); a(rc[6]); a(rc[7]); a(rfl); a(dsN)
            for x in mu: a(x)
            for e in range(4): a(fma(e))
            a("s_set_gpr_idx_off")
        else:
            from loopx import extra
            extra(sched, a, locals())
        if DR:
            assert sched in "bs" and DE == 8
            if not copy:
                a(f"s_sub_u32 {sG}, {sG}, 1")
                a(f"s_cbranch_scc1 K2_D{QQ+1}" if not last else "s_cbranch_scc0 K2_LOOP")
            else:
                a(f"s_sub_u32 {sG}, {sG}, 1\ns_cmp_eq_u32 {sG}, -3")
                a("s_cbranch_scc1 K2_LOOPDONE" if not last else "s_cbranch_scc0 K2_D0")
        else:
            a(f"s_sub_u32 {sG}, {sG}, 1\ns_cmp_eq_u32 {sG}, 0" if not P.get("subcc") else f"s_sub_u32 {sG}, {sG}, 1")
            a("s_cbranch_scc1 K2_LOOPDONE" if not last else "s_cbranch_scc0 K2_LOOP")
    a = a_real
    if PR == "quart":
        a("s_branch K2_LOOPDONE\nK2_PRIO:\ns_sub_i32 s41, s41, s40\ns_add_u32 s42, s42, 1")
        a("s_setprio 2\ns_cmp_eq_u32 s42, 1\ns_cbranch_scc1 K2_PRIOBACK\ns_setprio 1\ns_cmp_eq_u32 s42, 2\ns_cbranch_scc1 K2_PRIOBACK\ns_setprio 0\ns_branch K2_PRIOBACK")
    a("K2_LOOPDONE:")
```

```python
import sys
from asmlib import Asm
from loopgen import gen_loop, pre_mfmas
from gen import HEADER as _H, scan_incl, f32, LOG2E, LN2, desc

N, E = 10000, 320000
NB, NP, CH = 256, 250, 1280
WS_EPO, WS_TAB, WS_KEY, WS_PAY, WS_FLG, WS_END = 0, 0x2000, 0x82000, 0x300000, 0x7F0000, 0x800000
WS_TS = 0x8000000
FS = 128
NAME = "gather_scatter__tensor_product_equiv_tfn__graph_kernel"
HEADER = _H[:_H.index("; Launch 1")] + """; One launch, 256 workgroups (one per CU).
; Phase 1: 250 workgroups each bin a chunk of 1280 edges by destination block (256 bins) and publish it in d_ws with
;          write-through stores: table row and keys as 8-byte pieces carrying this launch's tag, Y/edge_feat behind a flag.
;          (tag = epoch word of d_ws + 1; workgroups that saw all 256 rows store the tag back as the next epoch.)
; Phase 2: every workgroup collects its own bin, sorts it by (owner wave, source bucket), gathers x rows, does the
;          tensor product + radial gate in registers, mixes the channels and stores.
; If the hand-off never arrives (workgroups not co-resident) a workgroup scans the raw edge list on its own.
"""
A39 = [6, 5, 6, 7, 4, 2, 0, 1, 3, 4, 6, 3, 2, 0, 6, 1, 3, 5, 7, 1, 0, 5, 7, 4, 2, 1, 5, 4, 7, 3, 2, 0, 2, 0, 7, 1, 3, 4, 5, 6]
A40 = [3, 2, 4, 7, 0, 1, 6, 0, 5, 1, 7, 5, 6, 3, 4, 6, 5, 0, 2, 7, 1, 4, 6, 3, 2, 1, 3, 0, 5, 4, 2, 7, 2, 5, 4, 7, 1, 6, 0, 3]
DPP = ["row_shr:1 row_mask:0xf bank_mask:0xf", "row_shr:2 row_mask:0xf bank_mask:0xf", "row_shr:4 row_mask:0xf bank_mask:0xf",
       "row_shr:8 row_mask:0xf bank_mask:0xf", "row_bcast:15 row_mask:0xa bank_mask:0xf", "row_bcast:31 row_mask:0xc bank_mask:0xf"]

def gen(P=None, verbose=False):
    P = dict(dict(prio="pair2", sched="b", subcc=1, out_aux="sc1", pf=3, pfx=2, drain=1, nolo=1, epre=1, aswz=1, earlyA=1), **(P or {}))
    a = Asm()
    FS = P.get("FS", 128)
    DE = P.setdefault("DE", 8); ngr = (DE + 3) // 4; SAFE = P.get("safe"); PR = P["prio"]
    CAPW = 192; CAP = 8 * CAPW; NE = CAP + 8 * 48 + 16
    L_CNT, L_DEG, L_HCNT, L_FB, L_PROG, L_OFF = 0, 512, 768, 1792, 2048, 4096
    L_NODE = L_OFF + NE * 4
    L_PAY = (L_NODE + NE + 63) // 64 * 64
    L_A = L_PAY + NE * 16
    L_AGG = (L_A + NE * 32 + 255) // 256 * 256
    RS = 288
    L_END = L_AGG + 160 * RS
    L_MARK = L_AGG; L_WM = L_AGG + 8192; L_WR = L_WM + 32768; L_CG = L_WR + 1024; L_MAP = L_CG + 128
    L_PRE = L_OFF; L_TABL = L_OFF + 1024; L_SKEY = L_PAY; L_SPAY = L_A
    assert L_SPAY + 16384 < 65536 and L_MAP + 128 <= L_END
    ACC, XR, TP, TA, TB, EE, WF, AOP, EF, OFFS, NODE = 16, 56, 120, 152, 160, 168, 176, 184, 186, 188, 192
    vOffA, vNodeA, vAA, vEfA = 196, 197, 198, 199
    BF, CGF, PP, PL, PD = 200, 232, 240, 244, 248
    vPm, vPo, vPv = 252, 253, 254
    sW, sT, sRB, sG, sN, sBase, sLen, sTag, sBin, sNs, sFB = "s3", "s46", "s47", "s48", "s49", "s50", "s51", "s52", "s53", "s54", "s55"
    sRole, sT8, sRot = "s40", "s26", "s27"
    XS, OS, WSR = "s[28:31]", "s[32:35]", "s[36:39]"
    M = lambda u: f"s[{40+2*u}:{41+2*u}]"
    tsn = [0]; gen.names = []
    DEFST = ["start", "Bb", "Bc1", "Bc", "Bx", "keys", "pollP", "Bd", "Be", "Bf", "loop0", "loop1", "Bg", "end"]
    def stamp(name):
        if P.get("hold_at") == name:
            a(f"s_waitcnt lgkmcnt(0)\ns_add_u32 s70, s70, {P['hold_x']}\nK_HOLDP:\ns_memrealtime s[68:69]\ns_waitcnt lgkmcnt(0)\ns_sub_u32 s68, s68, s70\ns_cmp_lt_i32 s68, 0\ns_cbranch_scc1 K_HOLDP")
        if P.get("ts") and name in P.get("stamps", DEFST):
            gen.names.append(name)
            r = 70 + 2 * tsn[0]; a(f"s_memrealtime s[{r}:{r+1}]"); tsn[0] += 1

    a(f".globl {NAME}\n.p2align 8\n.type {NAME},@function\n{NAME}:")
    a(f"s_cmp_ge_u32 s2, {NB}\ns_cbranch_scc1 K_END")
    a("s_load_dwordx16 s[4:19], s[0:1], 0\ns_load_dwordx2 s[20:21], s[0:1], 64\ns_load_dwordx2 s[24:25], s[0:1], 80")
    stamp("start")
    if P.get("hold_at"): a("s_memrealtime s[70:71]")
    D, S, Y, F, B4, RK1 = TP, TP + 4, TP + 8, TP + 16, TP + 24, TP + 28
    KY, t, tmp, KG = XR, XR + 4, XR + 8, XR + 10
    la = P.get("load_aux", "")
    a("v_lshrrev_b32 v2, 6, v0\nv_and_b32 v1, 63, v0\nv_readfirstlane_b32 s3, v2")
    a(f"v_lshlrev_b32 v10, 4, v0\ns_mul_i32 s57, s2, {CH*4}\nv_lshlrev_b32 v3, 2, v0")
    if P.get("pfcode0", 1):
        a(f"s_cmp_lg_u32 s3, 5\ns_cbranch_scc1 K_PF0\ns_getpc_b64 s[26:27]\nK_PC3:\nv_lshlrev_b32 v13, 7, v1\nglobal_load_dword v255, v13, s[26:27]")
        a(f"v_add_u32 v13, 8192, v13\nv_min_u32 v13, K_TAB-K_PC3, v13\nglobal_load_dword v255, v13, s[26:27]\nK_PF0:")
    a("v_or_b32 v13, 0x4b000000, v1\ns_cmp_eq_u32 s3, 2\ns_cselect_b32 s56, -1, 0")
    a("v_add_u32 v11, s57, v10\nv_and_b32 v13, s56, v13\nv_lshlrev_b32 v12, 1, v11")
    a("ds_write_b32 v3, v13")
    a(f"s_cmp_lt_u32 s2, {NP}\ns_cselect_b32 s56, 5, 0\ns_cmp_lt_u32 {sW}, s56")
    stamp("prek")
    TL = P.get("tlb", 0)
    if TL:
        a(f"s_cselect_b32 {sRole}, 1, 0\ns_lshr_b32 s58, s2, 3\ns_cmp_lt_u32 s58, 11\ns_cbranch_scc0 K_NOTLB")
        a(f"s_cmp_lg_u32 {sW}, 6\ns_cbranch_scc1 K_TLB1\ns_lshl_b32 s59, s58, 3\ns_load_dwordx2 s[64:65], s[0:1], s59")
        a("s_mov_b32 s66, 128\ns_mov_b32 s67, 0x20000")
        for idx, size in ((0, 10240000), (1, 1280000), (2, 1280000), (3, 2560000), (4, 2560000), (7, 32768), (8, 10240000), (10, WS_END)):
            a(f"s_cmp_eq_u32 s58, {idx}\ns_cselect_b32 s66, {size}, s66")
        a("s_lshr_b32 s59, s66, 6\ns_and_b32 s59, s59, -4\nv_mul_lo_u32 v14, s59, v1\ns_waitcnt lgkmcnt(0)\nbuffer_load_dword v255, v14, s[64:67], 0 offen")
        a("K_TLB1:")
        if TL == 2: a("s_barrier")
        a(f"K_NOTLB:\ns_cmp_lg_u32 {sRole}, 0")
    a("s_waitcnt lgkmcnt(0)")
    stamp("karg")
    def setup0():
        if P.get("wsoff"): a(f"s_add_u32 s24, s24, {P['wsoff']}\ns_addc_u32 s25, s25, 0")
        a(f"s_load_dword {sTag}, s[24:25], {WS_EPO}")
        for k in range(4, 8): a(f"v_mov_b32 v{k}, 0")
        a(f"v_add_u32 v8, {L_MARK}, v10\nv_lshlrev_b32 v9, 4, v1\nv_lshlrev_b32 v15, 2, v1")
        a(f"ds_write_b128 v8, v[4:7]\nds_write_b32 v3, v4 offset:{L_PROG}")
        a(f"s_and_b32 {sBin}, s2, 7\ns_lshr_b32 s56, s2, 3\ns_lshl_b32 {sBin}, {sBin}, 5\ns_or_b32 {sBin}, {sBin}, s56")
    def setup():
        a(f"s_mul_i32 {sNs}, {sBin}, 625\ns_add_u32 s57, {sNs}, 640\ns_add_u32 {sNs}, {sNs}, 15\ns_lshr_b32 {sNs}, {sNs}, 4\ns_lshr_b32 s57, s57, 4")
        if SAFE: a("s_mov_b32 s28, s4\ns_mov_b32 s29, s5\ns_mov_b32 s30, 10240000\ns_mov_b32 s31, 0x20000")
        else: a("s_mov_b32 s28, s4\ns_and_b32 s29, s5, 0xffff\ns_or_b32 s29, s29, 0x100000\ns_mov_b32 s30, 10240000\ns_mov_b32 s31, 0x800000")
        a("s_mov_b32 s32, s20\ns_mov_b32 s33, s21\ns_lshl_b32 s34, s57, 10\ns_mov_b32 s35, 0x20000")
        a(f"s_mov_b32 s36, s24\ns_mov_b32 s37, s25\ns_mov_b32 s38, {WS_END}\ns_mov_b32 s39, 0x20000")
        a(f"s_mov_b32 {sRB}, 0\ns_mov_b32 s63, 0\nv_mov_b32 v14, 1")
        a(f"s_lshr_b32 {sRot}, {sBin}, 5\ns_mul_i32 {sRot}, {sRot}, 20009\ns_add_u32 {sRot}, {sRot}, 14\ns_lshr_b32 {sRot}, {sRot}, 4\ns_lshl_b32 {sRot}, {sRot}, 10")
        for k in range(40): a(f"v_mov_b32 v{ACC+k}, 0")
    def keycalc(Dr, Br, Kr, tm):
        a(f"v_mul_u32_u24 v{tm}, 625, v{Br}\nv_add_u32 v{tm}, 15, v{tm}\nv_lshrrev_b32 v{tm}, 4, v{tm}\nv_sub_u32 v{Kr}, v{Dr}, v{tm}")
    def keycalc2(Sr, Kr, tm):
        a(f"v_mul_u32_u24 v{tm}, 1677, v{Sr}\nv_lshrrev_b32 v{tm}, 20, v{tm}\nv_lshl_or_b32 v{Kr}, v{Kr}, 4, v{tm}\nv_lshl_or_b32 v{Kr}, v{Sr}, 10, v{Kr}")
    a("s_cbranch_scc0 K_BA")
    a(f"global_load_dwordx4 v[{D}:{D+3}], v11, s[8:9] {la}")
    if P.get("sfirst", 1): a(f"global_load_dwordx4 v[{S}:{S+3}], v11, s[6:7] {la}")
    a("K_BA:\ns_barrier\ns_cbranch_scc0 K_HELP")
    if not P.get("sfirst", 1): a(f"global_load_dwordx4 v[{S}:{S+3}], v11, s[6:7] {la}")
    for i in range(P.get("ydelay", 0)): a("s_nop 15")
    for h in range(2): a(f"global_load_dwordx4 v[{Y+4*h}:{Y+4*h+3}], v12, s[10:11] offset:{16*h} {la}")
    for h in range(2): a(f"global_load_dwordx4 v[{F+4*h}:{F+4*h+3}], v12, s[12:13] offset:{16*h} {la}")
    stamp("ldiss")
    a(f"s_mov_b32 {sRole}, 1")
    setup0(); setup()
    stamp("setup")
    a("s_waitcnt vmcnt(5)")
    stamp("dst")
    for u in range(4):
        a(f"v_mul_u32_u24 v{t+u}, 214749, v{D+u}\nv_lshrrev_b32 v{t+u}, 23, v{t+u}\nv_lshlrev_b32 v{B4+u}, 2, v{t+u}")
        a(f"ds_add_rtn_u32 v{RK1+u}, v{B4+u}, v14 offset:{L_HCNT}")
    for u in range(4): keycalc(D+u, t+u, KY+u, tmp)
    a("s_branch K_BB")
    a(f"K_HELP:\ns_mov_b32 {sRole}, 0")
    setup0()
    if P.get("pfcode"):
        a(f"s_cmp_lg_u32 {sW}, 5\ns_cbranch_scc1 K_HELP1\ns_getpc_b64 s[26:27]\nK_PC2:\nv_lshlrev_b32 v13, 7, v1\nglobal_load_dword v255, v13, s[26:27]")
        a(f"v_add_u32 v13, 8192, v13\nv_min_u32 v13, K_TAB-K_PC2, v13\nglobal_load_dword v255, v13, s[26:27]\nK_HELP1:")
    a(f"s_cmp_eq_u32 {sW}, 7\ns_cbranch_scc1 K_HELP7\ns_cmp_lg_u32 {sW}, 6\ns_cbranch_scc1 K_HELP2")
    a(f"s_and_b32 s56, {sBin}, 31\ns_lshl_b32 s56, s56, 10\nv_lshl_add_u32 v13, v1, 7, s56\ns_mov_b64 exec, 0xff")
    a("global_load_dword v255, v13, s[18:19]\ns_mov_b64 exec, -1\ns_branch K_HELP2\nK_HELP7:")
    a(f"s_mov_b32 m0, {L_WR}\ns_getpc_b64 s[26:27]\nK_PC:\nglobal_load_lds_dwordx4 v9, s[14:15]")
    a(f"s_add_u32 s26, s26, K_TAB-K_PC\ns_addc_u32 s27, s27, 0\ns_mov_b32 m0, {L_CG}\ns_mov_b64 exec, 0xff\nglobal_load_lds_dwordx4 v9, s[16:17]")
    a(f"s_mov_b32 m0, {L_MAP}\ns_nop 0\nglobal_load_lds_dwordx4 v9, s[26:27]\ns_mov_b64 exec, -1")
    a("K_HELP2:")
    setup()
    a("K_BB:\ns_waitcnt lgkmcnt(0)\ns_barrier")
    stamp("Bb")
    c = TA; q = TB
    a(f"s_add_u32 {sTag}, {sTag}, 1\ns_and_b32 s56, {sTag}, 0x3ff\ns_lshl_b32 s58, s56, 22\ns_lshl_b32 {sT8}, {sTag}, 24")
    a(f"s_cmp_eq_u32 {sW}, 7\ns_cselect_b32 s56, 1, {sRole}\ns_cmp_eq_u32 s56, 0\ns_cbranch_scc1 K_BC1")
    a(f"ds_read_b128 v[{c}:{c+3}], v9 offset:{L_HCNT}")
    a(f"s_cmp_eq_u32 {sW}, 7\ns_cbranch_scc1 K_SC\ns_waitcnt vmcnt(4)")
    for u in range(4): keycalc2(S+u, KY+u, t+u)
    a("K_SC:\ns_waitcnt lgkmcnt(0)")
    a(f"v_add_u32 v{c+4}, v{c}, v{c+1}\nv_add_u32 v{c+5}, v{c+4}, v{c+2}\nv_add_u32 v{c+6}, v{c+5}, v{c+3}\nv_mov_b32 v{q}, v{c+6}")
    fill = [x for u in range(4) for x in (f"v_or_b32 v{KG+2*u}, {sT8}, v{KY+u}", f"v_mov_b32 v{KG+2*u+1}, {sTag}")]
    for k in range(6):
        for x in fill[2*k:2*k+2]: a(x)
        a(f"v_add_u32_dpp v{q}, v{q}, v{q} {DPP[k]}")
    a(f"v_sub_u32 v{q}, v{q}, v{c+6}\nv_add_u32 v{q+1}, v{q}, v{c}\nv_add_u32 v{q+2}, v{q}, v{c+4}\nv_add_u32 v{q+3}, v{q}, v{c+5}")
    a(f"s_cmp_lg_u32 {sW}, 7\ns_cbranch_scc1 K_NOROW")
    g = EE
    for i in range(4):
        a(f"v_lshl_or_b32 v{g+2*i}, v{c+i}, 11, v{q+i}\nv_or_b32 v{g+2*i}, s58, v{g+2*i}\nv_mov_b32 v{g+2*i+1}, {sTag}")
    a(f"s_lshl_b32 s57, s2, 11\ns_add_u32 s57, s57, {WS_TAB}\nv_lshlrev_b32 v12, 5, v1")
    a(f"buffer_store_dwordx4 v[{g}:{g+3}], v12, {WSR}, s57 offen sc1\nbuffer_store_dwordx4 v[{g+4}:{g+7}], v12, {WSR}, s57 offen offset:16 sc1")
    a("s_branch K_BC1\nK_NOROW:")
    a(f"ds_write_b128 v9, v[{q}:{q+3}] offset:{L_PRE}")
    for u in range(4): a(f"ds_read_b32 v{t+u}, v{B4+u} offset:{L_PRE}")
    for u in range(4):
        a(f"s_waitcnt lgkmcnt(3)\nv_add_lshl_u32 v{B4+u}, v{t+u}, v{RK1+u}, 3")
        a(f"ds_write_b64 v{B4+u}, v[{KG+2*u}:{KG+2*u+1}] offset:{L_SKEY}")
    a(f"s_mov_b32 s56, {L_SPAY}")
    for u in range(4): a(f"v_lshl_add_u32 v{B4+u}, v{B4+u}, 1, s56")
    a("K_BC1:")
    a(f"s_mul_i32 s60, s2, {CH*8}\ns_add_u32 s60, s60, {WS_KEY}")
    a(f"s_sub_u32 s56, {sW}, 5\ns_lshl_b32 s57, s56, 14\nv_add_u32 v13, s57, v9\ns_add_u32 s57, s57, {L_WM}")
    a("s_waitcnt lgkmcnt(0)\ns_barrier")
    stamp("Bc1")
    o = XR + 20
    a(f"s_cmp_ge_u32 s2, {NP}\ns_cbranch_scc1 K_KS2")
    a(f"ds_read_b128 v[{o}:{o+3}], v10 offset:{L_SKEY}")
    a(f"s_cmp_lt_u32 s56, 2\ns_cbranch_scc0 K_KS1")
    a(f"ds_read_b128 v[{o+4}:{o+7}], v10 offset:{L_SKEY + 8192 - 5120}\ns_add_u32 s59, s60, {8192 - 5120}")
    a(f"s_waitcnt lgkmcnt(0)\nbuffer_store_dwordx4 v[{o+4}:{o+7}], v10, {WSR}, s59 offen sc1")
    a(f"K_KS1:\ns_waitcnt lgkmcnt(0)\nbuffer_store_dwordx4 v[{o}:{o+3}], v10, {WSR}, s60 offen sc1")
    a(f"K_KS2:\ns_cmp_lt_u32 s56, 2\ns_cbranch_scc1 K_DMA\ns_cmp_eq_u32 {sRole}, 0\ns_cbranch_scc1 K_BC7")
    if P.get("ts") and "y0" in P.get("stamps", []):
        a("s_waitcnt vmcnt(4)"); stamp("y0"); a("s_waitcnt vmcnt(3)"); stamp("y1"); a("s_waitcnt vmcnt(2)"); stamp("f0"); a("s_waitcnt vmcnt(1)"); stamp("f1")
    for h in range(2):
        a(f"s_waitcnt vmcnt({2 - h})")
        for u in (2*h, 2*h+1): a(f"ds_write2_b64 v{B4+u}, v[{Y+2*u}:{Y+2*u+1}], v[{F+2*u}:{F+2*u+1}] offset0:0 offset1:1")
    a("s_branch K_BC\nK_DMA:")
    for gidx in range(4):
        a("s_mov_b32 m0, s57\ns_add_u32 s57, s57, 4096")
        for i in range(4): a(f"global_load_lds_dwordx4 v13, s[18:19] offset:{i*1024}")
        if gidx < 3: a("v_add_u32 v13, 4096, v13")
    a(f"s_branch K_BC\nK_BC7:\ns_cmp_ge_u32 s2, {NP}\ns_cbranch_scc0 K_BC8\ns_waitcnt vmcnt(2)\nK_BC8:\ns_waitcnt vmcnt(3)")
    SM = [P.get("sm2", 0), P.get("sm0", 0), P.get("sm3", 0)]
    smw = [8, 8, 4]
    smb = [n_ * 256 * 32 * w_ for n_, w_ in zip(SM, smw)]
    def sfetch(k, first):
        n = SM[k]
        if not n: return
        lim = 10240000 - n * 256 - 128
        if smw[k] == 4: a(f"s_cmp_lt_u32 {sW}, 4\ns_cbranch_scc1 K_NOSM{k}")
        a(f"s_and_b32 s68, {sBin}, 31\ns_mul_i32 s68, s68, {smw[k]}\ns_and_b32 s69, {sW}, {smw[k]-1}\ns_add_u32 s68, s68, s69\ns_mul_i32 s68, s68, {n*256}\ns_add_u32 s68, s68, {sRot}\ns_add_u32 s68, s68, {first}")
        a(f"s_cmp_ge_u32 s68, {lim}\ns_cselect_b32 s69, {lim}, 0\ns_sub_u32 s68, s68, s69\ns_add_u32 s22, s4, s68\ns_addc_u32 s23, s5, 0")
        for i in range(n): a(f"s_load_dwordx2 s[0:1], s[22:23], {i*256 + 124}")
        a(f"K_NOSM{k}:")
    def pfetch(lab, n=None, first=None, extra=0):
        n = n or P["pf"]
        first = P.get("pfc", 0) + P.get("pfd", 0) + P.get("pfx", 0) + P.get("pfk", 0) if first is None else first
        a(f"s_cmp_lt_u32 {sW}, {8-n}\ns_cbranch_scc1 {lab}")
        a("s_mov_b32 s64, s4\ns_mov_b32 s65, s5\ns_mov_b32 s66, 10240000\ns_mov_b32 s67, 0x20000")
        a(f"s_sub_u32 s68, {7 + first}, {sW}\ns_lshl_b32 s68, s68, 5\ns_and_b32 s69, {sBin}, 31\ns_add_u32 s68, s68, s69\ns_lshl_b32 s68, s68, 13\ns_add_u32 s68, s68, {sRot}")
        if extra: a(f"s_add_u32 s68, s68, {extra}")
        a(f"v_lshlrev_b32 v12, 7, v1\nbuffer_load_dword v255, v12, s[64:67], s68 offen")
    a("K_BC:")
    if P.get("pfc"):
        pfetch("K_NOPFC", P["pfc"], 0); a("K_NOPFC:")
    a(f"s_mul_i32 s56, s2, {CH*16}\ns_add_u32 s56, s56, {WS_PAY}\ns_add_u32 s57, s56, 8192\ns_add_u32 s59, s56, 16384")
    a(f"v_lshlrev_b32 v11, 11, v0\ns_lshl_b32 s61, {sBin}, 3\ns_add_u32 s61, s61, {WS_TAB}")
    a("s_waitcnt lgkmcnt(0)\ns_barrier")
    stamp("Bc")
    o = XR
    a(f"s_cmp_ge_u32 s2, {NP}\ns_cbranch_scc1 K_NOST")
    for u in range(3): a(f"ds_read_b128 v[{o+4*u}:{o+4*u+3}], v10 offset:{L_SPAY + 8192*u}")
    a(f"s_waitcnt lgkmcnt(2)\nbuffer_store_dwordx4 v[{o}:{o+3}], v10, {WSR}, s56 offen sc1")
    a(f"s_waitcnt lgkmcnt(1)\nbuffer_store_dwordx4 v[{o+4}:{o+7}], v10, {WSR}, s57 offen sc1")
    a(f"s_cmp_ge_u32 {sW}, 4\ns_cbranch_scc1 K_NOST")
    a(f"s_waitcnt lgkmcnt(0)\nbuffer_store_dwordx4 v[{o+8}:{o+11}], v10, {WSR}, s59 offen sc1")
    a("K_NOST:")
    if P.get("earlyA"): a(f"s_cmp_ge_u32 {sW}, 4\ns_cbranch_scc1 K_NOA0\nbuffer_load_dwordx2 v[{TA}:{TA+1}], v11, {WSR}, s61 offen sc1\nK_NOA0:")
    if P.get("pfd"):
        pfetch("K_NOPFD", P["pfd"], P.get("pfc", 0)); a("K_NOPFD:")
    RW, RC, RM = OFFS, NODE, TP
    a(f"s_lshr_b32 s56, s34, 10\ns_sub_u32 s56, s56, {sNs}\ns_sub_u32 s56, s56, 39\ns_lshl_b32 s56, s56, 6\ns_add_u32 s56, s56, {L_MAP}")
    a(f"v_add_u32 v2, s56, v1\nv_add_u32 v13, {L_WR}, v15\nds_read_u8 v2, v2")
    a(f"ds_read2st64_b32 v[{RW}:{RW+1}], v13 offset0:0 offset1:1\nds_read2st64_b32 v[{RW+2}:{RW+3}], v13 offset0:2 offset1:3")
    a(f"v_and_b32 v12, 3, v1\nv_lshlrev_b32 v12, 5, v12\nv_bfe_u32 v13, v1, 2, 2\nv_lshl_or_b32 v12, v13, 1, v12\nv_add_u32 v12, {L_CG}, v12")
    for f_ in range(4): a(f"ds_read_u16 v{RC+f_}, v12 offset:{f_*8}")
    a(f"v_mov_b32 v{vPm}, v3\nv_xor_b32 v{vPo}, 1024, v3\nv_mul_u32_u24 v{AOP+1}, {FS}, v0")
    a(f"s_mov_b32 s56, {f32(-LOG2E)}\ns_waitcnt lgkmcnt(0)")
    sfetch(0, 0)
    w = TP + 16
    for h in range(2):
        for k in range(4):
            a(f"v_lshlrev_b32 v{w+k}, 16, v{RW+k}" if h == 0 else f"v_and_b32 v{w+k}, 0xffff0000, v{RW+k}")
            a(f"v_mul_f32 v{w+4+k}, s56, v{w+k}")
        oo = WF + 4*h
        a(f"v_cvt_pk_bf16_f32 v{oo}, v{w+4}, v{w+5}\nv_cvt_pk_bf16_f32 v{oo+1}, v{w+6}, v{w+7}")
        if not P.get("nolo"):
            for k in range(4):
                a(f"v_lshlrev_b32 v{w+4+k}, 16, v{oo + k//2}" if k % 2 == 0 else f"v_and_b32 v{w+4+k}, 0xffff0000, v{oo + k//2}")
                a(f"v_fma_f32 v{w+4+k}, s56, v{w+k}, -v{w+4+k}")
            a(f"v_cvt_pk_bf16_f32 v{oo+2}, v{w+4}, v{w+5}\nv_cvt_pk_bf16_f32 v{oo+3}, v{w+6}, v{w+7}")
    a(f"v_lshl_or_b32 v{w}, v{RC+1}, 16, v{RC}\nv_lshl_or_b32 v{w+1}, v{RC+3}, 16, v{RC+2}\nv_lshrrev_b32 v13, 4, v1")
    for gg in range(4):
        a(f"v_cmp_eq_u32 vcc, {gg}, v13")
        a(f"v_cndmask_b32 v{CGF+2*gg}, 0, v{w}, vcc\nv_cndmask_b32 v{CGF+2*gg+1}, 0, v{w+1}, vcc")
    a(f"v_mul_u32_u24 v13, {4*CH}, v1")
    def wmextract():
        a(f"s_and_b32 s56, {sW}, 3\ns_lshl_b32 s56, s56, 6\ns_add_u32 s56, s56, {L_WM}")
        a("v_lshrrev_b32 v10, 4, v1\nv_lshlrev_b32 v10, 11, v10\nv_and_b32 v12, 15, v1\nv_lshl_or_b32 v10, v12, 2, v10\nv_add_u32 v10, s56, v10")
        a("s_mov_b32 s56, 0x05040100\ns_mov_b32 s57, 0x07060302")
        for ks in range(4):
            for i in range(4): a(f"ds_read2st64_b32 v[{RM+8*ks+2*i}:{RM+8*ks+2*i+1}], v10 offset0:{32*ks+2*i} offset1:{32*ks+2*i+1}")
        for ks in range(4):
            for i in range(4):
                a(f"s_waitcnt lgkmcnt({15 - 4*ks - i})")
                a(f"v_perm_b32 v{BF+4*ks+i}, v{RM+8*ks+2*i+1}, v{RM+8*ks+2*i}, s56")
                a(f"v_perm_b32 v{BF+16+4*ks+i}, v{RM+8*ks+2*i+1}, v{RM+8*ks+2*i}, s57")
    a(f"s_cmp_ge_u32 {sW}, 4\ns_cbranch_scc1 K_TABOK")
    a(f"s_mov_b32 s59, {P.get('timeout', 40000)}\ns_lshr_b32 s58, s58, 22")
    if P.get("earlyA"): a("s_branch K_POLLA1")
    a(f"K_POLLA:\nbuffer_load_dwordx2 v[{TA}:{TA+1}], v11, {WSR}, s61 offen sc1\nK_POLLA1:\ns_waitcnt vmcnt(0)")
    a(f"v_lshrrev_b32 v{TA+2}, 22, v{TA}\nv_cmp_ne_u32 vcc, {sTag}, v{TA+1}\nv_cmp_ne_u32 s[56:57], s58, v{TA+2}\ns_or_b64 vcc, vcc, s[56:57]")
    if P.get("force_fb"): a("s_mov_b64 vcc, -1")
    a("s_cbranch_vccz K_POLLAOK")
    a(f"s_sub_u32 s59, s59, 1\ns_cbranch_scc0 K_POLLA")
    a(f"ds_write_b32 v4, v14 offset:{L_FB}")
    a(f"K_POLLAOK:\nds_write_b32 v3, v{TA} offset:{L_TABL}")
    a("K_TABOK:\ns_waitcnt vmcnt(0) lgkmcnt(0)\ns_barrier")
    stamp("Bx")
    a(f"s_cmp_lg_u32 {sW}, 0\ns_cbranch_scc1 K_NOFLAG")
    a(f"s_mul_i32 s56, s2, {FS}\ns_add_u32 s56, s56, {WS_FLG}\nv_mov_b32 v10, {sTag}\ns_mov_b64 exec, 1")
    a(f"buffer_store_dword v10, v4, {WSR}, s56 offen sc1\ns_mov_b64 exec, -1\nK_NOFLAG:")
    a(f"ds_read_b128 v[{TP}:{TP+3}], v9 offset:{L_TABL}\nds_read_b32 v10, v4 offset:{L_FB}")
    if P.get("pfx"):
        pfetch("K_NOPFX", P["pfx"], P.get("pfc", 0) + P.get("pfd", 0), smb[0]); a("K_NOPFX:")
    a("s_waitcnt lgkmcnt(0)")
    a(f"v_readfirstlane_b32 {sFB}, v10")
    c = TP + 4; p = TP + 8
    for i in range(4): a(f"v_bfe_u32 v{c+i}, v{TP+i}, 11, 11")
    a(f"v_add_u32 v{p+1}, v{c}, v{c+1}\nv_add_u32 v{p+2}, v{p+1}, v{c+2}\nv_add_u32 v{p+3}, v{p+2}, v{c+3}\nv_mov_b32 v{p+4}, v{p+3}")
    fill = []
    for i in range(4):
        fill.append(f"v_and_b32 v{TP+i}, 0x7ff, v{TP+i}")
        fill.append(f"v_add_u32 v{PD+i}, v13, v{TP+i}")
        if i: fill.append(f"v_add_u32 v{PD+i}, {i*CH}, v{PD+i}")
    for k in range(6):
        for x in fill[2*k:2*k+2]: a(x)
        a(f"v_add_u32_dpp v{p+4}, v{p+4}, v{p+4} {DPP[k]}")
    a(f"s_cmp_lg_u32 {sFB}, 0\ns_cbranch_scc1 K_FB0")
    a(f"v_readlane_b32 {sT}, v{p+4}, 63")
    a(f"v_sub_u32 v{PP}, v{p+4}, v{p+3}")
    a(f"v_add_u32 v{PP+1}, v{PP}, v{c}\nv_add_u32 v{PP+2}, v{PP}, v{p+1}\nv_add_u32 v{PP+3}, v{PP}, v{p+2}")
    for i in range(4):
        a(f"v_sub_u32 v{PD+i}, v{PD+i}, v{PP+i}\nv_add_u32 v{PL+i}, v{PP+i}, v{c+i}")
    m = XR; f = m + 12; KEY = m + 16; RK = m + 22; ad = m + 25; CD = m + 28; PAYR = m + 32; PA = m + 44; CI = m + 47; q = m + 52
    FL = AOP
    a("K_ROUND:")
    a(f"s_mul_i32 s56, {sW}, {CAPW}\ns_add_u32 s56, s56, {sRB}\ns_add_u32 s57, s56, {CAPW}")
    a(f"s_lshl_b32 s58, {sW}, 10\ns_add_u32 s58, s58, {L_MARK}")
    for i in range(4):
        a(f"v_cmp_lt_u32 vcc, s56, v{PL+i}\nv_cmp_gt_u32 s[60:61], s57, v{PP+i}")
        a(f"v_subrev_u32 v{m+i}, s56, v{PP+i}\nv_max_i32 v{m+i}, 0, v{m+i}\nv_lshl_add_u32 v{m+i}, v{m+i}, 2, s58")
        a(f"s_and_b64 exec, vcc, s[60:61]\nds_max_u32 v{m+i}, v{PD+i}\ns_mov_b64 exec, -1")
    a(f"v_add_u32 v{m+4}, s58, v15")
    for u in range(3): a(f"ds_read_b32 v{m+8+u}, v{m+4} offset:{u*256}")
    a(f"v_add_u32 v{f}, s56, v1\nv_add_u32 v{f+1}, 64, v{f}\nv_add_u32 v{f+2}, 128, v{f}")
    for u in range(3): a(f"v_cmp_gt_u32 {M(u)}, {sT}, v{f+u}")
    a(f"s_mov_b32 s60, {WS_KEY}\ns_mov_b32 s61, {WS_PAY}\ns_lshr_b32 s62, {sT8}, 24")
    a("s_waitcnt lgkmcnt(0)")
    scan_incl(a, "v_max_u32", [m+8, m+9, m+10])
    a(f"v_readlane_b32 s56, v{m+8}, 63\nv_readlane_b32 s57, v{m+9}, 63\nv_add_u32 v{f}, v{f}, v{m+8}")
    a(f"s_max_u32 s57, s56, s57")
    a(f"v_max_u32 v{m+9}, s56, v{m+9}\nv_max_u32 v{m+10}, s57, v{m+10}")
    a(f"v_add_u32 v{f+1}, v{f+1}, v{m+9}\nv_add_u32 v{f+2}, v{f+2}, v{m+10}")
    for u in range(3): a(f"v_lshlrev_b32 v{ad+u}, 3, v{f+u}")
    stamp("marks")
    def keyloads():
        for u in range(3):
            a(f"s_mov_b64 exec, {M(u)}\nbuffer_load_dwordx2 v[{KEY+2*u}:{KEY+2*u+1}], v{ad+u}, {WSR}, s60 offen sc1")
        a("s_mov_b64 exec, -1")
    keyloads()
    for u in range(3): a(f"v_lshlrev_b32 v{PA+u}, 4, v{f+u}")
    a(f"s_cmp_lg_u32 {sRB}, 0\ns_cbranch_scc1 K_KEYS1")
    TWO = P.get("two", 0); M2 = lambda u: ("s[0:1]", "s[20:21]", "s[22:23]")[u]
    if TWO:
        for u in range(3): a(f"v_lshrrev_b32 v{f+u}, 8, v{f+u}\nv_mul_u32_u24 v{f+u}, 52429, v{f+u}\nv_lshrrev_b32 v{f+u}, 18, v{f+u}\nv_lshlrev_b32 v{f+u}, 2, v{f+u}")
    wmextract()
    sfetch(1, smb[0] + P.get("pfx", 0) * 262144)
    stamp("wmx")
    a("s_branch K_KEYS1\nK_KEYS:")
    keyloads()
    a(f"K_KEYS1:\nv_mov_b32 v14, 64\ns_mov_b64 s[58:59], 0")
    for u in range(3):
        a(f"s_waitcnt vmcnt({2-u})")
        a(f"v_lshrrev_b32 v{RK+u}, 24, v{KEY+2*u}\nv_cmp_ne_u32 vcc, {sTag}, v{KEY+2*u+1}\nv_cmp_ne_u32 s[56:57], s62, v{RK+u}")
        a(f"s_or_b64 vcc, vcc, s[56:57]\ns_and_b64 vcc, vcc, {M(u)}\ns_or_b64 s[58:59], s[58:59], vcc")
    a("s_cbranch_scc1 K_KEYS")
    stamp("keys")
    def payloads():
        for u in range(3):
            a(f"s_mov_b64 exec, {M(u)}\nbuffer_load_dwordx4 v[{PAYR+4*u}:{PAYR+4*u+3}], v{PA+u}, {WSR}, s61 offen sc1")
        a("s_mov_b64 exec, -1")
    a(f"s_cmp_lg_u32 {sRB}, 0\ns_cbranch_scc1 K_LATER")
    if P.get("pe", 0) >= 2: a(f"s_mov_b32 s62, {WS_FLG}")
    else: a(f"s_mov_b32 s62, {WS_FLG}\ns_cmp_lt_u32 {sW}, 4\ns_cbranch_scc0 K_GOT\nbuffer_load_dword v{FL}, v{FL+1}, {WSR}, s62 offen sc1")
    a("K_GOT:")
    for u in range(3):
        a(f"v_lshrrev_b32 v{ad+u}, 2, v{KEY+2*u}\nv_and_b32 v{ad+u}, 0xfc, v{ad+u}")
    for u in range(3): a(f"s_mov_b64 exec, {M(u)}\nds_add_u32 v{ad+u}, v14 offset:{L_DEG}")
    a("s_mov_b64 exec, -1")
    if P.get("pfk"):
        pfetch("K_NOPFK", P["pfk"], P.get("pfc", 0) + P.get("pfd", 0) + P.get("pfx", 0)); a("K_NOPFK:")
    a(f"s_lshr_b32 s56, {sW}, 2\ns_or_b32 s56, s56, {sFB}\ns_cbranch_scc1 K_POLLBOK")
    PE = P.get("pe", 0)
    if PE:
        a("K_POLLBOK:\ns_waitcnt lgkmcnt(0)")
        stamp("pollP")
        a("s_barrier")
        stamp("Bd")
    elif not TWO:
        a(f"K_POLLB:\ns_waitcnt vmcnt(0)\nv_cmp_ne_u32 vcc, {sTag}, v{FL}\ns_cbranch_vccz K_POLLBOK")
        a(f"buffer_load_dword v{FL}, v{FL+1}, {WSR}, s62 offen sc1\ns_branch K_POLLB")
        a("K_POLLBOK:\ns_waitcnt lgkmcnt(0)")
        sfetch(2, smb[0] + smb[1] + P.get("pfx", 0) * 262144)
        stamp("pollP")
        a("s_barrier")
        stamp("Bd")
        a(f"s_cmp_lg_u32 {sFB}, 0\ns_cbranch_scc1 K_NOPF")
        payloads()
        if P["pf"]: pfetch("K_NOPF", extra=sum(smb))
        a("K_NOPF:")
    else:
        a(f"s_waitcnt vmcnt(0)\nds_write_b32 v3, v{FL} offset:{L_PRE}")
        a("K_POLLBOK:\ns_waitcnt lgkmcnt(0)")
        stamp("pollP")
        a("s_barrier")
        stamp("Bd")
        a(f"s_cmp_lg_u32 {sFB}, 0\ns_cbranch_scc1 K_NOPF")
        for u in range(3): a(f"ds_read_b32 v{f+u}, v{f+u} offset:{L_PRE}")
        for u in range(3):
            a(f"s_waitcnt lgkmcnt({2-u})\nv_cmp_eq_u32 vcc, {sTag}, v{f+u}\ns_andn2_b64 {M2(u)}, {M(u)}, vcc\ns_and_b64 exec, {M(u)}, vcc")
            a(f"buffer_load_dwordx4 v[{PAYR+4*u}:{PAYR+4*u+3}], v{PA+u}, {WSR}, s61 offen sc1\ns_mov_b64 exec, -1")
        a(f"s_cmp_lt_u32 {sW}, 4\ns_cbranch_scc0 K_NOPF\nv_cmp_ne_u32 vcc, {sTag}, v{FL}\ns_cbranch_vccz K_NOPF\nbuffer_load_dword v{FL}, v{FL+1}, {WSR}, s62 offen sc1\ns_mov_b32 s63, 1")
        a("K_NOPF:")
    KK = TP; MI = EE
    def flag2(): a(f"s_lshr_b32 s58, {sW}, 2\ns_or_b32 s58, s58, {sFB}\ns_cbranch_scc1 K_NOB2\nbuffer_load_dword v{FL}, v{FL+1}, {WSR}, s62 offen sc1\nK_NOB2:")
    if P.get("pe") == 2: flag2()
    a(f"ds_read_b32 v{MI}, v15 offset:{L_DEG}")
    for jj in range(10): a(f"ds_read_b128 v[{KK+4*jj}:{KK+4*jj+3}], v4 offset:{L_DEG+16*jj}")
    a("v_cmp_gt_u32 vcc, 40, v1")
    for jj in range(20):
        if jj % 2 == 0: a(f"s_waitcnt lgkmcnt({9 - jj//2})")
        tt = KK + 2*jj
        a(f"v_pk_add_f32 v[{tt}:{tt+1}], v[{tt}:{tt+1}], v[{MI}:{MI+1}] op_sel_hi:[1,0] neg_lo:[0,1] neg_hi:[0,1] clamp")
        if jj >= 2: a(f"v_pk_add_f32 v[{tt}:{tt+1}], v[{tt}:{tt+1}], v[{tt-4}:{tt-3}]")
    tt = KK + 38
    a(f"v_pk_add_f32 v[{tt}:{tt+1}], v[{tt}:{tt+1}], v[{tt-2}:{tt-1}]")
    a(f"v_add_f32 v{tt}, v{tt}, v{tt+1}\nv_cvt_u32_f32 v{tt}, v{tt}\nv_lshlrev_b32 v{tt}, 2, v{tt}")
    if P.get("pe") == 3: flag2()
    a(f"ds_bpermute_b32 v2, v{tt}, v2\ns_waitcnt lgkmcnt(0)\nv_cndmask_b32 v2, -1, v2, vcc")
    a("K_BAL:")
    for u in range(3): a(f"ds_bpermute_b32 v{CD+u}, v{ad+u}, v2")
    a("v_mov_b32 v14, 1\nv_lshlrev_b32 v10, 3, v1")
    a(f"s_lshr_b32 s56, {sBin}, 4\ns_and_b32 s56, s56, 14")
    for u in range(3): a(f"v_subrev_u32 v{CI+u}, s56, v{KEY+2*u}\nv_and_b32 v{CI+u}, {P.get('bmask', 15)}, v{CI+u}")
    for u in range(3):
        a(f"s_waitcnt lgkmcnt(2)\ns_mov_b64 exec, {M(u)}")
        a(f"v_and_b32 v{ad+u}, 7, v{CD+u}\nv_lshl_or_b32 v{CI+u}, v{ad+u}, 4, v{CI+u}\nv_lshlrev_b32 v{ad+u}, 2, v{CI+u}")
        a(f"ds_add_rtn_u32 v{RK+u}, v{ad+u}, v14 offset:{L_CNT}")
    a("s_mov_b64 exec, -1")
    for u in range(3):
        a(f"v_lshlrev_b32 v{ad+u}, 1, v{CI+u}\nv_lshlrev_b32 v{CI+u}, 4, v{CI+u}")
        a(f"v_and_b32 v{CD+u}, 0x38, v{CD+u}\nv_and_b32 v{KEY+2*u}, {P.get('xmask', 0xfffc00)}, v{KEY+2*u}")
    a(f"s_lshl_b32 s56, {sW}, 3\ns_add_u32 s57, s56, 7")
    a(f"v_lshrrev_b32 v{q+6}, 3, v1\nv_mul_u32_u24 v{q+6}, 48, v{q+6}")
    if PE:
        a(f"s_lshr_b32 s58, {sW}, 2\ns_or_b32 s58, s58, {sFB}\ns_or_b32 s58, s58, {sRB}\ns_cbranch_scc1 K_POLLCOK")
        a(f"K_POLLC:\ns_waitcnt vmcnt(0)\nv_cmp_ne_u32 vcc, {sTag}, v{FL}\ns_cbranch_vccz K_POLLCOK")
        a(f"buffer_load_dword v{FL}, v{FL+1}, {WSR}, s62 offen sc1\ns_branch K_POLLC\nK_POLLCOK:")
    if TWO:
        a("s_cmp_eq_u32 s63, 0\ns_mov_b32 s63, 0\ns_cbranch_scc1 K_POLLCOK")
        a(f"K_POLLC:\ns_waitcnt vmcnt(0)\nv_cmp_ne_u32 vcc, {sTag}, v{FL}\ns_cbranch_vccz K_POLLCOK")
        a(f"buffer_load_dword v{FL}, v{FL+1}, {WSR}, s62 offen sc1\ns_branch K_POLLC\nK_POLLCOK:")
    a("s_waitcnt lgkmcnt(0)\ns_barrier")
    stamp("Be")
    a(f"ds_read_b64 v[{q}:{q+1}], v10 offset:{L_CNT}")
    if PE:
        a(f"s_or_b32 s58, {sFB}, {sRB}\ns_cbranch_scc1 K_NOPF")
        payloads()
        if P["pf"]: pfetch("K_NOPF", extra=sum(smb))
        a("K_NOPF:")
    if TWO:
        a(f"s_or_b32 s58, {sFB}, {sRB}\ns_cbranch_scc1 K_NOREST")
        a(f"s_or_b64 s[58:59], {M2(0)}, {M2(1)}\ns_or_b64 s[58:59], s[58:59], {M2(2)}\ns_cbranch_scc0 K_NOREST1")
        for u in range(3):
            a(f"s_mov_b64 exec, {M2(u)}\nbuffer_load_dwordx4 v[{PAYR+4*u}:{PAYR+4*u+3}], v{PA+u}, {WSR}, s61 offen sc1")
        a("s_mov_b64 exec, -1\nK_NOREST1:")
        if P["pf"]: pfetch("K_NOREST")
        a("K_NOREST:")
    a(f"s_sub_u32 s58, {sRot}, 1024\ns_cselect_b32 s58, {(N-1)*1024}, s58")
    a("s_waitcnt lgkmcnt(0)")
    a(f"v_add_u32 v{q+2}, v{q}, v{q+1}\nv_mov_b32 v{q+3}, v{q+2}")
    fill = ["v_and_b32 v12, 15, v1", "v_lshrrev_b32 v11, 4, v1", "v_lshlrev_b32 v11, 3, v11", "v_lshl_add_u32 v11, v12, 5, v11",
            f"v_mov_b32 v{q+7}, s58", f"v_mov_b32 v{vPv}, 0"]
    if P.get("aswz", 0):
        fill = ["v_and_b32 v12, 15, v1", "v_lshrrev_b32 v11, 2, v1", "v_and_b32 v11, 8, v11", "v_xor_b32 v11, v11, v1",
                f"v_mov_b32 v{q+7}, s58", f"v_mov_b32 v{vPv}, 0", "v_lshlrev_b32 v11, 3, v11", "v_lshrrev_b32 v13, 2, v1",
                "v_and_b32 v10, 3, v1", "v_lshl_or_b32 v13, v10, 4, v13", "v_lshlrev_b32 v10, 2, v10", "v_and_b32 v10, 8, v10"]
    for k in range(6):
        for x in fill[2*k:2*k+2]: a(x)
        a(f"v_add_u32_dpp v{q+3}, v{q+3}, v{q+3} {DPP[k]}")
    a(f"v_sub_u32 v{q+2}, v{q+3}, v{q+2}")
    a(f"v_readlane_b32 {sLen}, v{q+3}, s57")
    if P.get("aswz", 0): a("v_xor_b32 v10, v10, v13\nv_lshlrev_b32 v10, 3, v10")
    a(f"v_mov_b32_dpp v{q+4}, v{q+2} row_newbcast:0 row_mask:0xf bank_mask:0x3")
    a(f"v_readlane_b32 s58, v{q+2}, s56")
    a(f"v_mov_b32_dpp v{q+4}, v{q+2} row_newbcast:8 row_mask:0xf bank_mask:0xc")
    a(f"v_add_u32 v{q+5}, 15, v{q+4}\nv_and_b32 v{q+5}, -16, v{q+5}\nv_add_u32 v{q+5}, v{q+5}, v{q+6}")
    a(f"v_sub_u32 v{q+4}, v{q+5}, v{q+4}\nv_add_u32 v{q+4}, v{q+4}, v{q+2}")
    a(f"v_add_u32 v{q}, v{q+4}, v{q}\nv_lshl_or_b32 v{q}, v{q}, 16, v{q+4}")
    a(f"v_readlane_b32 {sBase}, v{q+5}, s56")
    for u in range(3): a(f"ds_bpermute_b32 v{ad+u}, v{ad+u}, v{q}")
    a(f"s_sub_u32 {sLen}, {sLen}, s58\ns_add_u32 s56, {sBase}, {sLen}")
    a(f"v_add_u32 v{q+1}, s56, v1\nv_lshlrev_b32 v{q+2}, 2, v{q+1}\nv_lshlrev_b32 v{q+3}, 4, v{q+1}")
    a("s_mov_b64 exec, 0xfffff")
    a(f"ds_write_b32 v{q+2}, v{q+7} offset:{L_OFF}\nds_write_b8 v{q+1}, v4 offset:{L_NODE}\nds_write_b128 v{q+3}, v[4:7] offset:{L_PAY}")
    for u in range(3):
        a(f"s_mov_b64 exec, {M(u)}\ns_waitcnt lgkmcnt({5 + u})")
        a(f"v_bfe_u32 v{ad+u}, v{ad+u}, v{CI+u}, 16\nv_add_u32 v{ad+u}, v{ad+u}, v{RK+u}")
        a(f"v_lshlrev_b32 v{RK+u}, 2, v{ad+u}\nv_lshlrev_b32 v{CI+u}, 4, v{ad+u}")
        a(f"ds_write_b32 v{RK+u}, v{KEY+2*u} offset:{L_OFF}\nds_write_b8 v{ad+u}, v{CD+u} offset:{L_NODE}")
    EP = P.get("epre", 0); PA5 = [XR + 50, XR + 51, XR + 60, XR + 61, XR + 62]
    if EP:
        P["ring"] = 8
        a("s_mov_b64 exec, -1")
        for sl in range(5):
            a(f"s_add_u32 s58, {sW}, {8*sl}\nv_cmp_eq_u32 vcc, s58, v2\ns_ff1_i32_b64 s58, vcc\ns_mul_i32 s58, s58, {4*RS}\ns_add_u32 s58, s58, {L_AGG}\nv_add_u32 v{PA5[sl]}, s58, v15")
    XE = P.get("xearly", 0); XO = P.get("xorder", 0); xaux = P.get("xaux", "")
    def xloads(wait, lo=0, hi=None):
        for n in range(lo, DE if hi is None else hi):
            if wait is not None and n % 4 == 0: a(f"s_waitcnt lgkmcnt({ngr - 1 - n//4 + wait})")
            if SAFE: a(f"v_add_u32 v{TP+n}, v9, v{TP+n}")
            a(f"buffer_load_dwordx4 v[{XR+4*n}:{XR+4*n+3}], v{TP+n}, {XS}, 0 offen {xaux}")
    def addrs():
        a(f"s_lshl_b32 s56, {sBase}, 2\ns_add_u32 s56, s56, {L_OFF}\nv_mov_b32 v{vOffA}, s56")
        a(f"s_add_u32 s56, {sBase}, {L_NODE}\nv_mov_b32 v{vNodeA}, s56")
        a(f"s_lshl_b32 s56, {sBase}, 5\ns_add_u32 s56, s56, {L_A}\nv_add_u32 v{vAA}, s56, v10\nv_add_u32 v11, s56, v11")
        a(f"s_lshl_b32 s57, {sBase}, 4\ns_add_u32 s57, s57, {L_PAY}")
        a(f"v_lshl_add_u32 v{vEfA}, v12, 4, s57\nv_add_u32 v10, s57, v9")
        a(f"s_add_u32 {sG}, {sLen}, 3\ns_lshr_b32 {sG}, {sG}, 2")
    def paywait(nx):
        if P["pf"]:
            a(f"s_cmp_lt_u32 {sW}, {8-P['pf']}\ns_cselect_b32 s56, 1, {sRB}\ns_or_b32 s56, s56, {sFB}\ns_cbranch_scc0 K_PW1\ns_waitcnt vmcnt({nx})\nK_PW1:\ns_waitcnt vmcnt({nx+1})")
        else: a(f"s_waitcnt vmcnt({nx})")
        for u in range(3): a(f"s_mov_b64 exec, {M(u)}\nds_write_b128 v{CI+u}, v[{PAYR+4*u}:{PAYR+4*u+3}] offset:{L_PAY}")
        a("s_mov_b64 exec, -1")
    if XE:
        assert DE == 8
        a("s_mov_b64 exec, -1")
        addrs()
        a("s_waitcnt lgkmcnt(0)\ns_barrier")
        stamp("Bf1")
        for gg in range(ngr): a(f"ds_read_b128 v[{TP+4*gg}:{TP+4*gg+3}], v{vOffA} offset:{16*gg}")
        a(f"ds_read2_b64 v[{OFFS}:{OFFS+3}], v{vOffA} offset0:{DE//2} offset1:{DE//2+1}\nds_read_b128 v[{NODE}:{NODE+3}], v{vNodeA}")
        xloads(2, 0, XE)
        paywait(XE)
        a("s_waitcnt lgkmcnt(0)\ns_barrier")
        stamp("Bf")
        a(f"s_cmp_eq_u32 {sG}, 0\ns_cbranch_scc1 K2_LOOPDONE")
        a(f"ds_read_b64 v[{TA}:{TA+1}], v10\nds_read_b64 v[{EF}:{EF+1}], v{vEfA} offset:8\ns_lshl_b32 s56, {sG}, 2")
        xloads(None, XE)
    else:
        paywait(0)
        addrs()
        a("s_waitcnt lgkmcnt(0)\ns_barrier")
        stamp("Bf")
        a(f"s_cmp_eq_u32 {sG}, 0\ns_cbranch_scc1 K2_LOOPDONE")
        for gg in range(ngr): a(f"ds_read_b128 v[{TP+4*gg}:{TP+4*gg+3}], v{vOffA} offset:{16*gg}")
        a(f"ds_read_b64 v[{TA}:{TA+1}], v10\nds_read2_b64 v[{OFFS}:{OFFS+3}], v{vOffA} offset0:{DE//2} offset1:{DE//2+1}")
        a(f"ds_read_b64 v[{EF}:{EF+1}], v{vEfA} offset:8\nds_read_b128 v[{NODE}:{NODE+3}], v{vNodeA}\ns_lshl_b32 s56, {sG}, 2")
        if XO: a(f"s_cmp_ge_u32 {sW}, 4\ns_cbranch_scc1 K_XL1")
        xloads(4)
        if XO: a("K_XL1:")
        if P.get("pfl"):
            pfetch("K_NOPFL", P["pfl"], P.get("pfc", 0) + P.get("pfd", 0) + P.get("pfx", 0) + P.get("pfk", 0) + P["pf"]); a("K_NOPFL:")
    stamp("xiss")
    if P.get("afold"): a(f"s_mov_b32 s58, {f32(-LN2)}\ns_mov_b32 s59, s58")
    a("K_APREP:")
    a(f"v_cmp_gt_u32 vcc, s56, v1")
    a("s_waitcnt lgkmcnt(0)")
    a(f"v_cndmask_b32 v{TB}, 0, v{TA}, vcc\nv_cndmask_b32 v{TB+1}, 0, v{TA+1}, vcc")
    a(f"ds_read_b64 v[{TA}:{TA+1}], v10 offset:1024\nv_add_u32 v10, 1024, v10")
    for gg in range(4):
        a(f"v_mfma_f32_16x16x16_bf16 v[{TP+16+4*gg}:{TP+19+4*gg}], v[{CGF+2*gg}:{CGF+2*gg+1}], v[{TB}:{TB+1}], 0")
    for gg in range(4):
        if P.get("afold"):
            for k in range(2): a(f"v_pk_mul_f32 v[{TP+16+4*gg+2*k}:{TP+17+4*gg+2*k}], v[{TP+16+4*gg+2*k}:{TP+17+4*gg+2*k}], s[58:59]")
        a(f"v_cvt_pk_bf16_f32 v{EE+2*gg}, v{TP+16+4*gg}, v{TP+17+4*gg}\nv_cvt_pk_bf16_f32 v{EE+2*gg+1}, v{TP+18+4*gg}, v{TP+19+4*gg}")
        a(f"ds_write_b64 v11, v[{EE+2*gg}:{EE+2*gg+1}] offset:{512*gg}")
        a(f"s_sub_u32 s56, s56, 16\ns_cmp_le_i32 s56, 0\ns_cbranch_scc1 K_APDONE")
    a("v_add_u32 v11, 2048, v11\ns_branch K_APREP")
    a("K_APDONE:")
    if XO:
        a(f"s_cmp_lt_u32 {sW}, 4\ns_cbranch_scc1 K_XL2")
        xloads(None)
        a("K_XL2:")
    a(f"s_waitcnt lgkmcnt(0)\nds_read_b64 v[{AOP}:{AOP+1}], v{vAA}")
    for x in pre_mfmas(dict(EF=EF, WF=WF), TA, 0, P): a(x)
    stamp("loop0")
    if P.get("ts"): a("s_memtime s[66:67]")
    if P.get("drain"): a(f"s_sub_u32 {sG}, {sG}, 3\ns_nop 2\ns_cbranch_scc1 K2_D0")
    else: a(f"s_sub_u32 {sG}, {sG}, 1\ns_nop 3")
    R = dict(ACC=ACC, XR=XR, TP=TP, TA=TA, TB=TB, EE=EE, WF=WF, AOP=AOP, EF=EF, OFFS=OFFS, NODE=NODE, vOffA=vOffA, vNodeA=vNodeA,
             vAA=vAA, vEfA=vEfA, sG=sG, sN=sN, vPm=vPm, vPo=vPo, vPv=vPv, XS=XS, sRot=sRot, vPt=255, RING=P.get("ring", 16))
    gen_loop(a, R, P, dict(PROG=L_PROG))
    if P.get("ts"): a("s_memtime s[68:69]")
    stamp("loop1")
    if PR.startswith("pair"):
        a(f"v_mov_b32 v{vPv}, -1\nds_write_b32 v{vPm}, v{vPv} offset:{L_PROG}\ns_setprio 0")
    a(f"s_add_u32 {sRB}, {sRB}, {CAP}\ns_cmp_ge_u32 {sRB}, {sT}\ns_cbranch_scc1 K_EPI")
    a("s_waitcnt vmcnt(0) lgkmcnt(0)\ns_barrier")
    a(f"ds_write_b128 v8, v[4:7]\nds_write_b32 v3, v4 offset:{L_PROG}")
    a(f"v_cmp_gt_u32 vcc, 128, v0\ns_and_saveexec_b64 s[56:57], vcc\nds_write_b32 v3, v4 offset:{L_CNT}\ns_mov_b64 exec, s[56:57]")
    a("s_waitcnt lgkmcnt(0)\ns_barrier")
    a(f"s_cmp_eq_u32 {sFB}, 0\ns_cbranch_scc1 K_ROUND\ns_branch K_FB")
    a("K_LATER:")
    payloads()
    a("K_LATER2:")
    for u in range(3): a(f"v_lshrrev_b32 v{ad+u}, 2, v{KEY+2*u}\nv_and_b32 v{ad+u}, 0xfc, v{ad+u}")
    a("s_branch K_BAL")
    a(f"K_FB0:\ns_mov_b32 {sT}, {E}")
    wmextract()
    a("K_FB:")
    a(f"s_mul_i32 s56, {sW}, {CAPW}\ns_add_u32 s56, s56, {sRB}")
    a(f"v_add_u32 v{f}, s56, v1\nv_add_u32 v{f+1}, 64, v{f}\nv_add_u32 v{f+2}, 128, v{f}")
    for u in range(3):
        a(f"v_cmp_gt_u32 {M(u)}, {sT}, v{f+u}\nv_min_u32 v{f+u}, {E-1}, v{f+u}\nv_lshlrev_b32 v{ad+u}, 2, v{f+u}\nv_lshlrev_b32 v{PA+u}, 3, v{f+u}")
        a(f"global_load_dword v{m+u}, v{ad+u}, s[8:9]\nglobal_load_dword v{m+4+u}, v{ad+u}, s[6:7]")
        a(f"global_load_dwordx2 v[{PAYR+4*u}:{PAYR+4*u+1}], v{PA+u}, s[10:11]\nglobal_load_dwordx2 v[{PAYR+4*u+2}:{PAYR+4*u+3}], v{PA+u}, s[12:13]")
    a(f"v_mov_b32 v14, 64\ns_waitcnt vmcnt(0)")
    for u in range(3):
        a(f"v_mul_u32_u24 v{f+u}, 214749, v{m+u}\nv_lshrrev_b32 v{f+u}, 23, v{f+u}\nv_cmp_eq_u32 vcc, {sBin}, v{f+u}\ns_and_b64 {M(u)}, {M(u)}, vcc")
        a(f"v_subrev_u32 v{KEY+2*u}, {sNs}, v{m+u}")
        keycalc2(m+4+u, KEY+2*u, f+u)
    a(f"s_cmp_lg_u32 {sRB}, 0\ns_cbranch_scc1 K_LATER2\ns_branch K_GOT")
    a("K_EPI:")
    SPLIT = P.get("split", 0)
    if SPLIT:
        L_GC = 1800
        NO = TA
        a(f"v_and_b32 v10, 7, v2\nv_bfe_u32 v11, v2, 3, 3\nv_mad_u32_u24 v10, v10, 5, v11\nv_lshlrev_b32 v10, 2, v10")
        a(f"s_lshr_b32 s59, {sW}, 2\ns_mul_i32 s60, s59, 80\nv_lshrrev_b32 v13, 4, v1\nv_lshl_add_u32 v11, v13, 2, s60")
        a("ds_permute_b32 v10, v10, v1")
        a(f"s_mov_b32 s56, {f32(-LN2)}\ns_mov_b32 s57, s56\ns_mul_i32 s58, {sW}, {20*RS}\ns_add_u32 s58, s58, {L_AGG}\nv_add_u32 v14, s58, v15")
        for k in range(0 if P.get("afold") else 4): a(f"v_pk_mul_f32 v[{ACC+2*k}:{ACC+2*k+1}], v[{ACC+2*k}:{ACC+2*k+1}], s[56:57]")
        a("s_waitcnt lgkmcnt(0)")
        for i_ in range(5): a(f"ds_bpermute_b32 v{NO+i_}, v11, v10 offset:{16*i_}")
        for sl in range(5):
            if sl:
                for k in range(0 if P.get("afold") else 4): a(f"v_pk_mul_f32 v[{ACC+8*sl+2*k}:{ACC+8*sl+2*k+1}], v[{ACC+8*sl+2*k}:{ACC+8*sl+2*k+1}], s[56:57]")
            for mm in range(4):
                a(f"v_cvt_pk_bf16_f32 v{ACC+8*sl+mm}, v{ACC+8*sl+mm}, v{ACC+8*sl+4+mm}")
                a(f"ds_write_b32 v14, v{ACC+8*sl+mm} offset:{RS*(4*sl+mm)}")
        a(f"s_lshl_b32 s61, s59, 2\nv_mov_b32 v10, s61\nv_mov_b32 v11, 1\nv_and_b32 v12, 15, v1")
        a(f"s_mul_i32 s59, s59, {80*RS}\ns_add_u32 s59, s59, {L_AGG}")
        a(f"v_mul_u32_u24 v14, {RS}, v12\nv_lshl_add_u32 v14, v13, 4, v14\nv_add_u32 v14, s59, v14")
        a(f"s_lshl_b32 s58, {sNs}, 10\ns_and_b32 s59, {sW}, 3\ns_lshl_b32 s59, s59, 8\ns_add_u32 s58, s58, s59\nv_lshlrev_b32 v12, 4, v12")
        a(f"s_waitcnt lgkmcnt(0)\ns_mov_b64 exec, 1\nds_add_u32 v10, v11 offset:{L_GC}\ns_mov_b64 exec, -1")
        for i_ in range(5): a(f"v_lshl_add_u32 v{NO+i_}, v{NO+i_}, 10, v12")
        a(f"K_GW:\nds_read_b32 v11, v10 offset:{L_GC}\ns_waitcnt lgkmcnt(0)\nv_readfirstlane_b32 s59, v11\ns_cmp_ge_u32 s59, 4\ns_cbranch_scc1 K_GW1\ns_sleep 1\ns_branch K_GW\nK_GW1:")
        a("s_waitcnt vmcnt(0)")
        stamp("Bg")
    else:
        a(f"s_mov_b32 s56, {f32(-LN2)}\ns_mov_b32 s57, s56")
        for sl in range(5):
            if not EP: a(f"s_add_u32 s58, {sW}, {8*sl}\nv_cmp_eq_u32 vcc, s58, v2")
            for k in range(0 if P.get("afold") else 4): a(f"v_pk_mul_f32 v[{ACC+8*sl+2*k}:{ACC+8*sl+2*k+1}], v[{ACC+8*sl+2*k}:{ACC+8*sl+2*k+1}], s[56:57]")
            if not EP: a(f"s_ff1_i32_b64 s58, vcc\ns_mul_i32 s58, s58, {4*RS}\ns_add_u32 s58, s58, {L_AGG}\nv_add_u32 v{10 + sl%2}, s58, v15")
            for mm in range(4):
                a(f"v_cvt_pk_bf16_f32 v{ACC+8*sl+mm}, v{ACC+8*sl+mm}, v{ACC+8*sl+4+mm}")
                a(f"ds_write_b32 v{PA5[sl] if EP else 10 + sl%2}, v{ACC+8*sl+mm} offset:{RS*mm}")
        a(f"v_and_b32 v12, 15, v1\nv_lshrrev_b32 v13, 4, v1")
        a(f"s_lshr_b32 s58, {sW}, 2\ns_mul_i32 s59, s58, {16*RS}\ns_add_u32 s59, s59, {L_AGG}")
        a(f"v_mul_u32_u24 v14, {RS}, v12\nv_lshl_add_u32 v14, v13, 4, v14\nv_add_u32 v14, s59, v14")
        a(f"s_lshl_b32 s58, s58, 2\ns_add_u32 s58, s58, {sNs}\ns_lshl_b32 s58, s58, 10\ns_and_b32 s59, {sW}, 3\ns_lshl_b32 s59, s59, 8\ns_add_u32 s58, s58, s59")
        a(f"v_lshlrev_b32 v13, 10, v13\nv_lshl_add_u32 v13, v12, 4, v13")
        a("s_waitcnt vmcnt(0) lgkmcnt(0)\ns_barrier")
        stamp("Bg")
    TS_ = 16 * RS if SPLIT else 32 * RS
    FA = XR
    for i in range(4):
        for ks in range(4): a(f"ds_read_b128 v[{FA+16*i+4*ks}:{FA+16*i+4*ks+3}], v14 offset:{TS_*i + 64*ks}")
    ost = P["out_aux"]
    def outtile(i):
        Dp = TP + 8 * (i % 2); Op = TP + 16 + 4 * (i % 2)
        for k in range(4): a(f"v_cvt_pk_bf16_f32 v{Op+k}, v{Dp+2*k}, v{Dp+2*k+1}")
        a(f"buffer_store_dwordx4 v[{Op}:{Op+3}], v{TA+i if SPLIT else 13}, {OS}, s58 offen {ost}")
        if i < 4 and not SPLIT: a("s_add_u32 s58, s58, 8192")
    for i in range(5):
        Dd = TP + 8 * (i % 2); fi = FA + 16 * (i % 4)
        for ks in range(4):
            if i < 4: a(f"s_waitcnt lgkmcnt({min(15, 15 - 4*i - ks + (4 if i >= 1 else 0))})")
            else: a(f"s_waitcnt lgkmcnt({3 - ks})")
            for tt in range(2):
                b = BF + 16*tt + 4*ks
                a(f"v_mfma_f32_16x16x32_bf16 v[{Dd+4*tt}:{Dd+4*tt+3}], v[{fi+4*ks}:{fi+4*ks+3}], v[{b}:{b+3}], " + ("0" if ks == 0 else f"v[{Dd+4*tt}:{Dd+4*tt+3}]"))
        if i == 0:
            for ks in range(4): a(f"ds_read_b128 v[{FA+4*ks}:{FA+4*ks+3}], v14 offset:{TS_*4 + 64*ks}")
        if i >= 1: outtile(i - 1)
    outtile(4)
    a(f"s_or_b32 s56, {sFB}, {sW}")
    if P.get("epo") == "none": a("s_mov_b32 s56, 1")
    if P.get("epo") == "wg0": a("s_or_b32 s56, s56, s2")
    a("s_cmp_lg_u32 s56, 0\ns_cbranch_scc1 K_NOEPO")
    a(f"v_mov_b32 v10, {sTag}\ns_mov_b64 exec, 1\nbuffer_store_dword v10, v4, {WSR}, 0 offen offset:{WS_EPO} {P.get('epo_aux', '')}\nK_NOEPO:")
    if P.get("ts"):
        a("s_waitcnt vmcnt(0)"); stamp("end")
        a("s_waitcnt lgkmcnt(0)")
        a(f"s_lshl_b32 s98, s2, 3\ns_add_u32 s98, s98, s3\ns_lshl_b32 s98, s98, 6\ns_add_u32 s98, s98, {WS_TS}")
        a("s_mov_b64 exec, 1\nv_mov_b32 v2, s98")
        for i in range(tsn[0]): a(f"v_mov_b32 v3, s{70 + 2*i}\nglobal_store_dword v2, v3, s[24:25] offset:{4*i}")
        a(f"s_sub_u32 s68, s68, s66\nv_mov_b32 v3, s68\nglobal_store_dword v2, v3, s[24:25] offset:56\nv_mov_b32 v3, {sLen}\nglobal_store_dword v2, v3, s[24:25] offset:60")
        assert tsn[0] <= 14
    a("K_END:\ns_endpgm")
    a(".p2align 6\n.type K_TAB,@object\nK_TAB:")
    for A in (A39, A40):
        used = [0]*8; codes = []
        for ww in A: codes.append(ww | used[ww] << 3); used[ww] += 1
        assert used == [5]*8
        a(".byte " + ", ".join(str(cc) for cc in codes + [255]*24))
    body = a.text(verbose=verbose)
    ns = 100 if P.get("ts") else 72
    gen.nts = tsn[0]
    return (HEADER + f"; @launch grid=({NB},1,1) block=(512,1,1) lds={L_END}\n" + '.amdgcn_target "amdgcn-amd-amdhsa--gfx950"\n.text\n' + body
            + '.section .rodata,"a"\n' + desc(NAME, 256, ns))

if __name__ == "__main__":
    P = eval(sys.argv[2]) if len(sys.argv) > 2 else {}
    open(sys.argv[1], "w").write(gen(P, verbose=True))
```
